```python
import torch

def _softmax(x, axis=-1):
    return torch.softmax(x, dim=axis)

def _gelu(x):
    return torch.nn.functional.gelu(x, approximate='tanh')

def _silu(x):
    return torch.nn.functional.silu(x)

def _sigmoid(x):
    return torch.sigmoid(x)

def _layernorm(x, axis=-1, eps=1e-05):
    m = x.mean(dim=axis, keepdim=True)
    v = x.var(dim=axis, keepdim=True, unbiased=False)
    return (x - m) / torch.sqrt(v + eps)

def _scatter_add(tgt, idx, src, axis=0):
    return tgt.clone().index_add_(axis, idx, src)

def _segment_sum(src, seg, n):
    out = torch.zeros((n,) + src.shape[1:], dtype=src.dtype)
    return out.index_add_(0, seg, src)

def _pad(x, pw):
    flat = tuple((v for pair in reversed(pw) for v in pair))
    return torch.nn.functional.pad(x, flat)
kernel_name = 'adaLN_cond__ssm_conv_h3__mixer_s_mlp__prompt'

def setup_inputs():

    _w = lambda a: (lambda t: t.to(torch.bfloat16) if t.is_floating_point() else t)(torch.as_tensor(a))

    def _A_setup():
        B, S, D = (1, 2048, 576)
        ks = 4
        return {'q': _w((lambda *s: torch.randn(*s, dtype=torch.bfloat16) * 0.05)(B, S, D)), 'k': _w((lambda *s: torch.randn(*s, dtype=torch.bfloat16) * 0.8)(B, S, D)), 'v': _w((lambda *s: torch.randn(*s, dtype=torch.bfloat16) * 0.8)(B, S, D)), 'shift_k': _w((lambda *s: torch.randn(*s, dtype=torch.bfloat16) * 0.8)(D, ks) * 0.5), 'ssm_k': _w((lambda *s: torch.randn(*s, dtype=torch.bfloat16) * 0.8)(D, S) * (1.0 / S ** 0.5)), 'ssm_D': _w((lambda *s: torch.randn(*s, dtype=torch.bfloat16) * 0.8)(D))}
    _A_in = _A_setup()

    def _B_setup():
        B, S, D, F = (1, 2048, 576, 4608)
        return {'x': _w((lambda *s: torch.randn(*s, dtype=torch.bfloat16) * 0.05)(B, S, D)), 'w1': _w((lambda *s: torch.randn(*s, dtype=torch.bfloat16) * 3.2)(D, D) * D ** (-0.5)), 'w2': _w((lambda *s: torch.randn(*s, dtype=torch.bfloat16) * 3.2)(D, D) * D ** (-0.5)), 'w3': _w((lambda *s: torch.randn(*s, dtype=torch.bfloat16) * 3.2)(D, F) * D ** (-0.5)), 'w4': _w((lambda *s: torch.randn(*s, dtype=torch.bfloat16) * 1.6)(F, D) * F ** (-0.5))}
    _B_in = _B_setup()
    return {'A_q': _A_in['q'], 'A_k': _A_in['k'], 'A_v': _A_in['v'], 'A_shift_k': _A_in['shift_k'], 'A_ssm_k': _A_in['ssm_k'], 'A_ssm_D': _A_in['ssm_D'], 'B_x': _B_in['x'], 'B_w1': _B_in['w1'], 'B_w2': _B_in['w2'], 'B_w3': _B_in['w3'], 'B_w4': _B_in['w4'], 'c': _w((lambda *s: torch.randn(*s, dtype=torch.bfloat16) * 0.1)(1, 576) * 8.0), 'w_mod': _w((lambda *s: torch.randn(*s, dtype=torch.bfloat16) * 0.1)(576, 6 * 576) * 576 ** (-0.5) * 8.0)}

def reference(A_q, A_k, A_v, A_shift_k, A_ssm_k, A_ssm_D, B_x, B_w1, B_w2, B_w3, B_w4, c, w_mod):

    def _A_ref(q, k, v, shift_k, ssm_k, ssm_D):
        B, S, D = q.shape
        ks = shift_k.shape[-1]
        k_pad = _pad(k, ((0, 0), (ks - 1, 0), (0, 0)))
        k_shift = torch.zeros_like(k)
        for t in range(ks):
            k_shift = k_shift + k_pad[:, t:t + S, :] * shift_k[:, ks - 1 - t][None, None, :]
        kv = k_shift * v
        L = 2 * S
        kv_pad = _pad(kv, ((0, 0), (0, S), (0, 0)))
        kf_pad = _pad(ssm_k, ((0, 0), (0, S)))
        kv_f = (lambda x, axes=(-2, -1): torch.fft.rfft2(x.float(), dim=axes))(kv_pad[:, None, :, :], axes=(1, 2))
        kf_f = (lambda x, axes=(-2, -1): torch.fft.rfft2(x.float(), dim=axes))(kf_pad[:, None, :], axes=(1, 2))
        kf_f = (lambda x, *d: x.permute(*d))(kf_f, 1, 2, 0)
        y_f = kv_f * kf_f[None, :, :, :]
        y = (lambda x, s, axes=(-2, -1): torch.fft.irfft2(x, s=s, dim=axes).to(torch.bfloat16))(y_f, (1, L), axes=(1, 2))[:, 0, :S, :]
        y = y + kv * ssm_D[None, None, :]
        return q * y

    def _B_ref(x, w1, w2, w3, w4):
        B, S, D = x.shape
        h = _gelu(_layernorm(x, axis=-1) @ w1)
        c = D // 4
        g0 = _pad(h[:, :, 0 * c:1 * c], ((0, 0), (1, 0), (0, 0)))[:, :S, :]
        g1 = _pad(h[:, :, 1 * c:2 * c], ((0, 0), (0, 1), (0, 0)))[:, 1:, :]
        g2 = _pad(h[:, :, 2 * c:3 * c], ((0, 0), (2, 0), (0, 0)))[:, :S, :]
        g3 = _pad(h[:, :, 3 * c:], ((0, 0), (0, 2), (0, 0)))[:, 2:, :]
        hs = torch.concatenate([g0, g1, g2, g3], axis=-1) @ w2
        x1 = x + hs
        h2 = _gelu(_layernorm(x1, axis=-1) @ w3) @ w4
        return x1 + h2
    x = A_q
    mod = (_silu(c) @ w_mod).reshape(c.shape[0], 6, 1, -1)
    sa, ca, ga, sb, cb, gb = (mod[:, 0].clone(), mod[:, 1].clone(), mod[:, 2].clone(), mod[:, 3].clone(), mod[:, 4].clone(), mod[:, 5].clone())
    h = _layernorm(x, axis=-1) * (1 + ca) + sa
    x = x + ga * _A_ref(h, A_k, A_v, A_shift_k, A_ssm_k, A_ssm_D)
    h = _layernorm(x, axis=-1) * (1 + cb) + sb
    x = x + gb * _B_ref(h, B_w1, B_w2, B_w3, B_w4)
    return x
```

```python
import re

REG_RE = re.compile(r'^(-|abs\()?([vas])(\d+)\)?$')
RNG_RE = re.compile(r'^(-|abs\()?([vas])\[(\d+):(\d+)\]\)?$')

def regs_of(op):
    op = op.strip()
    if op.startswith('|') and op.endswith('|'): op = op[1:-1]
    if op.startswith('-|') and op.endswith('|'): op = op[2:-1]
    m = REG_RE.match(op)
    if m: return [(m.group(2), int(m.group(3)))]
    m = RNG_RE.match(op)
    if m: return [(m.group(2), i) for i in range(int(m.group(3)), int(m.group(4)) + 1)]
    if op in ('vcc',): return [('s', 106), ('s', 107)]
    if op == 'vcc_lo': return [('s', 106)]
    if op == 'vcc_hi': return [('s', 107)]
    if op == 'exec': return [('s', 126), ('s', 127)]
    if op == 'exec_lo': return [('s', 126)]
    if op == 'exec_hi': return [('s', 127)]
    if op == 'm0': return [('s', 124)]
    return []

VCC = [('s', 106), ('s', 107)]
EXEC = [('s', 126), ('s', 127)]
M0 = [('s', 124)]
TRANS = ('v_exp_f32', 'v_log_f32', 'v_rcp_f32', 'v_rsq_f32', 'v_sqrt_f32', 'v_sin_f32', 'v_cos_f32', 'v_rcp_iflag_f32')

def split_ops(s):
    out, depth, cur = [], 0, ''
    for ch in s:
        if ch in '[(': depth += 1
        if ch in '])': depth -= 1
        if ch == ',' and depth == 0:
            out.append(cur.strip()); cur = ''
        else: cur += ch
    if cur.strip(): out.append(cur.strip())
    return out

class Ins:
    __slots__ = ('text', 'mn', 'ops', 'mods', 'dst', 'src', 'kind', 'passes', 'srcA', 'srcB', 'srcC', 'cnt', 'token', 'is_dpp', 'nbytes_store', 'comment', 'nowait')
    def __init__(self, text):
        self.text = text.strip()
        self.token = None
        self.nowait = False
        t = self.text.split(';')[0].strip()
        parts = t.split(None, 1)
        self.mn = parts[0]
        rest = parts[1] if len(parts) > 1 else ''
        ops = split_ops(rest)
        mods = []
        if ops:
            last = ops[-1].split()
            if len(last) > 1:
                ops[-1] = last[0]; mods = last[1:]
        self.ops = ops; self.mods = mods
        self.classify()

    def classify(self):
        mn, ops = self.mn, self.ops
        base = re.sub(r'_(e32|e64|dpp|sdwa)$', '', mn)
        R = lambda i: regs_of(ops[i]) if i < len(ops) else []
        allsrc = lambda frm: [r for o in ops[frm:] for r in regs_of(o)]
        self.dst, self.src = [], []
        self.kind = 'other'; self.passes = 0
        self.srcA = self.srcB = self.srcC = []
        self.cnt = None
        self.nbytes_store = 0
        self.is_dpp = any(m.startswith(('quad_perm', 'row_', 'wave_', 'row_bcast', 'row_mirror', 'row_half_mirror')) for m in self.mods) or mn.endswith('_dpp')
        if base.startswith('v_mfma'):
            self.kind = 'mfma'
            self.passes = 8 if '32x32' in base else 4
            self.dst = R(0); self.srcA = R(1); self.srcB = R(2); self.srcC = R(3)
            self.src = self.srcA + self.srcB + self.srcC + EXEC
        elif base.startswith('v_cmp'):
            self.kind = 'valu'
            self.dst = R(0); self.src = allsrc(1) + EXEC
            if base.startswith('v_cmpx'): self.dst = self.dst + EXEC
        elif base.startswith(('v_readfirstlane', 'v_readlane')):
            self.kind = 'valu'; self.dst = R(0); self.src = allsrc(1) + EXEC
        elif base.startswith('v_writelane'):
            self.kind = 'valu'; self.dst = R(0); self.src = allsrc(0)
        elif base.startswith(('v_permlane16_swap', 'v_permlane32_swap')):
            self.kind = 'valu'; self.dst = R(0) + R(1); self.src = R(0) + R(1) + EXEC
        elif base in ('v_add_co_u32', 'v_sub_co_u32', 'v_subrev_co_u32'):
            self.kind = 'valu'; self.dst = R(0) + R(1); self.src = allsrc(2) + EXEC
        elif base in ('v_addc_co_u32', 'v_subb_co_u32'):
            self.kind = 'valu'; self.dst = R(0) + R(1); self.src = allsrc(2) + EXEC
        elif base.startswith('v_mad_u64_u32'):
            self.kind = 'valu'; self.dst = R(0) + R(1); self.src = allsrc(2) + EXEC
        elif base.startswith('v_cndmask'):
            self.kind = 'valu'; self.dst = R(0); self.src = allsrc(1) + EXEC
            if len(ops) == 3: self.src += VCC
        elif base.startswith('v_nop'):
            self.kind = 'valu'
        elif base.startswith('v_'):
            self.kind = 'valu'; self.dst = R(0); self.src = allsrc(1) + EXEC
            if base.startswith(('v_fmac', 'v_pk_fmac', 'v_dot2c', 'v_dot4c')) or self.is_dpp or any(m.startswith('op_sel') for m in self.mods) and base.startswith(('v_cvt_', 'v_mov')) and False:
                self.src += R(0)
            if base.startswith(('v_fmac', 'v_mac')) or self.is_dpp: self.src += R(0)
        elif base.startswith('ds_'):
            self.kind = 'ds'; self.cnt = 'lgkm'
            if base.startswith(('ds_read', 'ds_bpermute', 'ds_permute', 'ds_swizzle')):
                self.dst = R(0); self.src = allsrc(1) + EXEC
                if 'd16' in base: self.src += R(0)
            elif base.startswith(('ds_write', 'ds_add', 'ds_max', 'ds_min')):
                self.src = allsrc(0) + EXEC
            else:
                raise ValueError('unknown ds op ' + self.text)
        elif base.startswith('buffer_'):
            self.kind = 'vmem'; self.cnt = 'vm'
            lds = 'lds' in self.mods
            if base.startswith('buffer_load'):
                if lds: self.src = allsrc(0) + EXEC + M0
                else:
                    self.dst = R(0); self.src = allsrc(1) + EXEC
                    if 'd16' in base: self.src += R(0)
            elif base.startswith('buffer_store'):
                self.src = allsrc(0) + EXEC
                self.nbytes_store = 16 if 'x4' in base else 12 if 'x3' in base else 8
                self.kind = 'vmem'
            elif base.startswith('buffer_atomic'):
                self.src = allsrc(0) + EXEC
                if 'sc0' in self.mods: self.dst = R(0)
            elif base.startswith(('buffer_wbl2', 'buffer_inv')):
                pass
            else: raise ValueError(self.text)
        elif base.startswith('global_'):
            self.kind = 'vmem'; self.cnt = 'vm'
            if base.startswith('global_load_lds'):
                self.src = allsrc(0) + EXEC + M0
            elif base.startswith('global_load'):
                self.dst = R(0); self.src = allsrc(1) + EXEC
            elif base.startswith('global_store'):
                self.src = allsrc(0) + EXEC
                self.nbytes_store = 16 if 'x4' in base else 12 if 'x3' in base else 8
            elif base.startswith('global_atomic'):
                if 'sc0' in self.mods:
                    self.dst = R(0); self.src = allsrc(1) + EXEC
                else: self.src = allsrc(0) + EXEC
            else: raise ValueError(self.text)
        elif base.startswith(('s_load', 's_buffer_load', 's_memtime', 's_memrealtime')):
            self.kind = 'smem'; self.cnt = 'smem'; self.dst = R(0); self.src = allsrc(1)
        elif base.startswith('s_'):
            self.kind = 'salu'
            if base.startswith(('s_cmp', 's_bitcmp')):
                self.src = allsrc(0); self.dst = [('scc', 0)]
            elif base.startswith(('s_cbranch', 's_branch', 's_waitcnt', 's_barrier', 's_nop', 's_endpgm', 's_setprio', 's_sleep', 's_sethalt', 's_setpc', 's_sendmsg')):
                self.kind = 'ctl'
                if base.startswith('s_setpc'): self.src = allsrc(0)
                if base in ('s_cbranch_vccnz', 's_cbranch_vccz'): self.src = list(VCC)
                if base in ('s_cbranch_execz', 's_cbranch_execnz'): self.src = list(EXEC)
            elif 'saveexec' in base:
                self.dst = R(0) + EXEC; self.src = allsrc(1) + EXEC
            elif base.startswith(('s_getpc',)):
                self.dst = R(0)
            elif base.startswith(('s_getreg',)):
                self.dst = R(0)
            elif base.startswith(('s_swappc',)):
                self.dst = R(0); self.src = allsrc(1)
            elif base.startswith(('s_addk', 's_mulk')):
                self.dst = R(0); self.src = R(0)
            elif base.startswith(('s_cmov',)):
                self.dst = R(0); self.src = allsrc(0)
            else:
                self.dst = R(0); self.src = allsrc(1)
        else:
            raise ValueError('cannot classify: ' + self.text)

    def states(self):
        if self.mn == 's_nop': return int(self.ops[0], 0) + 1
        return 1

class Label:
    def __init__(self, name): self.name = name; self.text = name + ':'
class Raw:
    def __init__(self, text): self.text = text
class LoopBegin:
    def __init__(self, name): self.name = name
class LoopEnd:
    def __init__(self, name): self.name = name
class WaitTok:
    def __init__(self, toks): self.toks = toks
class Fence:
    pass

def overlap(a, b):
    if not a or not b: return False
    sa = set(a)
    return any(x in sa for x in b)

class Prog:
    def __init__(self):
        self.items = []
        self.ntok = 0
        self.uid = 0
    def label_name(self, base):
        self.uid += 1
        return '%s_%d' % (base, self.uid)
    def I(self, text, nowait=False):
        tok = None
        for ln in text.split('\n'):
            ln = ln.strip()
            if not ln or ln.startswith(';'): continue
            if ln.endswith(':'):
                self.items.append(Label(ln[:-1])); continue
            ins = Ins(ln)
            ins.nowait = nowait
            if ins.cnt:
                self.ntok += 1; ins.token = self.ntok; tok = ins.token
            self.items.append(ins)
        return tok
    def label(self, name): self.items.append(Label(name))
    def raw(self, text): self.items.append(Raw(text))
    def comment(self, text): self.items.append(Raw('; ' + text))
    def loop_begin(self, name):
        self.items.append(LoopBegin(name)); self.items.append(Label(name))
    def loop_end(self, name): self.items.append(LoopEnd(name))
    def wait(self, *toks): self.items.append(WaitTok([t for t in toks if t is not None]))
    def fence(self):
        self.I('s_waitcnt vmcnt(0) lgkmcnt(0)')
        self.items.append(Fence())
    def cut(self):
        self.items.append(Fence())

    def expand(self):
        def rec(lo, hi):
            out = []
            i = lo
            while i < hi:
                it = self.items[i]
                if isinstance(it, LoopBegin):
                    j = i + 1; depth = 1
                    while True:
                        if isinstance(self.items[j], LoopBegin): depth += 1
                        if isinstance(self.items[j], LoopEnd):
                            depth -= 1
                            if depth == 0: break
                        j += 1
                    body = rec(i + 1, j)
                    out += body + body
                    i = j + 1
                else:
                    out.append(i); i += 1
            return out
        return rec(0, len(self.items))

    def compute_waits(self):
        need = {}
        order = self.expand()
        vmq = []
        lgq = []
        def req(idx, vm=None, lg=None):
            o = need.get(idx, (None, None))
            nv = o[0] if vm is None else (vm if o[0] is None else min(o[0], vm))
            nl = o[1] if lg is None else (lg if o[1] is None else min(o[1], lg))
            need[idx] = (nv, nl)
        for idx in order:
            it = self.items[idx]
            if isinstance(it, Fence):
                vmq = []; lgq = []; continue
            if isinstance(it, WaitTok):
                wv = wl = None
                for t in it.toks:
                    for k, e in enumerate(vmq):
                        if e[0] == t:
                            n = len(vmq) - 1 - k
                            wv = n if wv is None else min(wv, n)
                    for k, e in enumerate(lgq):
                        if e[0] == t:
                            n = 0 if any(x[2] for x in lgq) else len(lgq) - 1 - k
                            wl = n if wl is None else min(wl, n)
                if wv is not None: req(idx, vm=wv); vmq = vmq[len(vmq) - wv:] if wv else []
                if wl is not None: req(idx, lg=wl); lgq = lgq[len(lgq) - wl:] if wl else []
                continue
            if not isinstance(it, Ins): continue
            if it.mn == 's_waitcnt':
                t = ' '.join(it.ops + it.mods)
                m = re.search(r'vmcnt\((\d+)\)', t)
                if m:
                    n = int(m.group(1)); vmq = vmq[len(vmq) - n:] if n and n < len(vmq) else (vmq if n else [])
                m = re.search(r'lgkmcnt\((\d+)\)', t)
                if m:
                    n = int(m.group(1))
                    if n == 0: lgq = []
                    elif not any(x[2] for x in lgq): lgq = lgq[len(lgq) - n:] if n < len(lgq) else lgq
                continue
            if not it.nowait:
                touched = it.src + it.dst
                wv = wl = None
                for k, e in enumerate(vmq):
                    if overlap(e[1], touched):
                        n = len(vmq) - 1 - k
                        wv = n if wv is None else min(wv, n)
                for k, e in enumerate(lgq):
                    if overlap(e[1], touched):
                        n = 0 if any(x[2] for x in lgq) else len(lgq) - 1 - k
                        wl = n if wl is None else min(wl, n)
                if wv is not None: req(idx, vm=wv); vmq = vmq[len(vmq) - wv:] if wv else []
                if wl is not None: req(idx, lg=wl); lgq = lgq[len(lgq) - wl:] if wl else []
            if it.cnt == 'vm': vmq.append((it.token, it.dst, it))
            elif it.cnt == 'lgkm': lgq.append((it.token, it.dst, False))
            elif it.cnt == 'smem': lgq.append((it.token, it.dst, True))
        return need

    def insert_waits(self):
        need = self.compute_waits()
        out = []
        for idx, it in enumerate(self.items):
            if idx in need:
                vm, lg = need[idx]
                s = []
                if vm is not None:
                    s.append('vmcnt(%d)' % min(vm, 63))
                if lg is not None:
                    s.append('lgkmcnt(%d)' % min(lg, 15))
                if s:
                    w = Ins('s_waitcnt ' + ' '.join(s)); out.append(w)
            if isinstance(it, WaitTok): continue
            out.append(it)
        self.items = out

    @staticmethod
    def hazard(p, c):
        n = 0
        pv = [r for r in p.dst if r[0] in 'va']
        ps = [r for r in p.dst if r[0] == 's']
        if p.kind == 'valu':
            if c.kind == 'mfma' and overlap(pv, c.srcA + c.srcB + c.srcC): n = max(n, 2)
            if c.kind == 'mfma' and overlap(p.dst, EXEC): n = max(n, 4)
            if p.mn.replace('_e32', '').replace('_e64', '') in TRANS and c.kind in ('valu', 'mfma') and overlap(pv, c.src) : n = max(n, 1)
            if c.kind == 'vmem' and overlap(ps, c.src): n = max(n, 5)
            if c.kind == 'valu' and overlap([r for r in ps if r not in EXEC], c.src):
                n = max(n, 4 if c.mn.startswith(('v_readlane', 'v_writelane')) else 2)
            if c.kind == 'valu' and c.mn.startswith(('v_readlane', 'v_readfirstlane')) and overlap(pv, c.src): n = max(n, 1)
            if c.kind == 'valu' and c.is_dpp and overlap(pv, c.src): n = max(n, 2)
            if c.kind == 'valu' and c.is_dpp and overlap(p.dst, EXEC): n = max(n, 5)
            if c.kind == 'valu' and c.mn.startswith('v_permlane') and overlap(pv, c.src): n = max(n, 2)
            if c.kind == 'valu' and overlap(p.dst, EXEC) and c.mn.startswith(('v_readlane', 'v_readfirstlane', 'v_writelane', 'v_permlane')): n = max(n, 4)
            if c.kind in ('salu', 'ctl') and overlap(ps, c.src): n = max(n, 2)
            if c.mn.startswith('v_div_fmas') and overlap(p.dst, VCC): n = max(n, 4)
            if any(m.startswith(('op_sel', 'dst_sel')) for m in p.mods) and not p.mn.startswith('v_pk_') and c.kind in ('valu', 'mfma') and overlap(pv, c.src + c.dst): n = max(n, 1)
            if 'sdwa' in p.mn and c.kind in ('valu', 'mfma') and overlap(pv, c.src + c.dst): n = max(n, 1)
        if p.kind == 'mfma':
            four = p.passes == 4
            if c.kind == 'mfma':
                if overlap(p.dst, c.srcC):
                    if not (c.srcC == p.dst and c.passes == p.passes): n = max(n, 6 if four else 10)
                if overlap(p.dst, c.srcA + c.srcB): n = max(n, 8 if four else 12)
                if overlap(p.dst, c.dst) and not overlap(p.dst, c.srcC): n = max(n, 8 if four else 12)
            elif c.kind in ('valu', 'vmem', 'ds'):
                if overlap(p.dst, c.src + c.dst): n = max(n, 8 if four else 12)
                if c.kind == 'valu' and overlap(p.srcC, c.dst): n = max(n, 3 if four else 7)
        if p.kind == 'vmem' and p.nbytes_store >= 12:
            data = [r for r in p.src if r[0] in 'va']
            if c.kind == 'valu' and overlap(data, c.dst): n = max(n, 2)
            elif c.kind in ('ds', 'vmem', 'mfma') and overlap(data, c.dst): n = max(n, 1)
        if p.kind == 'salu' and overlap(p.dst, M0) and (c.kind == 'vmem' and overlap(c.src, M0)): n = max(n, 1)
        if p.kind == 'salu' and overlap(p.dst, EXEC) and c.kind == 'mfma': n = max(n, 0)
        return n

    def insert_nops(self):
        W = 20
        for _ in range(50):
            order = self.expand()
            seq = [i for i in order if isinstance(self.items[i], Ins) or isinstance(self.items[i], Fence)]
            add = {}
            for pos, idx in enumerate(seq):
                c = self.items[idx]
                if isinstance(c, Fence): continue
                dist = 0
                q = pos - 1
                worst = 0
                while q >= 0 and dist < W:
                    p = self.items[seq[q]]
                    if isinstance(p, Fence):
                        q -= 1; continue
                    h = Prog.hazard(p, c)
                    if h > dist: worst = max(worst, h - dist)
                    dist += p.states()
                    q -= 1
                if worst: add[idx] = max(add.get(idx, 0), worst)
            if not add: return
            out = []
            for idx, it in enumerate(self.items):
                if idx in add:
                    k = add[idx]
                    while k > 0:
                        m = min(k, 16); out.append(Ins('s_nop %d' % (m - 1))); k -= m
                out.append(it)
            self.items = out
        raise RuntimeError('nop insertion did not converge')

    def finalize(self):
        self.insert_waits()
        self.insert_nops()
        lines = []
        for it in self.items:
            if isinstance(it, (LoopBegin, LoopEnd, Fence, WaitTok)): continue
            if isinstance(it, Label): lines.append(it.text)
            elif isinstance(it, Raw): lines.append(it.text)
            else: lines.append('  ' + it.text)
        return '\n'.join(lines) + '\n'

    def stats(self):
        from collections import Counter
        c = Counter()
        for it in self.items:
            if isinstance(it, Ins): c[it.mn] += 1
        return c

def vr(base, n=1):
    return 'v%d' % base if n == 1 else 'v[%d:%d]' % (base, base + n - 1)
def ar(base, n=1):
    return 'a%d' % base if n == 1 else 'a[%d:%d]' % (base, base + n - 1)
def sr(base, n=1):
    return 's%d' % base if n == 1 else 's[%d:%d]' % (base, base + n - 1)
```

```python
S, D, F = 2048, 576, 4608
def al(x, a=4096): return (x + a - 1) // a * a
off = 0
def region(n):
    global off
    o = off; off = al(off + n); return o
SYNC = region(2 << 20)
XT   = region(D * 4096)
ZT   = region(D * 4096)
MOD  = region(6 * D * 4)
X1   = region(S * D * 2)
HP   = region(S * D * 2)
H1   = region(S * D * 2)
X2   = region(S * D * 2)
W1T  = region(36 * 18 * 1024)
W2T  = region(36 * 18 * 1024)
W34T = region(32 * 324 * 1024)
PART = region(32 * 8 * 8 * 9216)
STAT = region(3 * 2048 * 8)
DBG  = region(1 << 20)
END  = off
if __name__ == '__main__':
    for k, v in list(globals().items()):
        if k.isupper(): print(k, v)
```

```python
import sys
sys.path.insert(0, 'gen')
from asmlib import *
import layout as L

NAME = 'adaLN_cond__ssm_conv_h3__mixer_s_mlp__prompt'

P_Q, P_K, P_V, P_SK, P_SSMK, P_SSMD, P_BX, P_W1, P_W2, P_W3, P_W4, P_C, P_WMOD, P_OUT, P_DBG, P_WS = [16 + 2 * i for i in range(16)]
S_WG, S_WAVE = 2, 3
V_TID, V_LANE = 0, 1

STAMPS = False
class Ctx:
    def __init__(self, mega, kid=0, sv=250):
        self.p = Prog()
        self.mega = mega
        self.sc = ' sc1' if mega else ''
        self.kid = kid; self.sv = sv; self.nst = 0
    def stamp(self, k=None):
        if not STAMPS: return
        if k is None: k = self.nst
        self.nst = k + 1
        self.p.I('s_memrealtime s[76:77]\ns_waitcnt lgkmcnt(0)\nv_writelane_b32 v%d, s76, %d' % (self.sv, k))
    def mstamp(self, i): self.stamp(3 + i)
    def stamp_out(self):
        if not STAMPS: return
        p = self.p
        self.stamp(31)
        srd(p, 72, P_WS, 1 << 20, off=L.DBG)
        p.I('s_lshl_b32 s76, s2, 2\ns_add_u32 s76, s76, s3\ns_add_u32 s76, s76, %d\ns_lshl_b32 s76, s76, 7' % (self.kid * 1024))
        p.I('v_and_b32 v2, 63, v0\nv_lshl_add_u32 v2, v2, 2, s76\nv_cmp_gt_u32 vcc, 32, v1\ns_and_saveexec_b64 s[76:77], vcc')
        p.I('buffer_store_dword v%d, v2, s[72:75], 0 offen' % self.sv)
        p.I('s_mov_b64 exec, s[76:77]')

def srd(p, slot, ptr, size, off=0, soff=None):
    if off == 0 and soff is None:
        p.I('s_mov_b32 s%d, s%d\ns_mov_b32 s%d, s%d' % (slot, ptr, slot + 1, ptr + 1))
    else:
        if off:
            p.I('s_add_u32 s%d, s%d, 0x%x\ns_addc_u32 s%d, s%d, 0' % (slot, ptr, off, slot + 1, ptr + 1))
            if soff is not None:
                p.I('s_add_u32 s%d, s%d, s%d\ns_addc_u32 s%d, s%d, 0' % (slot, slot, soff, slot + 1, slot + 1))
        else:
            p.I('s_add_u32 s%d, s%d, s%d\ns_addc_u32 s%d, s%d, 0' % (slot, ptr, soff, slot + 1, ptr + 1))
    p.I('s_mov_b32 s%d, 0x%x\ns_mov_b32 s%d, 0x20000' % (slot + 2, size, slot + 3))

def prologue(p, nwg=256, end='L_end'):
    p.I('s_cmp_ge_u32 s2, %d\ns_cbranch_scc1 %s' % (nwg, end))
    p.I('s_load_dwordx16 s[16:31], s[0:1], 0\ns_load_dwordx16 s[32:47], s[0:1], 64')
    p.I('v_lshrrev_b32 v2, 6, v0\nv_and_b32 v1, 63, v0')
    p.I('v_readfirstlane_b32 s3, v2')
    p.I('s_waitcnt lgkmcnt(0)')

def udiv_magic(d, maxn, shift=16):
    m = (1 << shift) // d + 1
    for n in range(maxn + 1):
        assert (n * m) >> shift == n // d, (d, n)
    return m

def p0_kv(c):
    p = c.p
    m9 = udiv_magic(9, 576)
    p.I('s_lshl_b32 s4, s2, 2\ns_add_u32 s4, s4, s3')
    p.I('s_mul_i32 s5, s4, %d\ns_lshr_b32 s5, s5, 16' % m9)
    p.I('s_mul_i32 s6, s5, 9\ns_sub_u32 s6, s4, s6')
    srd(p, 48, P_K, L.S * 1152); srd(p, 52, P_V, L.S * 1152); srd(p, 56, P_SK, 4608)
    srd(p, 60, P_WS, L.D * 4096, off=L.XT)
    p.I('v_lshrrev_b32 v2, 3, v1\nv_and_b32 v3, 7, v1')
    p.I('s_lshl_b32 s7, s5, 5\nv_lshl_add_u32 v4, v2, 2, s7')
    p.I('s_lshl_b32 s8, s6, 7\nv_lshl_add_u32 v5, v3, 4, s8')
    p.I('s_movk_i32 s9, 1152\nv_mad_u32_u24 v6, v4, s9, v5')
    p.I('v_subrev_u32 v7, 3456, v6')
    KR, VR, SK = 8, 36, 52
    for i in range(3): p.I('buffer_load_dwordx4 %s, v7, s[48:51], 0 offen offset:%d' % (vr(KR + 4 * i, 4), 1152 * i))
    for i in range(4): p.I('buffer_load_dwordx4 %s, v6, s[48:51], 0 offen offset:%d' % (vr(KR + 4 * (3 + i), 4), 1152 * i))
    for i in range(4): p.I('buffer_load_dwordx4 %s, v6, s[52:55], 0 offen offset:%d' % (vr(VR + 4 * i, 4), 1152 * i))
    p.I('v_lshlrev_b32 v68, 2, v5')
    for i in range(4): p.I('buffer_load_dwordx4 %s, v68, s[56:59], 0 offen offset:%d' % (vr(SK + 4 * i, 4), 16 * i))
    p.I('v_lshlrev_b32 v69, 11, v5\nv_lshlrev_b32 v70, 1, v4\nv_sub_u32 v69, v69, v70\nv_add_u32 v69, 4088, v69')
    p.I('s_mov_b32 s10, 0xffff0000')
    C, KP, VP, AC, OUT = 72, 80, 94, 102, 112
    for pr in range(4):
        a0, a1, b0, b1 = SK + 4 * pr, SK + 4 * pr + 1, SK + 4 * pr + 2, SK + 4 * pr + 3
        p.I('v_lshlrev_b32 v%d, 16, v%d\nv_lshlrev_b32 v%d, 16, v%d' % (C, a0, C + 1, b0))
        p.I('v_and_b32 v%d, s10, v%d\nv_and_b32 v%d, s10, v%d' % (C + 2, a0, C + 3, b0))
        p.I('v_lshlrev_b32 v%d, 16, v%d\nv_lshlrev_b32 v%d, 16, v%d' % (C + 4, a1, C + 5, b1))
        p.I('v_and_b32 v%d, s10, v%d\nv_and_b32 v%d, s10, v%d' % (C + 6, a1, C + 7, b1))
        for i in range(7):
            p.I('v_lshlrev_b32 v%d, 16, v%d\nv_and_b32 v%d, s10, v%d' % (KP + 2 * i, KR + 4 * i + pr, KP + 2 * i + 1, KR + 4 * i + pr))
        for t in range(4):
            p.I('v_lshlrev_b32 v%d, 16, v%d\nv_and_b32 v%d, s10, v%d' % (VP + 2 * t, VR + 4 * t + pr, VP + 2 * t + 1, VR + 4 * t + pr))
        for t in range(4):
            acc = vr(AC + 2 * t, 2)
            p.I('v_pk_mul_f32 %s, %s, %s' % (acc, vr(C + 6, 2), vr(KP + 2 * t, 2)))
            p.I('v_pk_fma_f32 %s, %s, %s, %s' % (acc, vr(C + 4, 2), vr(KP + 2 * (t + 1), 2), acc))
            p.I('v_pk_fma_f32 %s, %s, %s, %s' % (acc, vr(C + 2, 2), vr(KP + 2 * (t + 2), 2), acc))
            p.I('v_pk_fma_f32 %s, %s, %s, %s' % (acc, vr(C, 2), vr(KP + 2 * (t + 3), 2), acc))
            p.I('v_pk_mul_f32 %s, %s, %s' % (acc, acc, vr(VP + 2 * t, 2)))
        o = OUT + 4 * pr
        p.I('v_cvt_pk_bf16_f32 v%d, v%d, v%d' % (o, AC + 6, AC + 4))
        p.I('v_cvt_pk_bf16_f32 v%d, v%d, v%d' % (o + 1, AC + 2, AC + 0))
        p.I('v_cvt_pk_bf16_f32 v%d, v%d, v%d' % (o + 2, AC + 7, AC + 5))
        p.I('v_cvt_pk_bf16_f32 v%d, v%d, v%d' % (o + 3, AC + 3, AC + 1))
        for h in range(2):
            p.I('s_movk_i32 s11, %d' % (4096 * (2 * pr + h)) if 4096 * (2 * pr + h) < 32768 else 's_mov_b32 s11, %d' % (4096 * (2 * pr + h)))
            p.I('buffer_store_dwordx2 %s, v69, s[60:63], s11 offen%s' % (vr(o + 2 * h, 2), c.sc))

def bf16_round(p, dst, src):
    p.I('v_cvt_pk_bf16_f32 v%d, v%d, v%d\nv_lshlrev_b32 v%d, 16, v%d' % (dst, src, src, dst, dst))

LOG2E = 1.4426950408889634
def f2u(x):
    import struct
    return struct.unpack('<I', struct.pack('<f', x))[0]

def p0_mod(c, wg0=144):
    p = c.p
    p.I('s_sub_u32 s4, s2, %d' % wg0)
    srd(p, 48, P_C, 1152); srd(p, 52, P_WMOD, 576 * 6912); srd(p, 56, P_WS, 6 * 576 * 4, off=L.MOD)
    p.I('v_lshlrev_b32 v2, 1, v0')
    for i in range(3): p.I('buffer_load_ushort v%d, v2, s[48:51], 0 offen offset:%d' % (4 + i, 512 * i))
    m9 = udiv_magic(9, 256)
    p.I('s_mov_b32 s5, %d\nv_mul_u32_u24 v8, s5, v0\nv_lshrrev_b32 v8, 16, v8' % m9)
    p.I('v_mul_u32_u24 v9, 9, v8\nv_sub_u32 v9, v0, v9')
    p.I('s_mul_i32 s6, s4, 144\nv_lshl_add_u32 v10, v9, 4, s6')
    p.I('s_movk_i32 s7, 6912\nv_mad_u32_u24 v10, v8, s7, v10')
    p.I('v_cmp_lt_u32 vcc, 251, v0\nv_mov_b32 v11, 0x7f000000\nv_cndmask_b32 v10, v10, v11, vcc')
    W = 32
    for i in range(21):
        p.I('buffer_load_dwordx4 %s, v10, s[52:55], 0 offen' % vr(W + 4 * i, 4))
        if i < 20: p.I('v_add_u32 v10, %d, v10' % (28 * 6912))
    p.I('s_mov_b32 s8, 0x%x' % f2u(-LOG2E))
    p.I('v_lshlrev_b32 v12, 2, v0')
    for i in range(3):
        r = 4 + i
        p.I('v_lshlrev_b32 v%d, 16, v%d' % (r, r))
        p.I('v_mul_f32 v13, s8, v%d\nv_exp_f32 v13, v13\nv_add_f32 v13, 1.0, v13\nv_rcp_f32 v13, v13\nv_mul_f32 v13, v%d, v13' % (r, r))
        bf16_round(p, 13, 13)
        p.I('ds_write_b32 v12, v13 offset:%d' % (1024 * i))
    p.I('s_waitcnt lgkmcnt(0)\ns_barrier')
    p.I('v_lshlrev_b32 v14, 2, v8')
    SV = 120
    for i in range(21): p.I('ds_read_b32 v%d, v14 offset:%d' % (SV + i, 112 * i))
    AC, T = 16, 24
    for j in range(8): p.I('v_mov_b32 v%d, 0' % (AC + j))
    p.I('s_mov_b32 s10, 0xffff0000')
    for i in range(21):
        for d in range(4):
            p.I('v_lshlrev_b32 v%d, 16, v%d\nv_and_b32 v%d, s10, v%d' % (T + 2 * d, W + 4 * i + d, T + 2 * d + 1, W + 4 * i + d))
        for d in range(4):
            p.I('v_fmac_f32 v%d, v%d, v%d\nv_fmac_f32 v%d, v%d, v%d' % (AC + 2 * d, T + 2 * d, SV + i, AC + 2 * d + 1, T + 2 * d + 1, SV + i))
    p.I('v_mul_u32_u24 v15, 288, v8\nv_lshl_add_u32 v15, v9, 5, v15')
    p.I('v_cmp_gt_u32 vcc, 252, v0\ns_and_saveexec_b64 s[12:13], vcc')
    p.I('ds_write_b128 v15, %s offset:4096\nds_write_b128 v15, %s offset:4112' % (vr(AC, 4), vr(AC + 4, 4)))
    p.I('s_mov_b64 exec, s[12:13]')
    p.I('s_waitcnt lgkmcnt(0)\ns_barrier')
    p.I('v_cmp_gt_u32 vcc, 72, v0\ns_and_saveexec_b64 s[12:13], vcc')
    lab = p.label_name('L_mod_skip')
    p.I('s_cbranch_execz %s' % lab)
    p.I('v_lshlrev_b32 v14, 2, v0')
    for i in range(28): p.I('ds_read_b32 v%d, v14 offset:%d' % (W + i, 4096 + 288 * i))
    p.I('v_mov_b32 v16, 0')
    for i in range(28): p.I('v_add_f32 v16, v16, v%d' % (W + i))
    bf16_round(p, 16, 16)
    p.I('s_lshr_b32 s14, s4, 3')
    p.I('s_cmp_eq_u32 s14, 1\ns_cselect_b32 s15, 1, 0\ns_cmp_eq_u32 s14, 4\ns_cselect_b32 s15, 1, s15')
    p.I('v_cvt_f32_u32 v17, s15\nv_add_f32 v16, v16, v17')
    bf16_round(p, 16, 16)
    p.I('s_mul_i32 s6, s4, 288\nv_lshl_add_u32 v18, v0, 2, s6')
    p.I('buffer_store_dword v16, v18, s[56:59], 0 offen%s' % c.sc)
    p.label(lab)
    p.I('s_mov_b64 exec, s[12:13]')

def pretile_job(c, name, ptr, rowbytes, nrows, wsoff, wssize, nunits, gdiv, kind, u0_sgpr, nwaves=256, lds_base=0, NB=4):
    p = c.p
    p.comment('---- pretile %s' % name)
    srd(p, 64, ptr, nrows * rowbytes); srd(p, 68, P_WS, wssize, off=wsoff)
    p.I('v_lshrrev_b32 v2, 3, v1\nv_and_b32 v3, 7, v1\ns_mov_b32 s4, %d\nv_mul_lo_u32 v2, v2, s4\nv_lshl_add_u32 v2, v3, 4, v2' % rowbytes)
    p.I('v_lshrrev_b32 v4, 4, v1\nv_bfe_u32 v5, v1, 2, 2\nv_and_b32 v6, 3, v1')
    if kind in ('A', 'W3'):
        p.I('v_lshl_add_u32 v7, v4, 3, v5\nv_lshlrev_b32 v7, 7, v7\nv_lshl_add_u32 v7, v6, 3, v7')
        second, jstride = 4 * 128, 32
    else:
        p.I('v_lshl_add_u32 v7, v4, 2, v5\nv_lshlrev_b32 v7, 7, v7\nv_lshl_add_u32 v7, v6, 5, v7')
        second, jstride = 16 * 128, 8
    p.I('s_mul_i32 s5, s3, %d\ns_add_u32 s5, s5, %d\nv_add_u32 v7, s5, v7' % (NB * 4096, lds_base))
    p.I('v_lshlrev_b32 v8, 4, v1')
    p.I('s_mov_b32 s6, s%d' % u0_sgpr)
    mg = udiv_magic(gdiv, nunits + nwaves * NB, 20)
    m18 = udiv_magic(18, 200)
    loop = p.label_name('L_pt'); done = p.label_name('L_pt_done')
    p.loop_begin(loop)
    p.I('s_cmp_ge_u32 s6, %d\ns_cbranch_scc1 %s' % (nunits, done))
    toks = []
    for b in range(NB):
        p.I('s_add_u32 s7, s6, %d' % (b * nwaves))
        p.I('s_mul_i32 s8, s7, %d\ns_lshr_b32 s8, s8, 20' % mg)
        p.I('s_mul_i32 s9, s8, %d\ns_sub_u32 s9, s7, s9' % gdiv)
        p.I('s_mul_i32 s10, s8, %d\ns_lshl_b32 s11, s9, 7\ns_add_u32 s10, s10, s11' % (32 * rowbytes))
        DS = 80 + 4 * b
        if kind == 'A':
            p.I('s_mul_i32 s11, s9, %d\ns_lshl_b32 s12, s8, 10\ns_add_u32 s11, s11, s12' % (4 * 18 * 1024))
            for j in range(4): p.I('s_add_u32 s%d, s11, %d' % (DS + j, j * 18 * 1024))
        elif kind == 'W3':
            for j in range(4):
                p.I('s_lshl_b32 s11, s9, 2\ns_add_u32 s11, s11, %d' % j)
                p.I('s_mul_i32 s12, s11, %d\ns_lshr_b32 s12, s12, 16\ns_mul_i32 s13, s12, 36\ns_sub_u32 s11, s11, s13' % udiv_magic(36, 300))
                p.I('s_mul_i32 s13, s11, %d\ns_lshr_b32 s13, s13, 16\ns_mul_i32 s14, s13, 12\ns_sub_u32 s11, s11, s14' % udiv_magic(12, 40))
                p.I('s_mul_i32 s14, s11, %d\ns_lshr_b32 s14, s14, 16\ns_mul_i32 s15, s14, 3\ns_sub_u32 s11, s11, s15' % udiv_magic(3, 16))
                p.I('s_lshl_b32 s12, s12, 2\ns_add_u32 s12, s12, s14\ns_mul_i32 s12, s12, 324\ns_mul_i32 s13, s13, 54\ns_add_u32 s12, s12, s13\ns_mul_i32 s13, s8, 3\ns_add_u32 s12, s12, s13\ns_add_u32 s12, s12, s11\ns_lshl_b32 s%d, s12, 10' % (DS + j))
        else:
            p.I('s_mul_i32 s12, s8, %d\ns_lshr_b32 s12, s12, 16' % m18)
            p.I('s_mul_i32 s13, s12, 18\ns_sub_u32 s13, s8, s13')
            for j in range(4):
                p.I('s_and_b32 s14, s9, 3\ns_lshl_b32 s15, s13, 2\ns_add_u32 s15, s15, %d' % (162 + j))
                p.I('s_cmp_ge_u32 s9, 4\ns_cselect_b32 s11, 72, 0\ns_add_u32 s15, s15, s11')
                p.I('s_add_u32 s11, s13, 306\ns_cmp_eq_u32 s9, 8\ns_cselect_b32 s15, s11, s15\ns_cselect_b32 s14, %d, s14' % j)
                p.I('s_lshl_b32 s11, s12, 2\ns_add_u32 s11, s11, s14\ns_mul_i32 s11, s11, 324\ns_add_u32 s11, s11, s15\ns_lshl_b32 s%d, s11, 10' % (DS + j))
        p.I('s_cmp_ge_u32 s7, %d\ns_cselect_b32 s10, 0x7f000000, s10' % nunits)
        for j in range(4): p.I('s_cselect_b32 s%d, 0x7f000000, s%d' % (DS + j, DS + j))
        p.I('s_mul_i32 s12, s3, %d\ns_add_u32 s12, s12, %d' % (NB * 4096, lds_base + b * 4096))
        for q in range(4):
            p.I('s_add_u32 m0, s12, %d' % (q * 1024))
            p.I('v_add_u32 v9, s10, v2') if q == 0 else p.I('v_add_u32 v9, %d, v9' % (8 * rowbytes))
            t = p.I('buffer_load_dwordx4 v9, s[64:67], 0 offen lds')
        toks.append(t)
    for b in range(NB):
        p.wait(toks[b])
        R = 16 + 16 * (b % 2)
        for j in range(4):
            p.I('ds_read_b64_tr_b16 %s, v7 offset:%d' % (vr(R + 4 * j, 2), b * 4096 + j * jstride))
            p.I('ds_read_b64_tr_b16 %s, v7 offset:%d' % (vr(R + 4 * j + 2, 2), b * 4096 + j * jstride + second))
        for j in range(4):
            p.I('v_add_u32 v10, s%d, v8' % (80 + 4 * b + j))
            p.I('buffer_store_dwordx4 %s, v10, s[68:71], 0 offen%s' % (vr(R + 4 * j, 4), c.sc))
    p.I('s_add_u32 s6, s6, %d' % (NB * nwaves))
    p.I('s_waitcnt vmcnt(0)')
    p.I('s_branch %s' % loop)
    p.loop_end(loop)
    p.label(done)
    p.cut()

def p0_pretile(c, wg0=192, which=('w1', 'w2', 'w3', 'w4')):
    p = c.p
    p.I('s_sub_u32 s4, s2, %d\ns_lshl_b32 s4, s4, 2\ns_add_u32 s79, s4, s3' % wg0)
    if 'w1' in which: pretile_job(c, 'w1', P_W1, 1152, 576, L.W1T, 36 * 18 * 1024, 162, 9, 'A', 79, NB=1)
    if 'w2' in which:
        p.I('s_add_u32 s78, s79, 94\ns_and_b32 s78, s78, 255')
        pretile_job(c, 'w2', P_W2, 1152, 576, L.W2T, 36 * 18 * 1024, 162, 9, 'A', 78, NB=1)
    if 'w3' in which: pretile_job(c, 'w3', P_W3, 9216, 576, L.W34T, 32 * 324 * 1024, 1296, 72, 'W3', 79)
    if 'w4' in which: pretile_job(c, 'w4', P_W4, 1152, 4608, L.W34T, 32 * 324 * 1024, 1296, 9, 'B', 79)


KC_STRIDE, KCOPY = 18432, 4416
XR_BASE = 3 * KC_STRIDE
XR_STRIDE = 6144
RED_BASE = XR_BASE + 3 * XR_STRIDE
CONV_LDS = RED_BASE + 3 * 4096

def p1_pre(c):
    p = c.p
    p.I('s_mul_i32 s4, s2, %d' % (3 * 4096))
    for ch in range(3):
        p.I('s_add_u32 s5, s4, %d' % (4096 * ch))
        srd(p, 48 + 4 * ch, P_SSMK, 4096, soff=5)
    m276 = udiv_magic(276, 1300, 20)
    p.I('s_mov_b32 s6, %d' % m276)
    for t in range(5):
        p.I('s_lshl_b32 s7, s3, 6\ns_add_u32 s7, s7, %d\nv_add_u32 v2, s7, v1' % (256 * t))
        p.I('v_mul_u32_u24 v3, s6, v2\nv_lshrrev_b32 v3, 20, v3')
        p.I('v_mul_u32_u24 v4, 276, v3\nv_sub_u32 v4, v2, v4')
        p.I('v_lshl_add_u32 v4, v4, 3, v3\nv_subrev_u32 v4, 63, v4\nv_lshlrev_b32 v%d, 1, v4' % (8 + t))
        p.I('v_cmp_lt_u32 vcc, 3, v3\nv_mov_b32 v5, 0x7f000000\nv_cndmask_b32 v%d, v%d, v5, vcc' % (8 + t, 8 + t))
    toks = []
    for t in range(5):
        lab = None
        if t == 4:
            lab = p.label_name('L_kc_skip')
            p.I('s_cmp_ge_u32 s3, 2\ns_cbranch_scc1 %s' % lab)
        for ch in range(3):
            p.I('s_lshl_b32 s7, s3, 10\ns_add_u32 m0, s7, %d' % (ch * KC_STRIDE + 4096 * t))
            toks.append(p.I('buffer_load_dwordx4 v%d, s[%d:%d], 0 offen lds' % (8 + t, 48 + 4 * ch, 51 + 4 * ch), nowait=True))
        if lab: p.label(lab)
    p.I('v_mov_b32 v16, 0\nv_mov_b32 v17, 0\nv_mov_b32 v18, 0\nv_mov_b32 v19, 0')
    p.I('v_lshrrev_b32 v2, 4, v0\nv_and_b32 v3, 15, v0\nv_mul_u32_u24 v2, 48, v2\nv_add_u32 v2, v2, v3\nv_lshlrev_b32 v2, 4, v2\nv_add_u32 v2, %d, v2' % XR_BASE)
    p.I('v_cmp_gt_u32 vcc, 128, v0\ns_and_saveexec_b64 s[12:13], vcc')
    for ch in range(3):
        p.I('ds_write_b128 v2, v[16:19] offset:%d' % (ch * XR_STRIDE + 32 * 16))
    p.I('s_mov_b64 exec, s[12:13]')
    p.I('v_and_b32 v2, 31, v1\nv_cmp_lt_u32 vcc, 31, v1')
    p.I('v_lshrrev_b32 v3, 2, v1\nv_and_b32 v4, 3, v1')
    p.I('v_lshrrev_b32 v5, 3, v2\nv_and_b32 v6, 7, v1')
    p.I('v_cndmask_b32 v3, v3, v5, vcc\nv_cndmask_b32 v4, v4, v6, vcc')
    p.I('v_add_u32 v5, v3, v4\nv_add_u32 v5, 2041, v5\nv_cndmask_b32 v5, v4, v5, vcc')
    p.I('v_sub_u32 v6, v4, v3\nv_add_u32 v6, 63, v6\nv_add_u32 v7, 2104, v4\nv_cndmask_b32 v6, v6, v7, vcc')
    p.I('v_add_u32 v7, v3, v4\nv_cmp_ge_u32 s[14:15], 6, v7\ns_and_b64 s[14:15], s[14:15], vcc')
    p.I('v_cmp_le_u32 s[12:13], v4, v3\nv_cmp_gt_u32 s[10:11], 16, v1\ns_and_b64 s[12:13], s[12:13], s[10:11]\ns_or_b64 s[14:15], s[14:15], s[12:13]')
    p.I('v_mul_u32_u24 v20, %d, v3\nv_lshl_add_u32 v20, v6, 1, v20\ns_mul_i32 s7, s3, %d\nv_add_u32 v20, s7, v20' % (KCOPY, KC_STRIDE))
    p.I('v_lshlrev_b32 v21, 1, v5')
    p.I('s_min_u32 s8, s3, 2\ns_lshl_b32 s8, s8, 12\ns_add_u32 s8, s8, s4')
    srd(p, 60, P_SSMK, 4096, soff=8)
    p.I('buffer_load_ushort v22, v21, s[60:63], 0 offen')
    p.I('s_waitcnt vmcnt(0) lgkmcnt(0)\ns_barrier')
    p.cut()
    lab = p.label_name('L_patch_skip')
    p.I('s_cmp_ge_u32 s3, 3\ns_cbranch_scc1 %s' % lab)
    p.I('s_mov_b64 exec, s[14:15]\nds_write_b16 v20, v22\ns_mov_b64 exec, -1')
    p.label(lab)
    srd(p, 60, P_SSMD, 1152)
    p.I('s_mul_i32 s8, s2, 3\ns_min_u32 s9, s3, 2\ns_add_u32 s8, s8, s9\ns_lshl_b32 s8, s8, 1\nv_mov_b32 v2, s8')
    p.I('buffer_load_ushort v23, v2, s[60:63], 0 offen')
    p.I('v_lshlrev_b32 v23, 16, v23')

def p1_main(c):
    p = c.p
    srd(p, 48, P_WS, L.D * 4096, off=L.XT); srd(p, 52, P_WS, L.D * 4096, off=L.ZT)
    p.I('s_mul_i32 s4, s2, %d\ns_lshl_b32 s5, s3, 10\ns_add_u32 s5, s5, s4\nv_lshl_add_u32 v2, v1, 4, s5' % (3 * 4096))
    for ch in range(3):
        p.I('s_movk_i32 s6, %d\nbuffer_load_dwordx4 %s, v2, s[48:51], s6 offen%s' % (4096 * ch, vr(8 + 4 * ch, 4), c.sc))
    p.I('v_and_b32 v3, 7, v1\nv_mul_u32_u24 v3, 48, v3\nv_lshrrev_b32 v4, 3, v1\nv_add_u32 v3, v3, v4\ns_lshl_b32 s6, s3, 3\nv_add_u32 v3, s6, v3\nv_lshlrev_b32 v3, 4, v3\nv_add_u32 v3, %d, v3' % XR_BASE)
    for ch in range(3):
        p.I('ds_write_b128 v3, %s offset:%d' % (vr(8 + 4 * ch, 4), ch * XR_STRIDE))
    VA0, VB0, VA, VB = 24, 25, 26, 27
    p.I('v_and_b32 v4, 3, v1\nv_mul_u32_u24 v4, %d, v4\nv_bfe_u32 v5, v1, 2, 2\nv_lshl_add_u32 v4, v5, 3, v4\nv_lshrrev_b32 v5, 4, v1\nv_lshl_add_u32 v%d, v5, 4, v4' % (KCOPY, VA0))
    p.I('v_mul_u32_u24 v4, 48, v5\nv_and_b32 v6, 15, v1\nv_sub_u32 v4, v4, v6\nv_add_u32 v4, 15, v4\nv_lshlrev_b32 v%d, 4, v4' % VB0)
    p.I('s_waitcnt lgkmcnt(0)\ns_barrier')
    p.cut()
    c.stamp(2)
    AS, BS, ACC, KEEP = 32, 96, 112, 128
    p.I('s_mov_b32 s8, 0\ns_cmp_lt_u32 s3, 3\ns_cselect_b32 s9, 2, 3')
    seg = p.label_name('L_seg'); blk = p.label_name('L_blk')
    p.loop_begin(seg)
    p.I('s_cmp_lt_u32 s3, 3\ns_cselect_b32 s10, s3, s8\ns_cselect_b32 s12, 0, 8')
    p.I('s_cselect_b32 s14, 1, 0\ns_xor_b32 s11, s8, 1\ns_and_b32 s11, s11, s14')
    p.I('s_cmp_eq_u32 s11, 1\ns_cselect_b32 s13, 8, 1\ns_cmp_lt_u32 s3, 3\ns_cselect_b32 s13, s13, 3')
    p.I('s_mul_i32 s14, s10, %d\ns_lshl_b32 s15, s12, 6\ns_add_u32 s14, s14, s15\nv_add_u32 v%d, s14, v%d' % (KC_STRIDE, VA, VA0))
    p.I('s_mul_i32 s14, s10, %d\ns_add_u32 s14, s14, %d\ns_xor_b32 s15, s11, 1\ns_lshl_b32 s15, s15, 8\ns_add_u32 s14, s14, s15\ns_lshl_b32 s15, s12, 3\ns_add_u32 s14, s14, s15\nv_add_u32 v%d, s14, v%d' % (XR_STRIDE, XR_BASE, VB, VB0))
    for i in range(16): p.I('v_mov_b32 v%d, 0' % (ACC + i))
    def ldA(setk, rel):
        r = AS + 8 * (setk % 8)
        for f in range(2):
            for h in range(2):
                p.I('ds_read_b64 %s, v%d offset:%d' % (vr(r + 4 * f + 2 * h, 2), VA, 64 * rel + 32 * f + 8 * h))
    def ldB(slot, rel):
        p.I('ds_read_b128 %s, v%d offset:%d' % (vr(BS + 4 * (slot % 4), 4), VB, ((rel & 1) * 4 * 48 + (rel >> 1)) * 16))
    ldA(0, 0); ldA(1, 1); ldB(0, 0); ldA(2, 2); ldB(1, 1); ldA(3, 3); ldB(2, 2)
    p.loop_begin(blk)
    for st in range(8):
        b = vr(BS + 4 * (st % 4), 4)
        for rt in range(4):
            a = AS + 8 * ((st + rt // 2) % 8) + 4 * (rt % 2)
            p.I('v_mfma_f32_16x16x32_bf16 %s, %s, %s, %s' % (vr(ACC + 4 * rt, 4), vr(a, 4), b, vr(ACC + 4 * rt, 4)))
            if rt == 0: ldA(st + 4, st + 4)
            if rt == 2: ldB(st + 3, st + 3)
    p.I('v_add_u32 v%d, 512, v%d\nv_add_u32 v%d, 64, v%d' % (VA, VA, VB, VB))
    p.I('s_sub_u32 s13, s13, 1\ns_cmp_lg_u32 s13, 0\ns_cbranch_scc1 %s' % blk)
    p.loop_end(blk)
    p.I('s_waitcnt lgkmcnt(0)')
    l3 = p.label_name('L_w3'); ln = p.label_name('L_next')
    p.I('s_nop 7')
    p.I('s_cmp_eq_u32 s3, 3\ns_cbranch_scc1 %s' % l3)
    p.I('s_cmp_eq_u32 s8, 0\ns_cbranch_scc0 %s' % ln)
    for i in range(16): p.I('v_mov_b32 v%d, v%d' % (KEEP + i, ACC + i))
    p.I('s_branch %s' % ln)
    p.label(l3)
    p.I('s_lshl_b32 s14, s10, 12\ns_add_u32 s14, s14, %d\nv_lshl_add_u32 v2, v1, 4, s14' % RED_BASE)
    for rt in range(4): p.I('ds_write_b128 v2, %s offset:%d' % (vr(ACC + 4 * rt, 4), 1024 * rt))
    p.label(ln)
    p.I('s_add_u32 s8, s8, 1\ns_cmp_lt_u32 s8, s9\ns_cbranch_scc1 %s' % seg)
    p.loop_end(seg)
    c.stamp(3)
    p.I('s_waitcnt lgkmcnt(0)\ns_barrier')
    p.cut()
    c.stamp(4)
    done = p.label_name('L_conv_done')
    p.I('s_cmp_eq_u32 s3, 3\ns_cbranch_scc1 %s' % done)
    p.I('s_lshl_b32 s14, s3, 12\ns_add_u32 s14, s14, %d\nv_lshl_add_u32 v2, v1, 4, s14' % RED_BASE)
    T = 32
    for rt in range(4): p.I('ds_read_b128 %s, v2 offset:%d' % (vr(T + 4 * rt, 4), 1024 * rt))
    p.I('v_lshrrev_b32 v5, 5, v1\nv_sub_u32 v5, 1, v5\nv_mul_u32_u24 v5, 48, v5\nv_and_b32 v6, 15, v1\nv_sub_u32 v5, v5, v6\nv_add_u32 v5, 15, v5\nv_lshlrev_b32 v5, 4, v5')
    p.I('v_bfe_u32 v6, v1, 4, 1\nv_sub_u32 v6, 1, v6\nv_lshl_add_u32 v5, v6, 3, v5')
    p.I('s_mul_i32 s14, s3, %d\ns_add_u32 s14, s14, %d\nv_add_u32 v5, s14, v5' % (XR_STRIDE, XR_BASE))
    X = 48
    for ct in range(2):
        for rt in range(4):
            p.I('ds_read_b64 %s, v5 offset:%d' % (vr(X + 8 * ct + 2 * rt, 2), (2 * (3 - rt) * 48 + 16 * (1 - ct)) * 16))
    for i in range(16): p.I('v_add_f32 v%d, v%d, v%d' % (ACC + i, ACC + i, T + i))
    p.I('s_mul_i32 s14, s2, 3\ns_add_u32 s14, s14, s3\ns_lshl_b32 s14, s14, 12')
    p.I('v_and_b32 v6, 15, v1\nv_lshl_add_u32 v6, v6, 7, s14\nv_lshrrev_b32 v7, 5, v1\nv_lshl_add_u32 v6, v7, 4, v6\nv_bfe_u32 v7, v1, 4, 1\nv_lshl_add_u32 v6, v7, 5, v6')
    p.I('s_mov_b32 s10, 0xffff0000')
    Z, U = 64, 80
    for ct in range(2):
        src = ACC if ct == 0 else KEEP
        for rt in range(4):
            x0, x1 = X + 8 * ct + 2 * rt, X + 8 * ct + 2 * rt + 1
            a = src + 4 * rt
            p.I('v_and_b32 v%d, s10, v%d\nv_lshlrev_b32 v%d, 16, v%d\nv_and_b32 v%d, s10, v%d\nv_lshlrev_b32 v%d, 16, v%d' % (U, x1, U + 1, x1, U + 2, x0, U + 3, x0))
            for r in range(4): p.I('v_fmac_f32 v%d, v23, v%d' % (a + r, U + r))
            zb = Z + 8 * ct + 4 * (rt // 2) + 2 * (rt % 2)
            p.I('v_cvt_pk_bf16_f32 v%d, v%d, v%d\nv_cvt_pk_bf16_f32 v%d, v%d, v%d' % (zb, a, a + 1, zb + 1, a + 2, a + 3))
        for k in range(2):
            zb = Z + 8 * ct + 4 * k
            p.I('v_permlane16_swap_b32 v%d, v%d\nv_permlane16_swap_b32 v%d, v%d' % (zb, zb + 2, zb + 1, zb + 3))
            p.I('buffer_store_dwordx4 %s, v6, s[52:55], 0 offen offset:%d%s' % (vr(zb, 4), 64 * k + 2048 * ct, c.sc))
    p.label(done)


GELU_C1 = -2.0 * 0.7978845608028654 * LOG2E
GELU_C2 = GELU_C1 * 0.044715
def gelu_consts(p, s1, s2):
    p.I('s_mov_b32 s%d, 0x%x\ns_mov_b32 s%d, 0x%x' % (s1, f2u(GELU_C1), s2, f2u(GELU_C2)))
def gelu_inplace(p, regs, tmp, s1, vc2):
    n = len(regs)
    for k, r in enumerate(regs): p.I('v_mul_f32 v%d, v%d, v%d' % (tmp + k, r, r))
    for k, r in enumerate(regs): p.I('v_fma_f32 v%d, v%d, v%d, s%d' % (tmp + k, tmp + k, vc2, s1))
    for k, r in enumerate(regs): p.I('v_mul_f32 v%d, v%d, v%d' % (tmp + k, tmp + k, r))
    for k, r in enumerate(regs): p.I('v_exp_f32 v%d, v%d' % (tmp + k, tmp + k))
    for k, r in enumerate(regs): p.I('v_add_f32 v%d, 1.0, v%d' % (tmp + k, tmp + k))
    for k, r in enumerate(regs): p.I('v_rcp_f32 v%d, v%d' % (tmp + k, tmp + k))
    for k, r in enumerate(regs): p.I('v_mul_f32 v%d, v%d, v%d' % (r, r, tmp + k))

def reduce32(p, regs, tmp):
    for sh in (8, 4, 2, 1):
        for r in regs: p.I('v_add_f32_dpp v%d, v%d, v%d row_ror:%d row_mask:0xf bank_mask:0xf' % (r, r, r, sh))
    for k, r in enumerate(regs): p.I('v_mov_b32 v%d, v%d' % (tmp + k, r))
    for k, r in enumerate(regs): p.I('v_permlane16_swap_b32 v%d, v%d' % (r, tmp + k))
    for k, r in enumerate(regs): p.I('v_add_f32 v%d, v%d, v%d' % (r, r, tmp + k))

def ln_center_scale(p, X, ntok, nj, ST, seps):
    A = ST
    for i in range(ntok):
        p.I('v_pk_add_f32 %s, %s, %s' % (vr(A + 2 * i, 2), vr(X + (i * nj) * 2, 2), vr(X + (i * nj + 1) * 2, 2)))
    for j in range(2, nj):
        for i in range(ntok):
            p.I('v_pk_add_f32 %s, %s, %s' % (vr(A + 2 * i, 2), vr(A + 2 * i, 2), vr(X + (i * nj + j) * 2, 2)))
    for i in range(ntok): p.I('v_add_f32 v%d, v%d, v%d' % (A + 2 * i, A + 2 * i, A + 2 * i + 1))
    reduce32(p, [A + 2 * i for i in range(ntok)], ST + 2 * ntok)
    for i in range(ntok):
        p.I('v_mul_f32 v%d, s98, v%d' % (A + 2 * i, A + 2 * i))
    for i in range(ntok):
        p.I('v_sub_f32 v%d, 0, v%d' % (A + 2 * i, A + 2 * i))
    for i in range(ntok): p.I('v_mov_b32 v%d, v%d' % (A + 2 * i + 1, A + 2 * i))
    for j in range(nj):
        for i in range(ntok):
            x = vr(X + (i * nj + j) * 2, 2)
            p.I('v_pk_add_f32 %s, %s, %s' % (x, x, vr(A + 2 * i, 2)))
    for i in range(ntok):
        x = vr(X + (i * nj) * 2, 2)
        p.I('v_pk_mul_f32 %s, %s, %s' % (vr(A + 2 * i, 2), x, x))
    for j in range(1, nj):
        for i in range(ntok):
            x = vr(X + (i * nj + j) * 2, 2)
            p.I('v_pk_fma_f32 %s, %s, %s, %s' % (vr(A + 2 * i, 2), x, x, vr(A + 2 * i, 2)))
    for i in range(ntok): p.I('v_add_f32 v%d, v%d, v%d' % (A + 2 * i, A + 2 * i, A + 2 * i + 1))
    reduce32(p, [A + 2 * i for i in range(ntok)], ST + 2 * ntok)
    for i in range(ntok): p.I('v_mul_f32 v%d, s98, v%d' % (A + 2 * i, A + 2 * i))
    for i in range(ntok): p.I('v_add_f32 v%d, s%d, v%d' % (A + 2 * i, seps, A + 2 * i))
    for i in range(ntok): p.I('v_rsq_f32 v%d, v%d' % (A + 2 * i, A + 2 * i))
    for i in range(ntok): p.I('v_mov_b32 v%d, v%d' % (A + 2 * i + 1, A + 2 * i))
    for j in range(nj):
        for i in range(ntok):
            x = vr(X + (i * nj + j) * 2, 2)
            p.I('v_pk_mul_f32 %s, %s, %s' % (x, x, vr(A + 2 * i, 2)))

def unpack(p, dst, src, smask):
    p.I('v_lshlrev_b32 v%d, 16, v%d\nv_and_b32 v%d, s%d, v%d' % (dst, src, dst + 1, smask, src))

ZS_BASE, A1_BASE = 0, 36864
P2_LDS = A1_BASE + 36864
XP, GH, CB, SB, TM, HPK, ST2 = 16, 52, 124, 142, 160, 216, 200

def wg_rb_ns(p):
    m3 = udiv_magic(3, 256)
    p.I('s_mul_i32 s4, s2, %d\ns_lshr_b32 s4, s4, 16\ns_mul_i32 s5, s4, 3\ns_sub_u32 s5, s2, s5' % m3)

def load_wfrags(c, wsoff, abase):
    p = c.p
    srd(p, 64, P_WS, 36 * 18 * 1024, off=wsoff)
    p.I('s_mul_i32 s6, s5, 12\ns_mul_i32 s7, s3, 3\ns_add_u32 s6, s6, s7\ns_mul_i32 s6, s6, %d' % (18 * 1024))
    p.I('v_lshl_add_u32 v2, v1, 4, s6')
    for e in range(3):
        for ks in range(18):
            idx = e * 18 + ks
            if idx % 4 == 0 and idx > 0: p.I('v_add_u32 v2, 4096, v2')
            p.I('buffer_load_dwordx4 %s, v2, s[64:67], 0 offen offset:%d%s' % (ar(abase + 4 * idx, 4), 1024 * (idx % 4), c.sc))

def p2_pre(c):
    p = c.p
    wg_rb_ns(p)
    srd(p, 48, P_Q, L.S * 1152); srd(p, 52, P_WS, 6 * 576 * 4, off=L.MOD)
    p.I('s_mov_b32 s99, 0xffff0000\ns_mov_b32 s98, 0x%x\ns_mov_b32 s97, 0x%x' % (f2u(1.0 / 576), f2u(1e-5)))
    p.I('v_lshrrev_b32 v3, 5, v1\nv_and_b32 v4, 31, v1')
    p.I('s_lshl_b32 s6, s4, 5\ns_lshl_b32 s7, s3, 3\ns_add_u32 s6, s6, s7\nv_lshl_add_u32 v5, v3, 2, s6')
    p.I('s_movk_i32 s7, 1152\nv_mul_lo_u32 v6, v5, s7\nv_lshl_add_u32 v6, v4, 2, v6\nv_add_u32 v7, 2304, v6')
    for i in range(4):
        for j in range(9):
            p.I('buffer_load_dword v%d, v%d, s[48:51], 0 offen offset:%d' % (XP + i * 9 + j, 6 if i < 2 else 7, (i % 2) * 1152 + 128 * j))
    p.I('v_lshlrev_b32 v8, 3, v4')
    for arr, dst in ((0, TM), (1, TM + 18), (2, TM + 36), (3, SB), (4, CB)):
        p.I('s_movk_i32 s7, %d' % (arr * 2304))
        for j in range(9):
            p.I('buffer_load_dwordx2 %s, v8, s[52:55], s7 offen offset:%d%s' % (vr(dst + 2 * j, 2), 256 * j, c.sc))
    for i in range(4):
        for j in range(9): unpack(p, GH + (i * 9 + j) * 2, XP + i * 9 + j, 99)
    ln_center_scale(p, GH, 4, 9, ST2 + 16, 97)
    for j in range(9):
        p.I('v_pk_mul_f32 %s, %s, %s' % (vr(TM + 18 + 2 * j, 2), vr(TM + 18 + 2 * j, 2), vr(TM + 36 + 2 * j, 2)))
        p.I('v_pk_mul_f32 %s, %s, %s' % (vr(TM + 2 * j, 2), vr(TM + 2 * j, 2), vr(TM + 36 + 2 * j, 2)))
    for i in range(4):
        for j in range(9):
            x = vr(GH + (i * 9 + j) * 2, 2)
            p.I('v_pk_fma_f32 %s, %s, %s, %s' % (x, x, vr(TM + 18 + 2 * j, 2), vr(TM + 2 * j, 2)))

def p2_main(c, abase=0):
    p = c.p
    srd(p, 48, P_WS, L.D * 4096, off=L.ZT)
    srd(p, 52, P_WS, L.S * 1152, off=L.X1); srd(p, 56, P_WS, L.S * 1152, off=L.HP); srd(p, 60, P_WS, L.S * 1152, off=L.H1)
    p.I('v_lshrrev_b32 v8, 2, v1\nv_and_b32 v9, 3, v1\nv_lshlrev_b32 v10, 13, v8\nv_lshl_add_u32 v10, v9, 4, v10\ns_lshl_b32 s6, s4, 6\nv_add_u32 v10, s6, v10')
    p.I('s_lshl_b32 s6, s3, 17\nv_add_u32 v10, s6, v10\ns_movk_i32 s8, 4096')
    for t in range(5):
        if t: p.I('v_add_u32 v10, %d, v10' % (4 * 131072))
        p.I('buffer_load_dwordx4 %s, v10, s[48:51], 0 offen%s' % (vr(TM + 8 * t, 4), c.sc))
        p.I('buffer_load_dwordx4 %s, v10, s[48:51], s8 offen%s' % (vr(TM + 8 * t + 4, 4), c.sc))
    p.I('v_bfe_u32 v11, v8, 1, 3\nv_lshlrev_b32 v12, 1, v9\nv_xor_b32 v11, v11, v12\nv_lshlrev_b32 v11, 4, v11\nv_lshl_add_u32 v11, v8, 7, v11')
    p.I('s_lshl_b32 s6, s3, 11\nv_add_u32 v11, s6, v11\nv_xor_b32 v12, 16, v11')
    p.I('s_mov_b32 s8, 0x05040100\ns_mov_b32 s9, 0x07060302')
    PO = 200
    for t in range(5):
        a, b = TM + 8 * t, TM + 8 * t + 4
        o = PO + 8 * (t % 2)
        for k in range(4):
            p.I('v_perm_b32 v%d, v%d, v%d, s8\nv_perm_b32 v%d, v%d, v%d, s9' % (o + 2 * k, b + k, a + k, o + 2 * k + 1, b + k, a + k))
        p.I('ds_write_b128 v11, %s offset:%d' % (vr(o, 4), ZS_BASE + t * 8192))
        p.I('ds_write_b128 v12, %s offset:%d' % (vr(o + 4, 4), ZS_BASE + t * 8192))
    p.I('s_waitcnt vmcnt(0) lgkmcnt(0)\ns_barrier')
    p.cut()
    c.stamp(3)
    p.I('s_lshl_b32 s6, s3, 1\nv_add_u32 v8, s6, v3\nv_bfe_u32 v9, v4, 1, 3\nv_xor_b32 v8, v8, v9\nv_lshlrev_b32 v8, 4, v8\nv_lshl_add_u32 v8, v4, 7, v8')
    Z = TM
    for j in range(9): p.I('ds_read_b128 %s, v8 offset:%d' % (vr(Z + 4 * j, 4), ZS_BASE + 4096 * j))
    U = 196
    for j in range(9):
        for i in range(4):
            g = vr(GH + (i * 9 + j) * 2, 2)
            unpack(p, U, Z + 4 * j + i, 99); unpack(p, U + 2, XP + i * 9 + j, 99)
            p.I('v_pk_fma_f32 %s, %s, %s, %s' % (g, g, vr(U, 2), vr(U + 2, 2)))
            p.I('v_cvt_pk_bf16_f32 v%d, v%d, v%d' % (XP + i * 9 + j, GH + (i * 9 + j) * 2, GH + (i * 9 + j) * 2 + 1))
            unpack(p, GH + (i * 9 + j) * 2, XP + i * 9 + j, 99)
    ln_center_scale(p, GH, 4, 9, ST2, 97)
    for j in range(9):
        for i in range(4):
            g = vr(GH + (i * 9 + j) * 2, 2)
            p.I('v_pk_fma_f32 %s, %s, %s, %s' % (g, g, vr(CB + 2 * j, 2), vr(SB + 2 * j, 2)))
            p.I('v_cvt_pk_bf16_f32 v%d, v%d, v%d' % (HPK + i * 9 + j, GH + (i * 9 + j) * 2, GH + (i * 9 + j) * 2 + 1))
            unpack(p, GH + (i * 9 + j) * 2, HPK + i * 9 + j, 99)
    for jg in range(3):
        lab = p.label_name('L_st')
        p.I('s_cmp_lg_u32 s5, %d\ns_cbranch_scc1 %s' % (jg, lab))
        for j in range(3 * jg, 3 * jg + 3):
            for i in range(4):
                p.I('buffer_store_dword v%d, v%d, s[52:55], 0 offen offset:%d%s' % (XP + i * 9 + j, 6 if i < 2 else 7, (i % 2) * 1152 + 128 * j, c.sc))
                p.I('buffer_store_dword v%d, v%d, s[56:59], 0 offen offset:%d%s' % (HPK + i * 9 + j, 6 if i < 2 else 7, (i % 2) * 1152 + 128 * j, c.sc))
        p.label(lab)
    ln_center_scale(p, GH, 4, 9, ST2, 97)
    p.I('v_bfe_u32 v8, v4, 2, 2\nv_lshrrev_b32 v9, 4, v4\nv_lshlrev_b32 v9, 11, v9\ns_lshr_b32 s6, s3, 1\ns_lshl_b32 s6, s6, 10\ns_and_b32 s7, s3, 1\ns_lshl_b32 s7, s7, 7\ns_add_u32 s6, s6, s7\ns_add_u32 s6, s6, %d' % A1_BASE)
    p.I('v_add_u32 v9, s6, v9\nv_lshl_add_u32 v9, v8, 8, v9\nv_lshl_add_u32 v9, v3, 6, v9\nv_and_b32 v10, 3, v4\nv_lshl_add_u32 v9, v10, 2, v9')
    for i in range(4):
        p.I('v_xor_b32 v10, %d, v8\nv_lshl_add_u32 v%d, v10, 4, v9' % (i, 12 + i))
    for j in range(9):
        for i in range(4):
            p.I('v_cvt_pk_bf16_f32 v%d, v%d, v%d' % (U + i, GH + (i * 9 + j) * 2, GH + (i * 9 + j) * 2 + 1))
            p.I('ds_write_b32 v%d, v%d offset:%d' % (12 + i, U + i, 4096 * j))
    p.I('s_waitcnt lgkmcnt(0)\ns_barrier')
    c.stamp(4)
    gemm_small(c, A1_BASE, abase)
    c.stamp(5)
    ACC = 52
    gelu_consts(p, 8, 9)
    p.I('v_mov_b32 v8, s9')
    gelu_inplace(p, list(range(ACC, ACC + 24)), 100, 8, 8)
    small_out_addr(p, 9)
    for e in range(3):
        for tt in range(2):
            a = ACC + 4 * (e * 2 + tt)
            o = 128 + 2 * (e * 2 + tt)
            p.I('v_cvt_pk_bf16_f32 v%d, v%d, v%d\nv_cvt_pk_bf16_f32 v%d, v%d, v%d' % (o, a, a + 1, o + 1, a + 2, a + 3))
            p.I('buffer_store_dwordx2 %s, v%d, s[60:63], 0 offen offset:%d%s' % (vr(o, 2), 9 + tt, 32 * e, c.sc))

def small_out_addr(p, vdst):
    p.I('v_and_b32 v2, 15, v1\ns_lshl_b32 s6, s4, 5\nv_add_u32 v2, s6, v2\ns_movk_i32 s7, 1152\nv_mul_lo_u32 v2, v2, s7')
    p.I('s_mul_i32 s6, s5, 12\ns_mul_i32 s7, s3, 3\ns_add_u32 s6, s6, s7\ns_lshl_b32 s6, s6, 5\nv_lshrrev_b32 v%d, 4, v1\nv_lshl_add_u32 v2, v%d, 3, v2\nv_add_u32 v%d, s6, v2\nv_add_u32 v%d, %d, v%d' % (vdst, vdst, vdst, vdst + 1, 16 * 1152, vdst))

def gemm_small(c, lds_base, abase, ACC=52, BF=80):
    p = c.p
    p.I('v_and_b32 v2, 15, v1\nv_lshrrev_b32 v8, 4, v1\nv_xor_b32 v2, v2, v8\nv_lshl_add_u32 v2, v8, 4, v2\nv_lshlrev_b32 v2, 4, v2\nv_add_u32 v2, %d, v2' % lds_base)
    for i in range(24): p.I('v_mov_b32 v%d, 0' % (ACC + i))
    def ldb(ks):
        for tt in range(2):
            p.I('ds_read_b128 %s, v2 offset:%d' % (vr(BF + 8 * (ks % 3) + 4 * tt, 4), (ks * 2 + tt) * 1024))
    ldb(0); ldb(1)
    for ks in range(18):
        if ks + 2 < 18: ldb(ks + 2)
        for e in range(3):
            for tt in range(2):
                a = ACC + 4 * (e * 2 + tt)
                p.I('v_mfma_f32_16x16x32_bf16 %s, %s, %s, %s' % (vr(a, 4), ar(abase + 4 * (e * 18 + ks), 4), vr(BF + 8 * (ks % 3) + 4 * tt, 4), vr(a, 4)))


P3_B = 0
P3_LDS = 36864
def p3_main(c, abase=0):
    p = c.p
    srd(p, 48, P_WS, L.S * 1152, off=L.H1); srd(p, 52, P_WS, L.S * 1152, off=L.HP); srd(p, 56, P_WS, L.S * 1152, off=L.X2)
    p.I('s_mov_b32 s99, 0xffff0000')
    p.I('v_lshrrev_b32 v3, 4, v1\nv_and_b32 v4, 15, v1\ns_lshr_b32 s6, s3, 1\ns_lshl_b32 s6, s6, 5\nv_lshl_add_u32 v5, v3, 3, s6')
    p.I('s_lshl_b32 s6, s4, 5\ns_and_b32 s7, s3, 1\ns_lshl_b32 s7, s7, 4\ns_add_u32 s6, s6, s7\nv_add_u32 v6, s6, v4\ns_movk_i32 s7, 1152\nv_mul_lo_u32 v6, v6, s7\nv_lshl_add_u32 v6, v5, 1, v6')
    M1, P1, M2, P2_, N2, N4, N6 = 8, 9, 10, 11, 12, 13, 14
    p.I('v_subrev_u32 v%d, 1152, v6\nv_add_u32 v%d, 1152, v6\nv_subrev_u32 v%d, 2304, v6\nv_add_u32 v%d, 2304, v6' % (M1, P1, M2, P2_))
    p.I('v_cmp_gt_u32 vcc, 16, v5\nv_cndmask_b32 v%d, v%d, v%d, vcc' % (N2, P1, M1))
    p.I('v_cmp_gt_u32 vcc, 32, v5\nv_cndmask_b32 v%d, v%d, v%d, vcc' % (N4, M2, P1))
    p.I('v_cmp_gt_u32 vcc, 48, v5\nv_cndmask_b32 v%d, v%d, v%d, vcc' % (N6, P2_, M2))
    sel = [M1, M1, N2, P1, N4, M2, N6, P2_, P2_]
    T = 16
    for n in range(9):
        p.I('buffer_load_dwordx4 %s, v%d, s[48:51], 0 offen offset:%d%s' % (vr(T + 4 * n, 4), sel[n], 128 * n, c.sc))
    small_out_addr(p, 104)
    HR = 108
    for e in range(3):
        for tt in range(2):
            p.I('buffer_load_dwordx2 %s, v%d, s[52:55], 0 offen offset:%d%s' % (vr(HR + 2 * (e * 2 + tt), 2), 104 + tt, 32 * e, c.sc))
    p.I('v_xor_b32 v7, v4, v3\nv_lshl_add_u32 v7, v3, 4, v7\nv_lshlrev_b32 v7, 4, v7\ns_lshl_b32 s6, s3, 10\ns_add_u32 s6, s6, %d\nv_add_u32 v7, s6, v7' % P3_B)
    for n in range(9): p.I('ds_write_b128 v7, %s offset:%d' % (vr(T + 4 * n, 4), 4096 * n))
    p.I('s_waitcnt lgkmcnt(0)\ns_barrier')
    c.stamp(2)
    gemm_small(c, P3_B, abase)
    c.stamp(3)
    ACC = 52
    for e in range(3):
        for tt in range(2):
            a = ACC + 4 * (e * 2 + tt); h = HR + 2 * (e * 2 + tt); o = 128 + 2 * (e * 2 + tt)
            unpack(p, 120, h, 99); unpack(p, 122, h + 1, 99)
            for r in range(4): p.I('v_add_f32 v%d, v%d, v%d' % (a + r, a + r, 120 + r))
            p.I('v_cvt_pk_bf16_f32 v%d, v%d, v%d\nv_cvt_pk_bf16_f32 v%d, v%d, v%d' % (o, a, a + 1, o + 1, a + 2, a + 3))
            p.I('buffer_store_dwordx2 %s, v%d, s[56:59], 0 offen offset:%d%s' % (vr(o, 2), 104 + tt, 32 * e, c.sc))


A2_BASE, G_BASE = 0, 73728
P4_LDS = 2 * 73728
RING = 18

def reduce8(p, regs):
    for mod in ('quad_perm:[1,0,3,2]', 'quad_perm:[2,3,0,1]', 'row_half_mirror'):
        for r in regs: p.I('v_add_f32_dpp v%d, v%d, v%d %s row_mask:0xf bank_mask:0xf' % (r, r, r, mod))

def p4_ring_start(c):
    p = c.p
    srd(p, 64, P_WS, 32 * 324 * 1024, off=L.W34T)
    p.I('s_and_b32 s4, s2, 7\ns_lshr_b32 s5, s2, 3')
    p.I('s_lshl_b32 s6, s4, 2\ns_add_u32 s6, s6, s3\ns_mul_i32 s6, s6, %d\nv_lshl_add_u32 v2, v1, 4, s6' % (324 * 1024))
    c.wn = 0
    for n in range(RING): p4_wload(c)

def p4_wload(c):
    p = c.p
    n = c.wn
    if n >= 324: return
    if n % 4 == 0 and n > 0: p.I('v_add_u32 v2, 4096, v2')
    p.I('buffer_load_dwordx4 %s, v2, s[64:67], 0 offen offset:%d%s' % (ar(4 * (n % RING), 4), 1024 * (n % 4), c.sc))
    c.wn += 1

def p4_ln(c):
    p = c.p
    srd(p, 48, P_WS, L.S * 1152, off=L.X2)
    p.I('s_mov_b32 s99, 0xffff0000\ns_mov_b32 s98, 0x%x\ns_mov_b32 s97, 0x%x' % (f2u(1.0 / 576), f2u(1e-5)))
    p.I('v_lshrrev_b32 v3, 3, v1\nv_and_b32 v4, 7, v1')
    p.I('s_lshl_b32 s6, s5, 6\ns_lshl_b32 s7, s3, 4\ns_add_u32 s6, s6, s7\nv_add_u32 v5, s6, v3\ns_movk_i32 s7, 1152\nv_mul_lo_u32 v5, v5, s7\nv_lshl_add_u32 v5, v4, 4, v5\nv_add_u32 v6, %d, v5' % (8 * 1152))
    RAW, X = 64, 136
    for i in range(2):
        for j in range(9):
            p.I('buffer_load_dwordx4 %s, v%d, s[48:51], 0 offen offset:%d%s' % (vr(RAW + 36 * i + 4 * j, 4), 5 + i, 128 * j, c.sc))
    return RAW, X

def p4_ln2(c, RAW, X):
    p = c.p
    p.I('v_and_b32 v7, 3, v4\nv_lshrrev_b32 v8, 2, v4\nv_lshlrev_b32 v9, 12, v8\ns_lshl_b32 s6, s3, 10\nv_add_u32 v9, s6, v9\nv_lshl_add_u32 v9, v7, 8, v9')
    p.I('v_lshl_add_u32 v8, v8, 2, v7')
    for i in range(2):
        p.I('v_add_u32 v10, %d, v3\nv_xor_b32 v10, v10, v8\nv_lshl_add_u32 v%d, v10, 4, v9' % (8 * i, 11 + i))
    A = 208
    for i in range(2):
        for k in range(36): unpack(p, X + 2 * k, RAW + 36 * i + k, 99)
        p.I('v_pk_add_f32 %s, %s, %s\nv_pk_add_f32 %s, %s, %s' % (vr(A, 2), vr(X, 2), vr(X + 2, 2), vr(A + 2, 2), vr(X + 4, 2), vr(X + 6, 2)))
        for k in range(4, 36, 2):
            p.I('v_pk_add_f32 %s, %s, %s\nv_pk_add_f32 %s, %s, %s' % (vr(A, 2), vr(A, 2), vr(X + 2 * k, 2), vr(A + 2, 2), vr(A + 2, 2), vr(X + 2 * k + 2, 2)))
        p.I('v_pk_add_f32 %s, %s, %s\nv_add_f32 v%d, v%d, v%d' % (vr(A, 2), vr(A, 2), vr(A + 2, 2), A, A, A + 1))
        reduce8(p, [A])
        p.I('v_mul_f32 v%d, s98, v%d\nv_sub_f32 v%d, 0, v%d\nv_mov_b32 v%d, v%d' % (A, A, A, A, A + 1, A))
        for k in range(36): p.I('v_pk_add_f32 %s, %s, %s' % (vr(X + 2 * k, 2), vr(X + 2 * k, 2), vr(A, 2)))
        p.I('v_pk_mul_f32 %s, %s, %s\nv_pk_mul_f32 %s, %s, %s' % (vr(A, 2), vr(X, 2), vr(X, 2), vr(A + 2, 2), vr(X + 2, 2), vr(X + 2, 2)))
        for k in range(2, 36, 2):
            p.I('v_pk_fma_f32 %s, %s, %s, %s\nv_pk_fma_f32 %s, %s, %s, %s' % (vr(A, 2), vr(X + 2 * k, 2), vr(X + 2 * k, 2), vr(A, 2), vr(A + 2, 2), vr(X + 2 * k + 2, 2), vr(X + 2 * k + 2, 2), vr(A + 2, 2)))
        p.I('v_pk_add_f32 %s, %s, %s\nv_add_f32 v%d, v%d, v%d' % (vr(A, 2), vr(A, 2), vr(A + 2, 2), A, A, A + 1))
        reduce8(p, [A])
        p.I('v_mul_f32 v%d, s98, v%d\nv_add_f32 v%d, s97, v%d\nv_rsq_f32 v%d, v%d\nv_mov_b32 v%d, v%d' % (A, A, A, A, A, A, A + 1, A))
        for k in range(36): p.I('v_pk_mul_f32 %s, %s, %s' % (vr(X + 2 * k, 2), vr(X + 2 * k, 2), vr(A, 2)))
        for k in range(36): p.I('v_cvt_pk_bf16_f32 v%d, v%d, v%d' % (RAW + 36 * i + k, X + 2 * k, X + 2 * k + 1))
        for j in range(8): p.I('ds_write_b128 v%d, %s offset:%d' % (11 + i, vr(RAW + 36 * i + 4 * j, 4), A2_BASE + 8192 * j))
        p.I('v_add_u32 v13, 65536, v%d\nds_write_b128 v13, %s offset:%d' % (11 + i, vr(RAW + 36 * i + 32, 4), A2_BASE))
    p.I('s_waitcnt lgkmcnt(0)\ns_barrier')

class Filler:
    def __init__(self, p): self.p = p; self.q = []; self.acc = 0.0; self.rate = 0.0
    def add(self, lines): self.q += [l for l in lines.split('\n') if l.strip()]
    def set_rate(self, nslots): self.rate = len(self.q) / float(nslots); self.acc = 0.0
    def tick(self):
        self.acc += self.rate
        while self.acc >= 1.0 and self.q:
            self.p.I(self.q.pop(0)); self.acc -= 1.0
    def flush(self):
        while self.q: self.p.I(self.q.pop(0))

def gelu_tile_lines(a, tmp, o, s1, vc2):
    L_ = []
    for r in range(4): L_.append('v_mul_f32 v%d, v%d, v%d' % (tmp + r, a + r, a + r))
    for r in range(4): L_.append('v_fma_f32 v%d, v%d, v%d, s%d' % (tmp + r, tmp + r, vc2, s1))
    for r in range(4): L_.append('v_mul_f32 v%d, v%d, v%d' % (tmp + r, tmp + r, a + r))
    for r in range(4): L_.append('v_exp_f32 v%d, v%d' % (tmp + r, tmp + r))
    for r in range(4): L_.append('v_add_f32 v%d, 1.0, v%d' % (tmp + r, tmp + r))
    for r in range(4): L_.append('v_rcp_f32 v%d, v%d' % (tmp + r, tmp + r))
    for r in range(4): L_.append('v_mul_f32 v%d, v%d, v%d' % (tmp + r, a + r, tmp + r))
    L_.append('v_cvt_pk_bf16_f32 v%d, v%d, v%d' % (o, tmp, tmp + 1))
    L_.append('v_cvt_pk_bf16_f32 v%d, v%d, v%d' % (o + 1, tmp + 2, tmp + 3))
    return L_

def p4_main(c):
    p = c.p
    GA = [64, 112]; OA, OB, OC = 160, 64, 128
    BF = 224
    GT, GO = 32, 40
    VA_E, VA_O, VG, VGW = 14, 15, 16, 17
    VC2 = 20
    gelu_consts(p, 8, 9)
    p.I('v_mov_b32 v%d, s9' % VC2)
    p.I('v_and_b32 v3, 15, v1\nv_lshrrev_b32 v4, 4, v1')
    p.I('v_xor_b32 v5, v3, v4\nv_lshl_add_u32 v5, v4, 4, v5\nv_lshlrev_b32 v%d, 4, v5' % VA_E)
    p.I('v_xor_b32 v%d, 64, v%d' % (VA_O, VA_E))
    p.I('v_lshlrev_b32 v%d, 4, v1\nv_add_u32 v%d, %d, v%d' % (VG, VG, G_BASE, VG))
    p.I('v_add_u32 v24, 65536, v%d\nv_add_u32 v25, 65536, v%d\nv_add_u32 v26, 65536, v%d' % (VA_E, VA_O, VG))
    for e in range(3):
        p.I('s_mul_i32 s6, s3, 3\ns_add_u32 s6, s6, %d\ns_lshr_b32 s7, s6, 1\ns_lshl_b32 s7, s7, 12\ns_and_b32 s6, s6, 1\ns_lshl_b32 s6, s6, 3\ns_add_u32 s6, s6, s7\nv_add_u32 v%d, s6, v%d' % (e, VGW + e, VG))
    F = Filler(p)
    def gelu_fill(ch):
        g = GA[ch % 2]
        for e in range(3):
            for tt in range(4):
                k = (e * 4 + tt) % 2
                F.add('\n'.join(gelu_tile_lines(g + 4 * (e * 4 + tt), GT + 4 * k, GO + 2 * k, 8, VC2)))
                F.add('ds_write_b64 v%d, %s offset:%d' % (VGW + e, vr(GO + 2 * k, 2), ch * 6 * 4096 + tt * 1024))
    step = [0]
    def frag_step(accs, bregs, first):
        n = step[0]
        a = ar(4 * (n % RING), 4)
        for tt in range(4):
            cc = '0' if first else vr(accs[tt], 4)
            p.I('v_mfma_f32_16x16x32_bf16 %s, %s, %s, %s' % (vr(accs[tt], 4), a, vr(bregs[tt], 4), cc))
            F.tick()
        p4_wload(c)
        step[0] += 1
    def ld_act(ks):
        for tt in range(4):
            off = A2_BASE + (ks * 4 + tt) * 1024
            va = (VA_E if ks % 2 == 0 else VA_O) if off < 65536 else (24 if ks % 2 == 0 else 25)
            p.I('ds_read_b128 %s, v%d offset:%d' % (vr(BF + 16 * (ks % 2) + 4 * tt, 4), va, off % 65536))
    def ld_g(pl, par):
        for tt in range(4):
            off = (pl * 4 + tt) * 1024
            p.I('ds_read_b128 %s, v%d offset:%d' % (vr(BF + 16 * par + 4 * tt, 4), VG if off < 65536 else 26, off % 65536))
    ld_act(0)
    for ch in range(3):
        if ch > 0:
            gelu_fill(ch - 1); F.set_rate(216 - 24)
        g = GA[ch % 2]
        for ks in range(18):
            nxt = ks + 1
            if nxt < 18: ld_act(nxt)
            elif ch < 2: ld_act(0)
            b = [BF + 16 * (ks % 2) + 4 * tt for tt in range(4)]
            for e in range(3):
                frag_step([g + 4 * (e * 4 + tt) for tt in range(4)], b, ks == 0)
        F.flush()
        c.mstamp(ch)
    p.I('s_waitcnt lgkmcnt(0)\ns_barrier')
    gelu_fill(2); F.set_rate(12 * 16 - 16)
    def batch(acc, ntile, pls, first_pl, pre_barrier_at=None):
        par = 0
        ld_g(pls[0], par)
        for idx, pl in enumerate(pls):
            if pre_barrier_at is not None and pl == pre_barrier_at:
                F.flush()
                p.I('s_waitcnt lgkmcnt(0)\ns_barrier')
                ld_g(pl, par)
            if idx + 1 < len(pls) and not (pre_barrier_at is not None and pls[idx + 1] == pre_barrier_at):
                ld_g(pls[idx + 1], par ^ 1)
            b = [BF + 16 * par + 4 * tt for tt in range(4)]
            for j in range(ntile):
                frag_step([acc + 4 * (j * 4 + tt) for tt in range(4)], b, pl == first_pl)
            par ^= 1
    batch(OA, 4, list(range(18)), 0, pre_barrier_at=12)
    c.mstamp(3)
    srd(p, 68, P_WS, 32 * 8 * 8 * 9216, off=L.PART)
    VP = 21
    p.I('v_bfe_u32 v5, v1, 3, 1\ns_movk_i32 s6, %d\nv_mul_u32_u24 v5, %d, v5' % (0, 8 * 9216))
    p.I('v_and_b32 v6, 7, v1\nv_lshl_add_u32 v5, v6, 6, v5\nv_lshrrev_b32 v6, 4, v1\nv_lshl_add_u32 v7, v6, 4, v5')
    p.I('s_lshl_b32 s6, s5, 6\ns_add_u32 s6, s6, s4\ns_mul_i32 s6, s6, 9216')
    p.I('s_lshl_b32 s7, s3, 10\ns_add_u32 s7, s7, s6\nv_add_u32 v%d, s7, v7' % VP)
    p.I('v_and_b32 v6, 7, v1\nv_lshlrev_b32 v6, 5, v6\nv_lshrrev_b32 v7, 4, v1\nv_lshl_add_u32 v6, v7, 3, v6\nv_bfe_u32 v5, v1, 3, 1\nv_mul_u32_u24 v5, %d, v5\nv_add_u32 v6, v5, v6' % (8 * 9216))
    p.I('s_lshl_b32 s7, s3, 8\ns_add_u32 s7, s7, s6\ns_add_u32 s7, s7, 8192\nv_add_u32 v%d, s7, v6' % (VP + 1))
    def publish_lines(acc, goff):
        Ls = []
        PK = 44
        for tt in range(4):
            pk = PK + 8 * (tt % 2)
            for j in range(4):
                a = acc + 4 * (j * 4 + tt)
                Ls.append('v_cvt_pk_bf16_f32 v%d, v%d, v%d' % (pk + 2 * j, a, a + 1))
                Ls.append('v_cvt_pk_bf16_f32 v%d, v%d, v%d' % (pk + 2 * j + 1, a + 2, a + 3))
            Ls.append('s_mov_b32 s7, %d' % (tt * 2 * 8 * 9216 + goff))
            Ls.append('buffer_store_dwordx4 %s, v%d, s[68:71], s7 offen%s' % (vr(pk, 4), VP, c.sc))
            Ls.append('buffer_store_dwordx4 %s, v%d, s[68:71], s7 offen offset:512%s' % (vr(pk + 4, 4), VP, c.sc))
        return Ls
    F.add('\n'.join(publish_lines(OA, 0))); F.set_rate(200)
    batch(OB, 4, list(range(18)), 0)
    F.flush()
    c.mstamp(4)
    F.add('\n'.join(publish_lines(OB, 4096))); F.set_rate(56)
    batch(OC, 1, list(range(18)), 0)
    F.flush()
    c.mstamp(5)
    for tt in range(4):
        a = OC + 4 * tt
        p.I('v_cvt_pk_bf16_f32 v%d, v%d, v%d\nv_cvt_pk_bf16_f32 v%d, v%d, v%d' % (44 + 2 * tt, a, a + 1, 45 + 2 * tt, a + 2, a + 3))
        p.I('s_mov_b32 s7, %d' % (tt * 2 * 8 * 9216))
        p.I('buffer_store_dwordx2 %s, v%d, s[68:71], s7 offen%s' % (vr(44 + 2 * tt, 2), VP + 1, c.sc))

def p5_final(c):
    p = c.p
    p.I('s_and_b32 s4, s2, 7\ns_lshr_b32 s5, s2, 3')
    srd(p, 48, P_WS, 32 * 8 * 8 * 9216, off=L.PART); srd(p, 52, P_WS, L.S * 1152, off=L.X1); srd(p, 56, P_WS, L.S * 1152, off=L.X2)
    srd(p, 60, P_OUT, L.S * 1152); srd(p, 64, P_WS, 6 * 576 * 4, off=L.MOD)
    p.I('s_mov_b32 s99, 0xffff0000')
    p.I('s_lshl_b32 s6, s5, 3\ns_add_u32 s6, s6, s4\ns_mul_i32 s6, s6, %d\nv_lshl_add_u32 v2, v0, 4, s6' % (8 * 9216))
    PA = 32
    for u in range(2):
        for src in range(8):
            p.I('s_mov_b32 s7, %d\nbuffer_load_dwordx4 %s, v2, s[48:51], s7 offen%s' % (src * 9216 + u * 4096, vr(PA + 32 * u + 4 * src, 4), c.sc))
    p.I('v_lshlrev_b32 v3, 3, v0\nv_add_u32 v3, s6, v3\nv_add_u32 v3, 8192, v3\nv_cmp_gt_u32 vcc, 128, v0\nv_mov_b32 v4, 0x7f000000\nv_cndmask_b32 v3, v4, v3, vcc')
    PB = 96
    for src in range(8):
        p.I('s_mov_b32 s7, %d\nbuffer_load_dwordx2 %s, v3, s[48:51], s7 offen%s' % (src * 9216, vr(PB + 2 * src, 2), c.sc))
    p.I('v_bfe_u32 v5, v0, 2, 3\ns_lshl_b32 s6, s5, 6\ns_lshl_b32 s7, s4, 3\ns_add_u32 s6, s6, s7\nv_add_u32 v5, s6, v5\ns_movk_i32 s7, 1152\nv_mul_lo_u32 v5, v5, s7')
    p.I('v_lshrrev_b32 v6, 6, v0\nv_lshlrev_b32 v6, 6, v6\nv_and_b32 v7, 3, v0\nv_lshl_add_u32 v6, v7, 4, v6\nv_bfe_u32 v7, v0, 5, 1\nv_lshl_add_u32 v6, v7, 3, v6')
    p.I('v_lshl_add_u32 v8, v6, 1, v5\nv_lshlrev_b32 v9, 2, v6\nv_add_u32 v9, %d, v9' % (5 * 2304))
    p.I('v_lshrrev_b32 v10, 5, v0\nv_and_b32 v7, 3, v0\nv_lshlrev_b32 v7, 4, v7\nv_lshl_add_u32 v10, v10, 2, v7\nv_add_u32 v10, 512, v10')
    p.I('v_lshl_add_u32 v11, v10, 1, v5\nv_lshlrev_b32 v12, 2, v10\nv_add_u32 v12, %d, v12' % (5 * 2304))
    p.I('v_cndmask_b32 v11, v4, v11, vcc\nv_cndmask_b32 v12, v4, v12, vcc')
    X1R, X2R, GB = 112, 124, 136
    for u in range(2):
        p.I('buffer_load_dwordx4 %s, v8, s[52:55], 0 offen offset:%d%s' % (vr(X1R + 4 * u, 4), 512 * u, c.sc))
        p.I('buffer_load_dwordx4 %s, v8, s[56:59], 0 offen offset:%d%s' % (vr(X2R + 4 * u, 4), 512 * u, c.sc))
        p.I('buffer_load_dwordx4 %s, v9, s[64:67], 0 offen offset:%d%s' % (vr(GB + 8 * u, 4), 1024 * u, c.sc))
        p.I('buffer_load_dwordx4 %s, v9, s[64:67], 0 offen offset:%d%s' % (vr(GB + 8 * u + 4, 4), 1024 * u + 16, c.sc))
    p.I('buffer_load_dwordx2 %s, v11, s[52:55], 0 offen%s' % (vr(X1R + 8, 2), c.sc))
    p.I('buffer_load_dwordx2 %s, v11, s[56:59], 0 offen%s' % (vr(X2R + 8, 2), c.sc))
    p.I('buffer_load_dwordx4 %s, v12, s[64:67], 0 offen%s' % (vr(GB + 16, 4), c.sc))
    AC, U = 160, 180
    def piece(nd, src_reg, x1, x2, gb, out):
        for d in range(nd):
            unpack(p, AC + 2 * d, src_reg(0) + d, 99)
        for src in range(1, 8):
            for d in range(nd):
                unpack(p, U + 2 * d, src_reg(src) + d, 99)
            for d in range(nd):
                p.I('v_pk_add_f32 %s, %s, %s' % (vr(AC + 2 * d, 2), vr(AC + 2 * d, 2), vr(U + 2 * d, 2)))
        for d in range(nd):
            unpack(p, U + 2 * d, x2 + d, 99)
        for d in range(nd):
            p.I('v_pk_add_f32 %s, %s, %s' % (vr(AC + 2 * d, 2), vr(AC + 2 * d, 2), vr(U + 2 * d, 2)))
        for d in range(nd):
            unpack(p, U + 2 * d, x1 + d, 99)
        for d in range(nd):
            p.I('v_pk_fma_f32 %s, %s, %s, %s' % (vr(AC + 2 * d, 2), vr(AC + 2 * d, 2), vr(gb + 2 * d, 2), vr(U + 2 * d, 2)))
        for d in range(nd):
            p.I('v_cvt_pk_bf16_f32 v%d, v%d, v%d' % (out + d, AC + 2 * d, AC + 2 * d + 1))
    for u in range(2):
        piece(4, lambda src: PA + 32 * u + 4 * src, X1R + 4 * u, X2R + 4 * u, GB + 8 * u, 192 + 4 * u)
        p.I('buffer_store_dwordx4 %s, v8, s[60:63], 0 offen offset:%d' % (vr(192 + 4 * u, 4), 512 * u))
    piece(2, lambda src: PB + 2 * src, X1R + 8, X2R + 8, GB + 16, 200)
    p.I('buffer_store_dwordx2 %s, v11, s[60:63], 0 offen' % vr(200, 2))

def kernel_header(name):
    return '.globl %s\n.p2align 8\n.type %s,@function\n%s:\n' % (name, name, name)

def kernel_desc(name, vgpr=512, sgpr=102, accum=256):
    return '''.amdhsa_kernel %s
  .amdhsa_next_free_vgpr %d
  .amdhsa_next_free_sgpr %d
  .amdhsa_accum_offset %d
  .amdhsa_group_segment_fixed_size 0
  .amdhsa_kernarg_size 128
  .amdhsa_user_sgpr_count 2
  .amdhsa_user_sgpr_kernarg_segment_ptr 1
  .amdhsa_system_sgpr_workgroup_id_x 1
.end_amdhsa_kernel
''' % (name, vgpr, sgpr, accum)

def build_k0():
    c = Ctx(False, 0); p = c.p
    prologue(p, end='K0_end')
    c.stamp(0)
    p.I('s_cmp_ge_u32 s2, 192\ns_cbranch_scc1 K0_pt')
    p.I('s_cmp_ge_u32 s2, 144\ns_cbranch_scc1 K0_mod')
    p0_kv(c)
    p.I('s_waitcnt vmcnt(0)')
    c.stamp_out()
    p.I('s_endpgm'); p.cut()
    p.label('K0_mod')
    p0_mod(c)
    p.I('s_waitcnt vmcnt(0)')
    c.stamp_out()
    p.I('s_endpgm'); p.cut()
    p.label('K0_pt')
    p0_pretile(c)
    c.stamp_out()
    p.label('K0_end')
    p.I('s_endpgm')
    return p.finalize()

def build_k1():
    c = Ctx(False, 1, 250); p = c.p
    prologue(p, nwg=192, end='K1_end')
    c.stamp(0)
    p1_pre(c)
    c.stamp(1)
    p1_main(c)
    p.I('s_waitcnt vmcnt(0)')
    c.stamp_out()
    p.label('K1_end')
    p.I('s_endpgm')
    return p.finalize()

def build_k2():
    c = Ctx(False, 2, 255); p = c.p
    prologue(p, nwg=192, end='K2_end')
    c.stamp(0)
    wg_rb_ns(p)
    load_wfrags(c, L.W1T, 0)
    c.stamp(1)
    p2_pre(c)
    c.stamp(2)
    p2_main(c)
    p.I('s_waitcnt vmcnt(0)')
    c.stamp_out()
    p.label('K2_end')
    p.I('s_endpgm')
    return p.finalize()

def build_k3():
    c = Ctx(False, 3, 250); p = c.p
    prologue(p, nwg=192, end='K3_end')
    c.stamp(0)
    wg_rb_ns(p)
    load_wfrags(c, L.W2T, 0)
    c.stamp(1)
    p3_main(c)
    p.I('s_waitcnt vmcnt(0)')
    c.stamp_out()
    p.label('K3_end')
    p.I('s_endpgm')
    return p.finalize()

def build_k4():
    c = Ctx(False, 4, 63); p = c.p
    prologue(p, nwg=256, end='K4_end')
    c.stamp(0)
    p.I('s_and_b32 s4, s2, 7\ns_lshr_b32 s5, s2, 3')
    RAW, X = p4_ln(c)
    p4_ring_start(c)
    c.stamp(1)
    p4_ln2(c, RAW, X)
    c.stamp(2)
    p4_main(c)
    p.I('s_waitcnt vmcnt(0)')
    c.stamp_out()
    p.label('K4_end')
    p.I('s_endpgm')
    return p.finalize()

def build_k5():
    c = Ctx(False, 5, 250); p = c.p
    prologue(p, nwg=256, end='K5_end')
    c.stamp(0)
    p5_final(c)
    p.I('s_waitcnt vmcnt(0)')
    c.stamp_out()
    p.label('K5_end')
    p.I('s_endpgm')
    return p.finalize()

def assemble(kernels):
    hdr = open('cdna_kernels/%s.s.ref' % NAME).read().split('\n')
    lines = [l for l in hdr if l.startswith(';') and '@launch' not in l and 'Override launch' not in l and 'grid=ceil' not in l]
    out = '\n'.join(lines[:17]) + '\n'
    single = len(kernels) == 1 and kernels[0][0] == NAME + '_kernel'
    for k in kernels:
        if single: out += '; @launch grid=(%d,1,1) block=(%d,1,1) lds=%d\n' % (k[2], k[3], k[4])
        else: out += '; @launch kernel=%s grid=(%d,1,1) block=(%d,1,1) lds=%d\n' % (k[0], k[2], k[3], k[4])
    out += '.amdgcn_target "amdgcn-amd-amdhsa--gfx950"\n.text\n'
    seen = []
    for k in kernels:
        if k[0] in seen: continue
        seen.append(k[0])
        out += kernel_header(k[0]) + k[1]
    out += '.section .rodata,"a"\n'
    seen = []
    for k in kernels:
        if k[0] in seen: continue
        seen.append(k[0])
        out += '.p2align 6\n' + kernel_desc(k[0], k[5], 102, k[6])
    return out

if __name__ == '__main__':
    if 'stamps' in sys.argv: STAMPS = True
    ks = [('k0_kernel', build_k0(), 256, 256, 98304, 256, 256),
          ('k1_kernel', build_k1(), 256, 256, CONV_LDS, 256, 256),
          ('k2_kernel', build_k2(), 256, 256, P2_LDS, 512, 256),
          ('k3_kernel', build_k3(), 256, 256, P3_LDS, 512, 256),
          ('k4_kernel', build_k4(), 256, 256, P4_LDS, 512, 256),
          ('k5_kernel', build_k5(), 256, 256, 0, 256, 256)]
    open(sys.argv[1] if len(sys.argv) > 1 else 'out.s', 'w').write(assemble(ks))
```

```python
import os
from asmlib import *
import layout as L
from mk import srd, udiv_magic, f2u, P_WS, P_OUT, unpack, gelu_consts, Filler, reduce8

A2_BASE, G_BASE = 0, 73728
RING = int(os.environ.get('RING', '54'))

def w3_pos(Gl, jn, kh, kk):
    if Gl < 4: return Gl, 5 * kk + 2 * kh + jn
    return Gl - 5, 90 + 4 * kk + 2 * kh + jn
def w4_pos(Gl, jn, kh, pb):
    if Gl < 4: return Gl, 162 + 5 * pb + 2 * kh + jn
    return Gl - 5, 252 + 4 * pb + 2 * kh + jn

def pt34_lane_consts(p):
    p.I('v_bfe_u32 v4, v1, 4, 1\nv_lshrrev_b32 v5, 5, v1\nv_bfe_u32 v9, v1, 2, 2\nv_and_b32 v10, 3, v1')
    p.I('v_lshl_add_u32 v14, v5, 3, v9\nv_lshlrev_b32 v14, 7, v14\nv_lshl_add_u32 v14, v4, 5, v14\nv_lshl_add_u32 v14, v10, 3, v14')
    p.I('v_lshl_add_u32 v15, v5, 2, v9\nv_lshlrev_b32 v15, 7, v15\nv_and_b32 v11, 1, v10\nv_lshl_add_u32 v15, v11, 5, v15\nv_lshl_add_u32 v15, v4, 4, v15\nv_lshrrev_b32 v11, 1, v10\nv_lshl_add_u32 v15, v11, 3, v15')
    p.I('v_lshrrev_b32 v11, 4, v1\nv_lshl_add_u32 v16, v11, 3, v9\nv_lshlrev_b32 v16, 7, v16\nv_lshl_add_u32 v16, v10, 3, v16')
    p.I('v_lshl_add_u32 v17, v5, 2, v4\nv_lshl_add_u32 v17, v17, 2, v9\nv_lshlrev_b32 v17, 7, v17\nv_lshl_add_u32 v17, v10, 3, v17')

def pt34_decode(c, stask, SRD, ST):
    p = c.p
    w4 = p.label_name('L_t4'); cm = p.label_name('L_tc')
    p.I('s_cmp_ge_u32 s%d, 216\ns_cbranch_scc1 %s' % (stask, w4))
    p.I('s_mul_i32 s8, s%d, %d\ns_lshr_b32 s8, s8, 16\ns_mul_i32 s9, s8, 3\ns_sub_u32 s9, s%d, s9' % (stask, udiv_magic(3, 300), stask))
    for k in range(4): p.I('s_mov_b32 s%d, s%d' % (SRD + k, 56 + k))
    p.I('s_mul_i32 s%d, s9, %d\ns_lshl_b32 s10, s8, 7\ns_add_u32 s%d, s%d, s10' % (ST + 4, 6 * 32 * 9216, ST + 4, ST + 4))
    p.I('s_mov_b32 s%d, %d\ns_movk_i32 s%d, 9216\ns_mov_b32 s%d, 0' % (ST + 5, 32 * 9216, ST + 6, ST + 8))
    p.I('s_mul_i32 s10, s8, %d\ns_lshr_b32 s10, s10, 16\ns_mul_i32 s11, s10, 9\ns_sub_u32 s11, s8, s11\ns_mov_b32 s12, 0' % udiv_magic(9, 100))
    p.I('s_branch %s' % cm)
    p.label(w4)
    p.I('s_sub_u32 s7, s%d, 216\ns_mul_i32 s10, s7, %d\ns_lshr_b32 s10, s10, 16\ns_mul_i32 s9, s10, 27\ns_sub_u32 s7, s7, s9' % (stask, udiv_magic(27, 600)))
    p.I('s_mul_i32 s11, s7, %d\ns_lshr_b32 s11, s11, 16\ns_mul_i32 s9, s11, 3\ns_sub_u32 s9, s7, s9' % udiv_magic(3, 32))
    for k in range(4): p.I('s_mov_b32 s%d, s%d' % (SRD + k, 60 + k))
    p.I('s_mul_i32 s13, s10, 18\ns_mul_i32 s14, s9, 6\ns_add_u32 s13, s13, s14\ns_mul_i32 s%d, s13, %d\ns_lshl_b32 s13, s11, 7\ns_add_u32 s%d, s%d, s13' % (ST + 4, 32 * 1152, ST + 4, ST + 4))
    p.I('s_mov_b32 s%d, %d\ns_movk_i32 s%d, 1152\ns_mov_b32 s%d, 1\ns_movk_i32 s12, 162' % (ST + 5, 32 * 1152, ST + 6, ST + 8))
    p.label(cm)
    p.I('s_cmp_le_u32 s11, 4\ns_cselect_b32 s13, 5, 4\ns_cselect_b32 s14, 0, 90\ns_add_u32 s12, s12, s14\ns_mul_i32 s14, s9, 6\ns_mul_i32 s14, s14, s13\ns_add_u32 s12, s12, s14\ns_lshl_b32 s%d, s13, 10' % (ST + 7))
    p.I('s_sub_u32 s14, s11, 5\ns_cmp_lt_u32 s11, 4\ns_cselect_b32 s14, s11, s14')
    sm = p.label_name('L_ts'); dn = p.label_name('L_td')
    p.I('s_cmp_eq_u32 s11, 4\ns_cbranch_scc1 %s' % sm)
    p.I('s_lshl_b32 s7, s10, 2\ns_add_u32 s7, s7, s14\ns_mul_i32 s7, s7, 324\ns_add_u32 s7, s7, s12\ns_lshl_b32 s7, s7, 10\ns_add_u32 s7, s7, %d' % (L.W34T - L.W1T))
    for jn in range(2):
        for kh in range(2): p.I('s_add_u32 s%d, s7, %d' % (ST + 2 * jn + kh, (2 * kh + jn) * 1024))
    p.I('s_branch %s' % dn)
    p.label(sm)
    p.I('s_add_u32 s%d, s%d, 2' % (ST + 8, ST + 8))
    for j in range(4):
        p.I('s_lshl_b32 s7, s10, 2\ns_add_u32 s7, s7, %d\ns_mul_i32 s7, s7, 324\ns_add_u32 s7, s7, s12\ns_add_u32 s7, s7, 4\ns_lshl_b32 s7, s7, 10\ns_add_u32 s%d, s7, %d' % (j, ST + j, L.W34T - L.W1T))
    p.label(dn)
    p.I('s_cmp_ge_u32 s%d, 432' % stask)
    for k in range(5): p.I('s_cselect_b32 s%d, 0x7f000000, s%d' % (ST + k, ST + k))
    for k in (5, 7): p.I('s_cselect_b32 s%d, 0, s%d' % (ST + k, ST + k))

def pretile34(c, swave):
    p = c.p
    NB, NU = 8, 12
    pt34_lane_consts(p)
    STA, STB = 80, 90
    p.I('s_mul_i32 s15, s3, %d' % (NB * 4096))
    p.I('s_add_u32 s79, s%d, 256' % swave)
    pt34_decode(c, swave, 64, STA)
    pt34_decode(c, 79, 52, STB)
    p.I('v_mad_u32_u24 v12, v2, s%d, v3\nv_add_u32 v12, s%d, v12' % (STA + 6, STA + 4))
    p.I('v_mad_u32_u24 v13, v2, s%d, v3\nv_add_u32 v13, s%d, v13' % (STB + 6, STB + 4))
    p.I('s_lshl_b32 s4, s%d, 3\ns_lshl_b32 s5, s%d, 3' % (STA + 6, STB + 6))
    def issue(n):
        A = n < 6
        va, srdn, s8r, sstep = (12, 64, 4, STA + 5) if A else (13, 52, 5, STB + 5)
        p.I('v_mov_b32 v9, v%d' % va)
        t = None
        for q in range(4):
            p.I('s_add_u32 m0, s15, %d' % ((n % NB) * 4096 + q * 1024))
            if q: p.I('v_add_u32 v9, s%d, v9' % s8r)
            t = p.I('buffer_load_dwordx4 v9, s[%d:%d], 0 offen lds' % (srdn, srdn + 3), nowait=True)
        p.I('v_add_u32 v%d, s%d, v%d' % (va, sstep, va))
        return t
    def process(n):
        ST = STA if n < 6 else STB
        R = 20 + 16 * (n % 2)
        labs = [p.label_name('L_k%d' % k) for k in range(4)]; le = p.label_name('L_ke')
        for k in range(1, 4): p.I('s_cmp_eq_u32 s%d, %d\ns_cbranch_scc1 %s' % (ST + 8, k, labs[k]))
        for k, (va, second) in enumerate(((14, 512), (15, 1024), (16, 512), (17, 1024))):
            if k: p.label(labs[k])
            p.I('s_add_u32 s6, s15, %d\nv_add_u32 v10, s6, v%d' % ((n % NB) * 4096, va))
            for f in range(4):
                off = (f // 2) * 64 + (f % 2) * 2048 if k < 2 else 32 * f
                p.I('ds_read_b64_tr_b16 %s, v10 offset:%d' % (vr(R + 4 * f, 2), off), nowait=True)
                p.I('ds_read_b64_tr_b16 %s, v10 offset:%d' % (vr(R + 4 * f + 2, 2), off + second), nowait=True)
            if k < 3: p.I('s_branch %s' % le)
        p.label(le)
        p.I('s_waitcnt lgkmcnt(0)')
        for f in range(4):
            p.I('v_add_u32 v11, s%d, v8\ns_add_u32 s%d, s%d, s%d' % (ST + f, ST + f, ST + f, ST + 7))
            p.I('buffer_store_dwordx4 %s, v11, s[68:71], 0 offen%s' % (vr(R + 4 * f, 4), c.sc), nowait=True)
    toks = [issue(n) for n in range(NB - 1)]
    for n in range(NU):
        if n + NB - 1 < NU: toks.append(issue(n + NB - 1))
        p.wait(toks[n])
        process(n)
    p.I('s_waitcnt vmcnt(0)'); p.cut()

def ring_start(c):
    p = c.p
    srd(p, 64, P_WS, 32 * 324 * 1024, off=L.W34T)
    p.I('s_lshl_b32 s6, s4, 2\ns_add_u32 s6, s6, s3\ns_mul_i32 s6, s6, %d\nv_lshl_add_u32 v2, v1, 4, s6' % (324 * 1024))
    c.wn = 0
    for n in range(RING): wload(c)

def wload(c):
    p = c.p
    n = c.wn
    if n >= 324: return
    if n % 4 == 0 and n > 0: p.I('v_add_u32 v2, 4096, v2')
    p.I('buffer_load_dwordx4 %s, v2, s[64:67], 0 offen offset:%d%s' % (ar(4 * (n % RING), 4), 1024 * (n % 4), c.sc))
    c.wn += 1

def ln_addr(c):
    p = c.p
    p.I('v_lshrrev_b32 v7, 1, v4\nv_lshlrev_b32 v9, 11, v7\ns_lshr_b32 s6, s3, 1\ns_lshl_b32 s6, s6, 10\nv_add_u32 v9, s6, v9')
    p.I('v_and_b32 v7, 1, v4\nv_lshlrev_b32 v7, 5, v7\ns_and_b32 s6, s3, 1\ns_lshl_b32 s6, s6, 4\nv_add_u32 v7, s6, v7\nv_add_u32 v7, v7, v3')
    for i in range(2):
        p.I('v_add_u32 v10, %d, v7\nv_xor_b32 v10, v10, v4\nv_lshl_add_u32 v%d, v10, 4, v9' % (8 * i, 11 + i))

def gelu4_lines(a, tmp, o, s1, vc2):
    L_ = []
    for r in range(4): L_.append('v_mul_f32 v%d, v%d, v%d' % (tmp + r, a + r, a + r))
    for r in range(4): L_.append('v_fma_f32 v%d, v%d, v%d, s%d' % (tmp + r, tmp + r, vc2, s1))
    for r in range(4): L_.append('v_mul_f32 v%d, v%d, v%d' % (tmp + r, tmp + r, a + r))
    for r in range(4): L_.append('v_exp_f32 v%d, v%d' % (tmp + r, tmp + r))
    for r in range(4): L_.append('v_add_f32 v%d, 1.0, v%d' % (tmp + r, tmp + r))
    for r in range(4): L_.append('v_rcp_f32 v%d, v%d' % (tmp + r, tmp + r))
    for r in range(4): L_.append('v_mul_f32 v%d, v%d, v%d' % (tmp + r, a + r, tmp + r))
    L_.append('v_cvt_pk_bf16_f32 v%d, v%d, v%d' % (o, tmp, tmp + 1))
    L_.append('v_cvt_pk_bf16_f32 v%d, v%d, v%d' % (o + 1, tmp + 2, tmp + 3))
    return L_

def mlp_setup(c):
    p = c.p
    gelu_consts(p, 8, 9)
    p.I('v_mov_b32 v20, s9')
    p.I('v_lshrrev_b32 v3, 5, v1')
    for q in range(4):
        p.I('v_add_u32 v4, %d, v3\nv_xor_b32 v4, v4, v1\nv_lshlrev_b32 v%d, 4, v4\nv_add_u32 v%d, 65536, v%d' % (2 * q, 14 + q, 24 + q, 14 + q))
    p.I('v_and_b32 v4, 15, v1\nv_bfe_u32 v5, v1, 4, 1\nv_lshl_add_u32 v4, v5, 5, v4')
    for par in range(2):
        p.I('v_lshlrev_b32 v6, 1, v3\nv_add_u32 v6, %d, v6\nv_add_u32 v6, v6, v5\nv_xor_b32 v6, v6, v4\nv_lshlrev_b32 v6, 4, v6\nv_lshl_add_u32 v%d, v3, 11, v6' % (4 * par, 28 + par))
    p.I('v_add_u32 v30, 65536, v28\nv_add_u32 v31, 65536, v29')
    p.I('v_lshlrev_b32 v18, 4, v1\nv_add_u32 v18, %d, v18\nv_add_u32 v19, 65536, v18' % G_BASE)
    p.I('v_lshlrev_b32 v60, 4, v4\nv_lshl_add_u32 v60, v3, 11, v60\nv_add_u32 v60, %d, v60\nv_add_u32 v61, 65536, v60' % G_BASE)
    p.I('s_lshl_b32 s6, s3, 13\nv_add_u32 v22, s6, v18\ns_add_u32 s6, s6, %d\nv_add_u32 v23, s6, v18' % (20 * 2048))
    p.I('v_lshlrev_b32 v62, 4, v4\nv_lshl_add_u32 v62, v3, 3, v62\ns_add_u32 s6, s3, 16\ns_lshl_b32 s6, s6, 11\ns_add_u32 s6, s6, %d\nv_add_u32 v62, s6, v62' % G_BASE)
    srd(p, 68, P_WS, 32 * 8 * 8 * 9216, off=L.PART)
    p.I('v_bfe_u32 v5, v1, 3, 2\nv_mul_u32_u24 v5, %d, v5\nv_and_b32 v6, 7, v1\nv_lshl_add_u32 v5, v6, 5, v5\nv_lshl_add_u32 v5, v3, 4, v5' % (8 * 9216))
    p.I('s_lshl_b32 s6, s5, 6\ns_add_u32 s6, s6, s4\ns_mul_i32 s6, s6, 9216\nv_add_u32 v21, s6, v5')
    p.I('v_bfe_u32 v5, v1, 3, 1\nv_mul_u32_u24 v5, %d, v5\nv_and_b32 v6, 7, v1\nv_lshl_add_u32 v5, v6, 5, v5\nv_lshrrev_b32 v6, 4, v1\nv_lshl_add_u32 v5, v6, 3, v5' % (8 * 9216))
    p.I('s_lshl_b32 s7, s3, 8\ns_add_u32 s7, s7, s6\ns_add_u32 s7, s7, 8192\nv_add_u32 v63, s7, v5')

def mlp_main(c):
    p = c.p
    GA, GS, GB = 64, 128, 160
    BF, SF = 224, 144
    GT, GO = 32, 40
    F = Filler(p)
    def gelu_big(acc, vaddr):
        k = 0
        for e in range(2):
            for tt in range(2):
                a = acc + 16 * (e * 2 + tt)
                for h in range(2):
                    o = GO + 4 * (k % 2)
                    for q in range(2):
                        F.add('\n'.join(gelu4_lines(a + 8 * h + 4 * q, GT + 4 * q, o + 2 * q, 8, 20)))
                    F.add('ds_write_b128 v%d, %s offset:%d' % (vaddr, vr(o, 4), e * 4096 + h * 2048 + tt * 1024))
                    k += 1
    def gelu_small():
        for tq in range(4):
            o = GO + 2 * (tq % 2)
            F.add('\n'.join(gelu4_lines(GS + 4 * tq, GT + 4 * (tq % 2), o, 8, 20)))
            F.add('ds_write_b64 v62, %s offset:%d' % (vr(o, 2), (tq >> 1) * 1024 + (tq & 1) * 256))
    step = [0]
    def big_step(accs, bregs, first):
        a = ar(4 * (step[0] % RING), 4)
        for tt in range(2):
            cc = '0' if first else vr(accs[tt], 16)
            p.I('v_mfma_f32_32x32x16_bf16 %s, %s, %s, %s' % (vr(accs[tt], 16), a, vr(bregs[tt], 4), cc))
            F.tick()
        wload(c); step[0] += 1
    def small_step(acc, first):
        a = ar(4 * (step[0] % RING), 4)
        for tq in range(4):
            cc = '0' if first else vr(acc + 4 * tq, 4)
            p.I('v_mfma_f32_16x16x32_bf16 %s, %s, %s, %s' % (vr(acc + 4 * tq, 4), a, vr(SF + 4 * tq, 4), cc))
        F.tick()
        wload(c); step[0] += 1
    def ld_act(ks):
        for tt in range(2):
            off = A2_BASE + (ks * 2 + tt) * 1024
            p.I('ds_read_b128 %s, v%d offset:%d' % (vr(BF + 8 * (ks % 3) + 4 * tt, 4), (14 if off < 65536 else 24) + (ks & 3), off % 65536))
    def ld_act_small(K2):
        for tq in range(4):
            off = A2_BASE + K2 * 4096 + (tq >> 1) * 1024 + (tq & 1) * 256
            p.I('ds_read_b128 %s, v%d offset:%d' % (vr(SF + 4 * tq, 4), (28 if off < 65536 else 30) + (K2 & 1), off % 65536))
    def ld_g(ksf):
        for tt in range(2):
            off = (ksf * 2 + tt) * 1024
            p.I('ds_read_b128 %s, v%d offset:%d' % (vr(BF + 8 * (ksf % 3) + 4 * tt, 4), 18 if off < 65536 else 19, off % 65536))
    def ld_g_small(K2):
        for tq in range(4):
            off = K2 * 4096 + (tq >> 1) * 1024 + (tq & 1) * 256
            p.I('ds_read_b128 %s, v%d offset:%d' % (vr(SF + 4 * tq, 4), 60 if off < 65536 else 61, off % 65536))
    def loop(acc, sacc, ldb, lds_, barrier_at=None):
        ldb(0); ldb(1)
        for ks in range(36):
            if barrier_at is not None and ks == barrier_at:
                F.flush()
                p.I('s_waitcnt lgkmcnt(0)\ns_barrier')
                ldb(ks); ldb(ks + 1)
            nx = ks + 2
            if nx < 36 and not (barrier_at is not None and barrier_at - 2 <= ks < barrier_at): ldb(nx)
            if sacc is not None and ks % 2 == 0: lds_(ks >> 1)
            b = [BF + 8 * (ks % 3) + 4 * tt for tt in range(2)]
            for e in range(2):
                big_step([acc + 16 * (e * 2 + tt) for tt in range(2)], b, ks == 0)
            if sacc is not None and ks % 2 == 1: small_step(sacc, ks == 1)
    loop(GA, GS, ld_act, ld_act_small)
    c.mstamp(1)
    gelu_big(GA, 22); gelu_small(); F.set_rate(144 - 6)
    loop(GB, None, ld_act, None)
    F.flush()
    c.mstamp(2)
    p.I('s_waitcnt lgkmcnt(0)\ns_barrier')
    OA, OS, OB = 64, 128, 160
    gelu_big(GB, 23); F.set_rate(80 + 10 - 6)
    loop(OA, OS, ld_g, ld_g_small, barrier_at=20)
    c.mstamp(3)
    def publish_big(acc, t0):
        Ls = []
        PK = 44
        k = 0
        for e in range(2):
            for tt in range(2):
                a = acc + 16 * (e * 2 + tt)
                pk = PK + 8 * (k % 2); k += 1
                for d in range(8): Ls.append('v_cvt_pk_bf16_f32 v%d, v%d, v%d' % (pk + d, a + 2 * d, a + 2 * d + 1))
                Ls.append('s_add_u32 s7, s10, %d' % (tt * 4 * 8 * 9216 + (t0 + e) * 512))
                Ls.append('buffer_store_dwordx4 %s, v21, s[68:71], s7 offen%s' % (vr(pk, 4), c.sc))
                Ls.append('buffer_store_dwordx4 %s, v21, s[68:71], s7 offen offset:256%s' % (vr(pk + 4, 4), c.sc))
        return '\n'.join(Ls)
    def publish_small():
        Ls = []
        for tq in range(4):
            a = OS + 4 * tq; pk = 32 + 2 * tq
            Ls.append('v_cvt_pk_bf16_f32 v%d, v%d, v%d' % (pk, a, a + 1)); Ls.append('v_cvt_pk_bf16_f32 v%d, v%d, v%d' % (pk + 1, a + 2, a + 3))
            Ls.append('s_mov_b32 s7, %d' % (tq * 2 * 8 * 9216))
            Ls.append('buffer_store_dwordx2 %s, v63, s[68:71], s7 offen%s' % (vr(pk, 2), c.sc))
        return '\n'.join(Ls)
    p.I('s_lshl_b32 s10, s3, 10')
    F.add(publish_big(OA, 0)); F.add(publish_small()); F.set_rate(100)
    loop(OB, None, ld_g, None)
    F.flush()
    p.I(publish_big(OB, 8))

def final(c):
    p = c.p
    srd(p, 48, P_WS, 32 * 8 * 8 * 9216, off=L.PART); srd(p, 52, P_WS, L.S * 1152, off=L.X1); srd(p, 56, P_WS, L.S * 1152, off=L.X2)
    srd(p, 60, P_OUT, L.S * 1152); srd(p, 64, P_WS, 6 * 576 * 4, off=L.MOD)
    p.I('s_mov_b32 s99, 0xffff0000')
    p.I('s_lshl_b32 s6, s5, 3\ns_add_u32 s6, s6, s4\ns_mul_i32 s6, s6, %d\nv_lshl_add_u32 v2, v0, 4, s6' % (8 * 9216))
    p.I('v_cmp_gt_u32 vcc, 128, v0\nv_mov_b32 v4, 0x7f000000\nv_lshlrev_b32 v3, 3, v0\nv_add_u32 v3, s6, v3\nv_add_u32 v3, 8192, v3\nv_cndmask_b32 v3, v4, v3, vcc')
    PA, PB = 32, 96
    for u in range(2):
        for src in range(8):
            p.I('s_mov_b32 s7, %d\nbuffer_load_dwordx4 %s, v2, s[48:51], s7 offen%s' % (src * 9216 + u * 4096, vr(PA + 32 * u + 4 * src, 4), c.sc))
    for src in range(8):
        p.I('s_mov_b32 s7, %d\nbuffer_load_dwordx2 %s, v3, s[48:51], s7 offen%s' % (src * 9216, vr(PB + 2 * src, 2), c.sc))
    p.I('v_bfe_u32 v5, v0, 1, 3\ns_lshl_b32 s6, s5, 6\ns_lshl_b32 s7, s4, 3\ns_add_u32 s6, s6, s7\nv_add_u32 v5, s6, v5\ns_movk_i32 s7, 1152\nv_mul_lo_u32 v5, v5, s7')
    p.I('v_lshrrev_b32 v6, 5, v0\nv_lshlrev_b32 v6, 5, v6\nv_and_b32 v7, 1, v0\nv_lshl_add_u32 v6, v7, 4, v6\nv_bfe_u32 v7, v0, 4, 1\nv_lshl_add_u32 v6, v7, 3, v6')
    p.I('v_lshl_add_u32 v8, v6, 1, v5\nv_lshlrev_b32 v9, 2, v6\nv_add_u32 v9, %d, v9' % (5 * 2304))
    p.I('v_bfe_u32 v10, v0, 2, 3\nv_add_u32 v10, s6, v10\nv_mul_lo_u32 v10, v10, s7')
    p.I('v_lshrrev_b32 v11, 5, v0\nv_lshlrev_b32 v11, 4, v11\nv_and_b32 v7, 3, v0\nv_lshl_add_u32 v11, v7, 2, v11\nv_add_u32 v11, 256, v11')
    p.I('v_lshl_add_u32 v10, v11, 1, v10\nv_lshlrev_b32 v11, 2, v11\nv_add_u32 v11, %d, v11' % (5 * 2304))
    p.I('v_cndmask_b32 v10, v4, v10, vcc\nv_cndmask_b32 v11, v4, v11, vcc')
    X1R, X2R, GB = 112, 124, 136
    for u in range(2):
        p.I('buffer_load_dwordx4 %s, v8, s[52:55], 0 offen offset:%d%s' % (vr(X1R + 4 * u, 4), 640 * u, c.sc))
        p.I('buffer_load_dwordx4 %s, v8, s[56:59], 0 offen offset:%d%s' % (vr(X2R + 4 * u, 4), 640 * u, c.sc))
        p.I('buffer_load_dwordx4 %s, v9, s[64:67], 0 offen offset:%d%s' % (vr(GB + 8 * u, 4), 1280 * u, c.sc))
        p.I('buffer_load_dwordx4 %s, v9, s[64:67], 0 offen offset:%d%s' % (vr(GB + 8 * u + 4, 4), 1280 * u + 16, c.sc))
    p.I('buffer_load_dwordx2 %s, v10, s[52:55], 0 offen%s' % (vr(X1R + 8, 2), c.sc))
    p.I('buffer_load_dwordx2 %s, v10, s[56:59], 0 offen%s' % (vr(X2R + 8, 2), c.sc))
    p.I('buffer_load_dwordx4 %s, v11, s[64:67], 0 offen%s' % (vr(GB + 16, 4), c.sc))
    AC, U = 160, 180
    def piece(nd, src_reg, x1, x2, gb, out):
        for d in range(nd): unpack(p, AC + 2 * d, src_reg(0) + d, 99)
        for src in range(1, 8):
            for d in range(nd): unpack(p, U + 2 * d, src_reg(src) + d, 99)
            for d in range(nd): p.I('v_pk_add_f32 %s, %s, %s' % (vr(AC + 2 * d, 2), vr(AC + 2 * d, 2), vr(U + 2 * d, 2)))
        for d in range(nd): unpack(p, U + 2 * d, x2 + d, 99)
        for d in range(nd): p.I('v_pk_add_f32 %s, %s, %s' % (vr(AC + 2 * d, 2), vr(AC + 2 * d, 2), vr(U + 2 * d, 2)))
        for d in range(nd): unpack(p, U + 2 * d, x1 + d, 99)
        for d in range(nd): p.I('v_pk_fma_f32 %s, %s, %s, %s' % (vr(AC + 2 * d, 2), vr(AC + 2 * d, 2), vr(gb + 2 * d, 2), vr(U + 2 * d, 2)))
        for d in range(nd): p.I('v_cvt_pk_bf16_f32 v%d, v%d, v%d' % (out + d, AC + 2 * d, AC + 2 * d + 1))
    for u in range(2):
        piece(4, lambda src: PA + 32 * u + 4 * src, X1R + 4 * u, X2R + 4 * u, GB + 8 * u, 192 + 4 * u)
        p.I('buffer_store_dwordx4 %s, v8, s[60:63], 0 offen offset:%d' % (vr(192 + 4 * u, 4), 640 * u))
    piece(2, lambda src: PB + 2 * src, X1R + 8, X2R + 8, GB + 16, 200)
    p.I('buffer_store_dwordx2 %s, v10, s[60:63], 0 offen' % vr(200, 2))
```

```python
import sys
sys.path.insert(0, 'gen')
from asmlib import *
import layout as L
import mk
import mlp32
from mk import (srd, udiv_magic, f2u, bf16_round, LOG2E, NAME, P_Q, P_K, P_V, P_SK, P_SSMK, P_SSMD, P_W1, P_W2, P_W3, P_W4,
                P_C, P_WMOD, P_OUT, P_DBG, P_WS, unpack, gelu_consts, gelu_inplace, reduce32, reduce8, small_out_addr, gemm_small,
                Filler, gelu_tile_lines, KC_STRIDE, KCOPY, XR_BASE, XR_STRIDE, RED_BASE, kernel_header, kernel_desc, assemble)

STAMPS = False
NCONV = 192
LS = 4352
K_SH, K_TOP, K_REL = 0, 16, 17
V_SH, V_TOP, V_REL = 18, 34, 35
M_CNT, M_REL, A_CNT, A_REL, B_CNT, B_REL = 36, 37, 38, 39, 40, 41
C_H1, C_X2, C_PART = 42, 106, 170
NCNT = 256
S_SYNC = 72
SPIN_MAX = 1 << 17
import os
SLEEP = int(os.environ.get('SLEEP', '1'))

class Ctx:
    def __init__(self):
        self.p = Prog(); self.mega = True; self.sc = ' sc1'; self.first_arrive_done = False
    def stamp(self, k, force=False):
        if not STAMPS: return
        if os.environ.get('FINE2') and k in (6, 7, 8, 9, 10, 11, 12, 13) and not getattr(self, 'fine', False): return
        if os.environ.get('CYC'):
            self.p.I('s_memtime s[76:77]\ns_waitcnt lgkmcnt(0)\nv_accvgpr_write_b32 a%d, s76' % (232 + k))
        else:
            self.p.I('s_memrealtime s[76:77]\ns_waitcnt lgkmcnt(0)\nv_accvgpr_write_b32 a%d, s76' % (232 + k))
    def mstamp(self, i):
        if 1 <= i < 4: self.stamp(17 + i)
    def stamp_out(self):
        if not STAMPS: return
        p = self.p
        self.stamp(23)
        srd(p, 48, P_WS, 1 << 20, off=L.DBG)
        p.I('s_lshl_b32 s76, s2, 2\ns_add_u32 s76, s76, s3\ns_lshl_b32 s76, s76, 7\nv_mov_b32 v2, s76')
        for k in range(24): p.I('buffer_store_dword a%d, v2, s[48:51], 0 offen offset:%d' % (232 + k, 4 * k if k < 23 else 124))

def wave0(p, lab):
    p.I('s_cmp_lg_u32 s3, 0\ns_cbranch_scc1 %s' % lab)

def atomic_ret(p):
    p.I('v_mov_b32 v253, 1\nbuffer_atomic_add v253, v252, s[%d:%d], 0 offen sc0 sc1\ns_waitcnt vmcnt(0)\nv_readfirstlane_b32 s76, v253\ns_nop 3' % (S_SYNC, S_SYNC + 3), nowait=True)

def do_arrive(c, kind, check_ready=False, **kw):
    p = c.p
    if check_ready: ready_check(c)
    p.I('s_mov_b64 exec, 1')
    done = p.label_name('L_ad')
    if kind == 'add':
        if kw.get('sgpr') is None: p.I('v_mov_b32 v252, %d' % (kw['idx'] * LS))
        else: p.I('s_mul_i32 s76, s%d, %d\ns_add_u32 s76, s76, %d\nv_mov_b32 v252, s76' % (kw['sgpr'], LS, kw['idx'] * LS))
        p.I('v_mov_b32 v253, 1\nbuffer_atomic_add v253, v252, s[%d:%d], 0 offen sc1' % (S_SYNC, S_SYNC + 3), nowait=True)
    else:
        if kind == 'two':
            p.I('s_mul_i32 s76, s%d, %d\ns_add_u32 s76, s76, %d\nv_mov_b32 v252, s76' % (kw['sgpr'], LS, kw['sh'] * LS))
            atomic_ret(p)
            p.I('s_cmp_lg_u32 s76, %d\ns_cbranch_scc1 %s' % (kw['per'] - 1, done))
            cnt, n = kw['top'], kw['nsh']
        else: cnt, n = kw['cnt'], kw['n']
        p.I('v_mov_b32 v252, %d' % (cnt * LS))
        atomic_ret(p)
        p.I('s_cmp_lg_u32 s76, %d\ns_cbranch_scc1 %s' % (n - 1, done))
        p.I('v_mov_b32 v252, %d\nv_mov_b32 v253, 1\nbuffer_store_dword v253, v252, s[%d:%d], 0 offen sc1' % (kw['rel'] * LS, S_SYNC, S_SYNC + 3), nowait=True)
    p.label(done)
    p.I('s_mov_b64 exec, -1'); p.cut()

def arrive(c, kind, check_ready=False, **kw):
    p = c.p
    p.I('s_waitcnt vmcnt(0) lgkmcnt(0)\ns_barrier'); p.cut()
    lab = p.label_name('L_arr')
    wave0(p, lab)
    do_arrive(c, kind, check_ready, **kw)
    p.label(lab); p.cut()

def wave_arrive(c, kind, check_ready=False, **kw):
    c.p.I('s_waitcnt vmcnt(0) lgkmcnt(0)'); c.p.cut()
    do_arrive(c, kind, check_ready, **kw)

def ready_check(c):
    p = c.p
    srd(p, 92, P_DBG, 256)
    lp = p.label_name('L_rdy'); dn = p.label_name('L_rdy_done')
    p.I('s_mov_b32 s77, 0\nv_mov_b32 v252, 0')
    p.label(lp)
    p.I('buffer_load_dword v253, v252, s[92:95], 0 offen sc1\ns_waitcnt vmcnt(0)\nv_readfirstlane_b32 s76, v253', nowait=True)
    p.I('s_nop 3\ns_cmp_lg_u32 s76, 0\ns_cbranch_scc1 %s\ns_sleep 2\ns_add_u32 s77, s77, 1\ns_cmp_lt_u32 s77, %d\ns_cbranch_scc1 %s' % (dn, SPIN_MAX, lp))
    p.label(dn); p.cut()

def wait_cnt(c, setup, nlanes):
    p = c.p
    lab = p.label_name('L_wt'); lp = p.label_name('L_poll')
    wave0(p, lab)
    setup(p)
    p.I('s_mov_b32 s77, 0')
    p.I('s_mov_b64 exec, 0x%x' % ((1 << nlanes) - 1))
    p.label(lp)
    p.I('buffer_load_dword v253, v252, s[%d:%d], 0 offen sc1\ns_waitcnt vmcnt(0)\nv_cmp_lt_u32 vcc, v253, v254' % (S_SYNC, S_SYNC + 3), nowait=True)
    p.I('s_add_u32 s77, s77, 1\ns_cmp_ge_u32 s77, %d\ns_cbranch_scc1 %s_x\ns_cbranch_vccz %s_x' % (SPIN_MAX, lp, lp))
    if SLEEP: p.I('s_sleep %d' % SLEEP)
    p.I('s_branch %s' % lp)
    p.label(lp + '_x')
    p.I('s_mov_b64 exec, -1')
    p.label(lab)
    p.I('s_barrier'); p.cut()

def w_flags(*idx):
    def f(p):
        p.I('v_mov_b32 v252, %d\nv_mov_b32 v254, 1' % (idx[0] * LS))
        for k, i in enumerate(idx[1:]):
            p.I('v_mov_b32 v255, %d\nv_cmp_eq_u32 vcc, %d, v1\nv_cndmask_b32 v252, v252, v255, vcc' % (i * LS, k + 1))
    return f, len(idx)

def p0_kv(c):
    p = c.p
    m9 = udiv_magic(9, 576)
    p.I('s_mul_i32 s4, s2, 3\ns_add_u32 s4, s4, s3')
    p.I('s_mul_i32 s5, s4, %d\ns_lshr_b32 s5, s5, 16' % m9)
    p.I('s_mul_i32 s6, s5, 9\ns_sub_u32 s6, s4, s6')
    srd(p, 48, P_K, L.S * 1152); srd(p, 52, P_V, L.S * 1152); srd(p, 56, P_SK, 4608)
    srd(p, 60, P_WS, L.D * 4096, off=L.XT)
    p.I('v_lshrrev_b32 v2, 3, v1\nv_and_b32 v3, 7, v1')
    p.I('s_lshl_b32 s7, s5, 5\nv_lshl_add_u32 v4, v2, 2, s7')
    p.I('s_lshl_b32 s8, s6, 7\nv_lshl_add_u32 v5, v3, 4, s8')
    p.I('s_movk_i32 s9, 1152\nv_mad_u32_u24 v6, v4, s9, v5')
    p.I('v_subrev_u32 v7, 3456, v6')
    KR, VR, SK = 8, 36, 52
    for i in range(3): p.I('buffer_load_dwordx4 %s, v7, s[48:51], 0 offen offset:%d' % (vr(KR + 4 * i, 4), 1152 * i))
    for i in range(4): p.I('buffer_load_dwordx4 %s, v6, s[48:51], 0 offen offset:%d' % (vr(KR + 4 * (3 + i), 4), 1152 * i))
    for i in range(4): p.I('buffer_load_dwordx4 %s, v6, s[52:55], 0 offen offset:%d' % (vr(VR + 4 * i, 4), 1152 * i))
    p.I('v_lshlrev_b32 v68, 2, v5')
    for i in range(4): p.I('buffer_load_dwordx4 %s, v68, s[56:59], 0 offen offset:%d' % (vr(SK + 4 * i, 4), 16 * i))
    p.I('v_lshlrev_b32 v69, 11, v5\nv_lshlrev_b32 v70, 1, v4\nv_sub_u32 v69, v69, v70\nv_add_u32 v69, 4088, v69')
    p.I('s_mov_b32 s10, 0xffff0000')
    if os.environ.get('FINE2'):
        c.fine = True; c.stamp(12); p.I('s_waitcnt vmcnt(0)'); c.stamp(13); c.fine = False
    C, KP, VP, AC, OUT = 72, 80, 94, 102, 112
    for pr in range(4):
        a0, a1, b0, b1 = SK + 4 * pr, SK + 4 * pr + 1, SK + 4 * pr + 2, SK + 4 * pr + 3
        p.I('v_lshlrev_b32 v%d, 16, v%d\nv_lshlrev_b32 v%d, 16, v%d' % (C, a0, C + 1, b0))
        p.I('v_and_b32 v%d, s10, v%d\nv_and_b32 v%d, s10, v%d' % (C + 2, a0, C + 3, b0))
        p.I('v_lshlrev_b32 v%d, 16, v%d\nv_lshlrev_b32 v%d, 16, v%d' % (C + 4, a1, C + 5, b1))
        p.I('v_and_b32 v%d, s10, v%d\nv_and_b32 v%d, s10, v%d' % (C + 6, a1, C + 7, b1))
        for i in range(7):
            p.I('v_lshlrev_b32 v%d, 16, v%d\nv_and_b32 v%d, s10, v%d' % (KP + 2 * i, KR + 4 * i + pr, KP + 2 * i + 1, KR + 4 * i + pr))
        for t in range(4):
            p.I('v_lshlrev_b32 v%d, 16, v%d\nv_and_b32 v%d, s10, v%d' % (VP + 2 * t, VR + 4 * t + pr, VP + 2 * t + 1, VR + 4 * t + pr))
        for t in range(4):
            acc = vr(AC + 2 * t, 2)
            p.I('v_pk_mul_f32 %s, %s, %s' % (acc, vr(C + 6, 2), vr(KP + 2 * t, 2)))
            p.I('v_pk_fma_f32 %s, %s, %s, %s' % (acc, vr(C + 4, 2), vr(KP + 2 * (t + 1), 2), acc))
            p.I('v_pk_fma_f32 %s, %s, %s, %s' % (acc, vr(C + 2, 2), vr(KP + 2 * (t + 2), 2), acc))
            p.I('v_pk_fma_f32 %s, %s, %s, %s' % (acc, vr(C, 2), vr(KP + 2 * (t + 3), 2), acc))
            p.I('v_pk_mul_f32 %s, %s, %s' % (acc, acc, vr(VP + 2 * t, 2)))
        o = OUT + 4 * pr
        p.I('v_cvt_pk_bf16_f32 v%d, v%d, v%d' % (o, AC + 6, AC + 4))
        p.I('v_cvt_pk_bf16_f32 v%d, v%d, v%d' % (o + 1, AC + 2, AC + 0))
        p.I('v_cvt_pk_bf16_f32 v%d, v%d, v%d' % (o + 2, AC + 7, AC + 5))
        p.I('v_cvt_pk_bf16_f32 v%d, v%d, v%d' % (o + 3, AC + 3, AC + 1))
        for h in range(2):
            p.I('s_mov_b32 s11, %d' % (4096 * (2 * pr + h)))
            p.I('buffer_store_dwordx2 %s, v69, s[60:63], s11 offen%s' % (vr(o + 2 * h, 2), c.sc))

def p1_kcopies(c):
    p = c.p
    p.I('s_mul_i32 s4, s2, %d' % (3 * 4096))
    for ch in range(3):
        p.I('s_add_u32 s5, s4, %d' % (4096 * ch))
        srd(p, 48 + 4 * ch, P_SSMK, 4096, soff=5)
    NR = 5
    D = 16
    p.I('v_lshlrev_b32 v2, 4, v1\nv_subrev_u32 v3, 128, v2')
    for ch in range(3):
        for rd in range(NR):
            r = D + 8 * (ch * NR + rd)
            if rd == 0:
                p.I('buffer_load_dwordx4 %s, v3, s[%d:%d], 0 offen' % (vr(r, 4), 48 + 4 * ch, 51 + 4 * ch))
                p.I('v_subrev_u32 v4, 112, v2\nbuffer_load_dwordx4 %s, v4, s[%d:%d], 0 offen' % (vr(r + 4, 4), 48 + 4 * ch, 51 + 4 * ch))
            else:
                p.I('v_add_u32 v4, %d, v2' % (1024 * rd - 128))
                p.I('buffer_load_dwordx4 %s, v4, s[%d:%d], 0 offen' % (vr(r, 4), 48 + 4 * ch, 51 + 4 * ch))
                p.I('buffer_load_dwordx4 %s, v4, s[%d:%d], 0 offen offset:16' % (vr(r + 4, 4), 48 + 4 * ch, 51 + 4 * ch))
    p.I('v_mov_b32 v8, 0\nv_mov_b32 v9, 0\nv_mov_b32 v10, 0\nv_mov_b32 v11, 0')
    p.I('v_lshrrev_b32 v5, 4, v1\nv_and_b32 v6, 15, v1\nv_mul_u32_u24 v5, 48, v5\nv_add_u32 v5, v5, v6\nv_lshlrev_b32 v5, 4, v5\nv_add_u32 v5, %d, v5' % (XR_BASE + 32 * 16))
    for ch in range(3):
        p.I('ds_write_b128 v5, v[8:11] offset:%d\nds_write_b128 v5, v[8:11] offset:%d' % (ch * XR_STRIDE, ch * XR_STRIDE + 4 * 48 * 16))
    T = 140
    for ch in range(3):
        for rd in range(NR):
            r = D + 8 * (ch * NR + rd)
            t = T + 16 * ((ch * NR + rd) % 2)
            for k in range(4): p.I('v_alignbit_b32 v%d, v%d, v%d, 16' % (t + k, r + k + 1, r + k))
            for k in range(4): p.I('v_mov_b32 v%d, v%d' % (t + 4 + k, r + k + 1))
            for k in range(4): p.I('v_alignbit_b32 v%d, v%d, v%d, 16' % (t + 8 + k, r + k + 2, r + k + 1))
            if rd == NR - 1: p.I('s_mov_b64 exec, 0xfffff')
            off = ch * KC_STRIDE + 1024 * rd
            p.I('ds_write_b128 v2, %s offset:%d' % (vr(t, 4), off))
            p.I('ds_write_b128 v2, %s offset:%d' % (vr(t + 4, 4), off + KCOPY))
            p.I('ds_write_b128 v2, %s offset:%d' % (vr(t + 8, 4), off + 2 * KCOPY))
            p.I('ds_write_b128 v2, %s offset:%d' % (vr(r + 2, 4), off + 3 * KCOPY))
            if rd == NR - 1: p.I('s_mov_b64 exec, -1')

def p1_main(c):
    p = c.p
    srd(p, 48, P_WS, L.D * 4096, off=L.XT); srd(p, 52, P_WS, L.D * 4096, off=L.ZT)
    p.I('s_mul_i32 s4, s2, %d\ns_lshl_b32 s5, s3, 10\ns_add_u32 s5, s5, s4\nv_lshl_add_u32 v2, v1, 4, s5' % (3 * 4096))
    for ch in range(3):
        p.I('s_movk_i32 s6, %d\nbuffer_load_dwordx4 %s, v2, s[48:51], s6 offen%s' % (4096 * ch, vr(8 + 4 * ch, 4), c.sc))
    srd(p, 60, P_SSMD, 1152)
    c.w1_hook = True
    p.I('s_mul_i32 s8, s2, 3\ns_min_u32 s9, s3, 2\ns_add_u32 s8, s8, s9\ns_lshl_b32 s8, s8, 1\nv_mov_b32 v20, s8')
    p.I('buffer_load_ushort v23, v20, s[60:63], 0 offen')
    p.I('v_and_b32 v3, 7, v1\nv_mul_u32_u24 v3, 48, v3\nv_lshrrev_b32 v4, 3, v1\nv_add_u32 v3, v3, v4\ns_lshl_b32 s6, s3, 3\nv_add_u32 v3, s6, v3\nv_lshlrev_b32 v3, 4, v3\nv_add_u32 v3, %d, v3' % XR_BASE)
    VA0, VB0, VA, VB = 24, 25, 26, 27
    p.I('v_and_b32 v4, 3, v1\nv_mul_u32_u24 v4, %d, v4\nv_bfe_u32 v5, v1, 2, 2\nv_lshl_add_u32 v4, v5, 3, v4\nv_lshrrev_b32 v5, 4, v1\nv_lshl_add_u32 v%d, v5, 4, v4' % (KCOPY, VA0))
    p.I('v_mul_u32_u24 v4, 48, v5\nv_and_b32 v6, 15, v1\nv_sub_u32 v4, v4, v6\nv_add_u32 v4, 15, v4\nv_lshlrev_b32 v%d, 4, v4' % VB0)
    for ch in range(3):
        p.I('ds_write_b128 v3, %s offset:%d' % (vr(8 + 4 * ch, 4), ch * XR_STRIDE))
    p.I('v_lshlrev_b32 v23, 16, v23')
    p.I('s_waitcnt lgkmcnt(0)\ns_barrier')
    p.cut()
    c.stamp(3)

    AS, BS, ACC, KEEP = 32, 96, 112, 128
    p.I('s_mov_b32 s8, 0\ns_cmp_lt_u32 s3, 3\ns_cselect_b32 s9, 2, 3')
    seg = p.label_name('L_seg'); blk = p.label_name('L_blk')
    p.loop_begin(seg)
    p.I('s_cmp_lt_u32 s3, 3\ns_cselect_b32 s10, s3, s8\ns_cselect_b32 s12, 0, 8')
    p.I('s_cselect_b32 s14, 1, 0\ns_xor_b32 s11, s8, 1\ns_and_b32 s11, s11, s14')
    p.I('s_cmp_eq_u32 s11, 1\ns_cselect_b32 s13, 8, 1\ns_cmp_lt_u32 s3, 3\ns_cselect_b32 s13, s13, 3')
    p.I('s_mul_i32 s14, s10, %d\ns_lshl_b32 s15, s12, 6\ns_add_u32 s14, s14, s15\nv_add_u32 v%d, s14, v%d' % (KC_STRIDE, VA, VA0))
    p.I('s_mul_i32 s14, s10, %d\ns_add_u32 s14, s14, %d\ns_xor_b32 s15, s11, 1\ns_lshl_b32 s15, s15, 8\ns_add_u32 s14, s14, s15\ns_lshl_b32 s15, s12, 3\ns_add_u32 s14, s14, s15\nv_add_u32 v%d, s14, v%d' % (XR_STRIDE, XR_BASE, VB, VB0))
    def ldA(setk, rel):
        r = AS + 8 * (setk % 8)
        for f in range(2):
            for h in range(2):
                p.I('ds_read_b64 %s, v%d offset:%d' % (vr(r + 4 * f + 2 * h, 2), VA, 64 * rel + 32 * f + 8 * h))
    def ldB(slot, rel):
        p.I('ds_read_b128 %s, v%d offset:%d' % (vr(BS + 4 * (slot % 4), 4), VB, ((rel & 1) * 4 * 48 + (rel >> 1)) * 16))
    ldA(0, 0); ldA(1, 1); ldB(0, 0); ldA(2, 2); ldB(1, 1); ldA(3, 3); ldB(2, 2)
    for i in range(16): p.I('v_mov_b32 v%d, 0' % (ACC + i))
    p.loop_begin(blk)
    for st in range(8):
        b = vr(BS + 4 * (st % 4), 4)
        for rt in range(4):
            a = AS + 8 * ((st + rt // 2) % 8) + 4 * (rt % 2)
            p.I('v_mfma_f32_16x16x32_bf16 %s, %s, %s, %s' % (vr(ACC + 4 * rt, 4), vr(a, 4), b, vr(ACC + 4 * rt, 4)))
            if rt == 0: ldA(st + 4, st + 4)
            if rt == 2: ldB(st + 3, st + 3)
    p.I('v_add_u32 v%d, 512, v%d\nv_add_u32 v%d, 64, v%d' % (VA, VA, VB, VB))
    p.I('s_sub_u32 s13, s13, 1\ns_cmp_lg_u32 s13, 0\ns_cbranch_scc1 %s' % blk)
    p.loop_end(blk)
    p.I('s_waitcnt lgkmcnt(0)')
    l3 = p.label_name('L_w3'); ln = p.label_name('L_next')
    p.I('s_nop 7')
    p.I('s_cmp_eq_u32 s3, 3\ns_cbranch_scc1 %s' % l3)
    p.I('s_cmp_eq_u32 s8, 0\ns_cbranch_scc0 %s' % ln)
    for i in range(16): p.I('v_mov_b32 v%d, v%d' % (KEEP + i, ACC + i))
    p.I('s_branch %s' % ln)
    p.label(l3)
    p.I('s_lshl_b32 s14, s10, 12\ns_add_u32 s14, s14, %d\nv_lshl_add_u32 v2, v1, 4, s14' % RED_BASE)
    for rt in range(4): p.I('ds_write_b128 v2, %s offset:%d' % (vr(ACC + 4 * rt, 4), 1024 * rt))
    p.label(ln)
    p.I('s_add_u32 s8, s8, 1\ns_cmp_lt_u32 s8, s9\ns_cbranch_scc1 %s' % seg)
    p.loop_end(seg)
    p.I('s_waitcnt lgkmcnt(0)\ns_barrier')
    p.cut()
    c.stamp(4)
    done = p.label_name('L_conv_done')
    p.I('s_cmp_eq_u32 s3, 3\ns_cbranch_scc1 %s' % done)
    p.I('s_lshl_b32 s14, s3, 12\ns_add_u32 s14, s14, %d\nv_lshl_add_u32 v2, v1, 4, s14' % RED_BASE)
    T = 32
    for rt in range(4): p.I('ds_read_b128 %s, v2 offset:%d' % (vr(T + 4 * rt, 4), 1024 * rt))
    p.I('v_lshrrev_b32 v5, 5, v1\nv_sub_u32 v5, 1, v5\nv_mul_u32_u24 v5, 48, v5\nv_and_b32 v6, 15, v1\nv_sub_u32 v5, v5, v6\nv_add_u32 v5, 15, v5\nv_lshlrev_b32 v5, 4, v5')
    p.I('v_bfe_u32 v6, v1, 4, 1\nv_sub_u32 v6, 1, v6\nv_lshl_add_u32 v5, v6, 3, v5')
    p.I('s_mul_i32 s14, s3, %d\ns_add_u32 s14, s14, %d\nv_add_u32 v5, s14, v5' % (XR_STRIDE, XR_BASE))
    X = 48
    for ct in range(2):
        for rt in range(4):
            p.I('ds_read_b64 %s, v5 offset:%d' % (vr(X + 8 * ct + 2 * rt, 2), (2 * (3 - rt) * 48 + 16 * (1 - ct)) * 16))
    for i in range(16): p.I('v_add_f32 v%d, v%d, v%d' % (ACC + i, ACC + i, T + i))
    p.I('s_mul_i32 s14, s2, 3\ns_add_u32 s14, s14, s3\ns_lshl_b32 s14, s14, 12')
    p.I('v_and_b32 v6, 15, v1\nv_lshl_add_u32 v6, v6, 7, s14\nv_lshrrev_b32 v7, 5, v1\nv_lshl_add_u32 v6, v7, 4, v6\nv_bfe_u32 v7, v1, 4, 1\nv_lshl_add_u32 v6, v7, 5, v6')
    p.I('s_mov_b32 s10, 0xffff0000')
    Z, U = 64, 80
    for ct in range(2):
        src = ACC if ct == 0 else KEEP
        for rt in range(4):
            x0, x1 = X + 8 * ct + 2 * rt, X + 8 * ct + 2 * rt + 1
            a = src + 4 * rt
            p.I('v_and_b32 v%d, s10, v%d\nv_lshlrev_b32 v%d, 16, v%d\nv_and_b32 v%d, s10, v%d\nv_lshlrev_b32 v%d, 16, v%d' % (U, x1, U + 1, x1, U + 2, x0, U + 3, x0))
            for r in range(4): p.I('v_fmac_f32 v%d, v23, v%d' % (a + r, U + r))
            zb = Z + 8 * ct + 4 * (rt // 2) + 2 * (rt % 2)
            p.I('v_cvt_pk_bf16_f32 v%d, v%d, v%d\nv_cvt_pk_bf16_f32 v%d, v%d, v%d' % (zb, a, a + 1, zb + 1, a + 2, a + 3))
        for k in range(2):
            zb = Z + 8 * ct + 4 * k
            p.I('v_permlane16_swap_b32 v%d, v%d\nv_permlane16_swap_b32 v%d, v%d' % (zb, zb + 2, zb + 1, zb + 3))
            p.I('buffer_store_dwordx4 %s, v6, s[52:55], 0 offen offset:%d%s' % (vr(zb, 4), 64 * k + 2048 * ct, c.sc))
    p.label(done)

def p0_mod(c, wg0):
    p = c.p
    p.I('s_sub_u32 s4, s2, %d' % wg0)
    srd(p, 48, P_C, 1152); srd(p, 52, P_WMOD, 576 * 6912); srd(p, 56, P_WS, 6 * 576 * 4, off=L.MOD)
    p.I('v_lshlrev_b32 v2, 1, v0')
    for i in range(3): p.I('buffer_load_ushort v%d, v2, s[48:51], 0 offen offset:%d' % (4 + i, 512 * i))
    p.I('v_lshrrev_b32 v8, 3, v0\nv_and_b32 v9, 7, v0')
    p.I('s_lshl_b32 s6, s4, 7\nv_lshl_add_u32 v10, v9, 4, s6\ns_movk_i32 s7, 6912\nv_mad_u32_u24 v10, v8, s7, v10')
    W = 32
    for i in range(18):
        p.I('buffer_load_dwordx4 %s, v10, s[52:55], 0 offen' % vr(W + 4 * i, 4))
        if i < 17: p.I('v_add_u32 v10, %d, v10' % (32 * 6912))
    p.I('s_mov_b32 s8, 0x%x' % f2u(-LOG2E))
    p.I('v_lshlrev_b32 v12, 2, v0')
    for i in range(3):
        r = 4 + i
        p.I('v_lshlrev_b32 v%d, 16, v%d' % (r, r))
        p.I('v_mul_f32 v13, s8, v%d\nv_exp_f32 v13, v13\nv_add_f32 v13, 1.0, v13\nv_rcp_f32 v13, v13\nv_mul_f32 v13, v%d, v13' % (r, r))
        bf16_round(p, 13, 13)
        p.I('ds_write_b32 v12, v13 offset:%d' % (1024 * i))
    p.I('s_waitcnt lgkmcnt(0)\ns_barrier')
    p.I('v_lshlrev_b32 v14, 2, v8')
    SV = 120
    for i in range(18): p.I('ds_read_b32 v%d, v14 offset:%d' % (SV + i, 128 * i))
    AC, T = 16, 24
    p.I('s_mov_b32 s10, 0xffff0000')
    for i in range(18):
        for d in range(4): unpack(p, T + 2 * d, W + 4 * i + d, 10)
        for d in range(4):
            if i == 0: p.I('v_pk_mul_f32 %s, %s, %s op_sel_hi:[1,0]' % (vr(AC + 2 * d, 2), vr(T + 2 * d, 2), vr(SV + i, 2)))
            else: p.I('v_pk_fma_f32 %s, %s, %s, %s op_sel_hi:[1,0,1]' % (vr(AC + 2 * d, 2), vr(T + 2 * d, 2), vr(SV + i, 2) if (SV + i) % 2 == 0 else vr(SV + i - 1, 2), vr(AC + 2 * d, 2)) if (SV + i) % 2 == 0 else
                      'v_pk_fma_f32 %s, %s, %s, %s op_sel:[0,1,0] op_sel_hi:[1,1,1]' % (vr(AC + 2 * d, 2), vr(T + 2 * d, 2), vr(SV + i - 1, 2), vr(AC + 2 * d, 2)))
    p.I('v_lshlrev_b32 v15, 8, v8\nv_lshl_add_u32 v15, v9, 5, v15')
    p.I('ds_write_b128 v15, %s offset:4096\nds_write_b128 v15, %s offset:4112' % (vr(AC, 4), vr(AC + 4, 4)))
    p.I('s_waitcnt lgkmcnt(0)\ns_barrier')
    lab = p.label_name('L_mod_skip')
    wave0(p, lab)
    p.I('v_lshlrev_b32 v14, 2, v0')
    for i in range(32): p.I('ds_read_b32 v%d, v14 offset:%d' % (W + i, 4096 + 256 * i))
    for i in range(0, 32, 4):
        p.I('v_add_f32 v%d, v%d, v%d\nv_add_f32 v%d, v%d, v%d\nv_add_f32 v%d, v%d, v%d' % (W + i, W + i, W + i + 1, W + i + 2, W + i + 2, W + i + 3, W + i, W + i, W + i + 2))
    p.I('v_add_f32 v%d, v%d, v%d\nv_add_f32 v%d, v%d, v%d\nv_add_f32 v%d, v%d, v%d\nv_add_f32 v%d, v%d, v%d' % (W, W, W + 4, W + 8, W + 8, W + 12, W + 16, W + 16, W + 20, W + 24, W + 24, W + 28))
    p.I('v_add_f32 v%d, v%d, v%d\nv_add_f32 v%d, v%d, v%d\nv_add_f32 v16, v%d, v%d' % (W, W, W + 8, W + 16, W + 16, W + 24, W, W + 16))
    bf16_round(p, 16, 16)
    m9 = udiv_magic(9, 64)
    p.I('s_mul_i32 s14, s4, %d\ns_lshr_b32 s14, s14, 16' % m9)
    p.I('s_cmp_eq_u32 s14, 1\ns_cselect_b32 s15, 1, 0\ns_cmp_eq_u32 s14, 4\ns_cselect_b32 s15, 1, s15')
    p.I('v_cvt_f32_u32 v17, s15\nv_add_f32 v16, v16, v17')
    bf16_round(p, 16, 16)
    p.I('s_lshl_b32 s6, s4, 8\nv_lshl_add_u32 v18, v0, 2, s6')
    p.I('buffer_store_dword v16, v18, s[56:59], 0 offen%s' % c.sc)
    p.label(lab); p.cut()

PT_NB = 4
def pt_setup(c):
    p = c.p
    p.I('v_lshrrev_b32 v2, 3, v1\nv_and_b32 v3, 7, v1\nv_lshlrev_b32 v3, 4, v3')
    p.I('v_lshrrev_b32 v4, 4, v1\nv_bfe_u32 v5, v1, 2, 2\nv_and_b32 v9, 3, v1')
    p.I('v_lshl_add_u32 v6, v4, 3, v5\nv_lshlrev_b32 v6, 7, v6\nv_lshl_add_u32 v6, v9, 3, v6')
    p.I('v_lshl_add_u32 v7, v4, 2, v5\nv_lshlrev_b32 v7, 7, v7\nv_lshl_add_u32 v7, v9, 5, v7')
    p.I('v_lshlrev_b32 v8, 4, v1')
    p.I('s_mul_i32 s96, s3, %d' % (PT_NB * 4096))
    srd(p, 48, P_W1, 576 * 1152); srd(p, 52, P_W2, 576 * 1152); srd(p, 56, P_W3, 576 * 9216); srd(p, 60, P_W4, 4608 * 1152)
    srd(p, 68, P_WS, L.W34T + 32 * 324 * 1024 - L.W1T, off=L.W1T)

def pt_src(c, su, mode):
    p = c.p
    if mode == '12':
        p.I('s_cmp_ge_u32 s%d, 162\ns_cselect_b32 s15, 1, 0\ns_cselect_b32 s7, 162, 0\ns_sub_u32 s7, s%d, s7' % (su, su))
        p.I('s_mul_i32 s8, s7, %d\ns_lshr_b32 s8, s8, 16\ns_mul_i32 s9, s8, 9\ns_sub_u32 s9, s7, s9' % udiv_magic(9, 600))
        p.I('s_movk_i32 s11, 1152')
        p.I('s_cmp_eq_u32 s15, 1')
        for k in range(4): p.I('s_cselect_b32 s%d, s%d, s%d' % (64 + k, 52 + k, 48 + k))
        lim = 324
    else:
        p.I('s_cmp_ge_u32 s%d, 1296\ns_cselect_b32 s15, 1, 0\ns_cselect_b32 s7, 1296, 0\ns_sub_u32 s7, s%d, s7' % (su, su))
        p.I('s_mul_i32 s8, s7, %d\ns_lshr_b32 s8, s8, 20\ns_mul_i32 s12, s7, %d\ns_lshr_b32 s12, s12, 20' % (udiv_magic(72, 2600, 20), udiv_magic(9, 2600, 20)))
        p.I('s_cmp_eq_u32 s15, 1\ns_cselect_b32 s8, s12, s8\ns_cselect_b32 s12, 9, 72\ns_movk_i32 s11, 9216\ns_cselect_b32 s11, 1152, s11')
        for k in range(4): p.I('s_cselect_b32 s%d, s%d, s%d' % (64 + k, 60 + k, 56 + k))
        p.I('s_mul_i32 s9, s8, s12\ns_sub_u32 s9, s7, s9')
        lim = 2592
    p.I('s_mul_i32 s10, s8, s11\ns_lshl_b32 s10, s10, 5\ns_lshl_b32 s12, s9, 7\ns_add_u32 s10, s10, s12')
    p.I('s_cmp_ge_u32 s%d, %d\ns_cselect_b32 s10, 0x7f000000, s10' % (su, lim))

def pt_dst(c, su, mode):
    p = c.p
    m18 = udiv_magic(18, 300)
    if mode == '12':
        p.I('s_mul_i32 s12, s9, %d\ns_lshl_b32 s13, s8, 10\ns_add_u32 s12, s12, s13\ns_mul_i32 s13, s15, %d\ns_add_u32 s12, s12, s13' % (4 * 18 * 1024, L.W2T - L.W1T))
        for j in range(4): p.I('s_add_u32 s%d, s12, %d' % (80 + j, j * 18 * 1024))
        lim = 324
    else:
        w4 = p.label_name('L_d4'); dn = p.label_name('L_dd')
        p.I('s_cmp_eq_u32 s15, 1\ns_cbranch_scc1 %s' % w4)
        for j in range(4):
            p.I('s_lshl_b32 s12, s9, 2\ns_add_u32 s12, s12, %d' % j)
            p.I('s_mul_i32 s13, s12, %d\ns_lshr_b32 s13, s13, 16\ns_mul_i32 s14, s13, 36\ns_sub_u32 s12, s12, s14' % udiv_magic(36, 300))
            p.I('s_mul_i32 s14, s12, %d\ns_lshr_b32 s14, s14, 16\ns_mul_i32 s84, s14, 12\ns_sub_u32 s12, s12, s84' % udiv_magic(12, 40))
            p.I('s_mul_i32 s84, s12, %d\ns_lshr_b32 s84, s84, 16\ns_mul_i32 s85, s84, 3\ns_sub_u32 s12, s12, s85' % udiv_magic(3, 16))
            p.I('s_lshl_b32 s13, s13, 2\ns_add_u32 s13, s13, s84\ns_mul_i32 s13, s13, 324\ns_mul_i32 s14, s14, 54\ns_add_u32 s13, s13, s14\ns_mul_i32 s14, s8, 3\ns_add_u32 s13, s13, s14\ns_add_u32 s13, s13, s12\ns_lshl_b32 s13, s13, 10\ns_add_u32 s%d, s13, %d' % (80 + j, L.W34T - L.W1T))
        p.I('s_branch %s' % dn)
        p.label(w4)
        p.I('s_mul_i32 s12, s8, %d\ns_lshr_b32 s12, s12, 16\ns_mul_i32 s13, s12, 18\ns_sub_u32 s13, s8, s13' % m18)
        for j in range(4):
            p.I('s_and_b32 s14, s9, 3\ns_lshl_b32 s84, s13, 2\ns_add_u32 s84, s84, %d' % (162 + j))
            p.I('s_cmp_ge_u32 s9, 4\ns_cselect_b32 s85, 72, 0\ns_add_u32 s84, s84, s85')
            p.I('s_add_u32 s85, s13, 306\ns_cmp_eq_u32 s9, 8\ns_cselect_b32 s84, s85, s84\ns_cselect_b32 s14, %d, s14' % j)
            p.I('s_lshl_b32 s85, s12, 2\ns_add_u32 s85, s85, s14\ns_mul_i32 s85, s85, 324\ns_add_u32 s85, s85, s84\ns_lshl_b32 s85, s85, 10\ns_add_u32 s%d, s85, %d' % (80 + j, L.W34T - L.W1T))
        p.label(dn)
        lim = 2592
    p.I('s_cmp_ge_u32 s%d, %d' % (su, lim))
    for j in range(4): p.I('s_cselect_b32 s%d, 0x7f000000, s%d' % (80 + j, 80 + j))

def pt_issue(c, sbuf):
    p = c.p
    p.I('v_mad_u32_u24 v9, v2, s11, v3\nv_add_u32 v9, s10, v9\ns_lshl_b32 s12, s11, 3')
    for q in range(4):
        p.I('s_add_u32 m0, s%d, %d' % (sbuf, q * 1024))
        if q: p.I('v_add_u32 v9, s12, v9')
        p.I('buffer_load_dwordx4 v9, s[64:67], 0 offen lds', nowait=True)

def pt_process(c, sbuf, mode):
    p = c.p
    R = 16
    def reads(va, jstride, second):
        p.I('v_add_u32 v10, s%d, v%d' % (sbuf, va))
        for j in range(4):
            p.I('ds_read_b64_tr_b16 %s, v10 offset:%d' % (vr(R + 4 * j, 2), j * jstride))
            p.I('ds_read_b64_tr_b16 %s, v10 offset:%d' % (vr(R + 4 * j + 2, 2), j * jstride + second))
    if mode == '12': reads(6, 32, 512)
    else:
        lb = p.label_name('L_kb'); le = p.label_name('L_ke')
        p.I('s_cmp_eq_u32 s15, 1\ns_cbranch_scc1 %s' % lb)
        reads(6, 32, 512)
        p.I('s_branch %s' % le)
        p.label(lb)
        reads(7, 8, 2048)
        p.label(le)
    p.I('s_waitcnt lgkmcnt(0)');
    for j in range(4):
        p.I('v_add_u32 v11, s%d, v8' % (80 + j))
        if os.environ.get('NOST'): continue
        p.I('buffer_store_dwordx4 %s, v11, s[68:71], 0 offen%s' % (vr(R + 4 * j, 4), '' if os.environ.get('PLAINST') else c.sc), nowait=True)

def pretile(c, mode, su0):
    p = c.p
    p.comment('---- pretile %s' % mode)
    lim = 324 if mode == '12' else 2592
    p.I('s_mov_b32 s86, s%d\ns_mov_b32 s87, s%d\ns_mov_b32 s88, s96\ns_mov_b32 s89, s96\ns_add_u32 s90, s96, %d' % (su0, su0, PT_NB * 4096))
    def adv(r): p.I('s_add_u32 s%d, s%d, 4096\ns_cmp_ge_u32 s%d, s90\ns_cselect_b32 s%d, s96, s%d' % (r, r, r, r, r))
    for k in range(PT_NB - 1):
        pt_src(c, 86, mode); pt_issue(c, 88); adv(88); p.I('s_add_u32 s86, s86, 256')
    loop = p.label_name('L_pt'); done = p.label_name('L_pt_done')
    first = True
    p.label(loop)
    p.I('s_cmp_ge_u32 s87, %d\ns_cbranch_scc1 %s' % (lim, done))
    pt_src(c, 86, mode); pt_issue(c, 88); adv(88); p.I('s_add_u32 s86, s86, 256')
    p.I('s_waitcnt vmcnt(%d)' % (4 * (PT_NB - 1)))
    pt_src(c, 87, mode); pt_dst(c, 87, mode)
    pt_process(c, 89, mode); adv(89); p.I('s_add_u32 s87, s87, 256')
    p.I('s_branch %s' % loop)
    p.label(done); p.cut()
    p.I('s_waitcnt vmcnt(0)')

def ln_stats(p, X, ntok, nj, ST, red, stride=2):
    for j in range(nj):
        for i in range(ntok):
            x = vr(X + (i * nj + j) * stride, 2)
            if j == 0:
                p.I('v_pk_mul_f32 %s, %s, %s' % (vr(ST + 4 * i + 2, 2), x, x))
            else:
                p.I('v_pk_fma_f32 %s, %s, %s, %s' % (vr(ST + 4 * i + 2, 2), x, x, vr(ST + 4 * i + 2, 2)))
            if j == 1:
                p.I('v_pk_add_f32 %s, %s, %s' % (vr(ST + 4 * i, 2), vr(X + (i * nj) * stride, 2), x))
            elif j > 1:
                p.I('v_pk_add_f32 %s, %s, %s' % (vr(ST + 4 * i, 2), vr(ST + 4 * i, 2), x))
    for i in range(ntok):
        p.I('v_add_f32 v%d, v%d, v%d\nv_add_f32 v%d, v%d, v%d' % (ST + 4 * i, ST + 4 * i, ST + 4 * i + 1, ST + 4 * i + 2, ST + 4 * i + 2, ST + 4 * i + 3))
    red([ST + 4 * i for i in range(ntok)] + [ST + 4 * i + 2 for i in range(ntok)])
    for i in range(ntok):
        a = ST + 4 * i
        p.I('v_mul_f32 v%d, s98, v%d\nv_mul_f32 v%d, s98, v%d' % (a, a, a + 2, a + 2))
    for i in range(ntok):
        a = ST + 4 * i
        p.I('v_fma_f32 v%d, -v%d, v%d, v%d' % (a + 2, a, a, a + 2))
    for i in range(ntok):
        a = ST + 4 * i
        p.I('v_max_f32 v%d, 0, v%d' % (a + 2, a + 2))
    for i in range(ntok):
        a = ST + 4 * i
        p.I('v_add_f32 v%d, s97, v%d' % (a + 2, a + 2))
    for i in range(ntok):
        a = ST + 4 * i
        p.I('v_rsq_f32 v%d, v%d' % (a + 2, a + 2))
    for i in range(ntok):
        a = ST + 4 * i
        p.I('v_mul_f32 v%d, -v%d, v%d' % (a + 1, a, a + 2))
    for i in range(ntok):
        a = ST + 4 * i
        p.I('v_mov_b32 v%d, v%d' % (a, a + 2))

def ln_apply(p, dst, src, P):
    p.I('v_pk_fma_f32 %s, %s, %s, %s op_sel:[0,0,1] op_sel_hi:[1,0,1]' % (vr(dst, 2), vr(src, 2), vr(P, 2), vr(P, 2)))

def gemm_small2(c, lds_base, abase, ACC, BF, after_ks=None):
    p = c.p
    p.I('v_and_b32 v2, 15, v1\nv_lshrrev_b32 v8, 4, v1\nv_xor_b32 v2, v2, v8\nv_lshl_add_u32 v2, v8, 4, v2\nv_lshlrev_b32 v2, 4, v2\nv_add_u32 v2, %d, v2' % lds_base)
    def ldb(ks):
        for tt in range(2):
            p.I('ds_read_b128 %s, v2 offset:%d' % (vr(BF + 8 * (ks % 3) + 4 * tt, 4), (ks * 2 + tt) * 1024))
    ldb(0); ldb(1)
    for ks in range(18):
        if ks + 2 < 18: ldb(ks + 2)
        for e in range(3):
            for tt in range(2):
                a = ACC + 4 * (e * 2 + tt)
                p.I('v_mfma_f32_16x16x32_bf16 %s, %s, %s, %s' % (vr(a, 4), ar(abase + 4 * (e * 18 + ks), 4), vr(BF + 8 * (ks % 3) + 4 * tt, 4), '0' if ks == 0 else vr(a, 4)))
        if after_ks: after_ks(ks)

def wfrag_setup(c, wsoff, srdslot, vaddr):
    p = c.p
    srd(p, srdslot, P_WS, 36 * 18 * 1024, off=wsoff)
    p.I('s_mul_i32 s6, s5, 12\ns_mul_i32 s7, s3, 3\ns_add_u32 s6, s6, s7\ns_mul_i32 s6, s6, %d' % (18 * 1024))
    p.I('v_lshl_add_u32 v%d, v1, 4, s6\nv_add_u32 v%d, %d, v%d\nv_add_u32 v%d, %d, v%d' % (vaddr, vaddr + 1, 18 * 1024, vaddr, vaddr + 2, 36 * 1024, vaddr))

def wfrag_load(c, srdslot, vaddr, abase, ks):
    p = c.p
    for e in range(3):
        if ks % 4 == 0 and ks > 0: p.I('v_add_u32 v%d, 4096, v%d' % (vaddr + e, vaddr + e))
        p.I('buffer_load_dwordx4 %s, v%d, s[%d:%d], 0 offen offset:%d%s' % (ar(abase + 4 * (e * 18 + ks), 4), vaddr + e, srdslot, srdslot + 3, 1024 * (ks % 4), c.sc))

ZS_BASE, A1_BASE = 0, 36864
XF, GH, CB, SB, TM, ST2 = 16, 88, 160, 178, 196, 232

def wg_rb_ns(p):
    m3 = udiv_magic(3, 256)
    p.I('s_lshr_b32 s5, s2, 3\ns_mul_i32 s4, s5, %d\ns_lshr_b32 s4, s4, 16\ns_mul_i32 s6, s4, 3\ns_sub_u32 s5, s5, s6\ns_and_b32 s6, s2, 7\ns_lshl_b32 s6, s6, 3\ns_add_u32 s4, s4, s6' % m3)

def load_wfrags(c, wsoff, abase):
    p = c.p
    srd(p, 64, P_WS, 36 * 18 * 1024, off=wsoff)
    p.I('s_mul_i32 s6, s5, 12\ns_mul_i32 s7, s3, 3\ns_add_u32 s6, s6, s7\ns_mul_i32 s6, s6, %d' % (18 * 1024))
    p.I('v_lshl_add_u32 v2, v1, 4, s6')
    for e in range(3):
        for ks in range(18):
            idx = e * 18 + ks
            if idx % 4 == 0 and idx > 0: p.I('v_add_u32 v2, 4096, v2')
            p.I('buffer_load_dwordx4 %s, v2, s[64:67], 0 offen offset:%d%s' % (ar(abase + 4 * idx, 4), 1024 * (idx % 4), c.sc))

def red32(p, tmp):
    return lambda regs: reduce32(p, regs, tmp)

def p2_pre(c):
    p = c.p
    wg_rb_ns(p)
    srd(p, 48, P_Q, L.S * 1152); srd(p, 52, P_WS, 6 * 576 * 4, off=L.MOD)
    p.I('s_mov_b32 s99, 0xffff0000\ns_mov_b32 s98, 0x%x\ns_mov_b32 s97, 0x%x' % (f2u(1.0 / 576), f2u(1e-5)))
    p.I('v_lshrrev_b32 v3, 5, v1\nv_and_b32 v4, 31, v1')
    p.I('s_lshl_b32 s6, s4, 5\ns_lshl_b32 s7, s3, 3\ns_add_u32 s6, s6, s7\nv_lshl_add_u32 v5, v3, 2, s6')
    p.I('s_movk_i32 s7, 1152\nv_mul_lo_u32 v6, v5, s7\nv_lshl_add_u32 v6, v4, 2, v6\nv_add_u32 v7, 2304, v6')
    for i in range(4):
        for j in range(9):
            p.I('buffer_load_dword v%d, v%d, s[48:51], 0 offen offset:%d' % (XF + (i * 9 + j) * 2, 6 if i < 2 else 7, (i % 2) * 1152 + 128 * j))
    if os.environ.get('FINE'):
        p.I('s_waitcnt vmcnt(0)'); c.stamp(20)
    p.I('v_lshlrev_b32 v8, 3, v4')
    for arr, dst in ((0, TM), (1, TM + 18), (2, TM + 36), (3, SB), (4, CB)):
        p.I('s_movk_i32 s7, %d' % (arr * 2304))
        for j in range(9):
            p.I('buffer_load_dwordx2 %s, v8, s[52:55], s7 offen offset:%d%s' % (vr(dst + 2 * j, 2), 256 * j, c.sc))
    if os.environ.get('FINE'):
        p.I('s_waitcnt vmcnt(0)'); c.stamp(21)
    for i in range(4):
        for j in range(9):
            r = XF + (i * 9 + j) * 2
            p.I('v_and_b32 v%d, s99, v%d\nv_lshlrev_b32 v%d, 16, v%d' % (r + 1, r, r, r))
    for j in range(9):
        p.I('v_pk_mul_f32 %s, %s, %s' % (vr(TM + 18 + 2 * j, 2), vr(TM + 18 + 2 * j, 2), vr(TM + 36 + 2 * j, 2)))
        p.I('v_pk_mul_f32 %s, %s, %s' % (vr(TM + 2 * j, 2), vr(TM + 2 * j, 2), vr(TM + 36 + 2 * j, 2)))
    P0 = 232
    ln_stats(p, XF, 4, 9, P0, red32(p, 248))
    for i in range(4):
        for j in range(9):
            g = GH + (i * 9 + j) * 2
            ln_apply(p, g, XF + (i * 9 + j) * 2, P0 + 4 * i)
            p.I('v_pk_fma_f32 %s, %s, %s, %s' % (vr(g, 2), vr(g, 2), vr(TM + 18 + 2 * j, 2), vr(TM + 2 * j, 2)))

def p2_main(c, abase=0):
    p = c.p
    srd(p, 48, P_WS, L.D * 4096, off=L.ZT)
    srd(p, 52, P_WS, L.S * 1152, off=L.X1); srd(p, 56, P_WS, L.S * 1152, off=L.HP); srd(p, 60, P_WS, L.S * 1152, off=L.H1)
    p.I('v_lshrrev_b32 v8, 2, v1\nv_and_b32 v9, 3, v1\nv_lshlrev_b32 v10, 13, v8\nv_lshl_add_u32 v10, v9, 4, v10\ns_lshl_b32 s6, s4, 6\nv_add_u32 v10, s6, v10')
    p.I('s_lshl_b32 s6, s3, 17\nv_add_u32 v10, s6, v10\ns_movk_i32 s8, 4096')
    for t in range(5):
        if t: p.I('v_add_u32 v10, %d, v10' % (4 * 131072))
        p.I('buffer_load_dwordx4 %s, v10, s[48:51], 0 offen%s' % (vr(TM + 8 * t, 4), c.sc))
        p.I('buffer_load_dwordx4 %s, v10, s[48:51], s8 offen%s' % (vr(TM + 8 * t + 4, 4), c.sc))
    p.I('v_bfe_u32 v11, v8, 1, 3\nv_lshlrev_b32 v12, 1, v9\nv_xor_b32 v11, v11, v12\nv_lshlrev_b32 v11, 4, v11\nv_lshl_add_u32 v11, v8, 7, v11')
    p.I('s_lshl_b32 s6, s3, 11\nv_add_u32 v11, s6, v11\nv_xor_b32 v12, 16, v11')
    p.I('s_mov_b32 s8, 0x05040100\ns_mov_b32 s9, 0x07060302')
    PO = 236
    for t in range(5):
        a, b = TM + 8 * t, TM + 8 * t + 4
        o = PO + 8 * (t % 2)
        for k in range(4):
            p.I('v_perm_b32 v%d, v%d, v%d, s8\nv_perm_b32 v%d, v%d, v%d, s9' % (o + 2 * k, b + k, a + k, o + 2 * k + 1, b + k, a + k))
        p.I('ds_write_b128 v11, %s offset:%d' % (vr(o, 4), ZS_BASE + t * 8192))
        p.I('ds_write_b128 v12, %s offset:%d' % (vr(o + 4, 4), ZS_BASE + t * 8192))
    p.I('s_waitcnt vmcnt(0) lgkmcnt(0)\ns_barrier')
    p.cut()
    c.stamp(8)
    p.I('s_lshl_b32 s6, s3, 1\nv_add_u32 v8, s6, v3\nv_bfe_u32 v9, v4, 1, 3\nv_xor_b32 v8, v8, v9\nv_lshlrev_b32 v8, 4, v8\nv_lshl_add_u32 v8, v4, 7, v8')
    Z = TM
    for j in range(9): p.I('ds_read_b128 %s, v8 offset:%d' % (vr(Z + 4 * j, 4), ZS_BASE + 4096 * j))
    U = 232
    for j in range(9):
        for i in range(4):
            unpack(p, U + 2 * i, Z + 4 * j + i, 99)
        for i in range(4):
            g = vr(GH + (i * 9 + j) * 2, 2)
            p.I('v_pk_fma_f32 %s, %s, %s, %s' % (g, g, vr(U + 2 * i, 2), vr(XF + (i * 9 + j) * 2, 2)))
        for i in range(4):
            p.I('v_cvt_pk_bf16_f32 v%d, v%d, v%d' % (XF + (i * 9 + j) * 2, GH + (i * 9 + j) * 2, GH + (i * 9 + j) * 2 + 1))
    ST = 196
    ln_stats(p, GH, 4, 9, ST, red32(p, ST + 16))
    for j in range(9):
        for i in range(4):
            g = GH + (i * 9 + j) * 2
            ln_apply(p, g, g, ST + 4 * i)
        for i in range(4):
            g = vr(GH + (i * 9 + j) * 2, 2)
            p.I('v_pk_fma_f32 %s, %s, %s, %s' % (g, g, vr(CB + 2 * j, 2), vr(SB + 2 * j, 2)))
        for i in range(4):
            p.I('v_cvt_pk_bf16_f32 v%d, v%d, v%d' % (XF + (i * 9 + j) * 2 + 1, GH + (i * 9 + j) * 2, GH + (i * 9 + j) * 2 + 1))
    ln_stats(p, GH, 4, 9, ST, red32(p, ST + 16))
    p.I('v_bfe_u32 v8, v4, 2, 2\nv_lshrrev_b32 v9, 4, v4\nv_lshlrev_b32 v9, 11, v9\ns_lshr_b32 s6, s3, 1\ns_lshl_b32 s6, s6, 10\ns_and_b32 s7, s3, 1\ns_lshl_b32 s7, s7, 7\ns_add_u32 s6, s6, s7\ns_add_u32 s6, s6, %d' % A1_BASE)
    p.I('v_add_u32 v9, s6, v9\nv_lshl_add_u32 v9, v8, 8, v9\nv_lshl_add_u32 v9, v3, 6, v9\nv_and_b32 v10, 3, v4\nv_lshl_add_u32 v9, v10, 2, v9')
    for i in range(4):
        p.I('v_xor_b32 v10, %d, v8\nv_lshl_add_u32 v%d, v10, 4, v9' % (i, 12 + i))
    for j in range(9):
        for i in range(4):
            g = GH + (i * 9 + j) * 2
            ln_apply(p, U + 2 * i, g, ST + 4 * i)
        for i in range(4):
            p.I('v_cvt_pk_bf16_f32 v%d, v%d, v%d' % (U + 2 * i, U + 2 * i, U + 2 * i + 1))
        for i in range(4):
            p.I('ds_write_b32 v%d, v%d offset:%d' % (12 + i, U + 2 * i, 4096 * j))
    for jg in range(3):
        lab = p.label_name('L_st')
        p.I('s_cmp_lg_u32 s5, %d\ns_cbranch_scc1 %s' % (jg, lab))
        for j in range(3 * jg, 3 * jg + 3):
            for i in range(4):
                p.I('buffer_store_dword v%d, v%d, s[52:55], 0 offen offset:%d%s' % (XF + (i * 9 + j) * 2, 6 if i < 2 else 7, (i % 2) * 1152 + 128 * j, c.sc), nowait=True)
                p.I('buffer_store_dword v%d, v%d, s[56:59], 0 offen offset:%d%s' % (XF + (i * 9 + j) * 2 + 1, 6 if i < 2 else 7, (i % 2) * 1152 + 128 * j, c.sc), nowait=True)
        p.label(lab)
    p.I('s_waitcnt lgkmcnt(0)\ns_barrier')
    p.cut()
    c.stamp(9)
    wfrag_setup(c, L.W2T, 64, 156)
    gemm_small2(c, A1_BASE, abase, 100, 128, after_ks=lambda ks: wfrag_load(c, 64, 156, abase, ks))
    ACC = 100
    gelu_consts(p, 8, 9)
    p.I('v_mov_b32 v8, s9')
    gelu_inplace(p, list(range(ACC, ACC + 24)), 160, 8, 8)
    small_out_addr(p, 9)
    for e in range(3):
        for tt in range(2):
            a = ACC + 4 * (e * 2 + tt)
            o = 190 + 2 * (e * 2 + tt)
            p.I('v_cvt_pk_bf16_f32 v%d, v%d, v%d\nv_cvt_pk_bf16_f32 v%d, v%d, v%d' % (o, a, a + 1, o + 1, a + 2, a + 3))
            p.I('buffer_store_dwordx2 %s, v%d, s[60:63], 0 offen offset:%d%s' % (vr(o, 2), 9 + tt, 32 * e, c.sc))

def p3_main(c, abase=0):
    p = c.p
    srd(p, 48, P_WS, L.S * 1152, off=L.H1); srd(p, 52, P_WS, L.S * 1152, off=L.HP); srd(p, 56, P_WS, L.S * 1152, off=L.X2)
    p.I('s_mov_b32 s99, 0xffff0000')
    p.I('v_lshrrev_b32 v3, 4, v1\nv_and_b32 v4, 15, v1\ns_lshr_b32 s6, s3, 1\ns_lshl_b32 s6, s6, 5\nv_lshl_add_u32 v5, v3, 3, s6')
    p.I('s_lshl_b32 s6, s4, 5\ns_and_b32 s7, s3, 1\ns_lshl_b32 s7, s7, 4\ns_add_u32 s6, s6, s7\nv_add_u32 v6, s6, v4\ns_movk_i32 s7, 1152\nv_mul_lo_u32 v6, v6, s7\nv_lshl_add_u32 v6, v5, 1, v6')
    M1, P1, M2, P2_, N2, N4, N6 = 8, 9, 10, 11, 12, 13, 14
    p.I('v_subrev_u32 v%d, 1152, v6\nv_add_u32 v%d, 1152, v6\nv_subrev_u32 v%d, 2304, v6\nv_add_u32 v%d, 2304, v6' % (M1, P1, M2, P2_))
    p.I('v_cmp_gt_u32 vcc, 16, v5\nv_cndmask_b32 v%d, v%d, v%d, vcc' % (N2, P1, M1))
    p.I('v_cmp_gt_u32 vcc, 32, v5\nv_cndmask_b32 v%d, v%d, v%d, vcc' % (N4, M2, P1))
    p.I('v_cmp_gt_u32 vcc, 48, v5\nv_cndmask_b32 v%d, v%d, v%d, vcc' % (N6, P2_, M2))
    sel = [M1, M1, N2, P1, N4, M2, N6, P2_, P2_]
    T = 16
    for n in range(9):
        p.I('buffer_load_dwordx4 %s, v%d, s[48:51], 0 offen offset:%d%s' % (vr(T + 4 * n, 4), sel[n], 128 * n, c.sc))
    small_out_addr(p, 104)
    HR = 108
    for e in range(3):
        for tt in range(2):
            p.I('buffer_load_dwordx2 %s, v%d, s[52:55], 0 offen offset:%d%s' % (vr(HR + 2 * (e * 2 + tt), 2), 104 + tt, 32 * e, c.sc))
    p.I('v_xor_b32 v7, v4, v3\nv_lshl_add_u32 v7, v3, 4, v7\nv_lshlrev_b32 v7, 4, v7\ns_lshl_b32 s6, s3, 10\nv_add_u32 v7, s6, v7')
    for n in range(9): p.I('ds_write_b128 v7, %s offset:%d' % (vr(T + 4 * n, 4), 4096 * n))
    p.I('s_waitcnt lgkmcnt(0)\ns_barrier')
    c.stamp(12)
    gemm_small2(c, 0, abase, 52, 80)
    ACC = 52
    for e in range(3):
        for tt in range(2):
            a = ACC + 4 * (e * 2 + tt); h = HR + 2 * (e * 2 + tt); o = 128 + 2 * (e * 2 + tt)
            unpack(p, 120, h, 99); unpack(p, 122, h + 1, 99)
            for r in range(4): p.I('v_add_f32 v%d, v%d, v%d' % (a + r, a + r, 120 + r))
            p.I('v_cvt_pk_bf16_f32 v%d, v%d, v%d\nv_cvt_pk_bf16_f32 v%d, v%d, v%d' % (o, a, a + 1, o + 1, a + 2, a + 3))
            p.I('buffer_store_dwordx2 %s, v%d, s[56:59], 0 offen offset:%d%s' % (vr(o, 2), 104 + tt, 32 * e, c.sc))

def p4_ln2(c, RAW, X):
    p = c.p
    mlp32.ln_addr(c)
    ST = 208
    for i in range(2):
        for k in range(36): unpack(p, X + 2 * k, RAW + 36 * i + k, 99)
        ln_stats_single(p, X, 36, ST)
        for k in range(36): ln_apply(p, X + 2 * k, X + 2 * k, ST)
        for k in range(36): p.I('v_cvt_pk_bf16_f32 v%d, v%d, v%d' % (RAW + 36 * i + k, X + 2 * k, X + 2 * k + 1))
        for j in range(8): p.I('ds_write_b128 v%d, %s offset:%d' % (11 + i, vr(RAW + 36 * i + 4 * j, 4), 8192 * j))
        p.I('v_add_u32 v13, 65536, v%d\nds_write_b128 v13, %s' % (11 + i, vr(RAW + 36 * i + 32, 4)))
    p.I('s_waitcnt lgkmcnt(0)\ns_barrier')

def ln_stats_single(p, X, n, ST):
    S, Q = ST + 4, ST + 8
    p.I('v_pk_add_f32 %s, %s, %s\nv_pk_add_f32 %s, %s, %s' % (vr(S, 2), vr(X, 2), vr(X + 4, 2), vr(S + 2, 2), vr(X + 2, 2), vr(X + 6, 2)))
    p.I('v_pk_mul_f32 %s, %s, %s\nv_pk_mul_f32 %s, %s, %s' % (vr(Q, 2), vr(X, 2), vr(X, 2), vr(Q + 2, 2), vr(X + 2, 2), vr(X + 2, 2)))
    for k in range(2, n):
        x = vr(X + 2 * k, 2); o = 2 * (k % 2)
        p.I('v_pk_fma_f32 %s, %s, %s, %s' % (vr(Q + o, 2), x, x, vr(Q + o, 2)))
        if k >= 4: p.I('v_pk_add_f32 %s, %s, %s' % (vr(S + o, 2), vr(S + o, 2), x))
    p.I('v_pk_add_f32 %s, %s, %s\nv_pk_add_f32 %s, %s, %s' % (vr(S, 2), vr(S, 2), vr(S + 2, 2), vr(Q, 2), vr(Q, 2), vr(Q + 2, 2)))
    p.I('v_add_f32 v%d, v%d, v%d\nv_add_f32 v%d, v%d, v%d' % (S, S, S + 1, Q, Q, Q + 1))
    reduce8(p, [S, Q])
    p.I('v_mul_f32 v%d, s98, v%d\nv_mul_f32 v%d, s98, v%d' % (S, S, Q, Q))
    p.I('v_fma_f32 v%d, -v%d, v%d, v%d\nv_max_f32 v%d, 0, v%d\nv_add_f32 v%d, s97, v%d\nv_rsq_f32 v%d, v%d' % (Q, S, S, Q, Q, Q, Q, Q, ST, Q))
    p.I('v_mul_f32 v%d, -v%d, v%d' % (ST + 1, S, ST))

def pt34_decode(c, stask, SRD, ST):
    p = c.p
    w4 = p.label_name('L_t4'); dn = p.label_name('L_td')
    p.I('s_cmp_ge_u32 s%d, 216\ns_cbranch_scc1 %s' % (stask, w4))
    p.I('s_mul_i32 s8, s%d, %d\ns_lshr_b32 s8, s8, 16\ns_mul_i32 s9, s8, 3\ns_sub_u32 s9, s%d, s9' % (stask, udiv_magic(3, 300), stask))
    for k in range(4): p.I('s_mov_b32 s%d, s%d' % (SRD + k, 56 + k))
    p.I('s_mul_i32 s%d, s9, %d\ns_lshl_b32 s10, s8, 7\ns_add_u32 s%d, s%d, s10' % (ST + 4, 6 * 32 * 9216, ST + 4, ST + 4))
    p.I('s_mov_b32 s%d, %d\ns_movk_i32 s%d, 9216\ns_movk_i32 s%d, 3072\ns_mov_b32 s%d, 0' % (ST + 5, 32 * 9216, ST + 6, ST + 7, ST + 8))
    for j in range(4):
        p.I('s_lshl_b32 s12, s8, 2\ns_add_u32 s12, s12, %d' % j)
        p.I('s_mul_i32 s13, s12, %d\ns_lshr_b32 s13, s13, 16\ns_mul_i32 s14, s13, 36\ns_sub_u32 s12, s12, s14' % udiv_magic(36, 300))
        p.I('s_mul_i32 s14, s12, %d\ns_lshr_b32 s14, s14, 16\ns_mul_i32 s10, s14, 12\ns_sub_u32 s12, s12, s10' % udiv_magic(12, 40))
        p.I('s_mul_i32 s10, s12, %d\ns_lshr_b32 s10, s10, 16\ns_mul_i32 s11, s10, 3\ns_sub_u32 s12, s12, s11' % udiv_magic(3, 16))
        p.I('s_lshl_b32 s13, s13, 2\ns_add_u32 s13, s13, s10\ns_mul_i32 s13, s13, 324\ns_mul_i32 s14, s14, 54\ns_add_u32 s13, s13, s14\ns_mul_i32 s14, s9, 18\ns_add_u32 s13, s13, s14\ns_add_u32 s13, s13, s12\ns_lshl_b32 s13, s13, 10\ns_add_u32 s%d, s13, %d' % (ST + j, L.W34T - L.W1T))
    p.I('s_branch %s' % dn)
    p.label(w4)
    p.I('s_sub_u32 s7, s%d, 216\ns_mul_i32 s8, s7, %d\ns_lshr_b32 s8, s8, 16\ns_mul_i32 s9, s8, 27\ns_sub_u32 s7, s7, s9' % (stask, udiv_magic(27, 600)))
    p.I('s_mul_i32 s9, s7, %d\ns_lshr_b32 s9, s9, 16\ns_mul_i32 s10, s9, 3\ns_sub_u32 s10, s7, s10' % udiv_magic(3, 32))
    for k in range(4): p.I('s_mov_b32 s%d, s%d' % (SRD + k, 60 + k))
    p.I('s_mul_i32 s11, s8, 18\ns_mul_i32 s12, s10, 6\ns_add_u32 s11, s11, s12\ns_mul_i32 s%d, s11, %d\ns_lshl_b32 s11, s9, 7\ns_add_u32 s%d, s%d, s11' % (ST + 4, 32 * 1152, ST + 4, ST + 4))
    p.I('s_mov_b32 s%d, %d\ns_movk_i32 s%d, 1152\ns_mov_b32 s%d, 1' % (ST + 5, 32 * 1152, ST + 6, ST + 8))
    p.I('s_cmp_eq_u32 s9, 8\ns_movk_i32 s11, 4096\ns_cselect_b32 s%d, 1024, s11' % (ST + 7))
    for j in range(4):
        p.I('s_mul_i32 s11, s10, 24\ns_add_u32 s11, s11, %d\ns_and_b32 s12, s9, 3' % (162 + j))
        p.I('s_cmp_ge_u32 s9, 4\ns_cselect_b32 s13, 72, 0\ns_add_u32 s11, s11, s13')
        p.I('s_mul_i32 s13, s10, 6\ns_add_u32 s13, s13, 306\ns_cmp_eq_u32 s9, 8\ns_cselect_b32 s11, s13, s11\ns_cselect_b32 s12, %d, s12' % j)
        p.I('s_lshl_b32 s13, s8, 2\ns_add_u32 s13, s13, s12\ns_mul_i32 s13, s13, 324\ns_add_u32 s13, s13, s11\ns_lshl_b32 s13, s13, 10\ns_add_u32 s%d, s13, %d' % (ST + j, L.W34T - L.W1T))
    p.label(dn)
    p.I('s_cmp_ge_u32 s%d, 432' % stask)
    for k in range(5): p.I('s_cselect_b32 s%d, 0x7f000000, s%d' % (ST + k, ST + k))
    p.I('s_cselect_b32 s%d, 0, s%d\ns_cselect_b32 s%d, 0, s%d' % (ST + 5, ST + 5, ST + 7, ST + 7))

def pretile34(c, swave):
    p = c.p
    NB, NU = 8, 12
    p.I('s_mul_i32 s96, s3, %d' % (NB * 4096))
    TA, TB = (64, 80), (52, 4)
    SA, SB_ = 80, 89
    regsB = 48
    p.I('s_add_u32 s79, s%d, 256' % swave)
    pt34_decode(c, swave, 64, 80)
    p.I('s_mov_b32 s15, s96')
    pt34_decode(c, 79, 52, 89)
    p.I('v_mad_u32_u24 v12, v2, s%d, v3\nv_add_u32 v12, s%d, v12' % (86, 84))
    p.I('v_mad_u32_u24 v13, v2, s%d, v3\nv_add_u32 v13, s%d, v13' % (95, 93))
    p.I('s_lshl_b32 s4, s86, 3\ns_lshl_b32 s5, s95, 3')
    def issue(n):
        A = n < 6
        va, srdn, s8r, sstep = (12, 64, 4, 85) if A else (13, 52, 5, 94)
        p.I('v_mov_b32 v9, v%d' % va)
        t = None
        for q in range(4):
            p.I('s_add_u32 m0, s15, %d' % ((n % NB) * 4096 + q * 1024))
            if q: p.I('v_add_u32 v9, s%d, v9' % s8r)
            t = p.I('buffer_load_dwordx4 v9, s[%d:%d], 0 offen lds' % (srdn, srdn + 3), nowait=True)
        p.I('v_add_u32 v%d, s%d, v%d' % (va, sstep, va))
        return t
    def process(n):
        A = n < 6
        ST = 80 if A else 89
        R = 16 + 16 * (n % 2)
        lb = p.label_name('L_kb'); le = p.label_name('L_ke')
        p.I('s_cmp_eq_u32 s%d, 1\ns_cbranch_scc1 %s' % (ST + 8, lb))
        for va, jstride, second, lab in ((6, 32, 512, None), (7, 8, 2048, lb)):
            if lab: p.label(lab)
            p.I('s_add_u32 s6, s15, %d\nv_add_u32 v10, s6, v%d' % ((n % NB) * 4096, va))
            for j in range(4):
                p.I('ds_read_b64_tr_b16 %s, v10 offset:%d' % (vr(R + 4 * j, 2), j * jstride), nowait=True)
                p.I('ds_read_b64_tr_b16 %s, v10 offset:%d' % (vr(R + 4 * j + 2, 2), j * jstride + second), nowait=True)
            if not lab: p.I('s_branch %s' % le)
        p.label(le)
        p.I('s_waitcnt lgkmcnt(0)')
        for j in range(4):
            p.I('v_add_u32 v11, s%d, v8\ns_add_u32 s%d, s%d, s%d' % (ST + j, ST + j, ST + j, ST + 7))
            p.I('buffer_store_dwordx4 %s, v11, s[68:71], 0 offen%s' % (vr(R + 4 * j, 4), c.sc), nowait=True)
    toks = [issue(n) for n in range(NB - 1)]
    for n in range(NU):
        if n + NB - 1 < NU: toks.append(issue(n + NB - 1))
        p.wait(toks[n])
        process(n)
    p.I('s_waitcnt vmcnt(0)'); p.cut()

def warm_l2(c, nparts, part_sgpr):
    p = c.p
    lines = 4 * 324 * 8 // nparts
    srd(p, 64, P_WS, 32 * 324 * 1024, off=L.W34T)
    p.I('s_mul_i32 s6, s4, %d\ns_mul_i32 s7, s%d, %d\ns_add_u32 s6, s6, s7\nv_lshl_add_u32 v2, v0, 7, s6' % (4 * 324 * 1024, part_sgpr, lines * 128))
    n = (lines + 255) // 256
    for k in range(n):
        if (k + 1) * 256 > lines:
            p.I('v_cmp_gt_u32 vcc, %d, v0\nv_mov_b32 v3, 0x7f000000\nv_cndmask_b32 v2, v3, v2, vcc' % (lines - k * 256))
        p.I('buffer_load_dword v%d, v2, s[64:67], 0 offen sc1' % (8 + k), nowait=True)
        p.I('v_add_u32 v2, 32768, v2')

def build_mega():
    c = Ctx(); p = c.p
    p.I('s_cmp_ge_u32 s2, 256\ns_cbranch_scc1 L_end')
    p.I('s_load_dwordx16 s[16:31], s[0:1], 0\ns_load_dwordx16 s[32:47], s[0:1], 64')
    p.I('v_lshrrev_b32 v2, 6, v0\nv_and_b32 v1, 63, v0')
    p.I('v_readfirstlane_b32 s3, v2')
    p.I('s_waitcnt lgkmcnt(0)')
    if STAMPS:
        for k in range(24): p.I('v_accvgpr_write_b32 a%d, 0' % (232 + k))
    c.stamp(0)
    srd(p, S_SYNC, P_WS, 2 << 20, off=L.SYNC)
    p.I('s_cmp_ge_u32 s2, %d\ns_cbranch_scc1 L_pt' % NCONV)
    p.I('s_cmp_eq_u32 s3, 3\ns_cbranch_scc1 L_kc')
    p0_kv(c)
    if os.environ.get('FINE2'):
        c.fine = True; c.stamp(10); p.I('s_waitcnt vmcnt(0)'); c.stamp(11); c.fine = False
    p.I('s_mul_i32 s78, s2, 3\ns_add_u32 s78, s78, s3\ns_and_b32 s78, s78, 15')
    wave_arrive(c, 'two', check_ready=True, sh=K_SH, sgpr=78, per=36, top=K_TOP, nsh=16, rel=K_REL)
    p.I('s_branch L_kv_done'); p.cut()
    p.label('L_kc')
    p1_kcopies(c)
    p.I('s_waitcnt lgkmcnt(0)')
    p.label('L_kv_done'); p.cut()
    c.stamp(1)
    wait_cnt(c, *w_flags(A_REL))
    wg_rb_ns(p)
    wfrag_setup(c, L.W1T, 64, 28)
    for ks in range(18): wfrag_load(c, 64, 28, 0, ks)
    c.stamp(17)
    wait_cnt(c, *w_flags(K_REL))
    c.stamp(2)
    p1_main(c)
    c.stamp(5)
    p.I('s_and_b32 s78, s2, 15')
    arrive(c, 'two', sh=V_SH, sgpr=78, per=12, top=V_TOP, nsh=16, rel=V_REL)
    wait_cnt(c, *w_flags(M_REL))
    p2_pre(c)
    c.stamp(6)
    wait_cnt(c, *w_flags(V_REL))
    c.stamp(7)
    p2_main(c)
    c.stamp(10)
    arrive(c, 'add', idx=C_H1, sgpr=4)
    def fh(p): p.I('s_sub_u32 s6, s4, 1\nv_add_u32 v252, s6, v1\nv_max_i32 v252, 0, v252\nv_min_i32 v252, 63, v252\nv_mul_u32_u24 v252, %d, v252\nv_add_u32 v252, %d, v252\nv_mov_b32 v254, 3' % (LS, C_H1 * LS))
    wait_cnt(c, fh, 3)
    c.stamp(11)
    p3_main(c)
    c.stamp(13)
    arrive(c, 'add', idx=C_X2, sgpr=4)
    p.I('s_branch L_mlp'); p.cut()
    p.label('L_pt')
    lz = p.label_name('L_zero')
    p.I('s_cmp_lg_u32 s2, 255\ns_cbranch_scc1 %s\ns_cmp_lg_u32 s3, 0\ns_cbranch_scc1 %s' % (lz, lz))
    p.I('v_mul_u32_u24 v2, %d, v1\nv_mov_b32 v3, 0' % LS)
    for k in range(NCNT // 64):
        p.I('buffer_store_dword v3, v2, s[%d:%d], 0 offen sc1\nv_add_u32 v2, %d, v2' % (S_SYNC, S_SYNC + 3, 64 * LS), nowait=True)
    srd(p, 68, P_DBG, 256)
    p.I('s_waitcnt vmcnt(0)\nv_mov_b32 v2, 0\nv_mov_b32 v3, 1\ns_mov_b64 exec, 1\nbuffer_store_dword v3, v2, s[68:71], 0 offen sc1\ns_mov_b64 exec, -1', nowait=True)
    p.label(lz); p.cut()
    pt_setup(c)
    p.I('s_sub_u32 s4, s2, %d\ns_lshl_b32 s4, s4, 2\ns_add_u32 s79, s4, s3' % NCONV)
    p.I('s_mov_b32 s78, s79')
    pretile(c, '12', 78)
    arrive(c, 'last', check_ready=True, cnt=A_CNT, n=64, rel=A_REL)
    c.stamp(1)
    lm = p.label_name('L_nomod')
    p.I('s_cmp_ge_u32 s2, %d\ns_cbranch_scc1 %s' % (NCONV + 54, lm))
    p0_mod(c, NCONV)
    arrive(c, 'last', cnt=M_CNT, n=54, rel=M_REL)
    p.label(lm); p.cut()
    c.stamp(2)
    p.I('s_barrier')
    pt_setup(c)
    p.I('s_sub_u32 s4, s2, %d\ns_lshl_b32 s4, s4, 2\ns_add_u32 s78, s4, s3' % NCONV)
    mlp32.pretile34(c, 78)
    arrive(c, 'last', cnt=B_CNT, n=64, rel=B_REL)
    c.stamp(3)
    wait_cnt(c, *w_flags(B_REL))
    c.stamp(4)
    p.I('s_and_b32 s4, s2, 7\ns_sub_u32 s5, s2, %d\ns_lshr_b32 s5, s5, 3' % NCONV)
    warm_l2(c, 8, 5)
    p.I('s_waitcnt vmcnt(0)'); p.cut()
    p.label('L_mlp'); p.cut()
    c.stamp(14)
    p.I('s_and_b32 s4, s2, 7\ns_lshr_b32 s5, s2, 3')
    def fx(p): p.I('s_lshl_b32 s6, s5, 1\nv_add_u32 v252, s6, v1\nv_mul_u32_u24 v252, %d, v252\nv_add_u32 v252, %d, v252\nv_mov_b32 v254, 3\nv_mov_b32 v255, %d\nv_mov_b32 v251, 1\nv_cmp_eq_u32 vcc, 2, v1\nv_cndmask_b32 v252, v252, v255, vcc\nv_cndmask_b32 v254, v254, v251, vcc' % (LS, C_X2 * LS, B_REL * LS))
    wait_cnt(c, fx, 3)
    c.stamp(15)
    if os.environ.get('REWARM'):
        p.I('s_lshr_b32 s79, s2, 3')
        warm_l2(c, 32, 79)
    RAW, X = mk.p4_ln(c)
    c.fine = True
    if os.environ.get('FINE2'): c.stamp(6)
    mlp32.ring_start(c)
    if os.environ.get('FINE2'):
        c.stamp(7); p.I('s_waitcnt vmcnt(18)'); c.stamp(8); p.I('s_waitcnt vmcnt(0)'); c.stamp(9)
    p4_ln2(c, RAW, X)
    c.stamp(16)
    mlp32.mlp_setup(c)
    mlp32.mlp_main(c)
    c.stamp(21)
    arrive(c, 'add', idx=C_PART, sgpr=5)
    def fp(p): p.I('s_mul_i32 s6, s5, %d\ns_add_u32 s6, s6, %d\nv_mov_b32 v252, s6\nv_mov_b32 v254, 8' % (LS, C_PART * LS))
    wait_cnt(c, fp, 1)
    c.stamp(22)
    p.I('s_and_b32 s4, s2, 7\ns_lshr_b32 s5, s2, 3')
    mlp32.final(c)
    p.I('s_waitcnt vmcnt(0)')
    c.stamp_out()
    p.label('L_end')
    p.I('s_endpgm')
    return p.finalize()

if __name__ == '__main__':
    if 'stamps' in sys.argv: STAMPS = True
    mk.STAMPS = False
    body = build_mega()
    out = assemble([(NAME + '_kernel', body, 256, 256, 147456, 512, 256)])
    open(sys.argv[1], 'w').write(out)
```

```python
import os
from asmlib import *
import layout as L
from mk import srd, udiv_magic, f2u, P_WS, P_OUT, unpack, gelu_consts, Filler, reduce8

A2_BASE, G_BASE = 0, 73728
RING = 54
PERM = [(n % 3) * 18 + n // 3 for n in range(54)]
EARLY = 27

def w3_pos(Gl, jn, kh, kk):
    if Gl < 4: return Gl, 5 * kk + 2 * kh + jn
    return Gl - 5, 90 + 4 * kk + 2 * kh + jn
def w4_pos(Gl, jn, kh, pb):
    if Gl < 4: return Gl, 162 + 5 * pb + 2 * kh + jn
    return Gl - 5, 252 + 4 * pb + 2 * kh + jn

def pt34_lane_consts(p):
    p.I('v_bfe_u32 v4, v1, 4, 1\nv_lshrrev_b32 v5, 5, v1\nv_bfe_u32 v9, v1, 2, 2\nv_and_b32 v10, 3, v1')
    p.I('v_lshl_add_u32 v14, v5, 3, v9\nv_lshlrev_b32 v14, 7, v14\nv_lshl_add_u32 v14, v4, 5, v14\nv_lshl_add_u32 v14, v10, 3, v14')
    p.I('v_lshl_add_u32 v15, v5, 2, v9\nv_lshlrev_b32 v15, 7, v15\nv_and_b32 v11, 1, v10\nv_lshl_add_u32 v15, v11, 5, v15\nv_lshl_add_u32 v15, v4, 4, v15\nv_lshrrev_b32 v11, 1, v10\nv_lshl_add_u32 v15, v11, 3, v15')
    p.I('v_lshrrev_b32 v11, 4, v1\nv_lshl_add_u32 v16, v11, 3, v9\nv_lshlrev_b32 v16, 7, v16\nv_lshl_add_u32 v16, v10, 3, v16')
    p.I('v_lshl_add_u32 v17, v5, 2, v4\nv_lshl_add_u32 v17, v17, 2, v9\nv_lshlrev_b32 v17, 7, v17\nv_lshl_add_u32 v17, v10, 3, v17')

def pt34_decode(c, stask, SRD, ST):
    p = c.p
    w4 = p.label_name('L_t4'); cm = p.label_name('L_tc')
    p.I('s_cmp_ge_u32 s%d, 216\ns_cbranch_scc1 %s' % (stask, w4))
    p.I('s_mul_i32 s8, s%d, %d\ns_lshr_b32 s8, s8, 16\ns_mul_i32 s9, s8, 3\ns_sub_u32 s9, s%d, s9' % (stask, udiv_magic(3, 300), stask))
    for k in range(4): p.I('s_mov_b32 s%d, s%d' % (SRD + k, 56 + k))
    p.I('s_mul_i32 s%d, s9, %d\ns_lshl_b32 s10, s8, 7\ns_add_u32 s%d, s%d, s10' % (ST + 4, 6 * 32 * 9216, ST + 4, ST + 4))
    p.I('s_mov_b32 s%d, %d\ns_movk_i32 s%d, 9216\ns_mov_b32 s%d, 0' % (ST + 5, 32 * 9216, ST + 6, ST + 8))
    p.I('s_mul_i32 s10, s8, %d\ns_lshr_b32 s10, s10, 16\ns_mul_i32 s11, s10, 9\ns_sub_u32 s11, s8, s11\ns_mov_b32 s12, 0' % udiv_magic(9, 100))
    p.I('s_branch %s' % cm)
    p.label(w4)
    p.I('s_sub_u32 s7, s%d, 216\ns_mul_i32 s10, s7, %d\ns_lshr_b32 s10, s10, 16\ns_mul_i32 s9, s10, 27\ns_sub_u32 s7, s7, s9' % (stask, udiv_magic(27, 600)))
    p.I('s_mul_i32 s11, s7, %d\ns_lshr_b32 s11, s11, 16\ns_mul_i32 s9, s11, 3\ns_sub_u32 s9, s7, s9' % udiv_magic(3, 32))
    for k in range(4): p.I('s_mov_b32 s%d, s%d' % (SRD + k, 60 + k))
    p.I('s_mul_i32 s13, s10, 18\ns_mul_i32 s14, s9, 6\ns_add_u32 s13, s13, s14\ns_mul_i32 s%d, s13, %d\ns_lshl_b32 s13, s11, 7\ns_add_u32 s%d, s%d, s13' % (ST + 4, 32 * 1152, ST + 4, ST + 4))
    p.I('s_mov_b32 s%d, %d\ns_movk_i32 s%d, 1152\ns_mov_b32 s%d, 1\ns_movk_i32 s12, 162' % (ST + 5, 32 * 1152, ST + 6, ST + 8))
    p.label(cm)
    p.I('s_cmp_le_u32 s11, 4\ns_cselect_b32 s13, 5, 4\ns_cselect_b32 s14, 0, 90\ns_add_u32 s12, s12, s14\ns_mul_i32 s14, s9, 6\ns_mul_i32 s14, s14, s13\ns_add_u32 s12, s12, s14\ns_lshl_b32 s%d, s13, 10' % (ST + 7))
    p.I('s_sub_u32 s14, s11, 5\ns_cmp_lt_u32 s11, 4\ns_cselect_b32 s14, s11, s14')
    sm = p.label_name('L_ts'); dn = p.label_name('L_td')
    p.I('s_cmp_eq_u32 s11, 4\ns_cbranch_scc1 %s' % sm)
    p.I('s_lshl_b32 s7, s10, 2\ns_add_u32 s7, s7, s14\ns_mul_i32 s7, s7, 324\ns_add_u32 s7, s7, s12\ns_lshl_b32 s7, s7, 10\ns_add_u32 s7, s7, %d' % (L.W34T - L.W1T))
    for jn in range(2):
        for kh in range(2): p.I('s_add_u32 s%d, s7, %d' % (ST + 2 * jn + kh, (2 * kh + jn) * 1024))
    p.I('s_branch %s' % dn)
    p.label(sm)
    p.I('s_add_u32 s%d, s%d, 2' % (ST + 8, ST + 8))
    for j in range(4):
        p.I('s_lshl_b32 s7, s10, 2\ns_add_u32 s7, s7, %d\ns_mul_i32 s7, s7, 324\ns_add_u32 s7, s7, s12\ns_add_u32 s7, s7, 4\ns_lshl_b32 s7, s7, 10\ns_add_u32 s%d, s7, %d' % (j, ST + j, L.W34T - L.W1T))
    p.label(dn)
    p.I('s_cmp_ge_u32 s%d, 432' % stask)
    for k in range(5): p.I('s_cselect_b32 s%d, 0x7f000000, s%d' % (ST + k, ST + k))
    for k in (5, 7): p.I('s_cselect_b32 s%d, 0, s%d' % (ST + k, ST + k))

def pretile34(c, swave):
    p = c.p
    NB, NU = 8, 12
    pt34_lane_consts(p)
    STA, STB = 80, 90
    p.I('s_mul_i32 s15, s3, %d' % (NB * 4096))
    p.I('s_add_u32 s79, s%d, 256' % swave)
    pt34_decode(c, swave, 64, STA)
    pt34_decode(c, 79, 52, STB)
    p.I('v_mad_u32_u24 v12, v2, s%d, v3\nv_add_u32 v12, s%d, v12' % (STA + 6, STA + 4))
    p.I('v_mad_u32_u24 v13, v2, s%d, v3\nv_add_u32 v13, s%d, v13' % (STB + 6, STB + 4))
    p.I('s_lshl_b32 s4, s%d, 3\ns_mov_b32 s5, s%d\ns_mov_b32 s78, 0\ns_mov_b32 s14, s15\ns_add_u32 s13, s15, %d' % (STA + 6, STA + 5, NB * 4096))
    def issue():
        l1 = p.label_name('L_is')
        p.I('s_cmp_lg_u32 s78, 6\ns_cbranch_scc1 %s' % l1)
        p.I('v_mov_b32 v12, v13\ns_lshl_b32 s4, s%d, 3\ns_mov_b32 s5, s%d' % (STB + 6, STB + 5))
        for k in range(4): p.I('s_mov_b32 s%d, s%d' % (64 + k, 52 + k))
        p.label(l1)
        p.I('s_cmp_eq_u32 s78, 12\ns_cselect_b32 s7, 0x7f000000, 0\nv_add_u32 v12, s7, v12')
        p.I('v_mov_b32 v9, v12')
        for q in range(4):
            p.I('s_add_u32 m0, s14, %d' % (q * 1024))
            if q: p.I('v_add_u32 v9, s4, v9')
            p.I('buffer_load_dwordx4 v9, s[64:67], 0 offen lds', nowait=True)
        p.I('v_add_u32 v12, s5, v12\ns_add_u32 s78, s78, 1\ns_add_u32 s14, s14, 4096\ns_cmp_ge_u32 s14, s13\ns_cselect_b32 s14, s15, s14')
    pl = p.label_name('L_prime')
    p.I('v_mov_b32 v11, 0x7f000000')
    p.label(pl)
    issue()
    for f in range(4): p.I('buffer_store_dwordx4 v[20:23], v11, s[68:71], 0 offen', nowait=True)
    p.I('s_cmp_lt_u32 s78, %d\ns_cbranch_scc1 %s' % (NB - 1, pl))
    p.I('s_mov_b32 s79, 0\ns_mov_b32 s12, s15')
    lp = p.label_name('L_ptl')
    p.label(lp)
    def cst(k):
        if os.environ.get('PTST'):
            l = p.label_name('L_cs')
            p.I('s_cmp_lg_u32 s79, %s\ns_cbranch_scc1 %s' % (os.environ['PTST'], l)); c.stamp(k); p.label(l)
    cst(5)
    issue()
    cst(6)
    l2 = p.label_name('L_ps')
    p.I('s_cmp_lg_u32 s79, 6\ns_cbranch_scc1 %s' % l2)
    for k in (0, 1, 2, 3, 7, 8): p.I('s_mov_b32 s%d, s%d' % (STA + k, STB + k))
    p.label(l2)
    p.I('s_waitcnt vmcnt(%d)' % (8 * (NB - 1)))
    cst(7)
    R = 20
    labs = [p.label_name('L_k%d' % k) for k in range(4)]; le = p.label_name('L_ke')
    for k in range(1, 4): p.I('s_cmp_eq_u32 s%d, %d\ns_cbranch_scc1 %s' % (STA + 8, k, labs[k]))
    for k, (va, second) in enumerate(((14, 512), (15, 1024), (16, 512), (17, 1024))):
        if k: p.label(labs[k])
        p.I('v_add_u32 v10, s12, v%d' % va)
        for f in range(4):
            off = (f // 2) * 64 + (f % 2) * 2048 if k < 2 else 32 * f
            p.I('ds_read_b64_tr_b16 %s, v10 offset:%d' % (vr(R + 4 * f, 2), off), nowait=True)
            p.I('ds_read_b64_tr_b16 %s, v10 offset:%d' % (vr(R + 4 * f + 2, 2), off + second), nowait=True)
        if k < 3: p.I('s_branch %s' % le)
    p.label(le)
    p.I('s_waitcnt lgkmcnt(0)')
    cst(8)
    for f in range(4):
        p.I('v_add_u32 v11, s%d, v8\ns_add_u32 s%d, s%d, s%d' % (STA + f, STA + f, STA + f, STA + 7))
        p.I('buffer_store_dwordx4 %s, v11, s[68:71], 0 offen%s' % (vr(R + 4 * f, 4), c.sc), nowait=True)
    cst(9)
    p.I('s_add_u32 s12, s12, 4096\ns_cmp_ge_u32 s12, s13\ns_cselect_b32 s12, s15, s12')
    p.I('s_add_u32 s79, s79, 1\ns_cmp_lt_u32 s79, %d\ns_cbranch_scc1 %s' % (NU, lp))
    p.I('s_waitcnt vmcnt(0)'); p.cut()

def ring_start(c):
    p = c.p
    srd(p, 64, P_WS, 32 * 324 * 1024, off=L.W34T)
    p.I('s_lshl_b32 s6, s4, 2\ns_add_u32 s6, s6, s3\ns_mul_i32 s6, s6, %d\nv_lshl_add_u32 v2, v1, 4, s6' % (324 * 1024))
    c.wn = 0
    for n in range(RING): wload(c)

def ring_setup(c, sslice, vaddr):
    p = c.p
    srd(p, 64, P_WS, 32 * 324 * 1024, off=L.W34T)
    p.I('s_lshl_b32 s6, s%d, 2\ns_add_u32 s6, s6, s3\ns_mul_i32 s6, s6, %d\nv_lshl_add_u32 v%d, v1, 4, s6' % (sslice, 324 * 1024, vaddr))
    c.ring_off = 0

def ring_load_at(c, slot, n, vaddr):
    p = c.p
    c.ring_map = getattr(c, 'ring_map', {})
    c.ring_map[n] = slot
    need = (n // 4) * 4096
    if need != c.ring_off:
        p.I('v_add_u32 v%d, %d, v%d' % (vaddr, need - c.ring_off, vaddr)); c.ring_off = need
    p.I('buffer_load_dwordx4 %s, v%d, s[64:67], 0 offen offset:%d%s' % (ar(4 * slot, 4), vaddr, 1024 * (n % 4), c.sc))

def ring_resume(c):
    p = c.p
    srd(p, 64, P_WS, 32 * 324 * 1024, off=L.W34T)
    p.I('s_lshl_b32 s6, s4, 2\ns_add_u32 s6, s6, s3\ns_mul_i32 s6, s6, %d\ns_add_u32 s6, s6, %d\nv_lshl_add_u32 v2, v1, 4, s6' % (324 * 1024, (EARLY // 4) * 4096))
    c.wn = EARLY

def wload(c):
    p = c.p
    n = c.wn
    if n >= 324: return
    if n % 4 == 0 and n > 0: p.I('v_add_u32 v2, 4096, v2')
    p.I('buffer_load_dwordx4 %s, v2, s[64:67], 0 offen offset:%d%s' % (ar(4 * PERM[n % RING], 4), 1024 * (n % 4), c.sc))
    c.wn += 1

def ln_addr(c):
    p = c.p
    p.I('v_lshrrev_b32 v7, 1, v4\nv_lshlrev_b32 v9, 11, v7\ns_lshr_b32 s6, s3, 1\ns_lshl_b32 s6, s6, 10\nv_add_u32 v9, s6, v9')
    p.I('v_and_b32 v7, 1, v4\nv_lshlrev_b32 v7, 5, v7\ns_and_b32 s6, s3, 1\ns_lshl_b32 s6, s6, 4\nv_add_u32 v7, s6, v7\nv_add_u32 v7, v7, v3')
    for i in range(2):
        p.I('v_add_u32 v10, %d, v7\nv_xor_b32 v10, v10, v4\nv_lshl_add_u32 v%d, v10, 4, v9' % (8 * i, 11 + i))

def gelu4_lines(a, tmp, o, s1, vc2):
    L_ = []
    for r in range(4): L_.append('v_mul_f32 v%d, v%d, v%d' % (tmp + r, a + r, a + r))
    for r in range(4): L_.append('v_fma_f32 v%d, v%d, v%d, s%d' % (tmp + r, tmp + r, vc2, s1))
    for r in range(4): L_.append('v_mul_f32 v%d, v%d, v%d' % (tmp + r, tmp + r, a + r))
    for r in range(4): L_.append('v_exp_f32 v%d, v%d' % (tmp + r, tmp + r))
    for r in range(4): L_.append('v_add_f32 v%d, 1.0, v%d' % (tmp + r, tmp + r))
    for r in range(4): L_.append('v_rcp_f32 v%d, v%d' % (tmp + r, tmp + r))
    for r in range(4): L_.append('v_mul_f32 v%d, v%d, v%d' % (tmp + r, a + r, tmp + r))
    L_.append('v_cvt_pk_bf16_f32 v%d, v%d, v%d' % (o, tmp, tmp + 1))
    L_.append('v_cvt_pk_bf16_f32 v%d, v%d, v%d' % (o + 1, tmp + 2, tmp + 3))
    return L_

def mlp_setup(c):
    p = c.p
    gelu_consts(p, 8, 9)
    p.I('v_mov_b32 v20, s9')
    p.I('v_lshrrev_b32 v3, 5, v1')
    for q in range(4):
        p.I('v_add_u32 v4, %d, v3\nv_xor_b32 v4, v4, v1\nv_lshlrev_b32 v%d, 4, v4\nv_add_u32 v%d, 65536, v%d' % (2 * q, 14 + q, 24 + q, 14 + q))
    p.I('v_and_b32 v4, 15, v1\nv_bfe_u32 v5, v1, 4, 1\nv_lshl_add_u32 v4, v5, 5, v4')
    for par in range(2):
        p.I('v_lshlrev_b32 v6, 1, v3\nv_add_u32 v6, %d, v6\nv_add_u32 v6, v6, v5\nv_xor_b32 v6, v6, v4\nv_lshlrev_b32 v6, 4, v6\nv_lshl_add_u32 v%d, v3, 11, v6' % (4 * par, 28 + par))
    p.I('v_add_u32 v30, 65536, v28\nv_add_u32 v31, 65536, v29')
    p.I('v_lshlrev_b32 v18, 4, v1\nv_add_u32 v18, %d, v18\nv_add_u32 v19, 65536, v18' % G_BASE)
    p.I('v_lshlrev_b32 v60, 4, v4\nv_lshl_add_u32 v60, v3, 11, v60\nv_add_u32 v60, %d, v60\nv_add_u32 v61, 65536, v60' % G_BASE)
    p.I('s_lshl_b32 s6, s3, 13\nv_add_u32 v22, s6, v18\ns_add_u32 s6, s6, %d\nv_add_u32 v23, s6, v18' % (20 * 2048))
    p.I('v_lshlrev_b32 v62, 4, v4\nv_lshl_add_u32 v62, v3, 3, v62\ns_add_u32 s6, s3, 16\ns_lshl_b32 s6, s6, 11\ns_add_u32 s6, s6, %d\nv_add_u32 v62, s6, v62' % G_BASE)
    srd(p, 68, P_WS, 32 * 8 * 8 * 9216, off=L.PART)
    p.I('v_bfe_u32 v5, v1, 3, 2\nv_mul_u32_u24 v5, %d, v5\nv_and_b32 v6, 7, v1\nv_lshl_add_u32 v5, v6, 5, v5\nv_lshl_add_u32 v5, v3, 4, v5' % (8 * 9216))
    p.I('s_lshl_b32 s6, s5, 6\ns_add_u32 s6, s6, s4\ns_mul_i32 s6, s6, 9216\nv_add_u32 v21, s6, v5')
    p.I('v_bfe_u32 v5, v1, 3, 1\nv_mul_u32_u24 v5, %d, v5\nv_and_b32 v6, 7, v1\nv_lshl_add_u32 v5, v6, 5, v5\nv_lshrrev_b32 v6, 4, v1\nv_lshl_add_u32 v5, v6, 3, v5' % (8 * 9216))
    p.I('s_lshl_b32 s7, s3, 8\ns_add_u32 s7, s7, s6\ns_add_u32 s7, s7, 8192\nv_add_u32 v63, s7, v5')

def mlp_main(c):
    p = c.p
    GA, GS, GB = 64, 128, 160
    BF, SF = 224, 144
    GT, GO = 32, 40
    F = Filler(p)
    def gelu_big(acc, vaddr):
        k = 0
        for e in range(2):
            for tt in range(2):
                a = acc + 16 * (e * 2 + tt)
                for h in range(2):
                    o = GO + 4 * (k % 2)
                    for q in range(2):
                        F.add('\n'.join(gelu4_lines(a + 8 * h + 4 * q, GT + 4 * q, o + 2 * q, 8, 20)))
                    F.add('ds_write_b128 v%d, %s offset:%d' % (vaddr, vr(o, 4), e * 4096 + h * 2048 + tt * 1024))
                    k += 1
    def gelu_small():
        for tq in range(4):
            o = GO + 2 * (tq % 2)
            F.add('\n'.join(gelu4_lines(GS + 4 * tq, GT + 4 * (tq % 2), o, 8, 20)))
            F.add('ds_write_b64 v62, %s offset:%d' % (vr(o, 2), (tq >> 1) * 1024 + (tq & 1) * 256))
    step = [0]
    def big_step(accs, bregs, first):
        a = ar(4 * PERM[step[0] % RING], 4)
        for tt in range(2):
            cc = '0' if first else vr(accs[tt], 16)
            p.I('v_mfma_f32_32x32x16_bf16 %s, %s, %s, %s' % (vr(accs[tt], 16), a, vr(bregs[tt], 4), cc))
            F.tick()
        wload(c); step[0] += 1
    def small_step(acc, first):
        a = ar(4 * PERM[step[0] % RING], 4)
        for tq in range(4):
            cc = '0' if first else vr(acc + 4 * tq, 4)
            p.I('v_mfma_f32_16x16x32_bf16 %s, %s, %s, %s' % (vr(acc + 4 * tq, 4), a, vr(SF + 4 * tq, 4), cc))
        F.tick()
        wload(c); step[0] += 1
    def ld_act(ks):
        for tt in range(2):
            off = A2_BASE + (ks * 2 + tt) * 1024
            p.I('ds_read_b128 %s, v%d offset:%d' % (vr(BF + 8 * (ks % 3) + 4 * tt, 4), (14 if off < 65536 else 24) + (ks & 3), off % 65536))
    def ld_act_small(K2):
        for tq in range(4):
            off = A2_BASE + K2 * 4096 + (tq >> 1) * 1024 + (tq & 1) * 256
            p.I('ds_read_b128 %s, v%d offset:%d' % (vr(SF + 4 * tq, 4), (28 if off < 65536 else 30) + (K2 & 1), off % 65536))
    def ld_g(ksf):
        for tt in range(2):
            off = (ksf * 2 + tt) * 1024
            p.I('ds_read_b128 %s, v%d offset:%d' % (vr(BF + 8 * (ksf % 3) + 4 * tt, 4), 18 if off < 65536 else 19, off % 65536))
    def ld_g_small(K2):
        for tq in range(4):
            off = K2 * 4096 + (tq >> 1) * 1024 + (tq & 1) * 256
            p.I('ds_read_b128 %s, v%d offset:%d' % (vr(SF + 4 * tq, 4), 60 if off < 65536 else 61, off % 65536))
    def loop(acc, sacc, ldb, lds_, barrier_at=None):
        ldb(0); ldb(1)
        for ks in range(36):
            if barrier_at is not None and ks == barrier_at:
                F.flush()
                p.I('s_waitcnt lgkmcnt(0)\ns_barrier')
                ldb(ks); ldb(ks + 1)
            nx = ks + 2
            if nx < 36 and not (barrier_at is not None and barrier_at - 2 <= ks < barrier_at): ldb(nx)
            if sacc is not None and ks % 2 == 0: lds_(ks >> 1)
            b = [BF + 8 * (ks % 3) + 4 * tt for tt in range(2)]
            for e in range(2):
                big_step([acc + 16 * (e * 2 + tt) for tt in range(2)], b, ks == 0)
            if sacc is not None and ks % 2 == 1: small_step(sacc, ks == 1)
    loop(GA, GS, ld_act, ld_act_small)
    c.mstamp(1)
    gelu_big(GA, 22); gelu_small(); F.set_rate(144 - 6)
    loop(GB, None, ld_act, None)
    F.flush()
    c.mstamp(2)
    p.I('s_waitcnt lgkmcnt(0)\ns_barrier')
    OA, OS, OB = 64, 128, 160
    gelu_big(GB, 23); F.set_rate(80 + 10 - 6)
    loop(OA, OS, ld_g, ld_g_small, barrier_at=20)
    c.mstamp(3)
    def publish_big(acc, t0):
        Ls = []
        PK = 44
        k = 0
        for e in range(2):
            for tt in range(2):
                a = acc + 16 * (e * 2 + tt)
                pk = PK + 8 * (k % 2); k += 1
                for d in range(8): Ls.append('v_cvt_pk_bf16_f32 v%d, v%d, v%d' % (pk + d, a + 2 * d, a + 2 * d + 1))
                Ls.append('s_add_u32 s7, s10, %d' % (tt * 4 * 8 * 9216 + (t0 + e) * 512))
                Ls.append('buffer_store_dwordx4 %s, v21, s[68:71], s7 offen%s' % (vr(pk, 4), c.sc))
                Ls.append('buffer_store_dwordx4 %s, v21, s[68:71], s7 offen offset:256%s' % (vr(pk + 4, 4), c.sc))
        return '\n'.join(Ls)
    def publish_small():
        Ls = []
        for tq in range(4):
            a = OS + 4 * tq; pk = 32 + 2 * tq
            Ls.append('v_cvt_pk_bf16_f32 v%d, v%d, v%d' % (pk, a, a + 1)); Ls.append('v_cvt_pk_bf16_f32 v%d, v%d, v%d' % (pk + 1, a + 2, a + 3))
            Ls.append('s_mov_b32 s7, %d' % (tq * 2 * 8 * 9216))
            Ls.append('buffer_store_dwordx2 %s, v63, s[68:71], s7 offen%s' % (vr(pk, 2), c.sc))
        return '\n'.join(Ls)
    p.I('s_lshl_b32 s10, s3, 10')
    F.add(publish_big(OA, 0)); F.add(publish_small()); F.set_rate(100)
    loop(OB, None, ld_g, None)
    F.flush()
    p.I(publish_big(OB, 8))

def final(c):
    p = c.p
    srd(p, 48, P_WS, 32 * 8 * 8 * 9216, off=L.PART); srd(p, 52, P_WS, L.S * 1152, off=L.X1); srd(p, 56, P_WS, L.S * 1152, off=L.X2)
    srd(p, 60, P_OUT, L.S * 1152); srd(p, 64, P_WS, 6 * 576 * 4, off=L.MOD)
    p.I('s_mov_b32 s99, 0xffff0000')
    p.I('s_lshl_b32 s6, s5, 3\ns_add_u32 s6, s6, s4\ns_mul_i32 s6, s6, %d\nv_lshl_add_u32 v2, v0, 4, s6' % (8 * 9216))
    p.I('v_cmp_gt_u32 vcc, 128, v0\nv_mov_b32 v4, 0x7f000000\nv_lshlrev_b32 v3, 3, v0\nv_add_u32 v3, s6, v3\nv_add_u32 v3, 8192, v3\nv_cndmask_b32 v3, v4, v3, vcc')
    PA, PB = 32, 96
    for u in range(2):
        for src in range(8):
            p.I('s_mov_b32 s7, %d\nbuffer_load_dwordx4 %s, v2, s[48:51], s7 offen%s' % (src * 9216 + u * 4096, vr(PA + 32 * u + 4 * src, 4), c.sc))
    for src in range(8):
        p.I('s_mov_b32 s7, %d\nbuffer_load_dwordx2 %s, v3, s[48:51], s7 offen%s' % (src * 9216, vr(PB + 2 * src, 2), c.sc))
    p.I('v_bfe_u32 v5, v0, 1, 3\ns_lshl_b32 s6, s5, 6\ns_lshl_b32 s7, s4, 3\ns_add_u32 s6, s6, s7\nv_add_u32 v5, s6, v5\ns_movk_i32 s7, 1152\nv_mul_lo_u32 v5, v5, s7')
    p.I('v_lshrrev_b32 v6, 5, v0\nv_lshlrev_b32 v6, 5, v6\nv_and_b32 v7, 1, v0\nv_lshl_add_u32 v6, v7, 4, v6\nv_bfe_u32 v7, v0, 4, 1\nv_lshl_add_u32 v6, v7, 3, v6')
    p.I('v_lshl_add_u32 v8, v6, 1, v5\nv_lshlrev_b32 v9, 2, v6\nv_add_u32 v9, %d, v9' % (5 * 2304))
    p.I('v_bfe_u32 v10, v0, 2, 3\nv_add_u32 v10, s6, v10\nv_mul_lo_u32 v10, v10, s7')
    p.I('v_lshrrev_b32 v11, 5, v0\nv_lshlrev_b32 v11, 4, v11\nv_and_b32 v7, 3, v0\nv_lshl_add_u32 v11, v7, 2, v11\nv_add_u32 v11, 256, v11')
    p.I('v_lshl_add_u32 v10, v11, 1, v10\nv_lshlrev_b32 v11, 2, v11\nv_add_u32 v11, %d, v11' % (5 * 2304))
    p.I('v_cndmask_b32 v10, v4, v10, vcc\nv_cndmask_b32 v11, v4, v11, vcc')
    X1R, X2R, GB = 112, 124, 136
    for u in range(2):
        p.I('buffer_load_dwordx4 %s, v8, s[52:55], 0 offen offset:%d%s' % (vr(X1R + 4 * u, 4), 640 * u, c.sc))
        p.I('buffer_load_dwordx4 %s, v8, s[56:59], 0 offen offset:%d%s' % (vr(X2R + 4 * u, 4), 640 * u, c.sc))
        p.I('buffer_load_dwordx4 %s, v9, s[64:67], 0 offen offset:%d%s' % (vr(GB + 8 * u, 4), 1280 * u, c.sc))
        p.I('buffer_load_dwordx4 %s, v9, s[64:67], 0 offen offset:%d%s' % (vr(GB + 8 * u + 4, 4), 1280 * u + 16, c.sc))
    p.I('buffer_load_dwordx2 %s, v10, s[52:55], 0 offen%s' % (vr(X1R + 8, 2), c.sc))
    p.I('buffer_load_dwordx2 %s, v10, s[56:59], 0 offen%s' % (vr(X2R + 8, 2), c.sc))
    p.I('buffer_load_dwordx4 %s, v11, s[64:67], 0 offen%s' % (vr(GB + 16, 4), c.sc))
    AC, U = 160, 180
    def piece(nd, src_reg, x1, x2, gb, out):
        for d in range(nd): unpack(p, AC + 2 * d, src_reg(0) + d, 99)
        for src in range(1, 8):
            for d in range(nd): unpack(p, U + 2 * d, src_reg(src) + d, 99)
            for d in range(nd): p.I('v_pk_add_f32 %s, %s, %s' % (vr(AC + 2 * d, 2), vr(AC + 2 * d, 2), vr(U + 2 * d, 2)))
        for d in range(nd): unpack(p, U + 2 * d, x2 + d, 99)
        for d in range(nd): p.I('v_pk_add_f32 %s, %s, %s' % (vr(AC + 2 * d, 2), vr(AC + 2 * d, 2), vr(U + 2 * d, 2)))
        for d in range(nd): unpack(p, U + 2 * d, x1 + d, 99)
        for d in range(nd): p.I('v_pk_fma_f32 %s, %s, %s, %s' % (vr(AC + 2 * d, 2), vr(AC + 2 * d, 2), vr(gb + 2 * d, 2), vr(U + 2 * d, 2)))
        for d in range(nd): p.I('v_cvt_pk_bf16_f32 v%d, v%d, v%d' % (out + d, AC + 2 * d, AC + 2 * d + 1))
    for u in range(2):
        piece(4, lambda src: PA + 32 * u + 4 * src, X1R + 4 * u, X2R + 4 * u, GB + 8 * u, 192 + 4 * u)
        p.I('buffer_store_dwordx4 %s, v8, s[60:63], 0 offen offset:%d' % (vr(192 + 4 * u, 4), 640 * u))
    piece(2, lambda src: PB + 2 * src, X1R + 8, X2R + 8, GB + 16, 200)
    p.I('buffer_store_dwordx2 %s, v10, s[60:63], 0 offen' % vr(200, 2))
```

```python
import os
from asmlib import *
import layout as L
from mk import srd, udiv_magic, P_WS, P_W1, P_W2, P_W3, P_W4

NB, NU = 8, 12
STA, STB = 80, 89
S_IS12 = 98
S_STEP8, S_USTEP, S_IIDX = 99, 100, 101
S_LEND, S_LISS, S_LBASE = 13, 14, 15
V_OFF, V_OFFB, V_T = 176, 177, 178
SRDB = 48

def decode34(c, stask, ST):
    p = c.p
    w4 = p.label_name('L_t4'); cm = p.label_name('L_tc')
    p.I('s_cmp_ge_u32 s%d, 216\ns_cbranch_scc1 %s' % (stask, w4))
    p.I('s_mul_i32 s8, s%d, %d\ns_lshr_b32 s8, s8, 16\ns_mul_i32 s9, s8, 3\ns_sub_u32 s9, s%d, s9' % (stask, udiv_magic(3, 300), stask))
    p.I('s_mul_i32 s%d, s9, %d\ns_lshl_b32 s10, s8, 7\ns_add_u32 s%d, s%d, s10' % (ST + 4, 6 * 32 * 9216, ST + 4, ST + 4))
    p.I('s_mov_b32 s%d, %d\ns_movk_i32 s%d, 9216\ns_mov_b32 s%d, 0' % (ST + 5, 32 * 9216, ST + 6, ST + 8))
    p.I('s_mul_i32 s10, s8, %d\ns_lshr_b32 s10, s10, 16\ns_mul_i32 s11, s10, 9\ns_sub_u32 s11, s8, s11\ns_mov_b32 s12, 0' % udiv_magic(9, 100))
    p.I('s_branch %s' % cm)
    p.label(w4)
    p.I('s_sub_u32 s7, s%d, 216\ns_mul_i32 s10, s7, %d\ns_lshr_b32 s10, s10, 16\ns_mul_i32 s9, s10, 27\ns_sub_u32 s7, s7, s9' % (stask, udiv_magic(27, 600)))
    p.I('s_mul_i32 s11, s7, %d\ns_lshr_b32 s11, s11, 16\ns_mul_i32 s9, s11, 3\ns_sub_u32 s9, s7, s9' % udiv_magic(3, 32))
    p.I('s_mul_i32 s6, s10, 18\ns_mul_i32 s7, s9, 6\ns_add_u32 s6, s6, s7\ns_mul_i32 s%d, s6, %d\ns_lshl_b32 s6, s11, 7\ns_add_u32 s%d, s%d, s6' % (ST + 4, 32 * 1152, ST + 4, ST + 4))
    p.I('s_mov_b32 s%d, %d\ns_movk_i32 s%d, 1152\ns_mov_b32 s%d, 1\ns_movk_i32 s12, 162' % (ST + 5, 32 * 1152, ST + 6, ST + 8))
    p.label(cm)
    p.I('s_cmp_le_u32 s11, 4\ns_cselect_b32 s6, 5, 4\ns_cselect_b32 s7, 0, 90\ns_add_u32 s12, s12, s7\ns_mul_i32 s7, s9, 6\ns_mul_i32 s7, s7, s6\ns_add_u32 s12, s12, s7\ns_lshl_b32 s%d, s6, 10' % (ST + 7))
    p.I('s_sub_u32 s6, s11, 5\ns_cmp_lt_u32 s11, 4\ns_cselect_b32 s6, s11, s6')
    sm = p.label_name('L_ts'); dn = p.label_name('L_td')
    p.I('s_cmp_eq_u32 s11, 4\ns_cbranch_scc1 %s' % sm)
    p.I('s_lshl_b32 s7, s10, 2\ns_add_u32 s7, s7, s6\ns_mul_i32 s7, s7, 324\ns_add_u32 s7, s7, s12\ns_lshl_b32 s7, s7, 10\ns_add_u32 s7, s7, %d' % (L.W34T - L.W1T))
    for jn in range(2):
        for kh in range(2): p.I('s_add_u32 s%d, s7, %d' % (ST + 2 * jn + kh, (2 * kh + jn) * 1024))
    p.I('s_branch %s' % dn)
    p.label(sm)
    p.I('s_add_u32 s%d, s%d, 2' % (ST + 8, ST + 8))
    p.I('s_lshl_b32 s7, s10, 2\ns_mul_i32 s7, s7, 324\ns_add_u32 s7, s7, s12\ns_add_u32 s7, s7, 4\ns_lshl_b32 s7, s7, 10\ns_add_u32 s7, s7, %d' % (L.W34T - L.W1T))
    for j in range(4): p.I('s_add_u32 s%d, s7, %d' % (ST + j, j * 324 * 1024))
    p.label(dn)
    p.I('s_cmp_ge_u32 s%d, 432' % stask)
    for k in range(5): p.I('s_cselect_b32 s%d, 0x7f000000, s%d' % (ST + k, ST + k))
    for k in (5, 7): p.I('s_cselect_b32 s%d, 0, s%d' % (ST + k, ST + k))

def decode12(c, stask, ST, SRD):
    p = c.p
    p.I('s_cmp_ge_u32 s%d, 27\ns_cselect_b32 s10, 1, 0\ns_cselect_b32 s7, 27, 0\ns_sub_u32 s7, s%d, s7' % (stask, stask))
    p.I('s_mul_i32 s8, s7, %d\ns_lshr_b32 s8, s8, 16\ns_mul_i32 s9, s8, 3\ns_sub_u32 s9, s7, s9' % udiv_magic(3, 32))
    p.I('s_mul_i32 s%d, s9, %d\ns_lshl_b32 s6, s8, 7\ns_add_u32 s%d, s%d, s6' % (ST + 4, 6 * 32 * 1152, ST + 4, ST + 4))
    p.I('s_mov_b32 s%d, %d\ns_movk_i32 s%d, 1152\ns_movk_i32 s%d, 1024\ns_mov_b32 s%d, 2' % (ST + 5, 32 * 1152, ST + 6, ST + 7, ST + 8))
    p.I('s_mul_i32 s7, s8, 72\ns_mul_i32 s6, s9, 6\ns_add_u32 s7, s7, s6\ns_lshl_b32 s7, s7, 10\ns_mul_i32 s6, s10, %d\ns_add_u32 s7, s7, s6' % (L.W2T - L.W1T))
    for j in range(4): p.I('s_add_u32 s%d, s7, %d' % (ST + j, j * 18 * 1024))
    p.I('s_cmp_eq_u32 s10, 1\ns_cselect_b32 s%d, s%d, s%d\ns_cselect_b32 s%d, s%d, s%d\ns_mov_b32 s%d, %d\ns_mov_b32 s%d, 0x20000' % (SRD, P_W2, P_W1, SRD + 1, P_W2 + 1, P_W1 + 1, SRD + 2, 576 * 1152, SRD + 3))

def issue(c):
    p = c.p
    l1 = p.label_name('L_is')
    p.I('s_cmp_lg_u32 s%d, 6\ns_cbranch_scc1 %s' % (S_IIDX, l1))
    p.I('v_mov_b32 v%d, v%d\ns_lshl_b32 s%d, s%d, 3\ns_mov_b32 s%d, s%d' % (V_OFF, V_OFFB, S_STEP8, STB + 6, S_USTEP, STB + 5))
    for k in range(4): p.I('s_mov_b32 s%d, s%d' % (64 + k, SRDB + k))
    p.label(l1)
    p.I('s_cmp_eq_u32 s%d, 12\ns_cselect_b32 s7, 0x7f000000, 0\nv_add_u32 v%d, s7, v%d' % (S_IIDX, V_OFF, V_OFF))
    p.I('v_mov_b32 v%d, v%d' % (V_T, V_OFF))
    for q in range(4):
        p.I('s_add_u32 m0, s%d, %d' % (S_LISS, q * 1024))
        if q: p.I('v_add_u32 v%d, s%d, v%d' % (V_T, S_STEP8, V_T))
        p.I('buffer_load_dwordx4 v%d, s[64:67], 0 offen lds' % V_T, nowait=True)
    p.I('v_add_u32 v%d, s%d, v%d\ns_add_u32 s%d, s%d, 1' % (V_OFF, S_USTEP, V_OFF, S_IIDX, S_IIDX))
    p.I('s_add_u32 s%d, s%d, 4096\ns_cmp_ge_u32 s%d, s%d\ns_cselect_b32 s%d, s%d, s%d' % (S_LISS, S_LISS, S_LISS, S_LEND, S_LISS, S_LBASE, S_LISS))

def decode_any(c, stask, ST, SRD):
    p = c.p
    la = p.label_name('L_a12'); lb = p.label_name('L_adone')
    p.I('s_cmp_ge_u32 s%d, 432\ns_cbranch_scc1 %s' % (stask, la))
    decode34(c, stask, ST)
    p.I('s_bitcmp1_b32 s%d, 0' % (ST + 8))
    for k in range(4): p.I('s_cselect_b32 s%d, s%d, s%d' % (SRD + k, 60 + k, 56 + k))
    p.I('s_branch %s' % lb)
    p.label(la)
    p.I('s_sub_u32 s%d, s%d, 432' % (stask, stask))
    decode12(c, stask, ST, SRD)
    p.I('s_cmp_ge_u32 s%d, 54' % stask)
    for k in range(5): p.I('s_cselect_b32 s%d, 0x7f000000, s%d' % (ST + k, ST + k))
    for k in (5, 7): p.I('s_cselect_b32 s%d, 0, s%d' % (ST + k, ST + k))
    p.label(lb)

def prime(c, wg0):
    p = c.p
    srd(p, 56, P_W3, 576 * 9216); srd(p, 60, P_W4, 4608 * 1152)
    srd(p, 68, P_WS, L.W34T + 32 * 324 * 1024 - L.W1T, off=L.W1T)
    p.I('s_sub_u32 s78, s2, %d\ns_lshl_b32 s78, s78, 2\ns_add_u32 s78, s78, s3' % wg0)
    p.I('s_mov_b32 s79, s78\ns_add_u32 s78, s78, 216\ns_cmp_ge_u32 s79, 216\ns_cselect_b32 s78, 511, s78\ns_cselect_b32 s79, 511, s79\ns_mov_b32 s%d, 0' % S_IS12)
    decode_any(c, 79, STA, 64)
    decode_any(c, 78, STB, SRDB)
    p.I('v_lshrrev_b32 v%d, 3, v1\nv_and_b32 v%d, 7, v1\nv_lshlrev_b32 v%d, 4, v%d' % (V_T, V_T + 1, V_T + 1, V_T + 1))
    p.I('v_mad_u32_u24 v%d, v%d, s%d, v%d\nv_add_u32 v%d, s%d, v%d' % (V_OFF, V_T, STA + 6, V_T + 1, V_OFF, STA + 4, V_OFF))
    p.I('v_mad_u32_u24 v%d, v%d, s%d, v%d\nv_add_u32 v%d, s%d, v%d' % (V_OFFB, V_T, STB + 6, V_T + 1, V_OFFB, STB + 4, V_OFFB))
    p.I('s_lshl_b32 s%d, s%d, 3\ns_mov_b32 s%d, s%d\ns_mov_b32 s%d, 0' % (S_STEP8, STA + 6, S_USTEP, STA + 5, S_IIDX))
    p.I('s_mul_i32 s%d, s3, %d\ns_mov_b32 s%d, s%d\ns_add_u32 s%d, s%d, %d' % (S_LBASE, NB * 4096, S_LISS, S_LBASE, S_LEND, S_LBASE, NB * 4096))
    pl = p.label_name('L_prime')
    p.label(pl)
    issue(c)
    p.I('s_cmp_lt_u32 s%d, %d\ns_cbranch_scc1 %s' % (S_IIDX, NB - 1, pl))
    p.cut()

def lane_consts(p):
    p.I('v_bfe_u32 v4, v1, 4, 1\nv_lshrrev_b32 v5, 5, v1\nv_bfe_u32 v9, v1, 2, 2\nv_and_b32 v10, 3, v1')
    p.I('v_lshl_add_u32 v14, v5, 3, v9\nv_lshlrev_b32 v14, 7, v14\nv_lshl_add_u32 v14, v4, 5, v14\nv_lshl_add_u32 v14, v10, 3, v14')
    p.I('v_lshl_add_u32 v15, v5, 2, v9\nv_lshlrev_b32 v15, 7, v15\nv_and_b32 v11, 1, v10\nv_lshl_add_u32 v15, v11, 5, v15\nv_lshl_add_u32 v15, v4, 4, v15\nv_lshrrev_b32 v11, 1, v10\nv_lshl_add_u32 v15, v11, 3, v15')
    p.I('v_lshrrev_b32 v11, 4, v1\nv_lshl_add_u32 v16, v11, 3, v9\nv_lshlrev_b32 v16, 7, v16\nv_lshl_add_u32 v16, v10, 3, v16')
    p.I('v_lshl_add_u32 v17, v5, 2, v4\nv_lshl_add_u32 v17, v17, 2, v9\nv_lshlrev_b32 v17, 7, v17\nv_lshl_add_u32 v17, v10, 3, v17')
    p.I('v_lshlrev_b32 v8, 4, v1')

def run(c, arrive12):
    p = c.p
    lane_consts(p)
    p.I('s_waitcnt vmcnt(0)')
    p.I('s_mov_b32 s79, 0\ns_mov_b32 s12, s%d' % S_LBASE)
    lp = p.label_name('L_ptl')
    p.label(lp)
    issue(c)
    l2 = p.label_name('L_ps')
    p.I('s_cmp_lg_u32 s79, 6\ns_cbranch_scc1 %s' % l2)
    arrive12()
    for k in (0, 1, 2, 3, 7, 8): p.I('s_mov_b32 s%d, s%d' % (STA + k, STB + k))
    p.label(l2)
    p.I('s_waitcnt vmcnt(%d)' % (8 * (NB - 1)))
    R = 20
    labs = [p.label_name('L_k%d' % k) for k in range(4)]; le = p.label_name('L_ke')
    for k in range(1, 4): p.I('s_cmp_eq_u32 s%d, %d\ns_cbranch_scc1 %s' % (STA + 8, k, labs[k]))
    for k, (va, second) in enumerate(((14, 512), (15, 1024), (16, 512), (17, 1024))):
        if k: p.label(labs[k])
        p.I('v_add_u32 v10, s12, v%d' % va)
        for f in range(4):
            off = (f // 2) * 64 + (f % 2) * 2048 if k < 2 else 32 * f
            p.I('ds_read_b64_tr_b16 %s, v10 offset:%d' % (vr(R + 4 * f, 2), off), nowait=True)
            p.I('ds_read_b64_tr_b16 %s, v10 offset:%d' % (vr(R + 4 * f + 2, 2), off + second), nowait=True)
        if k < 3: p.I('s_branch %s' % le)
    p.label(le)
    p.I('s_waitcnt lgkmcnt(0)')
    for f in range(4):
        p.I('v_add_u32 v11, s%d, v8\ns_add_u32 s%d, s%d, s%d' % (STA + f, STA + f, STA + f, STA + 7))
        p.I('buffer_store_dwordx4 %s, v11, s[68:71], 0 offen%s' % (vr(R + 4 * f, 4), c.sc), nowait=True)
    p.I('s_add_u32 s12, s12, 4096\ns_cmp_ge_u32 s12, s%d\ns_cselect_b32 s12, s%d, s12' % (S_LEND, S_LBASE))
    p.I('s_add_u32 s79, s79, 1\ns_cmp_lt_u32 s79, %d\ns_cbranch_scc1 %s' % (NU, lp))
    p.I('s_waitcnt vmcnt(0)'); p.cut()
```

```python
import sys
sys.path.insert(0, 'gen')
from asmlib import *
import layout as L
import mk
import mlp32
import pt
from mk import (srd, udiv_magic, f2u, bf16_round, LOG2E, NAME, P_Q, P_K, P_V, P_SK, P_SSMK, P_SSMD, P_W1, P_W2, P_W3, P_W4,
                P_C, P_WMOD, P_OUT, P_DBG, P_WS, unpack, gelu_consts, gelu_inplace, reduce32, reduce8, small_out_addr, gemm_small,
                Filler, gelu_tile_lines, KC_STRIDE, KCOPY, XR_BASE, XR_STRIDE, RED_BASE, kernel_header, kernel_desc, assemble)

STAMPS = False
NCONV = 192
LS = 4352
K_SH, K_TOP, K_REL = 0, 16, 17
V_SH, V_TOP, V_REL = 18, 34, 35
M_CNT, M_REL, A_CNT, A_REL, B_CNT, B_REL = 36, 37, 38, 39, 40, 41
C_H1, C_X2, C_PART = 42, 106, 170
B3_CNT, B3_REL = 210, 211
NCNT = 256
S_SYNC = 72
SPIN_MAX = 1 << 17
import os
SLEEP = int(os.environ.get('SLEEP', '1'))

class Ctx:
    def __init__(self):
        self.p = Prog(); self.mega = True; self.sc = ' sc1'; self.first_arrive_done = False
    def stamp(self, k, force=False):
        if not STAMPS: return
        if os.environ.get('FINE2') and k in (6, 7, 8, 9, 10, 11, 12, 13) and not getattr(self, 'fine', False): return
        if os.environ.get('CYC'):
            self.p.I('s_memtime s[76:77]\ns_waitcnt lgkmcnt(0)\nv_accvgpr_write_b32 a%d, s76' % (232 + k))
        else:
            self.p.I('s_memrealtime s[76:77]\ns_waitcnt lgkmcnt(0)\nv_accvgpr_write_b32 a%d, s76' % (232 + k))
    def mstamp(self, i):
        if 1 <= i < 4: self.stamp(17 + i)
    def stamp_out(self):
        if not STAMPS: return
        p = self.p
        self.stamp(23)
        srd(p, 48, P_WS, 1 << 20, off=L.DBG)
        p.I('s_lshl_b32 s76, s2, 2\ns_add_u32 s76, s76, s3\ns_lshl_b32 s76, s76, 7\nv_mov_b32 v2, s76')
        for k in range(24): p.I('buffer_store_dword a%d, v2, s[48:51], 0 offen offset:%d' % (232 + k, 4 * k if k < 23 else 124))

def wave0(p, lab):
    p.I('s_cmp_lg_u32 s3, 0\ns_cbranch_scc1 %s' % lab)

def atomic_ret(p):
    p.I('v_mov_b32 v253, 1\nbuffer_atomic_add v253, v252, s[%d:%d], 0 offen sc0 sc1\ns_waitcnt vmcnt(0)\nv_readfirstlane_b32 s76, v253\ns_nop 3' % (S_SYNC, S_SYNC + 3), nowait=True)

def do_arrive(c, kind, check_ready=False, **kw):
    p = c.p
    if check_ready: ready_check(c)
    p.I('s_mov_b64 exec, 1')
    done = p.label_name('L_ad')
    if kind == 'add':
        if kw.get('sgpr') is None: p.I('v_mov_b32 v252, %d' % (kw['idx'] * LS))
        else: p.I('s_mul_i32 s76, s%d, %d\ns_add_u32 s76, s76, %d\nv_mov_b32 v252, s76' % (kw['sgpr'], LS, kw['idx'] * LS))
        p.I('v_mov_b32 v253, 1\nbuffer_atomic_add v253, v252, s[%d:%d], 0 offen sc1' % (S_SYNC, S_SYNC + 3), nowait=True)
    else:
        if kind == 'two':
            p.I('s_mul_i32 s76, s%d, %d\ns_add_u32 s76, s76, %d\nv_mov_b32 v252, s76' % (kw['sgpr'], LS, kw['sh'] * LS))
            atomic_ret(p)
            p.I('s_cmp_lg_u32 s76, %d\ns_cbranch_scc1 %s' % (kw['per'] - 1, done))
            cnt, n = kw['top'], kw['nsh']
        else: cnt, n = kw['cnt'], kw['n']
        p.I('v_mov_b32 v252, %d' % (cnt * LS))
        atomic_ret(p)
        p.I('s_cmp_lg_u32 s76, %d\ns_cbranch_scc1 %s' % (n - 1, done))
        p.I('v_mov_b32 v252, %d\nv_mov_b32 v253, 1\nbuffer_store_dword v253, v252, s[%d:%d], 0 offen sc1' % (kw['rel'] * LS, S_SYNC, S_SYNC + 3), nowait=True)
    p.label(done)
    p.I('s_mov_b64 exec, -1'); p.cut()

def arrive(c, kind, check_ready=False, **kw):
    p = c.p
    p.I('s_waitcnt vmcnt(0) lgkmcnt(0)\ns_barrier'); p.cut()
    lab = p.label_name('L_arr')
    wave0(p, lab)
    do_arrive(c, kind, check_ready, **kw)
    p.label(lab); p.cut()

def wave_arrive(c, kind, check_ready=False, **kw):
    c.p.I('s_waitcnt vmcnt(0) lgkmcnt(0)'); c.p.cut()
    do_arrive(c, kind, check_ready, **kw)

def ready_check(c):
    p = c.p
    srd(p, 8, P_DBG, 256)
    lp = p.label_name('L_rdy'); dn = p.label_name('L_rdy_done')
    p.I('s_mov_b32 s77, 0\nv_mov_b32 v252, 0')
    p.label(lp)
    p.I('buffer_load_dword v253, v252, s[8:11], 0 offen sc1\ns_waitcnt vmcnt(0)\nv_readfirstlane_b32 s76, v253', nowait=True)
    p.I('s_nop 3\ns_cmp_lg_u32 s76, 0\ns_cbranch_scc1 %s\ns_sleep 2\ns_add_u32 s77, s77, 1\ns_cmp_lt_u32 s77, %d\ns_cbranch_scc1 %s' % (dn, SPIN_MAX, lp))
    p.label(dn); p.cut()

def wait_cnt(c, setup, nlanes):
    p = c.p
    lab = p.label_name('L_wt'); lp = p.label_name('L_poll')
    wave0(p, lab)
    setup(p)
    p.I('s_mov_b32 s77, 0')
    p.I('s_mov_b64 exec, 0x%x' % ((1 << nlanes) - 1))
    p.label(lp)
    p.I('buffer_load_dword v253, v252, s[%d:%d], 0 offen sc1\ns_waitcnt vmcnt(0)\nv_cmp_lt_u32 vcc, v253, v254' % (S_SYNC, S_SYNC + 3), nowait=True)
    p.I('s_add_u32 s77, s77, 1\ns_cmp_ge_u32 s77, %d\ns_cbranch_scc1 %s_x\ns_cbranch_vccz %s_x' % (SPIN_MAX, lp, lp))
    if SLEEP: p.I('s_sleep %d' % SLEEP)
    p.I('s_branch %s' % lp)
    p.label(lp + '_x')
    p.I('s_mov_b64 exec, -1')
    p.label(lab)
    p.I('s_barrier'); p.cut()

def monitor(c):
    p = c.p
    ready_check(c)
    p.I('v_mov_b32 v20, %d\nv_mov_b32 v21, 36' % (K_SH * LS))
    p.I('v_mul_u32_u24 v22, %d, v1\nv_add_u32 v20, v20, v22' % LS)
    p.I('v_subrev_u32 v23, 16, v1\nv_mul_u32_u24 v23, %d, v23\nv_add_u32 v23, %d, v23' % (LS, V_SH * LS))
    p.I('v_cmp_le_u32 vcc, 16, v1\nv_cndmask_b32 v20, v20, v23, vcc\nv_mov_b32 v24, 12\nv_cndmask_b32 v21, v21, v24, vcc')
    for lane, idx, tgt in ((32, M_CNT, 54), (33, A_CNT, 64), (34, B3_CNT, 63)):
        p.I('v_mov_b32 v23, %d\nv_mov_b32 v24, %d\nv_cmp_eq_u32 vcc, %d, v1\nv_cndmask_b32 v20, v20, v23, vcc\nv_cndmask_b32 v21, v21, v24, vcc' % (idx * LS, tgt, lane))
    p.I('s_mov_b32 s9, 0\ns_mov_b32 s10, 0\nv_mov_b32 v25, 1')
    lp = p.label_name('L_mon'); dn = p.label_name('L_mon_done')
    p.label(lp)
    p.I('s_mov_b64 exec, 0x3ffffffff' if False else 's_mov_b32 exec_lo, -1\ns_mov_b32 exec_hi, 7')
    p.I('buffer_load_dword v26, v20, s[%d:%d], 0 offen sc1\ns_waitcnt vmcnt(0)\nv_cmp_lt_u32 vcc, v26, v21' % (S_SYNC, S_SYNC + 3), nowait=True)
    p.I('s_nop 4\ns_mov_b64 s[6:7], vcc\ns_mov_b64 exec, 1')
    for bit, (expr, rel) in enumerate((('s_and_b32 s8, s6, 0xffff', K_REL), ('s_lshr_b32 s8, s6, 16', V_REL), ('s_and_b32 s8, s7, 1', M_REL), ('s_and_b32 s8, s7, 2', A_REL), ('s_and_b32 s8, s7, 4', B3_REL))):
        sk = p.label_name('L_ms')
        p.I('s_bitcmp1_b32 s9, %d\ns_cbranch_scc1 %s' % (bit, sk))
        p.I(expr)
        p.I('s_cmp_lg_u32 s8, 0\ns_cbranch_scc1 %s' % sk)
        p.I('v_mov_b32 v27, %d\nbuffer_store_dword v25, v27, s[%d:%d], 0 offen sc1\ns_bitset1_b32 s9, %d' % (rel * LS, S_SYNC, S_SYNC + 3, bit), nowait=True)
        p.label(sk)
    p.I('s_cmp_eq_u32 s9, 31\ns_cbranch_scc1 %s\ns_add_u32 s10, s10, 1\ns_cmp_lt_u32 s10, %d\ns_cbranch_scc1 %s' % (dn, SPIN_MAX, lp))
    p.label(dn)
    p.I('s_mov_b64 exec, -1\ns_waitcnt vmcnt(0)'); p.cut()

def wave_wait(c, *idx):
    p = c.p
    lp = p.label_name('L_ww')
    f, n = w_flags(*idx)
    f(p)
    p.I('s_mov_b32 s77, 0\ns_mov_b64 exec, 0x%x' % ((1 << n) - 1))
    p.label(lp)
    p.I('buffer_load_dword v253, v252, s[%d:%d], 0 offen sc1\ns_waitcnt vmcnt(0)\nv_cmp_lt_u32 vcc, v253, v254' % (S_SYNC, S_SYNC + 3), nowait=True)
    p.I('s_add_u32 s77, s77, 1\ns_cmp_ge_u32 s77, %d\ns_cbranch_scc1 %s_x\ns_cbranch_vccz %s_x\ns_sleep 1\ns_branch %s' % (SPIN_MAX, lp, lp, lp))
    p.label(lp + '_x')
    p.I('s_mov_b64 exec, -1'); p.cut()

def w_flags(*idx):
    def f(p):
        p.I('v_mov_b32 v252, %d\nv_mov_b32 v254, 1' % (idx[0] * LS))
        for k, i in enumerate(idx[1:]):
            p.I('v_mov_b32 v255, %d\nv_cmp_eq_u32 vcc, %d, v1\nv_cndmask_b32 v252, v252, v255, vcc' % (i * LS, k + 1))
    return f, len(idx)

def p0_kv(c, hook=None):
    p = c.p
    m9 = udiv_magic(9, 576)
    p.I('s_mul_i32 s4, s2, 3\ns_add_u32 s4, s4, s3')
    p.I('s_mul_i32 s5, s4, %d\ns_lshr_b32 s5, s5, 16' % m9)
    p.I('s_mul_i32 s6, s5, 9\ns_sub_u32 s6, s4, s6')
    srd(p, 48, P_K, L.S * 1152); srd(p, 52, P_V, L.S * 1152); srd(p, 56, P_SK, 4608)
    srd(p, 60, P_WS, L.D * 4096, off=L.XT)
    p.I('v_lshrrev_b32 v2, 3, v1\nv_and_b32 v3, 7, v1')
    p.I('s_lshl_b32 s7, s5, 5\nv_lshl_add_u32 v4, v2, 2, s7')
    p.I('s_lshl_b32 s8, s6, 7\nv_lshl_add_u32 v5, v3, 4, s8')
    p.I('s_movk_i32 s9, 1152\nv_mad_u32_u24 v6, v4, s9, v5')
    p.I('v_subrev_u32 v7, 3456, v6')
    KR, VR, SK = 8, 36, 52
    for i in range(3): p.I('buffer_load_dwordx4 %s, v7, s[48:51], 0 offen offset:%d' % (vr(KR + 4 * i, 4), 1152 * i))
    for i in range(4): p.I('buffer_load_dwordx4 %s, v6, s[48:51], 0 offen offset:%d' % (vr(KR + 4 * (3 + i), 4), 1152 * i))
    for i in range(4): p.I('buffer_load_dwordx4 %s, v6, s[52:55], 0 offen offset:%d' % (vr(VR + 4 * i, 4), 1152 * i))
    p.I('v_lshlrev_b32 v68, 2, v5')
    for i in range(4): p.I('buffer_load_dwordx4 %s, v68, s[56:59], 0 offen offset:%d' % (vr(SK + 4 * i, 4), 16 * i))
    p.I('v_lshlrev_b32 v69, 11, v5\nv_lshlrev_b32 v70, 1, v4\nv_sub_u32 v69, v69, v70\nv_add_u32 v69, 4088, v69')
    if hook: hook(c)
    p.I('s_mov_b32 s10, 0xffff0000')
    if os.environ.get('FINE2'):
        c.fine = True; c.stamp(12); p.I('s_waitcnt vmcnt(0)'); c.stamp(13); c.fine = False
    C, KP, VP, AC, OUT = 72, 80, 94, 102, 112
    for pr in range(4):
        a0, a1, b0, b1 = SK + 4 * pr, SK + 4 * pr + 1, SK + 4 * pr + 2, SK + 4 * pr + 3
        p.I('v_lshlrev_b32 v%d, 16, v%d\nv_lshlrev_b32 v%d, 16, v%d' % (C, a0, C + 1, b0))
        p.I('v_and_b32 v%d, s10, v%d\nv_and_b32 v%d, s10, v%d' % (C + 2, a0, C + 3, b0))
        p.I('v_lshlrev_b32 v%d, 16, v%d\nv_lshlrev_b32 v%d, 16, v%d' % (C + 4, a1, C + 5, b1))
        p.I('v_and_b32 v%d, s10, v%d\nv_and_b32 v%d, s10, v%d' % (C + 6, a1, C + 7, b1))
        for i in range(7):
            p.I('v_lshlrev_b32 v%d, 16, v%d\nv_and_b32 v%d, s10, v%d' % (KP + 2 * i, KR + 4 * i + pr, KP + 2 * i + 1, KR + 4 * i + pr))
        for t in range(4):
            p.I('v_lshlrev_b32 v%d, 16, v%d\nv_and_b32 v%d, s10, v%d' % (VP + 2 * t, VR + 4 * t + pr, VP + 2 * t + 1, VR + 4 * t + pr))
        for t in range(4):
            acc = vr(AC + 2 * t, 2)
            p.I('v_pk_mul_f32 %s, %s, %s' % (acc, vr(C + 6, 2), vr(KP + 2 * t, 2)))
            p.I('v_pk_fma_f32 %s, %s, %s, %s' % (acc, vr(C + 4, 2), vr(KP + 2 * (t + 1), 2), acc))
            p.I('v_pk_fma_f32 %s, %s, %s, %s' % (acc, vr(C + 2, 2), vr(KP + 2 * (t + 2), 2), acc))
            p.I('v_pk_fma_f32 %s, %s, %s, %s' % (acc, vr(C, 2), vr(KP + 2 * (t + 3), 2), acc))
            p.I('v_pk_mul_f32 %s, %s, %s' % (acc, acc, vr(VP + 2 * t, 2)))
        o = OUT + 4 * pr
        p.I('v_cvt_pk_bf16_f32 v%d, v%d, v%d' % (o, AC + 6, AC + 4))
        p.I('v_cvt_pk_bf16_f32 v%d, v%d, v%d' % (o + 1, AC + 2, AC + 0))
        p.I('v_cvt_pk_bf16_f32 v%d, v%d, v%d' % (o + 2, AC + 7, AC + 5))
        p.I('v_cvt_pk_bf16_f32 v%d, v%d, v%d' % (o + 3, AC + 3, AC + 1))
        for h in range(2):
            p.I('s_mov_b32 s11, %d' % (4096 * (2 * pr + h)))
            p.I('buffer_store_dwordx2 %s, v69, s[60:63], s11 offen%s' % (vr(o + 2 * h, 2), c.sc))

def p1_kcopies(c, hook=None):
    p = c.p
    p.I('s_mul_i32 s4, s2, %d' % (3 * 4096))
    for ch in range(3):
        p.I('s_add_u32 s5, s4, %d' % (4096 * ch))
        srd(p, 48 + 4 * ch, P_SSMK, 4096, soff=5)
    NR = 5
    D = 16
    p.I('v_lshlrev_b32 v2, 4, v1\nv_subrev_u32 v3, 128, v2')
    for ch in range(3):
        for rd in range(NR):
            r = D + 8 * (ch * NR + rd)
            if rd == 0:
                p.I('buffer_load_dwordx4 %s, v3, s[%d:%d], 0 offen' % (vr(r, 4), 48 + 4 * ch, 51 + 4 * ch))
                p.I('v_subrev_u32 v4, 112, v2\nbuffer_load_dwordx4 %s, v4, s[%d:%d], 0 offen' % (vr(r + 4, 4), 48 + 4 * ch, 51 + 4 * ch))
            else:
                p.I('v_add_u32 v4, %d, v2' % (1024 * rd - 128))
                p.I('buffer_load_dwordx4 %s, v4, s[%d:%d], 0 offen' % (vr(r, 4), 48 + 4 * ch, 51 + 4 * ch))
                p.I('buffer_load_dwordx4 %s, v4, s[%d:%d], 0 offen offset:16' % (vr(r + 4, 4), 48 + 4 * ch, 51 + 4 * ch))
    if hook: hook(c)
    p.I('v_mov_b32 v8, 0\nv_mov_b32 v9, 0\nv_mov_b32 v10, 0\nv_mov_b32 v11, 0')
    p.I('v_lshrrev_b32 v5, 4, v1\nv_and_b32 v6, 15, v1\nv_mul_u32_u24 v5, 48, v5\nv_add_u32 v5, v5, v6\nv_lshlrev_b32 v5, 4, v5\nv_add_u32 v5, %d, v5' % (XR_BASE + 32 * 16))
    for ch in range(3):
        p.I('ds_write_b128 v5, v[8:11] offset:%d\nds_write_b128 v5, v[8:11] offset:%d' % (ch * XR_STRIDE, ch * XR_STRIDE + 4 * 48 * 16))
    T = 140
    for ch in range(3):
        for rd in range(NR):
            r = D + 8 * (ch * NR + rd)
            t = T + 16 * ((ch * NR + rd) % 2)
            for k in range(4): p.I('v_alignbit_b32 v%d, v%d, v%d, 16' % (t + k, r + k + 1, r + k))
            for k in range(4): p.I('v_mov_b32 v%d, v%d' % (t + 4 + k, r + k + 1))
            for k in range(4): p.I('v_alignbit_b32 v%d, v%d, v%d, 16' % (t + 8 + k, r + k + 2, r + k + 1))
            if rd == NR - 1: p.I('s_mov_b64 exec, 0xfffff')
            off = ch * KC_STRIDE + 1024 * rd
            p.I('ds_write_b128 v2, %s offset:%d' % (vr(t, 4), off))
            p.I('ds_write_b128 v2, %s offset:%d' % (vr(t + 4, 4), off + KCOPY))
            p.I('ds_write_b128 v2, %s offset:%d' % (vr(t + 8, 4), off + 2 * KCOPY))
            p.I('ds_write_b128 v2, %s offset:%d' % (vr(r + 2, 4), off + 3 * KCOPY))
            if rd == NR - 1: p.I('s_mov_b64 exec, -1')

def p1_main(c):
    p = c.p
    srd(p, 48, P_WS, L.D * 4096, off=L.XT); srd(p, 52, P_WS, L.D * 4096, off=L.ZT)
    p.I('s_mul_i32 s4, s2, %d\ns_lshl_b32 s5, s3, 10\ns_add_u32 s5, s5, s4\nv_lshl_add_u32 v2, v1, 4, s5' % (3 * 4096))
    for ch in range(3):
        p.I('s_movk_i32 s6, %d\nbuffer_load_dwordx4 %s, v2, s[48:51], s6 offen%s' % (4096 * ch, vr(8 + 4 * ch, 4), c.sc))
    srd(p, 60, P_SSMD, 1152)
    c.w1_hook = True
    p.I('s_mul_i32 s8, s2, 3\ns_min_u32 s9, s3, 2\ns_add_u32 s8, s8, s9\ns_lshl_b32 s8, s8, 1\nv_mov_b32 v20, s8')
    p.I('buffer_load_ushort v23, v20, s[60:63], 0 offen')
    p.I('v_and_b32 v3, 7, v1\nv_mul_u32_u24 v3, 48, v3\nv_lshrrev_b32 v4, 3, v1\nv_add_u32 v3, v3, v4\ns_lshl_b32 s6, s3, 3\nv_add_u32 v3, s6, v3\nv_lshlrev_b32 v3, 4, v3\nv_add_u32 v3, %d, v3' % XR_BASE)
    VA0, VB0, VA, VB = 24, 25, 26, 27
    p.I('v_and_b32 v4, 3, v1\nv_mul_u32_u24 v4, %d, v4\nv_bfe_u32 v5, v1, 2, 2\nv_lshl_add_u32 v4, v5, 3, v4\nv_lshrrev_b32 v5, 4, v1\nv_lshl_add_u32 v%d, v5, 4, v4' % (KCOPY, VA0))
    p.I('v_mul_u32_u24 v4, 48, v5\nv_and_b32 v6, 15, v1\nv_sub_u32 v4, v4, v6\nv_add_u32 v4, 15, v4\nv_lshlrev_b32 v%d, 4, v4' % VB0)
    for ch in range(3):
        p.I('ds_write_b128 v3, %s offset:%d' % (vr(8 + 4 * ch, 4), ch * XR_STRIDE))
    p.I('v_lshlrev_b32 v23, 16, v23')
    p.I('s_waitcnt lgkmcnt(0)\ns_barrier')
    p.cut()
    c.stamp(3)

    AS, BS, ACC, KEEP = 32, 96, 112, 128
    p.I('s_mov_b32 s8, 0\ns_cmp_lt_u32 s3, 3\ns_cselect_b32 s9, 2, 3')
    seg = p.label_name('L_seg'); blk = p.label_name('L_blk')
    p.loop_begin(seg)
    p.I('s_cmp_lt_u32 s3, 3\ns_cselect_b32 s10, s3, s8\ns_cselect_b32 s12, 0, 8')
    p.I('s_cselect_b32 s14, 1, 0\ns_xor_b32 s11, s8, 1\ns_and_b32 s11, s11, s14')
    p.I('s_cmp_eq_u32 s11, 1\ns_cselect_b32 s13, 8, 1\ns_cmp_lt_u32 s3, 3\ns_cselect_b32 s13, s13, 3')
    p.I('s_mul_i32 s14, s10, %d\ns_lshl_b32 s15, s12, 6\ns_add_u32 s14, s14, s15\nv_add_u32 v%d, s14, v%d' % (KC_STRIDE, VA, VA0))
    p.I('s_mul_i32 s14, s10, %d\ns_add_u32 s14, s14, %d\ns_xor_b32 s15, s11, 1\ns_lshl_b32 s15, s15, 8\ns_add_u32 s14, s14, s15\ns_lshl_b32 s15, s12, 3\ns_add_u32 s14, s14, s15\nv_add_u32 v%d, s14, v%d' % (XR_STRIDE, XR_BASE, VB, VB0))
    def ldA(setk, rel):
        r = AS + 8 * (setk % 8)
        for f in range(2):
            for h in range(2):
                p.I('ds_read_b64 %s, v%d offset:%d' % (vr(r + 4 * f + 2 * h, 2), VA, 64 * rel + 32 * f + 8 * h))
    def ldB(slot, rel):
        p.I('ds_read_b128 %s, v%d offset:%d' % (vr(BS + 4 * (slot % 4), 4), VB, ((rel & 1) * 4 * 48 + (rel >> 1)) * 16))
    ldA(0, 0); ldA(1, 1); ldB(0, 0); ldA(2, 2); ldB(1, 1); ldA(3, 3); ldB(2, 2)
    for i in range(16): p.I('v_mov_b32 v%d, 0' % (ACC + i))
    p.loop_begin(blk)
    for st in range(8):
        b = vr(BS + 4 * (st % 4), 4)
        for rt in range(4):
            a = AS + 8 * ((st + rt // 2) % 8) + 4 * (rt % 2)
            p.I('v_mfma_f32_16x16x32_bf16 %s, %s, %s, %s' % (vr(ACC + 4 * rt, 4), vr(a, 4), b, vr(ACC + 4 * rt, 4)))
            if rt == 0: ldA(st + 4, st + 4)
            if rt == 2: ldB(st + 3, st + 3)
    p.I('v_add_u32 v%d, 512, v%d\nv_add_u32 v%d, 64, v%d' % (VA, VA, VB, VB))
    p.I('s_sub_u32 s13, s13, 1\ns_cmp_lg_u32 s13, 0\ns_cbranch_scc1 %s' % blk)
    p.loop_end(blk)
    p.I('s_waitcnt lgkmcnt(0)')
    l3 = p.label_name('L_w3'); ln = p.label_name('L_next')
    p.I('s_nop 7')
    p.I('s_cmp_eq_u32 s3, 3\ns_cbranch_scc1 %s' % l3)
    p.I('s_cmp_eq_u32 s8, 0\ns_cbranch_scc0 %s' % ln)
    for i in range(16): p.I('v_mov_b32 v%d, v%d' % (KEEP + i, ACC + i))
    p.I('s_branch %s' % ln)
    p.label(l3)
    p.I('s_lshl_b32 s14, s10, 12\ns_add_u32 s14, s14, %d\nv_lshl_add_u32 v2, v1, 4, s14' % RED_BASE)
    for rt in range(4): p.I('ds_write_b128 v2, %s offset:%d' % (vr(ACC + 4 * rt, 4), 1024 * rt))
    p.label(ln)
    p.I('s_add_u32 s8, s8, 1\ns_cmp_lt_u32 s8, s9\ns_cbranch_scc1 %s' % seg)
    p.loop_end(seg)
    p.I('s_waitcnt lgkmcnt(0)\ns_barrier')
    p.cut()
    c.stamp(4)
    done = p.label_name('L_conv_done')
    p.I('s_cmp_eq_u32 s3, 3\ns_cbranch_scc1 %s' % done)
    p.I('s_lshl_b32 s14, s3, 12\ns_add_u32 s14, s14, %d\nv_lshl_add_u32 v2, v1, 4, s14' % RED_BASE)
    T = 32
    for rt in range(4): p.I('ds_read_b128 %s, v2 offset:%d' % (vr(T + 4 * rt, 4), 1024 * rt))
    p.I('v_lshrrev_b32 v5, 5, v1\nv_sub_u32 v5, 1, v5\nv_mul_u32_u24 v5, 48, v5\nv_and_b32 v6, 15, v1\nv_sub_u32 v5, v5, v6\nv_add_u32 v5, 15, v5\nv_lshlrev_b32 v5, 4, v5')
    p.I('v_bfe_u32 v6, v1, 4, 1\nv_sub_u32 v6, 1, v6\nv_lshl_add_u32 v5, v6, 3, v5')
    p.I('s_mul_i32 s14, s3, %d\ns_add_u32 s14, s14, %d\nv_add_u32 v5, s14, v5' % (XR_STRIDE, XR_BASE))
    X = 48
    for ct in range(2):
        for rt in range(4):
            p.I('ds_read_b64 %s, v5 offset:%d' % (vr(X + 8 * ct + 2 * rt, 2), (2 * (3 - rt) * 48 + 16 * (1 - ct)) * 16))
    for i in range(16): p.I('v_add_f32 v%d, v%d, v%d' % (ACC + i, ACC + i, T + i))
    p.I('s_mul_i32 s14, s2, 3\ns_add_u32 s14, s14, s3\ns_lshl_b32 s14, s14, 12')
    p.I('v_and_b32 v6, 15, v1\nv_lshl_add_u32 v6, v6, 7, s14\nv_lshrrev_b32 v7, 5, v1\nv_lshl_add_u32 v6, v7, 4, v6\nv_bfe_u32 v7, v1, 4, 1\nv_lshl_add_u32 v6, v7, 5, v6')
    p.I('s_mov_b32 s10, 0xffff0000')
    Z, U = 64, 80
    for ct in range(2):
        src = ACC if ct == 0 else KEEP
        for rt in range(4):
            x0, x1 = X + 8 * ct + 2 * rt, X + 8 * ct + 2 * rt + 1
            a = src + 4 * rt
            p.I('v_and_b32 v%d, s10, v%d\nv_lshlrev_b32 v%d, 16, v%d\nv_and_b32 v%d, s10, v%d\nv_lshlrev_b32 v%d, 16, v%d' % (U, x1, U + 1, x1, U + 2, x0, U + 3, x0))
            for r in range(4): p.I('v_fmac_f32 v%d, v23, v%d' % (a + r, U + r))
            zb = Z + 8 * ct + 4 * (rt // 2) + 2 * (rt % 2)
            p.I('v_cvt_pk_bf16_f32 v%d, v%d, v%d\nv_cvt_pk_bf16_f32 v%d, v%d, v%d' % (zb, a, a + 1, zb + 1, a + 2, a + 3))
        for k in range(2):
            zb = Z + 8 * ct + 4 * k
            p.I('v_permlane16_swap_b32 v%d, v%d\nv_permlane16_swap_b32 v%d, v%d' % (zb, zb + 2, zb + 1, zb + 3))
            p.I('buffer_store_dwordx4 %s, v6, s[52:55], 0 offen offset:%d%s' % (vr(zb, 4), 64 * k + 2048 * ct, c.sc))
    p.label(done)

MODW = 100
def p0_mod_loads(c, wg0):
    p = c.p
    p.I('s_sub_u32 s4, s2, %d' % wg0)
    srd(p, 8, P_C, 1152); srd(p, 52, P_WMOD, 576 * 6912)
    p.I('v_lshlrev_b32 v2, 1, v0')
    for i in range(3): p.I('buffer_load_ushort v%d, v2, s[8:11], 0 offen offset:%d' % (172 + i, 512 * i))
    p.I('v_lshrrev_b32 v8, 3, v0\nv_and_b32 v9, 7, v0')
    p.I('s_lshl_b32 s6, s4, 7\nv_lshl_add_u32 v10, v9, 4, s6\ns_movk_i32 s7, 6912\nv_mad_u32_u24 v10, v8, s7, v10')
    for i in range(18):
        p.I('buffer_load_dwordx4 %s, v10, s[52:55], 0 offen' % vr(MODW + 4 * i, 4))
        if i < 17: p.I('v_add_u32 v10, %d, v10' % (32 * 6912))

MODL = 131072
def p0_mod_compute(c, wg0):
    p = c.p
    W = MODW
    p.I('s_sub_u32 s4, s2, %d' % wg0)
    srd(p, 52, P_WS, 6 * 576 * 4, off=L.MOD)
    p.I('v_lshrrev_b32 v8, 3, v0\nv_and_b32 v9, 7, v0')
    p.I('s_mov_b32 s8, 0x%x' % f2u(-LOG2E))
    p.I('v_lshlrev_b32 v12, 2, v0\nv_add_u32 v12, %d, v12' % MODL)
    for i in range(3):
        r = 172 + i
        p.I('v_lshlrev_b32 v%d, 16, v%d' % (r, r))
        p.I('v_mul_f32 v13, s8, v%d\nv_exp_f32 v13, v13\nv_add_f32 v13, 1.0, v13\nv_rcp_f32 v13, v13\nv_mul_f32 v13, v%d, v13' % (r, r))
        bf16_round(p, 13, 13)
        p.I('ds_write_b32 v12, v13 offset:%d' % (1024 * i))
    p.I('s_waitcnt lgkmcnt(0)\ns_barrier')
    p.I('v_lshlrev_b32 v14, 2, v8\nv_add_u32 v14, %d, v14' % MODL)
    SV = 40
    for i in range(18): p.I('ds_read_b32 v%d, v14 offset:%d' % (SV + i, 128 * i))
    AC, T = 16, 24
    p.I('s_mov_b32 s10, 0xffff0000')
    for i in range(18):
        for d in range(4): unpack(p, T + 2 * d, W + 4 * i + d, 10)
        for d in range(4):
            sv = vr((SV + i) & ~1, 2)
            mods = 'op_sel_hi:[1,0,1]' if i % 2 == 0 else 'op_sel:[0,1,0] op_sel_hi:[1,1,1]'
            if i == 0: p.I('v_pk_mul_f32 %s, %s, %s op_sel_hi:[1,0]' % (vr(AC + 2 * d, 2), vr(T + 2 * d, 2), sv))
            else: p.I('v_pk_fma_f32 %s, %s, %s, %s %s' % (vr(AC + 2 * d, 2), vr(T + 2 * d, 2), sv, vr(AC + 2 * d, 2), mods))
    p.I('v_lshlrev_b32 v15, 8, v8\nv_lshl_add_u32 v15, v9, 5, v15\nv_add_u32 v15, %d, v15' % MODL)
    p.I('ds_write_b128 v15, %s offset:4096\nds_write_b128 v15, %s offset:4112' % (vr(AC, 4), vr(AC + 4, 4)))
    p.I('s_waitcnt lgkmcnt(0)\ns_barrier')
    lab = p.label_name('L_mod_skip')
    wave0(p, lab)
    p.I('v_lshlrev_b32 v14, 2, v0\nv_add_u32 v14, %d, v14' % MODL)
    W2_ = 40
    for i in range(32): p.I('ds_read_b32 v%d, v14 offset:%d' % (W2_ + i, 4096 + 256 * i))
    n = 32
    while n > 1:
        n //= 2
        for i in range(n): p.I('v_add_f32 v%d, v%d, v%d' % (W2_ + i, W2_ + i, W2_ + i + n))
    p.I('v_mov_b32 v16, v%d' % W2_)
    bf16_round(p, 16, 16)
    m9 = udiv_magic(9, 64)
    p.I('s_mul_i32 s9, s4, %d\ns_lshr_b32 s9, s9, 16' % m9)
    p.I('s_cmp_eq_u32 s9, 1\ns_cselect_b32 s11, 1, 0\ns_cmp_eq_u32 s9, 4\ns_cselect_b32 s11, 1, s11')
    p.I('v_cvt_f32_u32 v17, s11\nv_add_f32 v16, v16, v17')
    bf16_round(p, 16, 16)
    p.I('s_lshl_b32 s6, s4, 8\nv_lshl_add_u32 v18, v0, 2, s6')
    p.I('buffer_store_dword v16, v18, s[52:55], 0 offen%s' % c.sc)
    p.label(lab); p.cut()

PT_NB = 4
def pt_setup(c):
    p = c.p
    p.I('v_lshrrev_b32 v2, 3, v1\nv_and_b32 v3, 7, v1\nv_lshlrev_b32 v3, 4, v3')
    p.I('v_lshrrev_b32 v4, 4, v1\nv_bfe_u32 v5, v1, 2, 2\nv_and_b32 v9, 3, v1')
    p.I('v_lshl_add_u32 v6, v4, 3, v5\nv_lshlrev_b32 v6, 7, v6\nv_lshl_add_u32 v6, v9, 3, v6')
    p.I('v_lshl_add_u32 v7, v4, 2, v5\nv_lshlrev_b32 v7, 7, v7\nv_lshl_add_u32 v7, v9, 5, v7')
    p.I('v_lshlrev_b32 v8, 4, v1')
    p.I('s_mul_i32 s96, s3, %d' % (PT_NB * 4096))
    srd(p, 48, P_W1, 576 * 1152); srd(p, 52, P_W2, 576 * 1152); srd(p, 56, P_W3, 576 * 9216); srd(p, 60, P_W4, 4608 * 1152)
    srd(p, 68, P_WS, L.W34T + 32 * 324 * 1024 - L.W1T, off=L.W1T)

def pt_src(c, su, mode):
    p = c.p
    if mode == '12':
        p.I('s_cmp_ge_u32 s%d, 162\ns_cselect_b32 s15, 1, 0\ns_cselect_b32 s7, 162, 0\ns_sub_u32 s7, s%d, s7' % (su, su))
        p.I('s_mul_i32 s8, s7, %d\ns_lshr_b32 s8, s8, 16\ns_mul_i32 s9, s8, 9\ns_sub_u32 s9, s7, s9' % udiv_magic(9, 600))
        p.I('s_movk_i32 s11, 1152')
        p.I('s_cmp_eq_u32 s15, 1')
        for k in range(4): p.I('s_cselect_b32 s%d, s%d, s%d' % (64 + k, 52 + k, 48 + k))
        lim = 324
    else:
        p.I('s_cmp_ge_u32 s%d, 1296\ns_cselect_b32 s15, 1, 0\ns_cselect_b32 s7, 1296, 0\ns_sub_u32 s7, s%d, s7' % (su, su))
        p.I('s_mul_i32 s8, s7, %d\ns_lshr_b32 s8, s8, 20\ns_mul_i32 s12, s7, %d\ns_lshr_b32 s12, s12, 20' % (udiv_magic(72, 2600, 20), udiv_magic(9, 2600, 20)))
        p.I('s_cmp_eq_u32 s15, 1\ns_cselect_b32 s8, s12, s8\ns_cselect_b32 s12, 9, 72\ns_movk_i32 s11, 9216\ns_cselect_b32 s11, 1152, s11')
        for k in range(4): p.I('s_cselect_b32 s%d, s%d, s%d' % (64 + k, 60 + k, 56 + k))
        p.I('s_mul_i32 s9, s8, s12\ns_sub_u32 s9, s7, s9')
        lim = 2592
    p.I('s_mul_i32 s10, s8, s11\ns_lshl_b32 s10, s10, 5\ns_lshl_b32 s12, s9, 7\ns_add_u32 s10, s10, s12')
    p.I('s_cmp_ge_u32 s%d, %d\ns_cselect_b32 s10, 0x7f000000, s10' % (su, lim))

def pt_dst(c, su, mode):
    p = c.p
    m18 = udiv_magic(18, 300)
    if mode == '12':
        p.I('s_mul_i32 s12, s9, %d\ns_lshl_b32 s13, s8, 10\ns_add_u32 s12, s12, s13\ns_mul_i32 s13, s15, %d\ns_add_u32 s12, s12, s13' % (4 * 18 * 1024, L.W2T - L.W1T))
        for j in range(4): p.I('s_add_u32 s%d, s12, %d' % (80 + j, j * 18 * 1024))
        lim = 324
    else:
        w4 = p.label_name('L_d4'); dn = p.label_name('L_dd')
        p.I('s_cmp_eq_u32 s15, 1\ns_cbranch_scc1 %s' % w4)
        for j in range(4):
            p.I('s_lshl_b32 s12, s9, 2\ns_add_u32 s12, s12, %d' % j)
            p.I('s_mul_i32 s13, s12, %d\ns_lshr_b32 s13, s13, 16\ns_mul_i32 s14, s13, 36\ns_sub_u32 s12, s12, s14' % udiv_magic(36, 300))
            p.I('s_mul_i32 s14, s12, %d\ns_lshr_b32 s14, s14, 16\ns_mul_i32 s84, s14, 12\ns_sub_u32 s12, s12, s84' % udiv_magic(12, 40))
            p.I('s_mul_i32 s84, s12, %d\ns_lshr_b32 s84, s84, 16\ns_mul_i32 s85, s84, 3\ns_sub_u32 s12, s12, s85' % udiv_magic(3, 16))
            p.I('s_lshl_b32 s13, s13, 2\ns_add_u32 s13, s13, s84\ns_mul_i32 s13, s13, 324\ns_mul_i32 s14, s14, 54\ns_add_u32 s13, s13, s14\ns_mul_i32 s14, s8, 3\ns_add_u32 s13, s13, s14\ns_add_u32 s13, s13, s12\ns_lshl_b32 s13, s13, 10\ns_add_u32 s%d, s13, %d' % (80 + j, L.W34T - L.W1T))
        p.I('s_branch %s' % dn)
        p.label(w4)
        p.I('s_mul_i32 s12, s8, %d\ns_lshr_b32 s12, s12, 16\ns_mul_i32 s13, s12, 18\ns_sub_u32 s13, s8, s13' % m18)
        for j in range(4):
            p.I('s_and_b32 s14, s9, 3\ns_lshl_b32 s84, s13, 2\ns_add_u32 s84, s84, %d' % (162 + j))
            p.I('s_cmp_ge_u32 s9, 4\ns_cselect_b32 s85, 72, 0\ns_add_u32 s84, s84, s85')
            p.I('s_add_u32 s85, s13, 306\ns_cmp_eq_u32 s9, 8\ns_cselect_b32 s84, s85, s84\ns_cselect_b32 s14, %d, s14' % j)
            p.I('s_lshl_b32 s85, s12, 2\ns_add_u32 s85, s85, s14\ns_mul_i32 s85, s85, 324\ns_add_u32 s85, s85, s84\ns_lshl_b32 s85, s85, 10\ns_add_u32 s%d, s85, %d' % (80 + j, L.W34T - L.W1T))
        p.label(dn)
        lim = 2592
    p.I('s_cmp_ge_u32 s%d, %d' % (su, lim))
    for j in range(4): p.I('s_cselect_b32 s%d, 0x7f000000, s%d' % (80 + j, 80 + j))

def pt_issue(c, sbuf):
    p = c.p
    p.I('v_mad_u32_u24 v9, v2, s11, v3\nv_add_u32 v9, s10, v9\ns_lshl_b32 s12, s11, 3')
    for q in range(4):
        p.I('s_add_u32 m0, s%d, %d' % (sbuf, q * 1024))
        if q: p.I('v_add_u32 v9, s12, v9')
        p.I('buffer_load_dwordx4 v9, s[64:67], 0 offen lds', nowait=True)

def pt_process(c, sbuf, mode):
    p = c.p
    R = 16
    def reads(va, jstride, second):
        p.I('v_add_u32 v10, s%d, v%d' % (sbuf, va))
        for j in range(4):
            p.I('ds_read_b64_tr_b16 %s, v10 offset:%d' % (vr(R + 4 * j, 2), j * jstride))
            p.I('ds_read_b64_tr_b16 %s, v10 offset:%d' % (vr(R + 4 * j + 2, 2), j * jstride + second))
    if mode == '12': reads(6, 32, 512)
    else:
        lb = p.label_name('L_kb'); le = p.label_name('L_ke')
        p.I('s_cmp_eq_u32 s15, 1\ns_cbranch_scc1 %s' % lb)
        reads(6, 32, 512)
        p.I('s_branch %s' % le)
        p.label(lb)
        reads(7, 8, 2048)
        p.label(le)
    p.I('s_waitcnt lgkmcnt(0)');
    for j in range(4):
        p.I('v_add_u32 v11, s%d, v8' % (80 + j))
        if os.environ.get('NOST'): continue
        p.I('buffer_store_dwordx4 %s, v11, s[68:71], 0 offen%s' % (vr(R + 4 * j, 4), '' if os.environ.get('PLAINST') else c.sc), nowait=True)

def pretile(c, mode, su0):
    p = c.p
    p.comment('---- pretile %s' % mode)
    lim = 324 if mode == '12' else 2592
    p.I('s_mov_b32 s86, s%d\ns_mov_b32 s87, s%d\ns_mov_b32 s88, s96\ns_mov_b32 s89, s96\ns_add_u32 s90, s96, %d' % (su0, su0, PT_NB * 4096))
    def adv(r): p.I('s_add_u32 s%d, s%d, 4096\ns_cmp_ge_u32 s%d, s90\ns_cselect_b32 s%d, s96, s%d' % (r, r, r, r, r))
    for k in range(PT_NB - 1):
        pt_src(c, 86, mode); pt_issue(c, 88); adv(88); p.I('s_add_u32 s86, s86, 256')
    loop = p.label_name('L_pt'); done = p.label_name('L_pt_done')
    first = True
    p.label(loop)
    p.I('s_cmp_ge_u32 s87, %d\ns_cbranch_scc1 %s' % (lim, done))
    pt_src(c, 86, mode); pt_issue(c, 88); adv(88); p.I('s_add_u32 s86, s86, 256')
    p.I('s_waitcnt vmcnt(%d)' % (4 * (PT_NB - 1)))
    pt_src(c, 87, mode); pt_dst(c, 87, mode)
    pt_process(c, 89, mode); adv(89); p.I('s_add_u32 s87, s87, 256')
    p.I('s_branch %s' % loop)
    p.label(done); p.cut()
    p.I('s_waitcnt vmcnt(0)')

def ln_stats(p, X, ntok, nj, ST, red, stride=2):
    for j in range(nj):
        for i in range(ntok):
            x = vr(X + (i * nj + j) * stride, 2)
            if j == 0:
                p.I('v_pk_mul_f32 %s, %s, %s' % (vr(ST + 4 * i + 2, 2), x, x))
            else:
                p.I('v_pk_fma_f32 %s, %s, %s, %s' % (vr(ST + 4 * i + 2, 2), x, x, vr(ST + 4 * i + 2, 2)))
            if j == 1:
                p.I('v_pk_add_f32 %s, %s, %s' % (vr(ST + 4 * i, 2), vr(X + (i * nj) * stride, 2), x))
            elif j > 1:
                p.I('v_pk_add_f32 %s, %s, %s' % (vr(ST + 4 * i, 2), vr(ST + 4 * i, 2), x))
    for i in range(ntok):
        p.I('v_add_f32 v%d, v%d, v%d\nv_add_f32 v%d, v%d, v%d' % (ST + 4 * i, ST + 4 * i, ST + 4 * i + 1, ST + 4 * i + 2, ST + 4 * i + 2, ST + 4 * i + 3))
    red([ST + 4 * i for i in range(ntok)] + [ST + 4 * i + 2 for i in range(ntok)])
    for i in range(ntok):
        a = ST + 4 * i
        p.I('v_mul_f32 v%d, s98, v%d\nv_mul_f32 v%d, s98, v%d' % (a, a, a + 2, a + 2))
    for i in range(ntok):
        a = ST + 4 * i
        p.I('v_fma_f32 v%d, -v%d, v%d, v%d' % (a + 2, a, a, a + 2))
    for i in range(ntok):
        a = ST + 4 * i
        p.I('v_max_f32 v%d, 0, v%d' % (a + 2, a + 2))
    for i in range(ntok):
        a = ST + 4 * i
        p.I('v_add_f32 v%d, s97, v%d' % (a + 2, a + 2))
    for i in range(ntok):
        a = ST + 4 * i
        p.I('v_rsq_f32 v%d, v%d' % (a + 2, a + 2))
    for i in range(ntok):
        a = ST + 4 * i
        p.I('v_mul_f32 v%d, -v%d, v%d' % (a + 1, a, a + 2))
    for i in range(ntok):
        a = ST + 4 * i
        p.I('v_mov_b32 v%d, v%d' % (a, a + 2))

def ln_apply(p, dst, src, P):
    p.I('v_pk_fma_f32 %s, %s, %s, %s op_sel:[0,0,1] op_sel_hi:[1,0,1]' % (vr(dst, 2), vr(src, 2), vr(P, 2), vr(P, 2)))

def gemm_small2(c, lds_base, abase, ACC, BF, after_ks=None):
    p = c.p
    p.I('v_and_b32 v2, 15, v1\nv_lshrrev_b32 v8, 4, v1\nv_xor_b32 v2, v2, v8\nv_lshl_add_u32 v2, v8, 4, v2\nv_lshlrev_b32 v2, 4, v2\nv_add_u32 v2, %d, v2' % lds_base)
    def ldb(ks):
        for tt in range(2):
            p.I('ds_read_b128 %s, v2 offset:%d' % (vr(BF + 8 * (ks % 3) + 4 * tt, 4), (ks * 2 + tt) * 1024))
    ldb(0); ldb(1)
    for ks in range(18):
        if ks + 2 < 18: ldb(ks + 2)
        for e in range(3):
            for tt in range(2):
                a = ACC + 4 * (e * 2 + tt)
                p.I('v_mfma_f32_16x16x32_bf16 %s, %s, %s, %s' % (vr(a, 4), ar(abase + 4 * (e * 18 + ks), 4), vr(BF + 8 * (ks % 3) + 4 * tt, 4), '0' if ks == 0 else vr(a, 4)))
        if after_ks: after_ks(ks)

def wfrag_setup(c, wsoff, srdslot, vaddr):
    p = c.p
    srd(p, srdslot, P_WS, 36 * 18 * 1024, off=wsoff)
    p.I('s_mul_i32 s6, s5, 12\ns_mul_i32 s7, s3, 3\ns_add_u32 s6, s6, s7\ns_mul_i32 s6, s6, %d' % (18 * 1024))
    p.I('v_lshl_add_u32 v%d, v1, 4, s6\nv_add_u32 v%d, %d, v%d\nv_add_u32 v%d, %d, v%d' % (vaddr, vaddr + 1, 18 * 1024, vaddr, vaddr + 2, 36 * 1024, vaddr))

def wfrag_load(c, srdslot, vaddr, abase, ks):
    p = c.p
    for e in range(3):
        if ks % 4 == 0 and ks > 0: p.I('v_add_u32 v%d, 4096, v%d' % (vaddr + e, vaddr + e))
        p.I('buffer_load_dwordx4 %s, v%d, s[%d:%d], 0 offen offset:%d%s' % (ar(abase + 4 * (e * 18 + ks), 4), vaddr + e, srdslot, srdslot + 3, 1024 * (ks % 4), c.sc))

ZS_BASE, A1_BASE = 0, 36864
XF, GH, CB, SB, TM, ST2 = 16, 88, 160, 178, 196, 232

def wg_rb_ns(p):
    m3 = udiv_magic(3, 256)
    p.I('s_lshr_b32 s5, s2, 3\ns_mul_i32 s4, s5, %d\ns_lshr_b32 s4, s4, 16\ns_mul_i32 s6, s4, 3\ns_sub_u32 s5, s5, s6\ns_and_b32 s6, s2, 7\ns_lshl_b32 s6, s6, 3\ns_add_u32 s4, s4, s6' % m3)

def load_wfrags(c, wsoff, abase):
    p = c.p
    srd(p, 64, P_WS, 36 * 18 * 1024, off=wsoff)
    p.I('s_mul_i32 s6, s5, 12\ns_mul_i32 s7, s3, 3\ns_add_u32 s6, s6, s7\ns_mul_i32 s6, s6, %d' % (18 * 1024))
    p.I('v_lshl_add_u32 v2, v1, 4, s6')
    for e in range(3):
        for ks in range(18):
            idx = e * 18 + ks
            if idx % 4 == 0 and idx > 0: p.I('v_add_u32 v2, 4096, v2')
            p.I('buffer_load_dwordx4 %s, v2, s[64:67], 0 offen offset:%d%s' % (ar(abase + 4 * idx, 4), 1024 * (idx % 4), c.sc))

def red32(p, tmp):
    return lambda regs: reduce32(p, regs, tmp)

XP, P0S = 180, 216
PRM_BASE = 73728
HPL_BASE, HPL_RS = 86016, 400

def p2_xload(c):
    p = c.p
    wg_rb_ns(p)
    srd(p, 68, P_Q, L.S * 1152)
    p.I('v_lshrrev_b32 v172, 5, v1\nv_and_b32 v173, 31, v1')
    p.I('s_lshl_b32 s6, s4, 5\ns_lshl_b32 s7, s3, 3\ns_add_u32 s6, s6, s7\nv_lshl_add_u32 v174, v172, 2, s6')
    p.I('s_movk_i32 s7, 1152\nv_mul_lo_u32 v178, v174, s7\nv_lshl_add_u32 v178, v173, 2, v178\nv_add_u32 v179, 2304, v178')
    for i in range(4):
        for j in range(9):
            p.I('buffer_load_dword v%d, v%d, s[68:71], 0 offen offset:%d' % (XP + i * 9 + j, 178 if i < 2 else 179, (i % 2) * 1152 + 128 * j))

def p2_xstats(c):
    p = c.p
    p.I('s_mov_b32 s99, 0xffff0000\ns_mov_b32 s98, 0x%x\ns_mov_b32 s97, 0x%x' % (f2u(1.0 / 576), f2u(1e-5)))
    T = 8
    for k in range(36): unpack(p, T + 2 * k, XP + k, 99)
    ln_stats(p, T, 4, 9, P0S, red32(p, 232))

def p2_pre(c):
    p = c.p
    wg_rb_ns(p)
    srd(p, 52, P_WS, 6 * 576 * 4, off=L.MOD)
    p.I('s_mov_b32 s99, 0xffff0000\ns_mov_b32 s98, 0x%x\ns_mov_b32 s97, 0x%x' % (f2u(1.0 / 576), f2u(1e-5)))
    p.I('v_lshrrev_b32 v3, 5, v1\nv_and_b32 v4, 31, v1\nv_mov_b32 v6, v178\nv_mov_b32 v7, v179')
    p.I('v_lshlrev_b32 v8, 4, v0')
    PL = 236
    for u in range(3): p.I('s_movk_i32 s7, %d\nbuffer_load_dwordx4 %s, v8, s[52:55], s7 offen%s' % (4096 * u, vr(PL + 4 * u, 4), c.sc))
    wfrag_setup(c, L.W1T, 64, 12)
    F = Filler(p)
    for k in range(36):
        F.add('v_lshlrev_b32 v%d, 16, v%d\nv_and_b32 v%d, s99, v%d' % (XF + 2 * k, XP + k, XF + 2 * k + 1, XP + k))
    for i in range(4):
        for j in range(9):
            k = i * 9 + j
            F.add('v_pk_fma_f32 %s, %s, %s, %s op_sel:[0,0,1] op_sel_hi:[1,0,1]' % (vr(GH + 2 * k, 2), vr(XF + 2 * k, 2), vr(P0S + 4 * i, 2), vr(P0S + 4 * i, 2)))
    F.set_rate(18)
    for ks in range(6):
        wfrag_load(c, 64, 12, 0, ks)
        for _ in range(3): F.tick()
    F.flush()
    p.I('v_add_u32 v9, %d, v8' % PRM_BASE)
    for u in range(3): p.I('ds_write_b128 v9, %s offset:%d' % (vr(PL + 4 * u, 4), 4096 * u))
    p.I('s_waitcnt lgkmcnt(0)\ns_barrier')
    p.I('v_lshlrev_b32 v10, 3, v4\nv_add_u32 v10, %d, v10' % PRM_BASE)
    for arr, dst in ((0, TM), (1, TM + 18), (2, TM + 36), (3, SB), (4, CB)):
        for j in range(9):
            F.add('ds_read_b64 %s, v10 offset:%d' % (vr(dst + 2 * j, 2), arr * 2304 + 256 * j))
    for j in range(9):
        F.add('v_pk_mul_f32 %s, %s, %s' % (vr(TM + 18 + 2 * j, 2), vr(TM + 18 + 2 * j, 2), vr(TM + 36 + 2 * j, 2)))
        F.add('v_pk_mul_f32 %s, %s, %s' % (vr(TM + 2 * j, 2), vr(TM + 2 * j, 2), vr(TM + 36 + 2 * j, 2)))
    for i in range(4):
        for j in range(9):
            g = GH + (i * 9 + j) * 2
            F.add('v_pk_fma_f32 %s, %s, %s, %s' % (vr(g, 2), vr(g, 2), vr(TM + 18 + 2 * j, 2), vr(TM + 2 * j, 2)))
    F.set_rate(36)
    for ks in range(6, 18):
        wfrag_load(c, 64, 12, 0, ks)
        for _ in range(3): F.tick()
    F.flush()

def p2_main(c, abase=0):
    p = c.p
    srd(p, 48, P_WS, L.D * 4096, off=L.ZT)
    srd(p, 52, P_WS, L.S * 1152, off=L.X1); srd(p, 56, P_WS, L.S * 1152, off=L.HP); srd(p, 60, P_WS, L.S * 1152, off=L.H1)
    p.I('v_lshrrev_b32 v8, 2, v1\nv_and_b32 v9, 3, v1\nv_lshlrev_b32 v10, 13, v8\nv_lshl_add_u32 v10, v9, 4, v10\ns_lshl_b32 s6, s4, 6\nv_add_u32 v10, s6, v10')
    p.I('s_lshl_b32 s6, s3, 17\nv_add_u32 v10, s6, v10\ns_movk_i32 s8, 4096')
    for t in range(5):
        if t: p.I('v_add_u32 v10, %d, v10' % (4 * 131072))
        p.I('buffer_load_dwordx4 %s, v10, s[48:51], 0 offen%s' % (vr(TM + 8 * t, 4), c.sc))
        p.I('buffer_load_dwordx4 %s, v10, s[48:51], s8 offen%s' % (vr(TM + 8 * t + 4, 4), c.sc))
    p.I('v_bfe_u32 v11, v8, 1, 3\nv_lshlrev_b32 v12, 1, v9\nv_xor_b32 v11, v11, v12\nv_lshlrev_b32 v11, 4, v11\nv_lshl_add_u32 v11, v8, 7, v11')
    p.I('s_lshl_b32 s6, s3, 11\nv_add_u32 v11, s6, v11\nv_xor_b32 v12, 16, v11')
    p.I('s_mov_b32 s8, 0x05040100\ns_mov_b32 s9, 0x07060302')
    PO = 236
    for t in range(5):
        a, b = TM + 8 * t, TM + 8 * t + 4
        o = PO + 8 * (t % 2)
        for k in range(4):
            p.I('v_perm_b32 v%d, v%d, v%d, s8\nv_perm_b32 v%d, v%d, v%d, s9' % (o + 2 * k, b + k, a + k, o + 2 * k + 1, b + k, a + k))
        p.I('ds_write_b128 v11, %s offset:%d' % (vr(o, 4), ZS_BASE + t * 8192))
        p.I('ds_write_b128 v12, %s offset:%d' % (vr(o + 4, 4), ZS_BASE + t * 8192))
    p.I('s_waitcnt vmcnt(0) lgkmcnt(0)\ns_barrier')
    p.cut()
    c.stamp(8)
    p.I('s_lshl_b32 s6, s3, 1\nv_add_u32 v8, s6, v3\nv_bfe_u32 v9, v4, 1, 3\nv_xor_b32 v8, v8, v9\nv_lshlrev_b32 v8, 4, v8\nv_lshl_add_u32 v8, v4, 7, v8')
    Z = TM
    for j in range(9): p.I('ds_read_b128 %s, v8 offset:%d' % (vr(Z + 4 * j, 4), ZS_BASE + 4096 * j))
    U = 232
    for j in range(9):
        for i in range(4):
            unpack(p, U + 2 * i, Z + 4 * j + i, 99)
        for i in range(4):
            g = vr(GH + (i * 9 + j) * 2, 2)
            p.I('v_pk_fma_f32 %s, %s, %s, %s' % (g, g, vr(U + 2 * i, 2), vr(XF + (i * 9 + j) * 2, 2)))
        for i in range(4):
            p.I('v_cvt_pk_bf16_f32 v%d, v%d, v%d' % (XF + (i * 9 + j) * 2, GH + (i * 9 + j) * 2, GH + (i * 9 + j) * 2 + 1))
    ST = 196
    ln_stats(p, GH, 4, 9, ST, red32(p, ST + 16))
    for j in range(9):
        for i in range(4):
            g = GH + (i * 9 + j) * 2
            ln_apply(p, g, g, ST + 4 * i)
        for i in range(4):
            g = vr(GH + (i * 9 + j) * 2, 2)
            p.I('v_pk_fma_f32 %s, %s, %s, %s' % (g, g, vr(CB + 2 * j, 2), vr(SB + 2 * j, 2)))
        for i in range(4):
            p.I('v_cvt_pk_bf16_f32 v%d, v%d, v%d' % (XF + (i * 9 + j) * 2 + 1, GH + (i * 9 + j) * 2, GH + (i * 9 + j) * 2 + 1))
    ln_stats(p, GH, 4, 9, ST, red32(p, ST + 16))
    p.I('v_bfe_u32 v8, v4, 2, 2\nv_lshrrev_b32 v9, 4, v4\nv_lshlrev_b32 v9, 11, v9\ns_lshr_b32 s6, s3, 1\ns_lshl_b32 s6, s6, 10\ns_and_b32 s7, s3, 1\ns_lshl_b32 s7, s7, 7\ns_add_u32 s6, s6, s7\ns_add_u32 s6, s6, %d' % A1_BASE)
    p.I('v_add_u32 v9, s6, v9\nv_lshl_add_u32 v9, v8, 8, v9\nv_lshl_add_u32 v9, v3, 6, v9\nv_and_b32 v10, 3, v4\nv_lshl_add_u32 v9, v10, 2, v9')
    for i in range(4):
        p.I('v_xor_b32 v10, %d, v8\nv_lshl_add_u32 v%d, v10, 4, v9' % (i, 12 + i))
    for j in range(9):
        for i in range(4):
            g = GH + (i * 9 + j) * 2
            ln_apply(p, U + 2 * i, g, ST + 4 * i)
        for i in range(4):
            p.I('v_cvt_pk_bf16_f32 v%d, v%d, v%d' % (U + 2 * i, U + 2 * i, U + 2 * i + 1))
        for i in range(4):
            p.I('ds_write_b32 v%d, v%d offset:%d' % (12 + i, U + 2 * i, 4096 * j))
    p.I('s_lshl_b32 s6, s3, 3\nv_lshl_add_u32 v11, v3, 2, s6\nv_mul_u32_u24 v11, %d, v11\nv_lshl_add_u32 v11, v4, 2, v11\nv_add_u32 v11, %d, v11' % (HPL_RS, HPL_BASE))
    for jg in range(3):
        lab = p.label_name('L_st')
        p.I('s_cmp_lg_u32 s5, %d\ns_cbranch_scc1 %s' % (jg, lab))
        for j in range(3 * jg, 3 * jg + 3):
            for i in range(4):
                p.I('buffer_store_dword v%d, v%d, s[52:55], 0 offen offset:%d%s' % (XF + (i * 9 + j) * 2, 6 if i < 2 else 7, (i % 2) * 1152 + 128 * j, c.sc), nowait=True)
                p.I('ds_write_b32 v11, v%d offset:%d' % (XF + (i * 9 + j) * 2 + 1, i * HPL_RS + 128 * (j - 3 * jg)), nowait=True)
        p.label(lab)
    p.I('s_waitcnt lgkmcnt(0)\ns_barrier')
    p.cut()
    c.stamp(9)
    wfrag_setup(c, L.W2T, 64, 156)
    gemm_small2(c, A1_BASE, abase, 100, 128, after_ks=lambda ks: wfrag_load(c, 64, 156, abase, ks))
    ACC = 100
    gelu_consts(p, 8, 9)
    p.I('v_mov_b32 v8, s9')
    gelu_inplace(p, list(range(ACC, ACC + 24)), 160, 8, 8)
    small_out_addr(p, 9)
    for e in range(3):
        for tt in range(2):
            a = ACC + 4 * (e * 2 + tt)
            o = 190 + 2 * (e * 2 + tt)
            p.I('v_cvt_pk_bf16_f32 v%d, v%d, v%d\nv_cvt_pk_bf16_f32 v%d, v%d, v%d' % (o, a, a + 1, o + 1, a + 2, a + 3))
            p.I('buffer_store_dwordx2 %s, v%d, s[60:63], 0 offen offset:%d%s' % (vr(o, 2), 9 + tt, 32 * e, c.sc))

def p3_main(c, abase=0):
    p = c.p
    srd(p, 48, P_WS, L.S * 1152, off=L.H1); srd(p, 52, P_WS, L.S * 1152, off=L.HP); srd(p, 56, P_WS, L.S * 1152, off=L.X2)
    p.I('s_mov_b32 s99, 0xffff0000')
    p.I('v_lshrrev_b32 v3, 4, v1\nv_and_b32 v4, 15, v1\ns_lshr_b32 s6, s3, 1\ns_lshl_b32 s6, s6, 5\nv_lshl_add_u32 v5, v3, 3, s6')
    p.I('s_lshl_b32 s6, s4, 5\ns_and_b32 s7, s3, 1\ns_lshl_b32 s7, s7, 4\ns_add_u32 s6, s6, s7\nv_add_u32 v6, s6, v4\ns_movk_i32 s7, 1152\nv_mul_lo_u32 v6, v6, s7\nv_lshl_add_u32 v6, v5, 1, v6')
    M1, P1, M2, P2_, N2, N4, N6 = 8, 9, 10, 11, 12, 13, 14
    p.I('v_subrev_u32 v%d, 1152, v6\nv_add_u32 v%d, 1152, v6\nv_subrev_u32 v%d, 2304, v6\nv_add_u32 v%d, 2304, v6' % (M1, P1, M2, P2_))
    p.I('v_cmp_gt_u32 vcc, 16, v5\nv_cndmask_b32 v%d, v%d, v%d, vcc' % (N2, P1, M1))
    p.I('v_cmp_gt_u32 vcc, 32, v5\nv_cndmask_b32 v%d, v%d, v%d, vcc' % (N4, M2, P1))
    p.I('v_cmp_gt_u32 vcc, 48, v5\nv_cndmask_b32 v%d, v%d, v%d, vcc' % (N6, P2_, M2))
    sel = [M1, M1, N2, P1, N4, M2, N6, P2_, P2_]
    T = 16
    for n in range(9):
        p.I('buffer_load_dwordx4 %s, v%d, s[48:51], 0 offen offset:%d%s' % (vr(T + 4 * n, 4), sel[n], 128 * n, c.sc))
    small_out_addr(p, 104)
    HR = 108
    p.I('v_mul_u32_u24 v15, %d, v4\nv_lshl_add_u32 v15, v3, 3, v15\ns_mul_i32 s6, s3, 96\ns_add_u32 s6, s6, %d\nv_add_u32 v15, s6, v15' % (HPL_RS, HPL_BASE))
    for e in range(3):
        for tt in range(2):
            p.I('ds_read_b64 %s, v15 offset:%d' % (vr(HR + 2 * (e * 2 + tt), 2), tt * 16 * HPL_RS + 32 * e))
    p.I('v_xor_b32 v7, v4, v3\nv_lshl_add_u32 v7, v3, 4, v7\nv_lshlrev_b32 v7, 4, v7\ns_lshl_b32 s6, s3, 10\nv_add_u32 v7, s6, v7')
    for n in range(9): p.I('ds_write_b128 v7, %s offset:%d' % (vr(T + 4 * n, 4), 4096 * n))
    p.I('s_waitcnt lgkmcnt(0)\ns_barrier')
    c.stamp(12)
    gemm_small2(c, 0, abase, 52, 80)
    ACC = 52
    for e in range(3):
        for tt in range(2):
            a = ACC + 4 * (e * 2 + tt); h = HR + 2 * (e * 2 + tt); o = 128 + 2 * (e * 2 + tt)
            unpack(p, 120, h, 99); unpack(p, 122, h + 1, 99)
            for r in range(4): p.I('v_add_f32 v%d, v%d, v%d' % (a + r, a + r, 120 + r))
            p.I('v_cvt_pk_bf16_f32 v%d, v%d, v%d\nv_cvt_pk_bf16_f32 v%d, v%d, v%d' % (o, a, a + 1, o + 1, a + 2, a + 3))
            p.I('buffer_store_dwordx2 %s, v%d, s[56:59], 0 offen offset:%d%s' % (vr(o, 2), 104 + tt, 32 * e, c.sc))

def p4_ln2(c, RAW, X):
    p = c.p
    mlp32.ln_addr(c)
    ST = 208
    for i in range(2):
        for k in range(36):
            unpack(p, X + 2 * k, RAW + 36 * i + k, 99)
            if k % 2 == 1 and c.wn < mlp32.RING and i == 1: mlp32.wload(c)
        ln_stats_single(p, X, 36, ST)
        for k in range(36):
            ln_apply(p, X + 2 * k, X + 2 * k, ST)
            if k % 2 == 1 and c.wn < mlp32.RING: mlp32.wload(c)
        for k in range(36): p.I('v_cvt_pk_bf16_f32 v%d, v%d, v%d' % (RAW + 36 * i + k, X + 2 * k, X + 2 * k + 1))
        for j in range(8): p.I('ds_write_b128 v%d, %s offset:%d' % (11 + i, vr(RAW + 36 * i + 4 * j, 4), 8192 * j))
        p.I('v_add_u32 v13, 65536, v%d\nds_write_b128 v13, %s' % (11 + i, vr(RAW + 36 * i + 32, 4)))
    while c.wn < mlp32.RING: mlp32.wload(c)
    p.I('s_waitcnt lgkmcnt(0)\ns_barrier')

def ln_stats_single(p, X, n, ST):
    S, Q = ST + 4, ST + 8
    p.I('v_pk_add_f32 %s, %s, %s\nv_pk_add_f32 %s, %s, %s' % (vr(S, 2), vr(X, 2), vr(X + 4, 2), vr(S + 2, 2), vr(X + 2, 2), vr(X + 6, 2)))
    p.I('v_pk_mul_f32 %s, %s, %s\nv_pk_mul_f32 %s, %s, %s' % (vr(Q, 2), vr(X, 2), vr(X, 2), vr(Q + 2, 2), vr(X + 2, 2), vr(X + 2, 2)))
    for k in range(2, n):
        x = vr(X + 2 * k, 2); o = 2 * (k % 2)
        p.I('v_pk_fma_f32 %s, %s, %s, %s' % (vr(Q + o, 2), x, x, vr(Q + o, 2)))
        if k >= 4: p.I('v_pk_add_f32 %s, %s, %s' % (vr(S + o, 2), vr(S + o, 2), x))
    p.I('v_pk_add_f32 %s, %s, %s\nv_pk_add_f32 %s, %s, %s' % (vr(S, 2), vr(S, 2), vr(S + 2, 2), vr(Q, 2), vr(Q, 2), vr(Q + 2, 2)))
    p.I('v_add_f32 v%d, v%d, v%d\nv_add_f32 v%d, v%d, v%d' % (S, S, S + 1, Q, Q, Q + 1))
    reduce8(p, [S, Q])
    p.I('v_mul_f32 v%d, s98, v%d\nv_mul_f32 v%d, s98, v%d' % (S, S, Q, Q))
    p.I('v_fma_f32 v%d, -v%d, v%d, v%d\nv_max_f32 v%d, 0, v%d\nv_add_f32 v%d, s97, v%d\nv_rsq_f32 v%d, v%d' % (Q, S, S, Q, Q, Q, Q, Q, ST, Q))
    p.I('v_mul_f32 v%d, -v%d, v%d' % (ST + 1, S, ST))

def pt34_decode(c, stask, SRD, ST):
    p = c.p
    w4 = p.label_name('L_t4'); dn = p.label_name('L_td')
    p.I('s_cmp_ge_u32 s%d, 216\ns_cbranch_scc1 %s' % (stask, w4))
    p.I('s_mul_i32 s8, s%d, %d\ns_lshr_b32 s8, s8, 16\ns_mul_i32 s9, s8, 3\ns_sub_u32 s9, s%d, s9' % (stask, udiv_magic(3, 300), stask))
    for k in range(4): p.I('s_mov_b32 s%d, s%d' % (SRD + k, 56 + k))
    p.I('s_mul_i32 s%d, s9, %d\ns_lshl_b32 s10, s8, 7\ns_add_u32 s%d, s%d, s10' % (ST + 4, 6 * 32 * 9216, ST + 4, ST + 4))
    p.I('s_mov_b32 s%d, %d\ns_movk_i32 s%d, 9216\ns_movk_i32 s%d, 3072\ns_mov_b32 s%d, 0' % (ST + 5, 32 * 9216, ST + 6, ST + 7, ST + 8))
    for j in range(4):
        p.I('s_lshl_b32 s12, s8, 2\ns_add_u32 s12, s12, %d' % j)
        p.I('s_mul_i32 s13, s12, %d\ns_lshr_b32 s13, s13, 16\ns_mul_i32 s14, s13, 36\ns_sub_u32 s12, s12, s14' % udiv_magic(36, 300))
        p.I('s_mul_i32 s14, s12, %d\ns_lshr_b32 s14, s14, 16\ns_mul_i32 s10, s14, 12\ns_sub_u32 s12, s12, s10' % udiv_magic(12, 40))
        p.I('s_mul_i32 s10, s12, %d\ns_lshr_b32 s10, s10, 16\ns_mul_i32 s11, s10, 3\ns_sub_u32 s12, s12, s11' % udiv_magic(3, 16))
        p.I('s_lshl_b32 s13, s13, 2\ns_add_u32 s13, s13, s10\ns_mul_i32 s13, s13, 324\ns_mul_i32 s14, s14, 54\ns_add_u32 s13, s13, s14\ns_mul_i32 s14, s9, 18\ns_add_u32 s13, s13, s14\ns_add_u32 s13, s13, s12\ns_lshl_b32 s13, s13, 10\ns_add_u32 s%d, s13, %d' % (ST + j, L.W34T - L.W1T))
    p.I('s_branch %s' % dn)
    p.label(w4)
    p.I('s_sub_u32 s7, s%d, 216\ns_mul_i32 s8, s7, %d\ns_lshr_b32 s8, s8, 16\ns_mul_i32 s9, s8, 27\ns_sub_u32 s7, s7, s9' % (stask, udiv_magic(27, 600)))
    p.I('s_mul_i32 s9, s7, %d\ns_lshr_b32 s9, s9, 16\ns_mul_i32 s10, s9, 3\ns_sub_u32 s10, s7, s10' % udiv_magic(3, 32))
    for k in range(4): p.I('s_mov_b32 s%d, s%d' % (SRD + k, 60 + k))
    p.I('s_mul_i32 s11, s8, 18\ns_mul_i32 s12, s10, 6\ns_add_u32 s11, s11, s12\ns_mul_i32 s%d, s11, %d\ns_lshl_b32 s11, s9, 7\ns_add_u32 s%d, s%d, s11' % (ST + 4, 32 * 1152, ST + 4, ST + 4))
    p.I('s_mov_b32 s%d, %d\ns_movk_i32 s%d, 1152\ns_mov_b32 s%d, 1' % (ST + 5, 32 * 1152, ST + 6, ST + 8))
    p.I('s_cmp_eq_u32 s9, 8\ns_movk_i32 s11, 4096\ns_cselect_b32 s%d, 1024, s11' % (ST + 7))
    for j in range(4):
        p.I('s_mul_i32 s11, s10, 24\ns_add_u32 s11, s11, %d\ns_and_b32 s12, s9, 3' % (162 + j))
        p.I('s_cmp_ge_u32 s9, 4\ns_cselect_b32 s13, 72, 0\ns_add_u32 s11, s11, s13')
        p.I('s_mul_i32 s13, s10, 6\ns_add_u32 s13, s13, 306\ns_cmp_eq_u32 s9, 8\ns_cselect_b32 s11, s13, s11\ns_cselect_b32 s12, %d, s12' % j)
        p.I('s_lshl_b32 s13, s8, 2\ns_add_u32 s13, s13, s12\ns_mul_i32 s13, s13, 324\ns_add_u32 s13, s13, s11\ns_lshl_b32 s13, s13, 10\ns_add_u32 s%d, s13, %d' % (ST + j, L.W34T - L.W1T))
    p.label(dn)
    p.I('s_cmp_ge_u32 s%d, 432' % stask)
    for k in range(5): p.I('s_cselect_b32 s%d, 0x7f000000, s%d' % (ST + k, ST + k))
    p.I('s_cselect_b32 s%d, 0, s%d\ns_cselect_b32 s%d, 0, s%d' % (ST + 5, ST + 5, ST + 7, ST + 7))

def pretile34(c, swave):
    p = c.p
    NB, NU = 8, 12
    p.I('s_mul_i32 s96, s3, %d' % (NB * 4096))
    TA, TB = (64, 80), (52, 4)
    SA, SB_ = 80, 89
    regsB = 48
    p.I('s_add_u32 s79, s%d, 256' % swave)
    pt34_decode(c, swave, 64, 80)
    p.I('s_mov_b32 s15, s96')
    pt34_decode(c, 79, 52, 89)
    p.I('v_mad_u32_u24 v12, v2, s%d, v3\nv_add_u32 v12, s%d, v12' % (86, 84))
    p.I('v_mad_u32_u24 v13, v2, s%d, v3\nv_add_u32 v13, s%d, v13' % (95, 93))
    p.I('s_lshl_b32 s4, s86, 3\ns_lshl_b32 s5, s95, 3')
    def issue(n):
        A = n < 6
        va, srdn, s8r, sstep = (12, 64, 4, 85) if A else (13, 52, 5, 94)
        p.I('v_mov_b32 v9, v%d' % va)
        t = None
        for q in range(4):
            p.I('s_add_u32 m0, s15, %d' % ((n % NB) * 4096 + q * 1024))
            if q: p.I('v_add_u32 v9, s%d, v9' % s8r)
            t = p.I('buffer_load_dwordx4 v9, s[%d:%d], 0 offen lds' % (srdn, srdn + 3), nowait=True)
        p.I('v_add_u32 v%d, s%d, v%d' % (va, sstep, va))
        return t
    def process(n):
        A = n < 6
        ST = 80 if A else 89
        R = 16 + 16 * (n % 2)
        lb = p.label_name('L_kb'); le = p.label_name('L_ke')
        p.I('s_cmp_eq_u32 s%d, 1\ns_cbranch_scc1 %s' % (ST + 8, lb))
        for va, jstride, second, lab in ((6, 32, 512, None), (7, 8, 2048, lb)):
            if lab: p.label(lab)
            p.I('s_add_u32 s6, s15, %d\nv_add_u32 v10, s6, v%d' % ((n % NB) * 4096, va))
            for j in range(4):
                p.I('ds_read_b64_tr_b16 %s, v10 offset:%d' % (vr(R + 4 * j, 2), j * jstride), nowait=True)
                p.I('ds_read_b64_tr_b16 %s, v10 offset:%d' % (vr(R + 4 * j + 2, 2), j * jstride + second), nowait=True)
            if not lab: p.I('s_branch %s' % le)
        p.label(le)
        p.I('s_waitcnt lgkmcnt(0)')
        for j in range(4):
            p.I('v_add_u32 v11, s%d, v8\ns_add_u32 s%d, s%d, s%d' % (ST + j, ST + j, ST + j, ST + 7))
            p.I('buffer_store_dwordx4 %s, v11, s[68:71], 0 offen%s' % (vr(R + 4 * j, 4), c.sc), nowait=True)
    toks = [issue(n) for n in range(NB - 1)]
    for n in range(NU):
        if n + NB - 1 < NU: toks.append(issue(n + NB - 1))
        p.wait(toks[n])
        process(n)
    p.I('s_waitcnt vmcnt(0)'); p.cut()

def warm_l2(c, nparts, part_sgpr):
    p = c.p
    lines = 4 * 324 * 8 // nparts
    srd(p, 64, P_WS, 32 * 324 * 1024, off=L.W34T)
    p.I('s_mul_i32 s6, s4, %d\ns_mul_i32 s7, s%d, %d\ns_add_u32 s6, s6, s7\nv_lshl_add_u32 v2, v0, 7, s6' % (4 * 324 * 1024, part_sgpr, lines * 128))
    n = (lines + 255) // 256
    for k in range(n):
        if (k + 1) * 256 > lines:
            p.I('v_cmp_gt_u32 vcc, %d, v0\nv_mov_b32 v3, 0x7f000000\nv_cndmask_b32 v2, v3, v2, vcc' % (lines - k * 256))
        p.I('buffer_load_dword v%d, v2, s[64:67], 0 offen sc1' % (8 + k), nowait=True)
        p.I('v_add_u32 v2, 32768, v2')

def build_mega():
    c = Ctx(); p = c.p
    p.I('s_cmp_ge_u32 s2, 256\ns_cbranch_scc1 L_end')
    p.I('s_load_dwordx16 s[16:31], s[0:1], 0\ns_load_dwordx16 s[32:47], s[0:1], 64')
    p.I('v_lshrrev_b32 v2, 6, v0\nv_and_b32 v1, 63, v0')
    p.I('v_readfirstlane_b32 s3, v2')
    p.I('s_waitcnt lgkmcnt(0)')
    if STAMPS:
        for k in range(24): p.I('v_accvgpr_write_b32 a%d, 0' % (232 + k))
    c.stamp(0)
    srd(p, S_SYNC, P_WS, 2 << 20, off=L.SYNC)
    if not os.environ.get('NOCODEPF'):
        lpf = p.label_name('L_pf')
        p.I('s_cmp_lg_u32 s3, 3\ns_cbranch_scc1 %s' % lpf)
        p.I('s_getpc_b64 s[8:9]')
        p.label('L_pc_anchor')
        p.I('s_lshr_b32 s10, s2, 3\ns_mul_i32 s10, s10, CODE_PART\nv_lshl_add_u32 v2, v1, 7, s10')
        p.I('v_cmp_gt_u32 vcc, CODE_PART, v2') if False else None
        p.I('s_mov_b64 exec, CODE_MASK')
        p.I('global_load_dword v249, v2, s[8:9]', nowait=True)
        p.I('s_mov_b64 exec, -1')
        p.label(lpf); p.cut()
    p.I('s_cmp_ge_u32 s2, %d\ns_cbranch_scc1 L_pt' % NCONV)
    p.I('s_cmp_eq_u32 s3, 3\ns_cbranch_scc1 L_kc')
    p0_kv(c, hook=p2_xload)
    p.I('s_mul_i32 s78, s2, 3\ns_add_u32 s78, s78, s3\ns_and_b32 s78, s78, 15')
    wave_arrive(c, 'add', check_ready=True, idx=K_SH, sgpr=78)
    p.I('s_branch L_kv_done'); p.cut()
    p.label('L_kc')
    p1_kcopies(c, hook=p2_xload)
    p.I('s_waitcnt vmcnt(0) lgkmcnt(0)')
    p.label('L_kv_done'); p.cut()
    c.stamp(1)
    p2_xstats(c)
    c.stamp(17)
    wait_cnt(c, *w_flags(K_REL))
    c.stamp(2)
    p1_main(c)
    c.stamp(5)
    p.I('s_and_b32 s78, s2, 15')
    arrive(c, 'add', idx=V_SH, sgpr=78)
    wave_wait(c, M_REL, A_REL)
    p2_pre(c)
    c.stamp(6)
    wait_cnt(c, *w_flags(V_REL))
    c.stamp(7)
    p2_main(c)
    c.stamp(10)
    arrive(c, 'add', idx=C_H1, sgpr=4)
    def fh(p): p.I('s_sub_u32 s6, s4, 1\nv_add_u32 v252, s6, v1\nv_max_i32 v252, 0, v252\nv_min_i32 v252, 63, v252\nv_mul_u32_u24 v252, %d, v252\nv_add_u32 v252, %d, v252\nv_mov_b32 v254, 3' % (LS, C_H1 * LS))
    wait_cnt(c, fh, 3)
    c.stamp(11)
    p3_main(c)
    c.stamp(13)
    arrive(c, 'add', idx=C_X2, sgpr=4)
    wave_wait(c, B3_REL)
    p.I('s_and_b32 s10, s2, 7')
    mlp32.ring_setup(c, 10, 160)
    for n in range(mlp32.EARLY): mlp32.ring_load_at(c, mlp32.PERM[n], n, 160)
    p.I('s_branch L_mlp'); p.cut()
    p.label('L_pt')
    lz = p.label_name('L_zero')
    p.I('s_cmp_lg_u32 s2, 255\ns_cbranch_scc1 %s\ns_cmp_lg_u32 s3, 0\ns_cbranch_scc1 %s' % (lz, lz))
    p.I('v_mul_u32_u24 v2, %d, v1\nv_mov_b32 v3, 0' % LS)
    for k in range(NCNT // 64):
        p.I('buffer_store_dword v3, v2, s[%d:%d], 0 offen sc1\nv_add_u32 v2, %d, v2' % (S_SYNC, S_SYNC + 3, 64 * LS), nowait=True)
    srd(p, 68, P_DBG, 256)
    p.I('s_waitcnt vmcnt(0)\nv_mov_b32 v2, 0\nv_mov_b32 v3, 1\ns_mov_b64 exec, 1\nbuffer_store_dword v3, v2, s[68:71], 0 offen sc1\ns_mov_b64 exec, -1', nowait=True)
    p.label(lz); p.cut()
    lm0 = p.label_name('L_nomod0')
    p.I('s_cmp_ge_u32 s2, %d\ns_cbranch_scc1 %s' % (NCONV + 54, lm0))
    p0_mod_loads(c, NCONV)
    p.label(lm0); p.cut()
    pt_setup(c)
    p.I('s_sub_u32 s4, s2, %d\ns_lshl_b32 s4, s4, 2\ns_add_u32 s78, s4, s3' % NCONV)
    pretile(c, '12', 78)
    arrive(c, 'add', check_ready=True, idx=A_CNT)
    c.stamp(1)
    lmon = p.label_name('L_nomon')
    p.I('s_cmp_lg_u32 s2, 255\ns_cbranch_scc1 %s\ns_cmp_lg_u32 s3, 0\ns_cbranch_scc1 %s' % (lmon, lmon))
    monitor(c)
    p.label(lmon); p.cut()
    lm = p.label_name('L_nomod')
    p.I('s_cmp_ge_u32 s2, %d\ns_cbranch_scc1 %s' % (NCONV + 54, lm))
    p0_mod_compute(c, NCONV)
    arrive(c, 'add', idx=M_CNT)
    p.label(lm); p.cut()
    p.I('s_barrier')
    p.I('s_cmp_eq_u32 s2, 255\ns_cbranch_scc1 L_pt_skip')
    pt.prime(c, NCONV)
    c.stamp(2)
    def mid():
        arrive(c, 'add', idx=B3_CNT)
    pt.run(c, mid)
    arrive(c, 'last', cnt=B_CNT, n=63, rel=B_REL)
    p.label('L_pt_skip'); p.cut()
    c.stamp(3)
    wait_cnt(c, *w_flags(B_REL))
    c.stamp(4)
    p.I('s_and_b32 s4, s2, 7\ns_sub_u32 s5, s2, %d\ns_lshr_b32 s5, s5, 3' % NCONV)
    warm_l2(c, 8, 5)
    p.I('s_waitcnt vmcnt(0)'); p.cut()
    p.I('s_and_b32 s10, s2, 7')
    mlp32.ring_setup(c, 10, 160)
    for n in range(mlp32.EARLY): mlp32.ring_load_at(c, mlp32.PERM[n], n, 160)
    p.label('L_mlp'); p.cut()
    c.stamp(14)
    p.I('s_and_b32 s4, s2, 7\ns_lshr_b32 s5, s2, 3')
    def fx(p): p.I('s_lshl_b32 s6, s5, 1\nv_add_u32 v252, s6, v1\nv_mul_u32_u24 v252, %d, v252\nv_add_u32 v252, %d, v252\nv_mov_b32 v254, 3\nv_mov_b32 v255, %d\nv_mov_b32 v251, 1\nv_cmp_eq_u32 vcc, 2, v1\nv_cndmask_b32 v252, v252, v255, vcc\nv_cndmask_b32 v254, v254, v251, vcc' % (LS, C_X2 * LS, B_REL * LS))
    wait_cnt(c, fx, 3)
    c.stamp(15)
    if os.environ.get('REWARM'):
        p.I('s_lshr_b32 s79, s2, 3')
        warm_l2(c, 32, 79)
    RAW, X = mk.p4_ln(c)
    c.fine = True
    if os.environ.get('FINE2'): c.stamp(6)
    mlp32.ring_resume(c)
    if os.environ.get('FINE2'):
        c.stamp(7); p.I('s_waitcnt vmcnt(18)'); c.stamp(8); p.I('s_waitcnt vmcnt(0)'); c.stamp(9)
    p4_ln2(c, RAW, X)
    c.stamp(16)
    mlp32.mlp_setup(c)
    mlp32.mlp_main(c)
    c.stamp(21)
    arrive(c, 'add', idx=C_PART, sgpr=5)
    def fp(p): p.I('s_mul_i32 s6, s5, %d\ns_add_u32 s6, s6, %d\nv_mov_b32 v252, s6\nv_mov_b32 v254, 8' % (LS, C_PART * LS))
    wait_cnt(c, fp, 1)
    c.stamp(22)
    p.I('s_and_b32 s4, s2, 7\ns_lshr_b32 s5, s2, 3')
    mlp32.final(c)
    p.I('s_waitcnt vmcnt(0)')
    c.stamp_out()
    p.label('L_end')
    p.I('s_endpgm')
    txt = p.finalize()
    return txt

if __name__ == '__main__':
    if 'stamps' in sys.argv: STAMPS = True
    mk.STAMPS = False
    body = build_mega()
    if 'CODE_PART' in body:
        import subprocess
        t = assemble([(NAME + '_kernel', body.replace('CODE_PART', '2048').replace('CODE_MASK', '0xffff'), 256, 256, 147456, 512, 256)])
        open('_p1.s', 'w').write(t)
        subprocess.check_call(['clang', '-x', 'assembler', '-target', 'amdgcn-amd-amdhsa', '-mcpu=gfx950', '-c', '_p1.s', '-o', '_p1.o'])
        syms = subprocess.check_output(['llvm-objdump', '-t', '_p1.o'], text=True)
        ad = {l.split()[-1]: int(l.split()[0], 16) for l in syms.splitlines() if l.split() and l.split()[-1] in ('L_end', 'L_pc_anchor')}
        size = ad['L_end'] - ad['L_pc_anchor']
        nl = size // 128 // 32
        assert nl <= 32
        body = body.replace('CODE_PART', str(nl * 128)).replace('CODE_MASK', hex((1 << nl) - 1))
        print('code size', size, 'lines per part', nl)
    out = assemble([(NAME + '_kernel', body, 256, 256, 147456, 512, 256)])
    open(sys.argv[1], 'w').write(out)
```

```python
import sys
sys.path.insert(0, 'gen')
from asmlib import *
import layout as L

NAME = 'adaLN_cond__ssm_conv_h3__mixer_s_mlp__prompt'

P_Q, P_K, P_V, P_SK, P_SSMK, P_SSMD, P_BX, P_W1, P_W2, P_W3, P_W4, P_C, P_WMOD, P_OUT, P_DBG, P_WS = [16 + 2 * i for i in range(16)]
S_WG, S_WAVE = 2, 3
V_TID, V_LANE = 0, 1

STAMPS = False
class Ctx:
    def __init__(self, mega, kid=0, sv=250):
        self.p = Prog()
        self.mega = mega
        self.sc = ' sc1' if mega else ''
        self.kid = kid; self.sv = sv; self.nst = 0
    def stamp(self, k=None):
        if not STAMPS: return
        if k is None: k = self.nst
        self.nst = k + 1
        self.p.I('s_memrealtime s[76:77]\ns_waitcnt lgkmcnt(0)\nv_writelane_b32 v%d, s76, %d' % (self.sv, k))
    def mstamp(self, i): self.stamp(3 + i)
    def stamp_out(self):
        if not STAMPS: return
        p = self.p
        self.stamp(31)
        srd(p, 72, P_WS, 1 << 20, off=L.DBG)
        p.I('s_lshl_b32 s76, s2, 2\ns_add_u32 s76, s76, s3\ns_add_u32 s76, s76, %d\ns_lshl_b32 s76, s76, 7' % (self.kid * 1024))
        p.I('v_and_b32 v2, 63, v0\nv_lshl_add_u32 v2, v2, 2, s76\nv_cmp_gt_u32 vcc, 32, v1\ns_and_saveexec_b64 s[76:77], vcc')
        p.I('buffer_store_dword v%d, v2, s[72:75], 0 offen' % self.sv)
        p.I('s_mov_b64 exec, s[76:77]')

def srd(p, slot, ptr, size, off=0, soff=None):
    if off == 0 and soff is None:
        p.I('s_mov_b32 s%d, s%d\ns_mov_b32 s%d, s%d' % (slot, ptr, slot + 1, ptr + 1))
    else:
        if off:
            p.I('s_add_u32 s%d, s%d, 0x%x\ns_addc_u32 s%d, s%d, 0' % (slot, ptr, off, slot + 1, ptr + 1))
            if soff is not None:
                p.I('s_add_u32 s%d, s%d, s%d\ns_addc_u32 s%d, s%d, 0' % (slot, slot, soff, slot + 1, slot + 1))
        else:
            p.I('s_add_u32 s%d, s%d, s%d\ns_addc_u32 s%d, s%d, 0' % (slot, ptr, soff, slot + 1, ptr + 1))
    p.I('s_mov_b32 s%d, 0x%x\ns_mov_b32 s%d, 0x20000' % (slot + 2, size, slot + 3))

def prologue(p, nwg=256, end='L_end'):
    p.I('s_cmp_ge_u32 s2, %d\ns_cbranch_scc1 %s' % (nwg, end))
    p.I('s_load_dwordx16 s[16:31], s[0:1], 0\ns_load_dwordx16 s[32:47], s[0:1], 64')
    p.I('v_lshrrev_b32 v2, 6, v0\nv_and_b32 v1, 63, v0')
    p.I('v_readfirstlane_b32 s3, v2')
    p.I('s_waitcnt lgkmcnt(0)')

def udiv_magic(d, maxn, shift=16):
    m = (1 << shift) // d + 1
    for n in range(maxn + 1):
        assert (n * m) >> shift == n // d, (d, n)
    return m

def p0_kv(c):
    p = c.p
    m9 = udiv_magic(9, 576)
    p.I('s_lshl_b32 s4, s2, 2\ns_add_u32 s4, s4, s3')
    p.I('s_mul_i32 s5, s4, %d\ns_lshr_b32 s5, s5, 16' % m9)
    p.I('s_mul_i32 s6, s5, 9\ns_sub_u32 s6, s4, s6')
    srd(p, 48, P_K, L.S * 1152); srd(p, 52, P_V, L.S * 1152); srd(p, 56, P_SK, 4608)
    srd(p, 60, P_WS, L.D * 4096, off=L.XT)
    p.I('v_lshrrev_b32 v2, 3, v1\nv_and_b32 v3, 7, v1')
    p.I('s_lshl_b32 s7, s5, 5\nv_lshl_add_u32 v4, v2, 2, s7')
    p.I('s_lshl_b32 s8, s6, 7\nv_lshl_add_u32 v5, v3, 4, s8')
    p.I('s_movk_i32 s9, 1152\nv_mad_u32_u24 v6, v4, s9, v5')
    p.I('v_subrev_u32 v7, 3456, v6')
    KR, VR, SK = 8, 36, 52
    for i in range(3): p.I('buffer_load_dwordx4 %s, v7, s[48:51], 0 offen offset:%d' % (vr(KR + 4 * i, 4), 1152 * i))
    for i in range(4): p.I('buffer_load_dwordx4 %s, v6, s[48:51], 0 offen offset:%d' % (vr(KR + 4 * (3 + i), 4), 1152 * i))
    for i in range(4): p.I('buffer_load_dwordx4 %s, v6, s[52:55], 0 offen offset:%d' % (vr(VR + 4 * i, 4), 1152 * i))
    p.I('v_lshlrev_b32 v68, 2, v5')
    for i in range(4): p.I('buffer_load_dwordx4 %s, v68, s[56:59], 0 offen offset:%d' % (vr(SK + 4 * i, 4), 16 * i))
    p.I('v_lshlrev_b32 v69, 11, v5\nv_lshlrev_b32 v70, 1, v4\nv_sub_u32 v69, v69, v70\nv_add_u32 v69, 4088, v69')
    p.I('s_mov_b32 s10, 0xffff0000')
    C, KP, VP, AC, OUT = 72, 80, 94, 102, 112
    for pr in range(4):
        a0, a1, b0, b1 = SK + 4 * pr, SK + 4 * pr + 1, SK + 4 * pr + 2, SK + 4 * pr + 3
        p.I('v_lshlrev_b32 v%d, 16, v%d\nv_lshlrev_b32 v%d, 16, v%d' % (C, a0, C + 1, b0))
        p.I('v_and_b32 v%d, s10, v%d\nv_and_b32 v%d, s10, v%d' % (C + 2, a0, C + 3, b0))
        p.I('v_lshlrev_b32 v%d, 16, v%d\nv_lshlrev_b32 v%d, 16, v%d' % (C + 4, a1, C + 5, b1))
        p.I('v_and_b32 v%d, s10, v%d\nv_and_b32 v%d, s10, v%d' % (C + 6, a1, C + 7, b1))
        for i in range(7):
            p.I('v_lshlrev_b32 v%d, 16, v%d\nv_and_b32 v%d, s10, v%d' % (KP + 2 * i, KR + 4 * i + pr, KP + 2 * i + 1, KR + 4 * i + pr))
        for t in range(4):
            p.I('v_lshlrev_b32 v%d, 16, v%d\nv_and_b32 v%d, s10, v%d' % (VP + 2 * t, VR + 4 * t + pr, VP + 2 * t + 1, VR + 4 * t + pr))
        for t in range(4):
            acc = vr(AC + 2 * t, 2)
            p.I('v_pk_mul_f32 %s, %s, %s' % (acc, vr(C + 6, 2), vr(KP + 2 * t, 2)))
            p.I('v_pk_fma_f32 %s, %s, %s, %s' % (acc, vr(C + 4, 2), vr(KP + 2 * (t + 1), 2), acc))
            p.I('v_pk_fma_f32 %s, %s, %s, %s' % (acc, vr(C + 2, 2), vr(KP + 2 * (t + 2), 2), acc))
            p.I('v_pk_fma_f32 %s, %s, %s, %s' % (acc, vr(C, 2), vr(KP + 2 * (t + 3), 2), acc))
            p.I('v_pk_mul_f32 %s, %s, %s' % (acc, acc, vr(VP + 2 * t, 2)))
        o = OUT + 4 * pr
        p.I('v_cvt_pk_bf16_f32 v%d, v%d, v%d' % (o, AC + 6, AC + 4))
        p.I('v_cvt_pk_bf16_f32 v%d, v%d, v%d' % (o + 1, AC + 2, AC + 0))
        p.I('v_cvt_pk_bf16_f32 v%d, v%d, v%d' % (o + 2, AC + 7, AC + 5))
        p.I('v_cvt_pk_bf16_f32 v%d, v%d, v%d' % (o + 3, AC + 3, AC + 1))
        for h in range(2):
            p.I('s_movk_i32 s11, %d' % (4096 * (2 * pr + h)) if 4096 * (2 * pr + h) < 32768 else 's_mov_b32 s11, %d' % (4096 * (2 * pr + h)))
            p.I('buffer_store_dwordx2 %s, v69, s[60:63], s11 offen%s' % (vr(o + 2 * h, 2), c.sc))

def bf16_round(p, dst, src):
    p.I('v_cvt_pk_bf16_f32 v%d, v%d, v%d\nv_lshlrev_b32 v%d, 16, v%d' % (dst, src, src, dst, dst))

LOG2E = 1.4426950408889634
def f2u(x):
    import struct
    return struct.unpack('<I', struct.pack('<f', x))[0]

def p0_mod(c, wg0=144):
    p = c.p
    p.I('s_sub_u32 s4, s2, %d' % wg0)
    srd(p, 48, P_C, 1152); srd(p, 52, P_WMOD, 576 * 6912); srd(p, 56, P_WS, 6 * 576 * 4, off=L.MOD)
    p.I('v_lshlrev_b32 v2, 1, v0')
    for i in range(3): p.I('buffer_load_ushort v%d, v2, s[48:51], 0 offen offset:%d' % (4 + i, 512 * i))
    m9 = udiv_magic(9, 256)
    p.I('s_mov_b32 s5, %d\nv_mul_u32_u24 v8, s5, v0\nv_lshrrev_b32 v8, 16, v8' % m9)
    p.I('v_mul_u32_u24 v9, 9, v8\nv_sub_u32 v9, v0, v9')
    p.I('s_mul_i32 s6, s4, 144\nv_lshl_add_u32 v10, v9, 4, s6')
    p.I('s_movk_i32 s7, 6912\nv_mad_u32_u24 v10, v8, s7, v10')
    p.I('v_cmp_lt_u32 vcc, 251, v0\nv_mov_b32 v11, 0x7f000000\nv_cndmask_b32 v10, v10, v11, vcc')
    W = 32
    for i in range(21):
        p.I('buffer_load_dwordx4 %s, v10, s[52:55], 0 offen' % vr(W + 4 * i, 4))
        if i < 20: p.I('v_add_u32 v10, %d, v10' % (28 * 6912))
    p.I('s_mov_b32 s8, 0x%x' % f2u(-LOG2E))
    p.I('v_lshlrev_b32 v12, 2, v0')
    for i in range(3):
        r = 4 + i
        p.I('v_lshlrev_b32 v%d, 16, v%d' % (r, r))
        p.I('v_mul_f32 v13, s8, v%d\nv_exp_f32 v13, v13\nv_add_f32 v13, 1.0, v13\nv_rcp_f32 v13, v13\nv_mul_f32 v13, v%d, v13' % (r, r))
        bf16_round(p, 13, 13)
        p.I('ds_write_b32 v12, v13 offset:%d' % (1024 * i))
    p.I('s_waitcnt lgkmcnt(0)\ns_barrier')
    p.I('v_lshlrev_b32 v14, 2, v8')
    SV = 120
    for i in range(21): p.I('ds_read_b32 v%d, v14 offset:%d' % (SV + i, 112 * i))
    AC, T = 16, 24
    for j in range(8): p.I('v_mov_b32 v%d, 0' % (AC + j))
    p.I('s_mov_b32 s10, 0xffff0000')
    for i in range(21):
        for d in range(4):
            p.I('v_lshlrev_b32 v%d, 16, v%d\nv_and_b32 v%d, s10, v%d' % (T + 2 * d, W + 4 * i + d, T + 2 * d + 1, W + 4 * i + d))
        for d in range(4):
            p.I('v_fmac_f32 v%d, v%d, v%d\nv_fmac_f32 v%d, v%d, v%d' % (AC + 2 * d, T + 2 * d, SV + i, AC + 2 * d + 1, T + 2 * d + 1, SV + i))
    p.I('v_mul_u32_u24 v15, 288, v8\nv_lshl_add_u32 v15, v9, 5, v15')
    p.I('v_cmp_gt_u32 vcc, 252, v0\ns_and_saveexec_b64 s[12:13], vcc')
    p.I('ds_write_b128 v15, %s offset:4096\nds_write_b128 v15, %s offset:4112' % (vr(AC, 4), vr(AC + 4, 4)))
    p.I('s_mov_b64 exec, s[12:13]')
    p.I('s_waitcnt lgkmcnt(0)\ns_barrier')
    p.I('v_cmp_gt_u32 vcc, 72, v0\ns_and_saveexec_b64 s[12:13], vcc')
    lab = p.label_name('L_mod_skip')
    p.I('s_cbranch_execz %s' % lab)
    p.I('v_lshlrev_b32 v14, 2, v0')
    for i in range(28): p.I('ds_read_b32 v%d, v14 offset:%d' % (W + i, 4096 + 288 * i))
    p.I('v_mov_b32 v16, 0')
    for i in range(28): p.I('v_add_f32 v16, v16, v%d' % (W + i))
    bf16_round(p, 16, 16)
    p.I('s_lshr_b32 s14, s4, 3')
    p.I('s_cmp_eq_u32 s14, 1\ns_cselect_b32 s15, 1, 0\ns_cmp_eq_u32 s14, 4\ns_cselect_b32 s15, 1, s15')
    p.I('v_cvt_f32_u32 v17, s15\nv_add_f32 v16, v16, v17')
    bf16_round(p, 16, 16)
    p.I('s_mul_i32 s6, s4, 288\nv_lshl_add_u32 v18, v0, 2, s6')
    p.I('buffer_store_dword v16, v18, s[56:59], 0 offen%s' % c.sc)
    p.label(lab)
    p.I('s_mov_b64 exec, s[12:13]')

def pretile_job(c, name, ptr, rowbytes, nrows, wsoff, wssize, nunits, gdiv, kind, u0_sgpr, nwaves=256, lds_base=0, NB=4):
    p = c.p
    p.comment('---- pretile %s' % name)
    srd(p, 64, ptr, nrows * rowbytes); srd(p, 68, P_WS, wssize, off=wsoff)
    p.I('v_lshrrev_b32 v2, 3, v1\nv_and_b32 v3, 7, v1\ns_mov_b32 s4, %d\nv_mul_lo_u32 v2, v2, s4\nv_lshl_add_u32 v2, v3, 4, v2' % rowbytes)
    p.I('v_lshrrev_b32 v4, 4, v1\nv_bfe_u32 v5, v1, 2, 2\nv_and_b32 v6, 3, v1')
    if kind in ('A', 'W3'):
        p.I('v_lshl_add_u32 v7, v4, 3, v5\nv_lshlrev_b32 v7, 7, v7\nv_lshl_add_u32 v7, v6, 3, v7')
        second, jstride = 4 * 128, 32
    else:
        p.I('v_lshl_add_u32 v7, v4, 2, v5\nv_lshlrev_b32 v7, 7, v7\nv_lshl_add_u32 v7, v6, 5, v7')
        second, jstride = 16 * 128, 8
    p.I('s_mul_i32 s5, s3, %d\ns_add_u32 s5, s5, %d\nv_add_u32 v7, s5, v7' % (NB * 4096, lds_base))
    p.I('v_lshlrev_b32 v8, 4, v1')
    p.I('s_mov_b32 s6, s%d' % u0_sgpr)
    mg = udiv_magic(gdiv, nunits + nwaves * NB, 20)
    m18 = udiv_magic(18, 200)
    loop = p.label_name('L_pt'); done = p.label_name('L_pt_done')
    p.loop_begin(loop)
    p.I('s_cmp_ge_u32 s6, %d\ns_cbranch_scc1 %s' % (nunits, done))
    toks = []
    for b in range(NB):
        p.I('s_add_u32 s7, s6, %d' % (b * nwaves))
        p.I('s_mul_i32 s8, s7, %d\ns_lshr_b32 s8, s8, 20' % mg)
        p.I('s_mul_i32 s9, s8, %d\ns_sub_u32 s9, s7, s9' % gdiv)
        p.I('s_mul_i32 s10, s8, %d\ns_lshl_b32 s11, s9, 7\ns_add_u32 s10, s10, s11' % (32 * rowbytes))
        DS = 80 + 4 * b
        if kind == 'A':
            p.I('s_mul_i32 s11, s9, %d\ns_lshl_b32 s12, s8, 10\ns_add_u32 s11, s11, s12' % (4 * 18 * 1024))
            for j in range(4): p.I('s_add_u32 s%d, s11, %d' % (DS + j, j * 18 * 1024))
        elif kind == 'W3':
            for j in range(4):
                p.I('s_lshl_b32 s11, s9, 2\ns_add_u32 s11, s11, %d' % j)
                p.I('s_mul_i32 s12, s11, %d\ns_lshr_b32 s12, s12, 16\ns_mul_i32 s13, s12, 36\ns_sub_u32 s11, s11, s13' % udiv_magic(36, 300))
                p.I('s_mul_i32 s13, s11, %d\ns_lshr_b32 s13, s13, 16\ns_mul_i32 s14, s13, 12\ns_sub_u32 s11, s11, s14' % udiv_magic(12, 40))
                p.I('s_mul_i32 s14, s11, %d\ns_lshr_b32 s14, s14, 16\ns_mul_i32 s15, s14, 3\ns_sub_u32 s11, s11, s15' % udiv_magic(3, 16))
                p.I('s_lshl_b32 s12, s12, 2\ns_add_u32 s12, s12, s14\ns_mul_i32 s12, s12, 324\ns_mul_i32 s13, s13, 54\ns_add_u32 s12, s12, s13\ns_mul_i32 s13, s8, 3\ns_add_u32 s12, s12, s13\ns_add_u32 s12, s12, s11\ns_lshl_b32 s%d, s12, 10' % (DS + j))
        else:
            p.I('s_mul_i32 s12, s8, %d\ns_lshr_b32 s12, s12, 16' % m18)
            p.I('s_mul_i32 s13, s12, 18\ns_sub_u32 s13, s8, s13')
            for j in range(4):
                p.I('s_and_b32 s14, s9, 3\ns_lshl_b32 s15, s13, 2\ns_add_u32 s15, s15, %d' % (162 + j))
                p.I('s_cmp_ge_u32 s9, 4\ns_cselect_b32 s11, 72, 0\ns_add_u32 s15, s15, s11')
                p.I('s_add_u32 s11, s13, 306\ns_cmp_eq_u32 s9, 8\ns_cselect_b32 s15, s11, s15\ns_cselect_b32 s14, %d, s14' % j)
                p.I('s_lshl_b32 s11, s12, 2\ns_add_u32 s11, s11, s14\ns_mul_i32 s11, s11, 324\ns_add_u32 s11, s11, s15\ns_lshl_b32 s%d, s11, 10' % (DS + j))
        p.I('s_cmp_ge_u32 s7, %d\ns_cselect_b32 s10, 0x7f000000, s10' % nunits)
        for j in range(4): p.I('s_cselect_b32 s%d, 0x7f000000, s%d' % (DS + j, DS + j))
        p.I('s_mul_i32 s12, s3, %d\ns_add_u32 s12, s12, %d' % (NB * 4096, lds_base + b * 4096))
        for q in range(4):
            p.I('s_add_u32 m0, s12, %d' % (q * 1024))
            p.I('v_add_u32 v9, s10, v2') if q == 0 else p.I('v_add_u32 v9, %d, v9' % (8 * rowbytes))
            t = p.I('buffer_load_dwordx4 v9, s[64:67], 0 offen lds')
        toks.append(t)
    for b in range(NB):
        p.wait(toks[b])
        R = 16 + 16 * (b % 2)
        for j in range(4):
            p.I('ds_read_b64_tr_b16 %s, v7 offset:%d' % (vr(R + 4 * j, 2), b * 4096 + j * jstride))
            p.I('ds_read_b64_tr_b16 %s, v7 offset:%d' % (vr(R + 4 * j + 2, 2), b * 4096 + j * jstride + second))
        for j in range(4):
            p.I('v_add_u32 v10, s%d, v8' % (80 + 4 * b + j))
            p.I('buffer_store_dwordx4 %s, v10, s[68:71], 0 offen%s' % (vr(R + 4 * j, 4), c.sc))
    p.I('s_add_u32 s6, s6, %d' % (NB * nwaves))
    p.I('s_waitcnt vmcnt(0)')
    p.I('s_branch %s' % loop)
    p.loop_end(loop)
    p.label(done)
    p.cut()

def p0_pretile(c, wg0=192, which=('w1', 'w2', 'w3', 'w4')):
    p = c.p
    p.I('s_sub_u32 s4, s2, %d\ns_lshl_b32 s4, s4, 2\ns_add_u32 s79, s4, s3' % wg0)
    if 'w1' in which: pretile_job(c, 'w1', P_W1, 1152, 576, L.W1T, 36 * 18 * 1024, 162, 9, 'A', 79, NB=1)
    if 'w2' in which:
        p.I('s_add_u32 s78, s79, 94\ns_and_b32 s78, s78, 255')
        pretile_job(c, 'w2', P_W2, 1152, 576, L.W2T, 36 * 18 * 1024, 162, 9, 'A', 78, NB=1)
    if 'w3' in which: pretile_job(c, 'w3', P_W3, 9216, 576, L.W34T, 32 * 324 * 1024, 1296, 72, 'W3', 79)
    if 'w4' in which: pretile_job(c, 'w4', P_W4, 1152, 4608, L.W34T, 32 * 324 * 1024, 1296, 9, 'B', 79)


KC_STRIDE, KCOPY = 18432, 4416
XR_BASE = 3 * KC_STRIDE
XR_STRIDE = 6144
RED_BASE = XR_BASE + 3 * XR_STRIDE
CONV_LDS = RED_BASE + 3 * 4096

def p1_pre(c):
    p = c.p
    p.I('s_mul_i32 s4, s2, %d' % (3 * 4096))
    for ch in range(3):
        p.I('s_add_u32 s5, s4, %d' % (4096 * ch))
        srd(p, 48 + 4 * ch, P_SSMK, 4096, soff=5)
    m276 = udiv_magic(276, 1300, 20)
    p.I('s_mov_b32 s6, %d' % m276)
    for t in range(5):
        p.I('s_lshl_b32 s7, s3, 6\ns_add_u32 s7, s7, %d\nv_add_u32 v2, s7, v1' % (256 * t))
        p.I('v_mul_u32_u24 v3, s6, v2\nv_lshrrev_b32 v3, 20, v3')
        p.I('v_mul_u32_u24 v4, 276, v3\nv_sub_u32 v4, v2, v4')
        p.I('v_lshl_add_u32 v4, v4, 3, v3\nv_subrev_u32 v4, 63, v4\nv_lshlrev_b32 v%d, 1, v4' % (8 + t))
        p.I('v_cmp_lt_u32 vcc, 3, v3\nv_mov_b32 v5, 0x7f000000\nv_cndmask_b32 v%d, v%d, v5, vcc' % (8 + t, 8 + t))
    toks = []
    for t in range(5):
        lab = None
        if t == 4:
            lab = p.label_name('L_kc_skip')
            p.I('s_cmp_ge_u32 s3, 2\ns_cbranch_scc1 %s' % lab)
        for ch in range(3):
            p.I('s_lshl_b32 s7, s3, 10\ns_add_u32 m0, s7, %d' % (ch * KC_STRIDE + 4096 * t))
            toks.append(p.I('buffer_load_dwordx4 v%d, s[%d:%d], 0 offen lds' % (8 + t, 48 + 4 * ch, 51 + 4 * ch), nowait=True))
        if lab: p.label(lab)
    p.I('v_mov_b32 v16, 0\nv_mov_b32 v17, 0\nv_mov_b32 v18, 0\nv_mov_b32 v19, 0')
    p.I('v_lshrrev_b32 v2, 4, v0\nv_and_b32 v3, 15, v0\nv_mul_u32_u24 v2, 48, v2\nv_add_u32 v2, v2, v3\nv_lshlrev_b32 v2, 4, v2\nv_add_u32 v2, %d, v2' % XR_BASE)
    p.I('v_cmp_gt_u32 vcc, 128, v0\ns_and_saveexec_b64 s[12:13], vcc')
    for ch in range(3):
        p.I('ds_write_b128 v2, v[16:19] offset:%d' % (ch * XR_STRIDE + 32 * 16))
    p.I('s_mov_b64 exec, s[12:13]')
    p.I('v_and_b32 v2, 31, v1\nv_cmp_lt_u32 vcc, 31, v1')
    p.I('v_lshrrev_b32 v3, 2, v1\nv_and_b32 v4, 3, v1')
    p.I('v_lshrrev_b32 v5, 3, v2\nv_and_b32 v6, 7, v1')
    p.I('v_cndmask_b32 v3, v3, v5, vcc\nv_cndmask_b32 v4, v4, v6, vcc')
    p.I('v_add_u32 v5, v3, v4\nv_add_u32 v5, 2041, v5\nv_cndmask_b32 v5, v4, v5, vcc')
    p.I('v_sub_u32 v6, v4, v3\nv_add_u32 v6, 63, v6\nv_add_u32 v7, 2104, v4\nv_cndmask_b32 v6, v6, v7, vcc')
    p.I('v_add_u32 v7, v3, v4\nv_cmp_ge_u32 s[14:15], 6, v7\ns_and_b64 s[14:15], s[14:15], vcc')
    p.I('v_cmp_le_u32 s[12:13], v4, v3\nv_cmp_gt_u32 s[10:11], 16, v1\ns_and_b64 s[12:13], s[12:13], s[10:11]\ns_or_b64 s[14:15], s[14:15], s[12:13]')
    p.I('v_mul_u32_u24 v20, %d, v3\nv_lshl_add_u32 v20, v6, 1, v20\ns_mul_i32 s7, s3, %d\nv_add_u32 v20, s7, v20' % (KCOPY, KC_STRIDE))
    p.I('v_lshlrev_b32 v21, 1, v5')
    p.I('s_min_u32 s8, s3, 2\ns_lshl_b32 s8, s8, 12\ns_add_u32 s8, s8, s4')
    srd(p, 60, P_SSMK, 4096, soff=8)
    p.I('buffer_load_ushort v22, v21, s[60:63], 0 offen')
    p.I('s_waitcnt vmcnt(0) lgkmcnt(0)\ns_barrier')
    p.cut()
    lab = p.label_name('L_patch_skip')
    p.I('s_cmp_ge_u32 s3, 3\ns_cbranch_scc1 %s' % lab)
    p.I('s_mov_b64 exec, s[14:15]\nds_write_b16 v20, v22\ns_mov_b64 exec, -1')
    p.label(lab)
    srd(p, 60, P_SSMD, 1152)
    p.I('s_mul_i32 s8, s2, 3\ns_min_u32 s9, s3, 2\ns_add_u32 s8, s8, s9\ns_lshl_b32 s8, s8, 1\nv_mov_b32 v2, s8')
    p.I('buffer_load_ushort v23, v2, s[60:63], 0 offen')
    p.I('v_lshlrev_b32 v23, 16, v23')

def p1_main(c):
    p = c.p
    srd(p, 48, P_WS, L.D * 4096, off=L.XT); srd(p, 52, P_WS, L.D * 4096, off=L.ZT)
    p.I('s_mul_i32 s4, s2, %d\ns_lshl_b32 s5, s3, 10\ns_add_u32 s5, s5, s4\nv_lshl_add_u32 v2, v1, 4, s5' % (3 * 4096))
    for ch in range(3):
        p.I('s_movk_i32 s6, %d\nbuffer_load_dwordx4 %s, v2, s[48:51], s6 offen%s' % (4096 * ch, vr(8 + 4 * ch, 4), c.sc))
    p.I('v_and_b32 v3, 7, v1\nv_mul_u32_u24 v3, 48, v3\nv_lshrrev_b32 v4, 3, v1\nv_add_u32 v3, v3, v4\ns_lshl_b32 s6, s3, 3\nv_add_u32 v3, s6, v3\nv_lshlrev_b32 v3, 4, v3\nv_add_u32 v3, %d, v3' % XR_BASE)
    for ch in range(3):
        p.I('ds_write_b128 v3, %s offset:%d' % (vr(8 + 4 * ch, 4), ch * XR_STRIDE))
    VA0, VB0, VA, VB = 24, 25, 26, 27
    p.I('v_and_b32 v4, 3, v1\nv_mul_u32_u24 v4, %d, v4\nv_bfe_u32 v5, v1, 2, 2\nv_lshl_add_u32 v4, v5, 3, v4\nv_lshrrev_b32 v5, 4, v1\nv_lshl_add_u32 v%d, v5, 4, v4' % (KCOPY, VA0))
    p.I('v_mul_u32_u24 v4, 48, v5\nv_and_b32 v6, 15, v1\nv_sub_u32 v4, v4, v6\nv_add_u32 v4, 15, v4\nv_lshlrev_b32 v%d, 4, v4' % VB0)
    p.I('s_waitcnt lgkmcnt(0)\ns_barrier')
    p.cut()
    c.stamp(2)
    AS, BS, ACC, KEEP = 32, 96, 112, 128
    p.I('s_mov_b32 s8, 0\ns_cmp_lt_u32 s3, 3\ns_cselect_b32 s9, 2, 3')
    seg = p.label_name('L_seg'); blk = p.label_name('L_blk')
    p.loop_begin(seg)
    p.I('s_cmp_lt_u32 s3, 3\ns_cselect_b32 s10, s3, s8\ns_cselect_b32 s12, 0, 8')
    p.I('s_cselect_b32 s14, 1, 0\ns_xor_b32 s11, s8, 1\ns_and_b32 s11, s11, s14')
    p.I('s_cmp_eq_u32 s11, 1\ns_cselect_b32 s13, 8, 1\ns_cmp_lt_u32 s3, 3\ns_cselect_b32 s13, s13, 3')
    p.I('s_mul_i32 s14, s10, %d\ns_lshl_b32 s15, s12, 6\ns_add_u32 s14, s14, s15\nv_add_u32 v%d, s14, v%d' % (KC_STRIDE, VA, VA0))
    p.I('s_mul_i32 s14, s10, %d\ns_add_u32 s14, s14, %d\ns_xor_b32 s15, s11, 1\ns_lshl_b32 s15, s15, 8\ns_add_u32 s14, s14, s15\ns_lshl_b32 s15, s12, 3\ns_add_u32 s14, s14, s15\nv_add_u32 v%d, s14, v%d' % (XR_STRIDE, XR_BASE, VB, VB0))
    for i in range(16): p.I('v_mov_b32 v%d, 0' % (ACC + i))
    def ldA(setk, rel):
        r = AS + 8 * (setk % 8)
        for f in range(2):
            for h in range(2):
                p.I('ds_read_b64 %s, v%d offset:%d' % (vr(r + 4 * f + 2 * h, 2), VA, 64 * rel + 32 * f + 8 * h))
    def ldB(slot, rel):
        p.I('ds_read_b128 %s, v%d offset:%d' % (vr(BS + 4 * (slot % 4), 4), VB, ((rel & 1) * 4 * 48 + (rel >> 1)) * 16))
    ldA(0, 0); ldA(1, 1); ldB(0, 0); ldA(2, 2); ldB(1, 1); ldA(3, 3); ldB(2, 2)
    p.loop_begin(blk)
    for st in range(8):
        b = vr(BS + 4 * (st % 4), 4)
        for rt in range(4):
            a = AS + 8 * ((st + rt // 2) % 8) + 4 * (rt % 2)
            p.I('v_mfma_f32_16x16x32_bf16 %s, %s, %s, %s' % (vr(ACC + 4 * rt, 4), vr(a, 4), b, vr(ACC + 4 * rt, 4)))
            if rt == 0: ldA(st + 4, st + 4)
            if rt == 2: ldB(st + 3, st + 3)
    p.I('v_add_u32 v%d, 512, v%d\nv_add_u32 v%d, 64, v%d' % (VA, VA, VB, VB))
    p.I('s_sub_u32 s13, s13, 1\ns_cmp_lg_u32 s13, 0\ns_cbranch_scc1 %s' % blk)
    p.loop_end(blk)
    p.I('s_waitcnt lgkmcnt(0)')
    l3 = p.label_name('L_w3'); ln = p.label_name('L_next')
    p.I('s_nop 7')
    p.I('s_cmp_eq_u32 s3, 3\ns_cbranch_scc1 %s' % l3)
    p.I('s_cmp_eq_u32 s8, 0\ns_cbranch_scc0 %s' % ln)
    for i in range(16): p.I('v_mov_b32 v%d, v%d' % (KEEP + i, ACC + i))
    p.I('s_branch %s' % ln)
    p.label(l3)
    p.I('s_lshl_b32 s14, s10, 12\ns_add_u32 s14, s14, %d\nv_lshl_add_u32 v2, v1, 4, s14' % RED_BASE)
    for rt in range(4): p.I('ds_write_b128 v2, %s offset:%d' % (vr(ACC + 4 * rt, 4), 1024 * rt))
    p.label(ln)
    p.I('s_add_u32 s8, s8, 1\ns_cmp_lt_u32 s8, s9\ns_cbranch_scc1 %s' % seg)
    p.loop_end(seg)
    c.stamp(3)
    p.I('s_waitcnt lgkmcnt(0)\ns_barrier')
    p.cut()
    c.stamp(4)
    done = p.label_name('L_conv_done')
    p.I('s_cmp_eq_u32 s3, 3\ns_cbranch_scc1 %s' % done)
    p.I('s_lshl_b32 s14, s3, 12\ns_add_u32 s14, s14, %d\nv_lshl_add_u32 v2, v1, 4, s14' % RED_BASE)
    T = 32
    for rt in range(4): p.I('ds_read_b128 %s, v2 offset:%d' % (vr(T + 4 * rt, 4), 1024 * rt))
    p.I('v_lshrrev_b32 v5, 5, v1\nv_sub_u32 v5, 1, v5\nv_mul_u32_u24 v5, 48, v5\nv_and_b32 v6, 15, v1\nv_sub_u32 v5, v5, v6\nv_add_u32 v5, 15, v5\nv_lshlrev_b32 v5, 4, v5')
    p.I('v_bfe_u32 v6, v1, 4, 1\nv_sub_u32 v6, 1, v6\nv_lshl_add_u32 v5, v6, 3, v5')
    p.I('s_mul_i32 s14, s3, %d\ns_add_u32 s14, s14, %d\nv_add_u32 v5, s14, v5' % (XR_STRIDE, XR_BASE))
    X = 48
    for ct in range(2):
        for rt in range(4):
            p.I('ds_read_b64 %s, v5 offset:%d' % (vr(X + 8 * ct + 2 * rt, 2), (2 * (3 - rt) * 48 + 16 * (1 - ct)) * 16))
    for i in range(16): p.I('v_add_f32 v%d, v%d, v%d' % (ACC + i, ACC + i, T + i))
    p.I('s_mul_i32 s14, s2, 3\ns_add_u32 s14, s14, s3\ns_lshl_b32 s14, s14, 12')
    p.I('v_and_b32 v6, 15, v1\nv_lshl_add_u32 v6, v6, 7, s14\nv_lshrrev_b32 v7, 5, v1\nv_lshl_add_u32 v6, v7, 4, v6\nv_bfe_u32 v7, v1, 4, 1\nv_lshl_add_u32 v6, v7, 5, v6')
    p.I('s_mov_b32 s10, 0xffff0000')
    Z, U = 64, 80
    for ct in range(2):
        src = ACC if ct == 0 else KEEP
        for rt in range(4):
            x0, x1 = X + 8 * ct + 2 * rt, X + 8 * ct + 2 * rt + 1
            a = src + 4 * rt
            p.I('v_and_b32 v%d, s10, v%d\nv_lshlrev_b32 v%d, 16, v%d\nv_and_b32 v%d, s10, v%d\nv_lshlrev_b32 v%d, 16, v%d' % (U, x1, U + 1, x1, U + 2, x0, U + 3, x0))
            for r in range(4): p.I('v_fmac_f32 v%d, v23, v%d' % (a + r, U + r))
            zb = Z + 8 * ct + 4 * (rt // 2) + 2 * (rt % 2)
            p.I('v_cvt_pk_bf16_f32 v%d, v%d, v%d\nv_cvt_pk_bf16_f32 v%d, v%d, v%d' % (zb, a, a + 1, zb + 1, a + 2, a + 3))
        for k in range(2):
            zb = Z + 8 * ct + 4 * k
            p.I('v_permlane16_swap_b32 v%d, v%d\nv_permlane16_swap_b32 v%d, v%d' % (zb, zb + 2, zb + 1, zb + 3))
            p.I('buffer_store_dwordx4 %s, v6, s[52:55], 0 offen offset:%d%s' % (vr(zb, 4), 64 * k + 2048 * ct, c.sc))
    p.label(done)


GELU_C1 = -2.0 * 0.7978845608028654 * LOG2E
GELU_C2 = GELU_C1 * 0.044715
def gelu_consts(p, s1, s2):
    p.I('s_mov_b32 s%d, 0x%x\ns_mov_b32 s%d, 0x%x' % (s1, f2u(GELU_C1), s2, f2u(GELU_C2)))
def gelu_inplace(p, regs, tmp, s1, vc2):
    n = len(regs)
    for k, r in enumerate(regs): p.I('v_mul_f32 v%d, v%d, v%d' % (tmp + k, r, r))
    for k, r in enumerate(regs): p.I('v_fma_f32 v%d, v%d, v%d, s%d' % (tmp + k, tmp + k, vc2, s1))
    for k, r in enumerate(regs): p.I('v_mul_f32 v%d, v%d, v%d' % (tmp + k, tmp + k, r))
    for k, r in enumerate(regs): p.I('v_exp_f32 v%d, v%d' % (tmp + k, tmp + k))
    for k, r in enumerate(regs): p.I('v_add_f32 v%d, 1.0, v%d' % (tmp + k, tmp + k))
    for k, r in enumerate(regs): p.I('v_rcp_f32 v%d, v%d' % (tmp + k, tmp + k))
    for k, r in enumerate(regs): p.I('v_mul_f32 v%d, v%d, v%d' % (r, r, tmp + k))

def reduce32(p, regs, tmp):
    for sh in (8, 4, 2, 1):
        for r in regs: p.I('v_add_f32_dpp v%d, v%d, v%d row_ror:%d row_mask:0xf bank_mask:0xf' % (r, r, r, sh))
    for k, r in enumerate(regs): p.I('v_mov_b32 v%d, v%d' % (tmp + k, r))
    for k, r in enumerate(regs): p.I('v_permlane16_swap_b32 v%d, v%d' % (r, tmp + k))
    for k, r in enumerate(regs): p.I('v_add_f32 v%d, v%d, v%d' % (r, r, tmp + k))

def ln_center_scale(p, X, ntok, nj, ST, seps):
    A = ST
    for i in range(ntok):
        p.I('v_pk_add_f32 %s, %s, %s' % (vr(A + 2 * i, 2), vr(X + (i * nj) * 2, 2), vr(X + (i * nj + 1) * 2, 2)))
    for j in range(2, nj):
        for i in range(ntok):
            p.I('v_pk_add_f32 %s, %s, %s' % (vr(A + 2 * i, 2), vr(A + 2 * i, 2), vr(X + (i * nj + j) * 2, 2)))
    for i in range(ntok): p.I('v_add_f32 v%d, v%d, v%d' % (A + 2 * i, A + 2 * i, A + 2 * i + 1))
    reduce32(p, [A + 2 * i for i in range(ntok)], ST + 2 * ntok)
    for i in range(ntok):
        p.I('v_mul_f32 v%d, s98, v%d' % (A + 2 * i, A + 2 * i))
    for i in range(ntok):
        p.I('v_sub_f32 v%d, 0, v%d' % (A + 2 * i, A + 2 * i))
    for i in range(ntok): p.I('v_mov_b32 v%d, v%d' % (A + 2 * i + 1, A + 2 * i))
    for j in range(nj):
        for i in range(ntok):
            x = vr(X + (i * nj + j) * 2, 2)
            p.I('v_pk_add_f32 %s, %s, %s' % (x, x, vr(A + 2 * i, 2)))
    for i in range(ntok):
        x = vr(X + (i * nj) * 2, 2)
        p.I('v_pk_mul_f32 %s, %s, %s' % (vr(A + 2 * i, 2), x, x))
    for j in range(1, nj):
        for i in range(ntok):
            x = vr(X + (i * nj + j) * 2, 2)
            p.I('v_pk_fma_f32 %s, %s, %s, %s' % (vr(A + 2 * i, 2), x, x, vr(A + 2 * i, 2)))
    for i in range(ntok): p.I('v_add_f32 v%d, v%d, v%d' % (A + 2 * i, A + 2 * i, A + 2 * i + 1))
    reduce32(p, [A + 2 * i for i in range(ntok)], ST + 2 * ntok)
    for i in range(ntok): p.I('v_mul_f32 v%d, s98, v%d' % (A + 2 * i, A + 2 * i))
    for i in range(ntok): p.I('v_add_f32 v%d, s%d, v%d' % (A + 2 * i, seps, A + 2 * i))
    for i in range(ntok): p.I('v_rsq_f32 v%d, v%d' % (A + 2 * i, A + 2 * i))
    for i in range(ntok): p.I('v_mov_b32 v%d, v%d' % (A + 2 * i + 1, A + 2 * i))
    for j in range(nj):
        for i in range(ntok):
            x = vr(X + (i * nj + j) * 2, 2)
            p.I('v_pk_mul_f32 %s, %s, %s' % (x, x, vr(A + 2 * i, 2)))

def unpack(p, dst, src, smask):
    p.I('v_lshlrev_b32 v%d, 16, v%d\nv_and_b32 v%d, s%d, v%d' % (dst, src, dst + 1, smask, src))

ZS_BASE, A1_BASE = 0, 36864
P2_LDS = A1_BASE + 36864
XP, GH, CB, SB, TM, HPK, ST2 = 16, 52, 124, 142, 160, 216, 200

def wg_rb_ns(p):
    m3 = udiv_magic(3, 256)
    p.I('s_mul_i32 s4, s2, %d\ns_lshr_b32 s4, s4, 16\ns_mul_i32 s5, s4, 3\ns_sub_u32 s5, s2, s5' % m3)

def load_wfrags(c, wsoff, abase):
    p = c.p
    srd(p, 64, P_WS, 36 * 18 * 1024, off=wsoff)
    p.I('s_mul_i32 s6, s5, 12\ns_mul_i32 s7, s3, 3\ns_add_u32 s6, s6, s7\ns_mul_i32 s6, s6, %d' % (18 * 1024))
    p.I('v_lshl_add_u32 v2, v1, 4, s6')
    for e in range(3):
        for ks in range(18):
            idx = e * 18 + ks
            if idx % 4 == 0 and idx > 0: p.I('v_add_u32 v2, 4096, v2')
            p.I('buffer_load_dwordx4 %s, v2, s[64:67], 0 offen offset:%d%s' % (ar(abase + 4 * idx, 4), 1024 * (idx % 4), c.sc))

def p2_pre(c):
    p = c.p
    wg_rb_ns(p)
    srd(p, 48, P_Q, L.S * 1152); srd(p, 52, P_WS, 6 * 576 * 4, off=L.MOD)
    p.I('s_mov_b32 s99, 0xffff0000\ns_mov_b32 s98, 0x%x\ns_mov_b32 s97, 0x%x' % (f2u(1.0 / 576), f2u(1e-5)))
    p.I('v_lshrrev_b32 v3, 5, v1\nv_and_b32 v4, 31, v1')
    p.I('s_lshl_b32 s6, s4, 5\ns_lshl_b32 s7, s3, 3\ns_add_u32 s6, s6, s7\nv_lshl_add_u32 v5, v3, 2, s6')
    p.I('s_movk_i32 s7, 1152\nv_mul_lo_u32 v6, v5, s7\nv_lshl_add_u32 v6, v4, 2, v6\nv_add_u32 v7, 2304, v6')
    for i in range(4):
        for j in range(9):
            p.I('buffer_load_dword v%d, v%d, s[48:51], 0 offen offset:%d' % (XP + i * 9 + j, 6 if i < 2 else 7, (i % 2) * 1152 + 128 * j))
    p.I('v_lshlrev_b32 v8, 3, v4')
    for arr, dst in ((0, TM), (1, TM + 18), (2, TM + 36), (3, SB), (4, CB)):
        p.I('s_movk_i32 s7, %d' % (arr * 2304))
        for j in range(9):
            p.I('buffer_load_dwordx2 %s, v8, s[52:55], s7 offen offset:%d%s' % (vr(dst + 2 * j, 2), 256 * j, c.sc))
    for i in range(4):
        for j in range(9): unpack(p, GH + (i * 9 + j) * 2, XP + i * 9 + j, 99)
    ln_center_scale(p, GH, 4, 9, ST2 + 16, 97)
    for j in range(9):
        p.I('v_pk_mul_f32 %s, %s, %s' % (vr(TM + 18 + 2 * j, 2), vr(TM + 18 + 2 * j, 2), vr(TM + 36 + 2 * j, 2)))
        p.I('v_pk_mul_f32 %s, %s, %s' % (vr(TM + 2 * j, 2), vr(TM + 2 * j, 2), vr(TM + 36 + 2 * j, 2)))
    for i in range(4):
        for j in range(9):
            x = vr(GH + (i * 9 + j) * 2, 2)
            p.I('v_pk_fma_f32 %s, %s, %s, %s' % (x, x, vr(TM + 18 + 2 * j, 2), vr(TM + 2 * j, 2)))

def p2_main(c, abase=0):
    p = c.p
    srd(p, 48, P_WS, L.D * 4096, off=L.ZT)
    srd(p, 52, P_WS, L.S * 1152, off=L.X1); srd(p, 56, P_WS, L.S * 1152, off=L.HP); srd(p, 60, P_WS, L.S * 1152, off=L.H1)
    p.I('v_lshrrev_b32 v8, 2, v1\nv_and_b32 v9, 3, v1\nv_lshlrev_b32 v10, 13, v8\nv_lshl_add_u32 v10, v9, 4, v10\ns_lshl_b32 s6, s4, 6\nv_add_u32 v10, s6, v10')
    p.I('s_lshl_b32 s6, s3, 17\nv_add_u32 v10, s6, v10\ns_movk_i32 s8, 4096')
    for t in range(5):
        if t: p.I('v_add_u32 v10, %d, v10' % (4 * 131072))
        p.I('buffer_load_dwordx4 %s, v10, s[48:51], 0 offen%s' % (vr(TM + 8 * t, 4), c.sc))
        p.I('buffer_load_dwordx4 %s, v10, s[48:51], s8 offen%s' % (vr(TM + 8 * t + 4, 4), c.sc))
    p.I('v_bfe_u32 v11, v8, 1, 3\nv_lshlrev_b32 v12, 1, v9\nv_xor_b32 v11, v11, v12\nv_lshlrev_b32 v11, 4, v11\nv_lshl_add_u32 v11, v8, 7, v11')
    p.I('s_lshl_b32 s6, s3, 11\nv_add_u32 v11, s6, v11\nv_xor_b32 v12, 16, v11')
    p.I('s_mov_b32 s8, 0x05040100\ns_mov_b32 s9, 0x07060302')
    PO = 200
    for t in range(5):
        a, b = TM + 8 * t, TM + 8 * t + 4
        o = PO + 8 * (t % 2)
        for k in range(4):
            p.I('v_perm_b32 v%d, v%d, v%d, s8\nv_perm_b32 v%d, v%d, v%d, s9' % (o + 2 * k, b + k, a + k, o + 2 * k + 1, b + k, a + k))
        p.I('ds_write_b128 v11, %s offset:%d' % (vr(o, 4), ZS_BASE + t * 8192))
        p.I('ds_write_b128 v12, %s offset:%d' % (vr(o + 4, 4), ZS_BASE + t * 8192))
    p.I('s_waitcnt vmcnt(0) lgkmcnt(0)\ns_barrier')
    p.cut()
    c.stamp(3)
    p.I('s_lshl_b32 s6, s3, 1\nv_add_u32 v8, s6, v3\nv_bfe_u32 v9, v4, 1, 3\nv_xor_b32 v8, v8, v9\nv_lshlrev_b32 v8, 4, v8\nv_lshl_add_u32 v8, v4, 7, v8')
    Z = TM
    for j in range(9): p.I('ds_read_b128 %s, v8 offset:%d' % (vr(Z + 4 * j, 4), ZS_BASE + 4096 * j))
    U = 196
    for j in range(9):
        for i in range(4):
            g = vr(GH + (i * 9 + j) * 2, 2)
            unpack(p, U, Z + 4 * j + i, 99); unpack(p, U + 2, XP + i * 9 + j, 99)
            p.I('v_pk_fma_f32 %s, %s, %s, %s' % (g, g, vr(U, 2), vr(U + 2, 2)))
            p.I('v_cvt_pk_bf16_f32 v%d, v%d, v%d' % (XP + i * 9 + j, GH + (i * 9 + j) * 2, GH + (i * 9 + j) * 2 + 1))
            unpack(p, GH + (i * 9 + j) * 2, XP + i * 9 + j, 99)
    ln_center_scale(p, GH, 4, 9, ST2, 97)
    for j in range(9):
        for i in range(4):
            g = vr(GH + (i * 9 + j) * 2, 2)
            p.I('v_pk_fma_f32 %s, %s, %s, %s' % (g, g, vr(CB + 2 * j, 2), vr(SB + 2 * j, 2)))
            p.I('v_cvt_pk_bf16_f32 v%d, v%d, v%d' % (HPK + i * 9 + j, GH + (i * 9 + j) * 2, GH + (i * 9 + j) * 2 + 1))
            unpack(p, GH + (i * 9 + j) * 2, HPK + i * 9 + j, 99)
    for jg in range(3):
        lab = p.label_name('L_st')
        p.I('s_cmp_lg_u32 s5, %d\ns_cbranch_scc1 %s' % (jg, lab))
        for j in range(3 * jg, 3 * jg + 3):
            for i in range(4):
                p.I('buffer_store_dword v%d, v%d, s[52:55], 0 offen offset:%d%s' % (XP + i * 9 + j, 6 if i < 2 else 7, (i % 2) * 1152 + 128 * j, c.sc))
                p.I('buffer_store_dword v%d, v%d, s[56:59], 0 offen offset:%d%s' % (HPK + i * 9 + j, 6 if i < 2 else 7, (i % 2) * 1152 + 128 * j, c.sc))
        p.label(lab)
    ln_center_scale(p, GH, 4, 9, ST2, 97)
    p.I('v_bfe_u32 v8, v4, 2, 2\nv_lshrrev_b32 v9, 4, v4\nv_lshlrev_b32 v9, 11, v9\ns_lshr_b32 s6, s3, 1\ns_lshl_b32 s6, s6, 10\ns_and_b32 s7, s3, 1\ns_lshl_b32 s7, s7, 7\ns_add_u32 s6, s6, s7\ns_add_u32 s6, s6, %d' % A1_BASE)
    p.I('v_add_u32 v9, s6, v9\nv_lshl_add_u32 v9, v8, 8, v9\nv_lshl_add_u32 v9, v3, 6, v9\nv_and_b32 v10, 3, v4\nv_lshl_add_u32 v9, v10, 2, v9')
    for i in range(4):
        p.I('v_xor_b32 v10, %d, v8\nv_lshl_add_u32 v%d, v10, 4, v9' % (i, 12 + i))
    for j in range(9):
        for i in range(4):
            p.I('v_cvt_pk_bf16_f32 v%d, v%d, v%d' % (U + i, GH + (i * 9 + j) * 2, GH + (i * 9 + j) * 2 + 1))
            p.I('ds_write_b32 v%d, v%d offset:%d' % (12 + i, U + i, 4096 * j))
    p.I('s_waitcnt lgkmcnt(0)\ns_barrier')
    c.stamp(4)
    gemm_small(c, A1_BASE, abase)
    c.stamp(5)
    ACC = 52
    gelu_consts(p, 8, 9)
    p.I('v_mov_b32 v8, s9')
    gelu_inplace(p, list(range(ACC, ACC + 24)), 100, 8, 8)
    small_out_addr(p, 9)
    for e in range(3):
        for tt in range(2):
            a = ACC + 4 * (e * 2 + tt)
            o = 128 + 2 * (e * 2 + tt)
            p.I('v_cvt_pk_bf16_f32 v%d, v%d, v%d\nv_cvt_pk_bf16_f32 v%d, v%d, v%d' % (o, a, a + 1, o + 1, a + 2, a + 3))
            p.I('buffer_store_dwordx2 %s, v%d, s[60:63], 0 offen offset:%d%s' % (vr(o, 2), 9 + tt, 32 * e, c.sc))

def small_out_addr(p, vdst):
    p.I('v_and_b32 v2, 15, v1\ns_lshl_b32 s6, s4, 5\nv_add_u32 v2, s6, v2\ns_movk_i32 s7, 1152\nv_mul_lo_u32 v2, v2, s7')
    p.I('s_mul_i32 s6, s5, 12\ns_mul_i32 s7, s3, 3\ns_add_u32 s6, s6, s7\ns_lshl_b32 s6, s6, 5\nv_lshrrev_b32 v%d, 4, v1\nv_lshl_add_u32 v2, v%d, 3, v2\nv_add_u32 v%d, s6, v2\nv_add_u32 v%d, %d, v%d' % (vdst, vdst, vdst, vdst + 1, 16 * 1152, vdst))

def gemm_small(c, lds_base, abase, ACC=52, BF=80):
    p = c.p
    p.I('v_and_b32 v2, 15, v1\nv_lshrrev_b32 v8, 4, v1\nv_xor_b32 v2, v2, v8\nv_lshl_add_u32 v2, v8, 4, v2\nv_lshlrev_b32 v2, 4, v2\nv_add_u32 v2, %d, v2' % lds_base)
    for i in range(24): p.I('v_mov_b32 v%d, 0' % (ACC + i))
    def ldb(ks):
        for tt in range(2):
            p.I('ds_read_b128 %s, v2 offset:%d' % (vr(BF + 8 * (ks % 3) + 4 * tt, 4), (ks * 2 + tt) * 1024))
    ldb(0); ldb(1)
    for ks in range(18):
        if ks + 2 < 18: ldb(ks + 2)
        for e in range(3):
            for tt in range(2):
                a = ACC + 4 * (e * 2 + tt)
                p.I('v_mfma_f32_16x16x32_bf16 %s, %s, %s, %s' % (vr(a, 4), ar(abase + 4 * (e * 18 + ks), 4), vr(BF + 8 * (ks % 3) + 4 * tt, 4), vr(a, 4)))


P3_B = 0
P3_LDS = 36864
def p3_main(c, abase=0):
    p = c.p
    srd(p, 48, P_WS, L.S * 1152, off=L.H1); srd(p, 52, P_WS, L.S * 1152, off=L.HP); srd(p, 56, P_WS, L.S * 1152, off=L.X2)
    p.I('s_mov_b32 s99, 0xffff0000')
    p.I('v_lshrrev_b32 v3, 4, v1\nv_and_b32 v4, 15, v1\ns_lshr_b32 s6, s3, 1\ns_lshl_b32 s6, s6, 5\nv_lshl_add_u32 v5, v3, 3, s6')
    p.I('s_lshl_b32 s6, s4, 5\ns_and_b32 s7, s3, 1\ns_lshl_b32 s7, s7, 4\ns_add_u32 s6, s6, s7\nv_add_u32 v6, s6, v4\ns_movk_i32 s7, 1152\nv_mul_lo_u32 v6, v6, s7\nv_lshl_add_u32 v6, v5, 1, v6')
    M1, P1, M2, P2_, N2, N4, N6 = 8, 9, 10, 11, 12, 13, 14
    p.I('v_subrev_u32 v%d, 1152, v6\nv_add_u32 v%d, 1152, v6\nv_subrev_u32 v%d, 2304, v6\nv_add_u32 v%d, 2304, v6' % (M1, P1, M2, P2_))
    p.I('v_cmp_gt_u32 vcc, 16, v5\nv_cndmask_b32 v%d, v%d, v%d, vcc' % (N2, P1, M1))
    p.I('v_cmp_gt_u32 vcc, 32, v5\nv_cndmask_b32 v%d, v%d, v%d, vcc' % (N4, M2, P1))
    p.I('v_cmp_gt_u32 vcc, 48, v5\nv_cndmask_b32 v%d, v%d, v%d, vcc' % (N6, P2_, M2))
    sel = [M1, M1, N2, P1, N4, M2, N6, P2_, P2_]
    T = 16
    for n in range(9):
        p.I('buffer_load_dwordx4 %s, v%d, s[48:51], 0 offen offset:%d%s' % (vr(T + 4 * n, 4), sel[n], 128 * n, c.sc))
    small_out_addr(p, 104)
    HR = 108
    for e in range(3):
        for tt in range(2):
            p.I('buffer_load_dwordx2 %s, v%d, s[52:55], 0 offen offset:%d%s' % (vr(HR + 2 * (e * 2 + tt), 2), 104 + tt, 32 * e, c.sc))
    p.I('v_xor_b32 v7, v4, v3\nv_lshl_add_u32 v7, v3, 4, v7\nv_lshlrev_b32 v7, 4, v7\ns_lshl_b32 s6, s3, 10\ns_add_u32 s6, s6, %d\nv_add_u32 v7, s6, v7' % P3_B)
    for n in range(9): p.I('ds_write_b128 v7, %s offset:%d' % (vr(T + 4 * n, 4), 4096 * n))
    p.I('s_waitcnt lgkmcnt(0)\ns_barrier')
    c.stamp(2)
    gemm_small(c, P3_B, abase)
    c.stamp(3)
    ACC = 52
    for e in range(3):
        for tt in range(2):
            a = ACC + 4 * (e * 2 + tt); h = HR + 2 * (e * 2 + tt); o = 128 + 2 * (e * 2 + tt)
            unpack(p, 120, h, 99); unpack(p, 122, h + 1, 99)
            for r in range(4): p.I('v_add_f32 v%d, v%d, v%d' % (a + r, a + r, 120 + r))
            p.I('v_cvt_pk_bf16_f32 v%d, v%d, v%d\nv_cvt_pk_bf16_f32 v%d, v%d, v%d' % (o, a, a + 1, o + 1, a + 2, a + 3))
            p.I('buffer_store_dwordx2 %s, v%d, s[56:59], 0 offen offset:%d%s' % (vr(o, 2), 104 + tt, 32 * e, c.sc))


A2_BASE, G_BASE = 0, 73728
P4_LDS = 2 * 73728
RING = 18

def reduce8(p, regs):
    for mod in ('quad_perm:[1,0,3,2]', 'quad_perm:[2,3,0,1]', 'row_half_mirror'):
        for r in regs: p.I('v_add_f32_dpp v%d, v%d, v%d %s row_mask:0xf bank_mask:0xf' % (r, r, r, mod))

def p4_ring_start(c):
    p = c.p
    srd(p, 64, P_WS, 32 * 324 * 1024, off=L.W34T)
    p.I('s_and_b32 s4, s2, 7\ns_lshr_b32 s5, s2, 3')
    p.I('s_lshl_b32 s6, s4, 2\ns_add_u32 s6, s6, s3\ns_mul_i32 s6, s6, %d\nv_lshl_add_u32 v2, v1, 4, s6' % (324 * 1024))
    c.wn = 0
    for n in range(RING): p4_wload(c)

def p4_wload(c):
    p = c.p
    n = c.wn
    if n >= 324: return
    if n % 4 == 0 and n > 0: p.I('v_add_u32 v2, 4096, v2')
    p.I('buffer_load_dwordx4 %s, v2, s[64:67], 0 offen offset:%d%s' % (ar(4 * (n % RING), 4), 1024 * (n % 4), c.sc))
    c.wn += 1

def p4_ln(c):
    p = c.p
    srd(p, 48, P_WS, L.S * 1152, off=L.X2)
    p.I('s_mov_b32 s99, 0xffff0000\ns_mov_b32 s98, 0x%x\ns_mov_b32 s97, 0x%x' % (f2u(1.0 / 576), f2u(1e-5)))
    p.I('v_lshrrev_b32 v3, 3, v1\nv_and_b32 v4, 7, v1')
    p.I('s_lshl_b32 s6, s5, 6\ns_lshl_b32 s7, s3, 4\ns_add_u32 s6, s6, s7\nv_add_u32 v5, s6, v3\ns_movk_i32 s7, 1152\nv_mul_lo_u32 v5, v5, s7\nv_lshl_add_u32 v5, v4, 4, v5\nv_add_u32 v6, %d, v5' % (8 * 1152))
    RAW, X = 64, 136
    for i in range(2):
        for j in range(9):
            p.I('buffer_load_dwordx4 %s, v%d, s[48:51], 0 offen offset:%d%s' % (vr(RAW + 36 * i + 4 * j, 4), 5 + i, 128 * j, c.sc))
    return RAW, X

def p4_ln2(c, RAW, X):
    p = c.p
    p.I('v_and_b32 v7, 3, v4\nv_lshrrev_b32 v8, 2, v4\nv_lshlrev_b32 v9, 12, v8\ns_lshl_b32 s6, s3, 10\nv_add_u32 v9, s6, v9\nv_lshl_add_u32 v9, v7, 8, v9')
    p.I('v_lshl_add_u32 v8, v8, 2, v7')
    for i in range(2):
        p.I('v_add_u32 v10, %d, v3\nv_xor_b32 v10, v10, v8\nv_lshl_add_u32 v%d, v10, 4, v9' % (8 * i, 11 + i))
    A = 208
    for i in range(2):
        for k in range(36): unpack(p, X + 2 * k, RAW + 36 * i + k, 99)
        p.I('v_pk_add_f32 %s, %s, %s\nv_pk_add_f32 %s, %s, %s' % (vr(A, 2), vr(X, 2), vr(X + 2, 2), vr(A + 2, 2), vr(X + 4, 2), vr(X + 6, 2)))
        for k in range(4, 36, 2):
            p.I('v_pk_add_f32 %s, %s, %s\nv_pk_add_f32 %s, %s, %s' % (vr(A, 2), vr(A, 2), vr(X + 2 * k, 2), vr(A + 2, 2), vr(A + 2, 2), vr(X + 2 * k + 2, 2)))
        p.I('v_pk_add_f32 %s, %s, %s\nv_add_f32 v%d, v%d, v%d' % (vr(A, 2), vr(A, 2), vr(A + 2, 2), A, A, A + 1))
        reduce8(p, [A])
        p.I('v_mul_f32 v%d, s98, v%d\nv_sub_f32 v%d, 0, v%d\nv_mov_b32 v%d, v%d' % (A, A, A, A, A + 1, A))
        for k in range(36): p.I('v_pk_add_f32 %s, %s, %s' % (vr(X + 2 * k, 2), vr(X + 2 * k, 2), vr(A, 2)))
        p.I('v_pk_mul_f32 %s, %s, %s\nv_pk_mul_f32 %s, %s, %s' % (vr(A, 2), vr(X, 2), vr(X, 2), vr(A + 2, 2), vr(X + 2, 2), vr(X + 2, 2)))
        for k in range(2, 36, 2):
            p.I('v_pk_fma_f32 %s, %s, %s, %s\nv_pk_fma_f32 %s, %s, %s, %s' % (vr(A, 2), vr(X + 2 * k, 2), vr(X + 2 * k, 2), vr(A, 2), vr(A + 2, 2), vr(X + 2 * k + 2, 2), vr(X + 2 * k + 2, 2), vr(A + 2, 2)))
        p.I('v_pk_add_f32 %s, %s, %s\nv_add_f32 v%d, v%d, v%d' % (vr(A, 2), vr(A, 2), vr(A + 2, 2), A, A, A + 1))
        reduce8(p, [A])
        p.I('v_mul_f32 v%d, s98, v%d\nv_add_f32 v%d, s97, v%d\nv_rsq_f32 v%d, v%d\nv_mov_b32 v%d, v%d' % (A, A, A, A, A, A, A + 1, A))
        for k in range(36): p.I('v_pk_mul_f32 %s, %s, %s' % (vr(X + 2 * k, 2), vr(X + 2 * k, 2), vr(A, 2)))
        for k in range(36): p.I('v_cvt_pk_bf16_f32 v%d, v%d, v%d' % (RAW + 36 * i + k, X + 2 * k, X + 2 * k + 1))
        for j in range(8): p.I('ds_write_b128 v%d, %s offset:%d' % (11 + i, vr(RAW + 36 * i + 4 * j, 4), A2_BASE + 8192 * j))
        p.I('v_add_u32 v13, 65536, v%d\nds_write_b128 v13, %s offset:%d' % (11 + i, vr(RAW + 36 * i + 32, 4), A2_BASE))
    p.I('s_waitcnt lgkmcnt(0)\ns_barrier')

class Filler:
    def __init__(self, p): self.p = p; self.q = []; self.acc = 0.0; self.rate = 0.0; self.last_tok = None
    def emit(self, line):
        t = self.p.I(line)
        if t is not None and 'buffer_store' in line: self.last_tok = t
    def add(self, lines): self.q += [l for l in lines.split('\n') if l.strip()]
    def set_rate(self, nslots): self.rate = len(self.q) / float(nslots); self.acc = 0.0
    def tick(self):
        self.acc += self.rate
        while self.acc >= 1.0 and self.q:
            self.emit(self.q.pop(0)); self.acc -= 1.0
    def flush(self):
        while self.q: self.emit(self.q.pop(0))

def gelu_tile_lines(a, tmp, o, s1, vc2):
    L_ = []
    for r in range(4): L_.append('v_mul_f32 v%d, v%d, v%d' % (tmp + r, a + r, a + r))
    for r in range(4): L_.append('v_fma_f32 v%d, v%d, v%d, s%d' % (tmp + r, tmp + r, vc2, s1))
    for r in range(4): L_.append('v_mul_f32 v%d, v%d, v%d' % (tmp + r, tmp + r, a + r))
    for r in range(4): L_.append('v_exp_f32 v%d, v%d' % (tmp + r, tmp + r))
    for r in range(4): L_.append('v_add_f32 v%d, 1.0, v%d' % (tmp + r, tmp + r))
    for r in range(4): L_.append('v_rcp_f32 v%d, v%d' % (tmp + r, tmp + r))
    for r in range(4): L_.append('v_mul_f32 v%d, v%d, v%d' % (tmp + r, a + r, tmp + r))
    L_.append('v_cvt_pk_bf16_f32 v%d, v%d, v%d' % (o, tmp, tmp + 1))
    L_.append('v_cvt_pk_bf16_f32 v%d, v%d, v%d' % (o + 1, tmp + 2, tmp + 3))
    return L_

def p4_main(c):
    p = c.p
    GA = [64, 112]; OA, OB, OC = 160, 64, 128
    BF = 224
    GT, GO = 32, 40
    VA_E, VA_O, VG, VGW = 14, 15, 16, 17
    VC2 = 20
    gelu_consts(p, 8, 9)
    p.I('v_mov_b32 v%d, s9' % VC2)
    p.I('v_and_b32 v3, 15, v1\nv_lshrrev_b32 v4, 4, v1')
    p.I('v_xor_b32 v5, v3, v4\nv_lshl_add_u32 v5, v4, 4, v5\nv_lshlrev_b32 v%d, 4, v5' % VA_E)
    p.I('v_xor_b32 v%d, 64, v%d' % (VA_O, VA_E))
    p.I('v_lshlrev_b32 v%d, 4, v1\nv_add_u32 v%d, %d, v%d' % (VG, VG, G_BASE, VG))
    p.I('v_add_u32 v24, 65536, v%d\nv_add_u32 v25, 65536, v%d\nv_add_u32 v26, 65536, v%d' % (VA_E, VA_O, VG))
    for e in range(3):
        p.I('s_mul_i32 s6, s3, 3\ns_add_u32 s6, s6, %d\ns_lshr_b32 s7, s6, 1\ns_lshl_b32 s7, s7, 12\ns_and_b32 s6, s6, 1\ns_lshl_b32 s6, s6, 3\ns_add_u32 s6, s6, s7\nv_add_u32 v%d, s6, v%d' % (e, VGW + e, VG))
    F = Filler(p)
    def gelu_fill(ch):
        g = GA[ch % 2]
        for e in range(3):
            for tt in range(4):
                k = (e * 4 + tt) % 2
                F.add('\n'.join(gelu_tile_lines(g + 4 * (e * 4 + tt), GT + 4 * k, GO + 2 * k, 8, VC2)))
                F.add('ds_write_b64 v%d, %s offset:%d' % (VGW + e, vr(GO + 2 * k, 2), ch * 6 * 4096 + tt * 1024))
    step = [0]
    def frag_step(accs, bregs, first):
        n = step[0]
        a = ar(4 * (n % RING), 4)
        for tt in range(4):
            cc = '0' if first else vr(accs[tt], 4)
            p.I('v_mfma_f32_16x16x32_bf16 %s, %s, %s, %s' % (vr(accs[tt], 4), a, vr(bregs[tt], 4), cc))
            F.tick()
        p4_wload(c)
        step[0] += 1
    def ld_act(ks):
        for tt in range(4):
            off = A2_BASE + (ks * 4 + tt) * 1024
            va = (VA_E if ks % 2 == 0 else VA_O) if off < 65536 else (24 if ks % 2 == 0 else 25)
            p.I('ds_read_b128 %s, v%d offset:%d' % (vr(BF + 16 * (ks % 2) + 4 * tt, 4), va, off % 65536))
    def ld_g(pl, par):
        for tt in range(4):
            off = (pl * 4 + tt) * 1024
            p.I('ds_read_b128 %s, v%d offset:%d' % (vr(BF + 16 * par + 4 * tt, 4), VG if off < 65536 else 26, off % 65536))
    ld_act(0)
    for ch in range(3):
        if ch > 0:
            gelu_fill(ch - 1); F.set_rate(216 - 24)
        g = GA[ch % 2]
        for ks in range(18):
            nxt = ks + 1
            if nxt < 18: ld_act(nxt)
            elif ch < 2: ld_act(0)
            b = [BF + 16 * (ks % 2) + 4 * tt for tt in range(4)]
            for e in range(3):
                frag_step([g + 4 * (e * 4 + tt) for tt in range(4)], b, ks == 0)
        F.flush()
        c.mstamp(ch)
    p.I('s_waitcnt lgkmcnt(0)\ns_barrier')
    gelu_fill(2); F.set_rate(12 * 16 - 16)
    def batch(acc, ntile, pls, first_pl, pre_barrier_at=None):
        par = 0
        ld_g(pls[0], par)
        for idx, pl in enumerate(pls):
            if pre_barrier_at is not None and pl == pre_barrier_at:
                F.flush()
                p.I('s_waitcnt lgkmcnt(0)\ns_barrier')
                ld_g(pl, par)
            if idx + 1 < len(pls) and not (pre_barrier_at is not None and pls[idx + 1] == pre_barrier_at):
                ld_g(pls[idx + 1], par ^ 1)
            b = [BF + 16 * par + 4 * tt for tt in range(4)]
            for j in range(ntile):
                frag_step([acc + 4 * (j * 4 + tt) for tt in range(4)], b, pl == first_pl)
            par ^= 1
    batch(OA, 4, list(range(18)), 0, pre_barrier_at=12)
    c.mstamp(3)
    srd(p, 68, P_WS, 32 * 8 * 8 * 9216, off=L.PART)
    VP = 21
    p.I('v_bfe_u32 v5, v1, 3, 1\ns_movk_i32 s6, %d\nv_mul_u32_u24 v5, %d, v5' % (0, 8 * 9216))
    p.I('v_and_b32 v6, 7, v1\nv_lshl_add_u32 v5, v6, 6, v5\nv_lshrrev_b32 v6, 4, v1\nv_lshl_add_u32 v7, v6, 4, v5')
    p.I('s_lshl_b32 s6, s5, 6\ns_add_u32 s6, s6, s4\ns_mul_i32 s6, s6, 9216')
    p.I('s_lshl_b32 s7, s3, 10\ns_add_u32 s7, s7, s6\nv_add_u32 v%d, s7, v7' % VP)
    p.I('v_and_b32 v6, 7, v1\nv_lshlrev_b32 v6, 5, v6\nv_lshrrev_b32 v7, 4, v1\nv_lshl_add_u32 v6, v7, 3, v6\nv_bfe_u32 v5, v1, 3, 1\nv_mul_u32_u24 v5, %d, v5\nv_add_u32 v6, v5, v6' % (8 * 9216))
    p.I('s_lshl_b32 s7, s3, 8\ns_add_u32 s7, s7, s6\ns_add_u32 s7, s7, 8192\nv_add_u32 v%d, s7, v6' % (VP + 1))
    def publish_lines(acc, goff):
        Ls = []
        PK = 44
        for tt in range(4):
            pk = PK + 8 * (tt % 2)
            for j in range(4):
                a = acc + 4 * (j * 4 + tt)
                Ls.append('v_cvt_pk_bf16_f32 v%d, v%d, v%d' % (pk + 2 * j, a, a + 1))
                Ls.append('v_cvt_pk_bf16_f32 v%d, v%d, v%d' % (pk + 2 * j + 1, a + 2, a + 3))
            Ls.append('s_mov_b32 s7, %d' % (tt * 2 * 8 * 9216 + goff))
            Ls.append('buffer_store_dwordx4 %s, v%d, s[68:71], s7 offen%s' % (vr(pk, 4), VP, c.sc))
            Ls.append('buffer_store_dwordx4 %s, v%d, s[68:71], s7 offen offset:512%s' % (vr(pk + 4, 4), VP, c.sc))
        return Ls
    F.add('\n'.join(publish_lines(OA, 0))); F.set_rate(200)
    batch(OB, 4, list(range(18)), 0)
    F.flush()
    c.mstamp(4)
    F.add('\n'.join(publish_lines(OB, 4096))); F.set_rate(56)
    batch(OC, 1, list(range(18)), 0)
    F.flush()
    c.mstamp(5)
    for tt in range(4):
        a = OC + 4 * tt
        p.I('v_cvt_pk_bf16_f32 v%d, v%d, v%d\nv_cvt_pk_bf16_f32 v%d, v%d, v%d' % (44 + 2 * tt, a, a + 1, 45 + 2 * tt, a + 2, a + 3))
        p.I('s_mov_b32 s7, %d' % (tt * 2 * 8 * 9216))
        p.I('buffer_store_dwordx2 %s, v%d, s[68:71], s7 offen%s' % (vr(44 + 2 * tt, 2), VP + 1, c.sc))

def p5_final(c):
    p = c.p
    p.I('s_and_b32 s4, s2, 7\ns_lshr_b32 s5, s2, 3')
    srd(p, 48, P_WS, 32 * 8 * 8 * 9216, off=L.PART); srd(p, 52, P_WS, L.S * 1152, off=L.X1); srd(p, 56, P_WS, L.S * 1152, off=L.X2)
    srd(p, 60, P_OUT, L.S * 1152); srd(p, 64, P_WS, 6 * 576 * 4, off=L.MOD)
    p.I('s_mov_b32 s99, 0xffff0000')
    p.I('s_lshl_b32 s6, s5, 3\ns_add_u32 s6, s6, s4\ns_mul_i32 s6, s6, %d\nv_lshl_add_u32 v2, v0, 4, s6' % (8 * 9216))
    PA = 32
    for u in range(2):
        for src in range(8):
            p.I('s_mov_b32 s7, %d\nbuffer_load_dwordx4 %s, v2, s[48:51], s7 offen%s' % (src * 9216 + u * 4096, vr(PA + 32 * u + 4 * src, 4), c.sc))
    p.I('v_lshlrev_b32 v3, 3, v0\nv_add_u32 v3, s6, v3\nv_add_u32 v3, 8192, v3\nv_cmp_gt_u32 vcc, 128, v0\nv_mov_b32 v4, 0x7f000000\nv_cndmask_b32 v3, v4, v3, vcc')
    PB = 96
    for src in range(8):
        p.I('s_mov_b32 s7, %d\nbuffer_load_dwordx2 %s, v3, s[48:51], s7 offen%s' % (src * 9216, vr(PB + 2 * src, 2), c.sc))
    p.I('v_bfe_u32 v5, v0, 2, 3\ns_lshl_b32 s6, s5, 6\ns_lshl_b32 s7, s4, 3\ns_add_u32 s6, s6, s7\nv_add_u32 v5, s6, v5\ns_movk_i32 s7, 1152\nv_mul_lo_u32 v5, v5, s7')
    p.I('v_lshrrev_b32 v6, 6, v0\nv_lshlrev_b32 v6, 6, v6\nv_and_b32 v7, 3, v0\nv_lshl_add_u32 v6, v7, 4, v6\nv_bfe_u32 v7, v0, 5, 1\nv_lshl_add_u32 v6, v7, 3, v6')
    p.I('v_lshl_add_u32 v8, v6, 1, v5\nv_lshlrev_b32 v9, 2, v6\nv_add_u32 v9, %d, v9' % (5 * 2304))
    p.I('v_lshrrev_b32 v10, 5, v0\nv_and_b32 v7, 3, v0\nv_lshlrev_b32 v7, 4, v7\nv_lshl_add_u32 v10, v10, 2, v7\nv_add_u32 v10, 512, v10')
    p.I('v_lshl_add_u32 v11, v10, 1, v5\nv_lshlrev_b32 v12, 2, v10\nv_add_u32 v12, %d, v12' % (5 * 2304))
    p.I('v_cndmask_b32 v11, v4, v11, vcc\nv_cndmask_b32 v12, v4, v12, vcc')
    X1R, X2R, GB = 112, 124, 136
    for u in range(2):
        p.I('buffer_load_dwordx4 %s, v8, s[52:55], 0 offen offset:%d%s' % (vr(X1R + 4 * u, 4), 512 * u, c.sc))
        p.I('buffer_load_dwordx4 %s, v8, s[56:59], 0 offen offset:%d%s' % (vr(X2R + 4 * u, 4), 512 * u, c.sc))
        p.I('buffer_load_dwordx4 %s, v9, s[64:67], 0 offen offset:%d%s' % (vr(GB + 8 * u, 4), 1024 * u, c.sc))
        p.I('buffer_load_dwordx4 %s, v9, s[64:67], 0 offen offset:%d%s' % (vr(GB + 8 * u + 4, 4), 1024 * u + 16, c.sc))
    p.I('buffer_load_dwordx2 %s, v11, s[52:55], 0 offen%s' % (vr(X1R + 8, 2), c.sc))
    p.I('buffer_load_dwordx2 %s, v11, s[56:59], 0 offen%s' % (vr(X2R + 8, 2), c.sc))
    p.I('buffer_load_dwordx4 %s, v12, s[64:67], 0 offen%s' % (vr(GB + 16, 4), c.sc))
    AC, U = 160, 180
    def piece(nd, src_reg, x1, x2, gb, out):
        for d in range(nd):
            unpack(p, AC + 2 * d, src_reg(0) + d, 99)
        for src in range(1, 8):
            for d in range(nd):
                unpack(p, U + 2 * d, src_reg(src) + d, 99)
            for d in range(nd):
                p.I('v_pk_add_f32 %s, %s, %s' % (vr(AC + 2 * d, 2), vr(AC + 2 * d, 2), vr(U + 2 * d, 2)))
        for d in range(nd):
            unpack(p, U + 2 * d, x2 + d, 99)
        for d in range(nd):
            p.I('v_pk_add_f32 %s, %s, %s' % (vr(AC + 2 * d, 2), vr(AC + 2 * d, 2), vr(U + 2 * d, 2)))
        for d in range(nd):
            unpack(p, U + 2 * d, x1 + d, 99)
        for d in range(nd):
            p.I('v_pk_fma_f32 %s, %s, %s, %s' % (vr(AC + 2 * d, 2), vr(AC + 2 * d, 2), vr(gb + 2 * d, 2), vr(U + 2 * d, 2)))
        for d in range(nd):
            p.I('v_cvt_pk_bf16_f32 v%d, v%d, v%d' % (out + d, AC + 2 * d, AC + 2 * d + 1))
    for u in range(2):
        piece(4, lambda src: PA + 32 * u + 4 * src, X1R + 4 * u, X2R + 4 * u, GB + 8 * u, 192 + 4 * u)
        p.I('buffer_store_dwordx4 %s, v8, s[60:63], 0 offen offset:%d' % (vr(192 + 4 * u, 4), 512 * u))
    piece(2, lambda src: PB + 2 * src, X1R + 8, X2R + 8, GB + 16, 200)
    p.I('buffer_store_dwordx2 %s, v11, s[60:63], 0 offen' % vr(200, 2))

def kernel_header(name):
    return '.globl %s\n.p2align 8\n.type %s,@function\n%s:\n' % (name, name, name)

def kernel_desc(name, vgpr=512, sgpr=102, accum=256):
    return '''.amdhsa_kernel %s
  .amdhsa_next_free_vgpr %d
  .amdhsa_next_free_sgpr %d
  .amdhsa_accum_offset %d
  .amdhsa_group_segment_fixed_size 0
  .amdhsa_kernarg_size 128
  .amdhsa_user_sgpr_count 2
  .amdhsa_user_sgpr_kernarg_segment_ptr 1
  .amdhsa_system_sgpr_workgroup_id_x 1
.end_amdhsa_kernel
''' % (name, vgpr, sgpr, accum)

def build_k0():
    c = Ctx(False, 0); p = c.p
    prologue(p, end='K0_end')
    c.stamp(0)
    p.I('s_cmp_ge_u32 s2, 192\ns_cbranch_scc1 K0_pt')
    p.I('s_cmp_ge_u32 s2, 144\ns_cbranch_scc1 K0_mod')
    p0_kv(c)
    p.I('s_waitcnt vmcnt(0)')
    c.stamp_out()
    p.I('s_endpgm'); p.cut()
    p.label('K0_mod')
    p0_mod(c)
    p.I('s_waitcnt vmcnt(0)')
    c.stamp_out()
    p.I('s_endpgm'); p.cut()
    p.label('K0_pt')
    p0_pretile(c)
    c.stamp_out()
    p.label('K0_end')
    p.I('s_endpgm')
    return p.finalize()

def build_k1():
    c = Ctx(False, 1, 250); p = c.p
    prologue(p, nwg=192, end='K1_end')
    c.stamp(0)
    p1_pre(c)
    c.stamp(1)
    p1_main(c)
    p.I('s_waitcnt vmcnt(0)')
    c.stamp_out()
    p.label('K1_end')
    p.I('s_endpgm')
    return p.finalize()

def build_k2():
    c = Ctx(False, 2, 255); p = c.p
    prologue(p, nwg=192, end='K2_end')
    c.stamp(0)
    wg_rb_ns(p)
    load_wfrags(c, L.W1T, 0)
    c.stamp(1)
    p2_pre(c)
    c.stamp(2)
    p2_main(c)
    p.I('s_waitcnt vmcnt(0)')
    c.stamp_out()
    p.label('K2_end')
    p.I('s_endpgm')
    return p.finalize()

def build_k3():
    c = Ctx(False, 3, 250); p = c.p
    prologue(p, nwg=192, end='K3_end')
    c.stamp(0)
    wg_rb_ns(p)
    load_wfrags(c, L.W2T, 0)
    c.stamp(1)
    p3_main(c)
    p.I('s_waitcnt vmcnt(0)')
    c.stamp_out()
    p.label('K3_end')
    p.I('s_endpgm')
    return p.finalize()

def build_k4():
    c = Ctx(False, 4, 63); p = c.p
    prologue(p, nwg=256, end='K4_end')
    c.stamp(0)
    p.I('s_and_b32 s4, s2, 7\ns_lshr_b32 s5, s2, 3')
    RAW, X = p4_ln(c)
    p4_ring_start(c)
    c.stamp(1)
    p4_ln2(c, RAW, X)
    c.stamp(2)
    p4_main(c)
    p.I('s_waitcnt vmcnt(0)')
    c.stamp_out()
    p.label('K4_end')
    p.I('s_endpgm')
    return p.finalize()

def build_k5():
    c = Ctx(False, 5, 250); p = c.p
    prologue(p, nwg=256, end='K5_end')
    c.stamp(0)
    p5_final(c)
    p.I('s_waitcnt vmcnt(0)')
    c.stamp_out()
    p.label('K5_end')
    p.I('s_endpgm')
    return p.finalize()

def assemble(kernels):
    hdr = open('cdna_kernels/%s.s.ref' % NAME).read().split('\n')
    lines = [l for l in hdr if l.startswith(';') and '@launch' not in l and 'Override launch' not in l and 'grid=ceil' not in l]
    out = '\n'.join(lines[:17]) + '\n'
    single = len(kernels) == 1 and kernels[0][0] == NAME + '_kernel'
    for k in kernels:
        if single: out += '; @launch grid=(%d,1,1) block=(%d,1,1) lds=%d\n' % (k[2], k[3], k[4])
        else: out += '; @launch kernel=%s grid=(%d,1,1) block=(%d,1,1) lds=%d\n' % (k[0], k[2], k[3], k[4])
    out += '.amdgcn_target "amdgcn-amd-amdhsa--gfx950"\n.text\n'
    seen = []
    for k in kernels:
        if k[0] in seen: continue
        seen.append(k[0])
        out += kernel_header(k[0]) + k[1]
    out += '.section .rodata,"a"\n'
    seen = []
    for k in kernels:
        if k[0] in seen: continue
        seen.append(k[0])
        out += '.p2align 6\n' + kernel_desc(k[0], k[5], 102, k[6])
    return out

if __name__ == '__main__':
    if 'stamps' in sys.argv: STAMPS = True
    ks = [('k0_kernel', build_k0(), 256, 256, 98304, 256, 256),
          ('k1_kernel', build_k1(), 256, 256, CONV_LDS, 256, 256),
          ('k2_kernel', build_k2(), 256, 256, P2_LDS, 512, 256),
          ('k3_kernel', build_k3(), 256, 256, P3_LDS, 512, 256),
          ('k4_kernel', build_k4(), 256, 256, P4_LDS, 512, 256),
          ('k5_kernel', build_k5(), 256, 256, 0, 256, 256)]
    open(sys.argv[1] if len(sys.argv) > 1 else 'out.s', 'w').write(assemble(ks))
```

```python
import os
from asmlib import *
import layout as L
from mk import srd, udiv_magic, f2u, P_WS, P_OUT, unpack, gelu_consts, Filler, reduce8

A2_BASE, G_BASE = 0, 73728
RING = 54
PERM = [(n % 3) * 18 + n // 3 for n in range(54)]
EARLY = 27

def w3_pos(Gl, jn, kh, kk):
    if Gl < 4: return Gl, 5 * kk + 2 * kh + jn
    return Gl - 5, 90 + 4 * kk + 2 * kh + jn
def w4_pos(Gl, jn, kh, pb):
    if Gl < 4: return Gl, (162 + 3 * pb + kh) if jn == 0 else (162 + 54 + 2 * pb + kh)
    return Gl - 5, 162 + (90 if jn == 0 else 126) + 2 * pb + kh
def w4_small_pos(pb): return 162 + 3 * pb + 2

def pt34_lane_consts(p):
    p.I('v_bfe_u32 v4, v1, 4, 1\nv_lshrrev_b32 v5, 5, v1\nv_bfe_u32 v9, v1, 2, 2\nv_and_b32 v10, 3, v1')
    p.I('v_lshl_add_u32 v14, v5, 3, v9\nv_lshlrev_b32 v14, 7, v14\nv_lshl_add_u32 v14, v4, 5, v14\nv_lshl_add_u32 v14, v10, 3, v14')
    p.I('v_lshl_add_u32 v15, v5, 2, v9\nv_lshlrev_b32 v15, 7, v15\nv_and_b32 v11, 1, v10\nv_lshl_add_u32 v15, v11, 5, v15\nv_lshl_add_u32 v15, v4, 4, v15\nv_lshrrev_b32 v11, 1, v10\nv_lshl_add_u32 v15, v11, 3, v15')
    p.I('v_lshrrev_b32 v11, 4, v1\nv_lshl_add_u32 v16, v11, 3, v9\nv_lshlrev_b32 v16, 7, v16\nv_lshl_add_u32 v16, v10, 3, v16')
    p.I('v_lshl_add_u32 v17, v5, 2, v4\nv_lshl_add_u32 v17, v17, 2, v9\nv_lshlrev_b32 v17, 7, v17\nv_lshl_add_u32 v17, v10, 3, v17')

def pt34_decode(c, stask, SRD, ST):
    p = c.p
    w4 = p.label_name('L_t4'); cm = p.label_name('L_tc')
    p.I('s_cmp_ge_u32 s%d, 216\ns_cbranch_scc1 %s' % (stask, w4))
    p.I('s_mul_i32 s8, s%d, %d\ns_lshr_b32 s8, s8, 16\ns_mul_i32 s9, s8, 3\ns_sub_u32 s9, s%d, s9' % (stask, udiv_magic(3, 300), stask))
    for k in range(4): p.I('s_mov_b32 s%d, s%d' % (SRD + k, 56 + k))
    p.I('s_mul_i32 s%d, s9, %d\ns_lshl_b32 s10, s8, 7\ns_add_u32 s%d, s%d, s10' % (ST + 4, 6 * 32 * 9216, ST + 4, ST + 4))
    p.I('s_mov_b32 s%d, %d\ns_movk_i32 s%d, 9216\ns_mov_b32 s%d, 0' % (ST + 5, 32 * 9216, ST + 6, ST + 8))
    p.I('s_mul_i32 s10, s8, %d\ns_lshr_b32 s10, s10, 16\ns_mul_i32 s11, s10, 9\ns_sub_u32 s11, s8, s11\ns_mov_b32 s12, 0' % udiv_magic(9, 100))
    p.I('s_branch %s' % cm)
    p.label(w4)
    p.I('s_sub_u32 s7, s%d, 216\ns_mul_i32 s10, s7, %d\ns_lshr_b32 s10, s10, 16\ns_mul_i32 s9, s10, 27\ns_sub_u32 s7, s7, s9' % (stask, udiv_magic(27, 600)))
    p.I('s_mul_i32 s11, s7, %d\ns_lshr_b32 s11, s11, 16\ns_mul_i32 s9, s11, 3\ns_sub_u32 s9, s7, s9' % udiv_magic(3, 32))
    for k in range(4): p.I('s_mov_b32 s%d, s%d' % (SRD + k, 60 + k))
    p.I('s_mul_i32 s13, s10, 18\ns_mul_i32 s14, s9, 6\ns_add_u32 s13, s13, s14\ns_mul_i32 s%d, s13, %d\ns_lshl_b32 s13, s11, 7\ns_add_u32 s%d, s%d, s13' % (ST + 4, 32 * 1152, ST + 4, ST + 4))
    p.I('s_mov_b32 s%d, %d\ns_movk_i32 s%d, 1152\ns_mov_b32 s%d, 1\ns_movk_i32 s12, 162' % (ST + 5, 32 * 1152, ST + 6, ST + 8))
    p.label(cm)
    p.I('s_cmp_le_u32 s11, 4\ns_cselect_b32 s13, 5, 4\ns_cselect_b32 s14, 0, 90\ns_add_u32 s12, s12, s14\ns_mul_i32 s14, s9, 6\ns_mul_i32 s14, s14, s13\ns_add_u32 s12, s12, s14\ns_lshl_b32 s%d, s13, 10' % (ST + 7))
    p.I('s_sub_u32 s14, s11, 5\ns_cmp_lt_u32 s11, 4\ns_cselect_b32 s14, s11, s14')
    sm = p.label_name('L_ts'); dn = p.label_name('L_td')
    p.I('s_cmp_eq_u32 s11, 4\ns_cbranch_scc1 %s' % sm)
    p.I('s_lshl_b32 s7, s10, 2\ns_add_u32 s7, s7, s14\ns_mul_i32 s7, s7, 324\ns_add_u32 s7, s7, s12\ns_lshl_b32 s7, s7, 10\ns_add_u32 s7, s7, %d' % (L.W34T - L.W1T))
    for jn in range(2):
        for kh in range(2): p.I('s_add_u32 s%d, s7, %d' % (ST + 2 * jn + kh, (2 * kh + jn) * 1024))
    p.I('s_branch %s' % dn)
    p.label(sm)
    p.I('s_add_u32 s%d, s%d, 2' % (ST + 8, ST + 8))
    for j in range(4):
        p.I('s_lshl_b32 s7, s10, 2\ns_add_u32 s7, s7, %d\ns_mul_i32 s7, s7, 324\ns_add_u32 s7, s7, s12\ns_add_u32 s7, s7, 4\ns_lshl_b32 s7, s7, 10\ns_add_u32 s%d, s7, %d' % (j, ST + j, L.W34T - L.W1T))
    p.label(dn)
    p.I('s_cmp_ge_u32 s%d, 432' % stask)
    for k in range(5): p.I('s_cselect_b32 s%d, 0x7f000000, s%d' % (ST + k, ST + k))
    for k in (5, 7): p.I('s_cselect_b32 s%d, 0, s%d' % (ST + k, ST + k))

def pretile34(c, swave):
    p = c.p
    NB, NU = 8, 12
    pt34_lane_consts(p)
    STA, STB = 80, 90
    p.I('s_mul_i32 s15, s3, %d' % (NB * 4096))
    p.I('s_add_u32 s79, s%d, 256' % swave)
    pt34_decode(c, swave, 64, STA)
    pt34_decode(c, 79, 52, STB)
    p.I('v_mad_u32_u24 v12, v2, s%d, v3\nv_add_u32 v12, s%d, v12' % (STA + 6, STA + 4))
    p.I('v_mad_u32_u24 v13, v2, s%d, v3\nv_add_u32 v13, s%d, v13' % (STB + 6, STB + 4))
    p.I('s_lshl_b32 s4, s%d, 3\ns_mov_b32 s5, s%d\ns_mov_b32 s78, 0\ns_mov_b32 s14, s15\ns_add_u32 s13, s15, %d' % (STA + 6, STA + 5, NB * 4096))
    def issue():
        l1 = p.label_name('L_is')
        p.I('s_cmp_lg_u32 s78, 6\ns_cbranch_scc1 %s' % l1)
        p.I('v_mov_b32 v12, v13\ns_lshl_b32 s4, s%d, 3\ns_mov_b32 s5, s%d' % (STB + 6, STB + 5))
        for k in range(4): p.I('s_mov_b32 s%d, s%d' % (64 + k, 52 + k))
        p.label(l1)
        p.I('s_cmp_eq_u32 s78, 12\ns_cselect_b32 s7, 0x7f000000, 0\nv_add_u32 v12, s7, v12')
        p.I('v_mov_b32 v9, v12')
        for q in range(4):
            p.I('s_add_u32 m0, s14, %d' % (q * 1024))
            if q: p.I('v_add_u32 v9, s4, v9')
            p.I('buffer_load_dwordx4 v9, s[64:67], 0 offen lds', nowait=True)
        p.I('v_add_u32 v12, s5, v12\ns_add_u32 s78, s78, 1\ns_add_u32 s14, s14, 4096\ns_cmp_ge_u32 s14, s13\ns_cselect_b32 s14, s15, s14')
    pl = p.label_name('L_prime')
    p.I('v_mov_b32 v11, 0x7f000000')
    p.label(pl)
    issue()
    for f in range(4): p.I('buffer_store_dwordx4 v[20:23], v11, s[68:71], 0 offen', nowait=True)
    p.I('s_cmp_lt_u32 s78, %d\ns_cbranch_scc1 %s' % (NB - 1, pl))
    p.I('s_mov_b32 s79, 0\ns_mov_b32 s12, s15')
    lp = p.label_name('L_ptl')
    p.label(lp)
    def cst(k):
        if os.environ.get('PTST'):
            l = p.label_name('L_cs')
            p.I('s_cmp_lg_u32 s79, %s\ns_cbranch_scc1 %s' % (os.environ['PTST'], l)); c.stamp(k); p.label(l)
    cst(5)
    issue()
    cst(6)
    l2 = p.label_name('L_ps')
    p.I('s_cmp_lg_u32 s79, 6\ns_cbranch_scc1 %s' % l2)
    for k in (0, 1, 2, 3, 7, 8): p.I('s_mov_b32 s%d, s%d' % (STA + k, STB + k))
    p.label(l2)
    p.I('s_waitcnt vmcnt(%d)' % (8 * (NB - 1)))
    cst(7)
    R = 20
    labs = [p.label_name('L_k%d' % k) for k in range(4)]; le = p.label_name('L_ke')
    for k in range(1, 4): p.I('s_cmp_eq_u32 s%d, %d\ns_cbranch_scc1 %s' % (STA + 8, k, labs[k]))
    for k, (va, second) in enumerate(((14, 512), (15, 1024), (16, 512), (17, 1024))):
        if k: p.label(labs[k])
        p.I('v_add_u32 v10, s12, v%d' % va)
        for f in range(4):
            off = (f // 2) * 64 + (f % 2) * 2048 if k < 2 else 32 * f
            p.I('ds_read_b64_tr_b16 %s, v10 offset:%d' % (vr(R + 4 * f, 2), off), nowait=True)
            p.I('ds_read_b64_tr_b16 %s, v10 offset:%d' % (vr(R + 4 * f + 2, 2), off + second), nowait=True)
        if k < 3: p.I('s_branch %s' % le)
    p.label(le)
    p.I('s_waitcnt lgkmcnt(0)')
    cst(8)
    for f in range(4):
        p.I('v_add_u32 v11, s%d, v8\ns_add_u32 s%d, s%d, s%d' % (STA + f, STA + f, STA + f, STA + 7))
        p.I('buffer_store_dwordx4 %s, v11, s[68:71], 0 offen%s' % (vr(R + 4 * f, 4), c.sc), nowait=True)
    cst(9)
    p.I('s_add_u32 s12, s12, 4096\ns_cmp_ge_u32 s12, s13\ns_cselect_b32 s12, s15, s12')
    p.I('s_add_u32 s79, s79, 1\ns_cmp_lt_u32 s79, %d\ns_cbranch_scc1 %s' % (NU, lp))
    p.I('s_waitcnt vmcnt(0)'); p.cut()

def ring_start(c):
    p = c.p
    srd(p, 64, P_WS, 32 * 324 * 1024, off=L.W34T)
    p.I('s_lshl_b32 s6, s4, 2\ns_add_u32 s6, s6, s3\ns_mul_i32 s6, s6, %d\nv_lshl_add_u32 v2, v1, 4, s6' % (324 * 1024))
    c.wn = 0
    for n in range(RING): wload(c)

def ring_setup(c, sslice, vaddr):
    p = c.p
    srd(p, 64, P_WS, 32 * 324 * 1024, off=L.W34T)
    p.I('s_lshl_b32 s6, s%d, 2\ns_add_u32 s6, s6, s3\ns_mul_i32 s6, s6, %d\nv_lshl_add_u32 v%d, v1, 4, s6' % (sslice, 324 * 1024, vaddr))
    c.ring_off = 0

def ring_load_at(c, slot, n, vaddr):
    p = c.p
    c.ring_map = getattr(c, 'ring_map', {})
    c.ring_map[n] = slot
    need = (n // 4) * 4096
    if need != c.ring_off:
        p.I('v_add_u32 v%d, %d, v%d' % (vaddr, need - c.ring_off, vaddr)); c.ring_off = need
    p.I('buffer_load_dwordx4 %s, v%d, s[64:67], 0 offen offset:%d%s' % (ar(4 * slot, 4), vaddr, 1024 * (n % 4), c.sc))

def ring_resume(c):
    p = c.p
    srd(p, 64, P_WS, 32 * 324 * 1024, off=L.W34T)
    p.I('s_lshl_b32 s6, s4, 2\ns_add_u32 s6, s6, s3\ns_mul_i32 s6, s6, %d\ns_add_u32 s6, s6, %d\nv_lshl_add_u32 v2, v1, 4, s6' % (324 * 1024, (EARLY // 4) * 4096))
    c.wn = EARLY
    c.ptr = [(EARLY // 4) * 4096, None]

def stream_order():
    o = list(range(162))
    for ks in range(20):
        pb, kh = ks >> 1, ks & 1
        o.append(162 + 3 * pb + kh); o.append(216 + 2 * pb + kh)
        if kh: o.append(162 + 3 * pb + 2)
    for ks in range(20, 36):
        pb, kh = ks >> 1, ks & 1
        o.append(162 + 3 * pb + kh)
        if kh: o.append(162 + 3 * pb + 2)
    for ks in range(20, 36): o.append(216 + ks)
    o += list(range(252, 324))
    assert sorted(o) == list(range(324))
    return o
ORDER = stream_order()
VPTR = [2, 3]

def wload(c):
    p = c.p
    n = c.wn
    if n >= 324: return
    pos = ORDER[n]
    k = 1 if 216 <= pos < 252 else 0
    need = (pos // 4) * 4096
    if c.ptr[k] is None:
        p.I('v_add_u32 v%d, %d, v%d' % (VPTR[k], need - c.ptr[0], VPTR[0]) if need >= c.ptr[0] else 'v_subrev_u32 v%d, %d, v%d' % (VPTR[k], c.ptr[0] - need, VPTR[0]))
        c.ptr[k] = need
    elif need != c.ptr[k]:
        assert need > c.ptr[k]
        p.I('v_add_u32 v%d, %d, v%d' % (VPTR[k], need - c.ptr[k], VPTR[k])); c.ptr[k] = need
    p.I('buffer_load_dwordx4 %s, v%d, s[64:67], 0 offen offset:%d%s' % (ar(4 * PERM[n % RING], 4), VPTR[k], 1024 * (pos % 4), c.sc))
    c.wn += 1

def ln_addr(c):
    p = c.p
    p.I('v_lshrrev_b32 v7, 1, v4\nv_lshlrev_b32 v9, 11, v7\ns_lshr_b32 s6, s3, 1\ns_lshl_b32 s6, s6, 10\nv_add_u32 v9, s6, v9')
    p.I('v_and_b32 v7, 1, v4\nv_lshlrev_b32 v7, 5, v7\ns_and_b32 s6, s3, 1\ns_lshl_b32 s6, s6, 4\nv_add_u32 v7, s6, v7\nv_add_u32 v7, v7, v3')
    for i in range(2):
        p.I('v_add_u32 v10, %d, v7\nv_xor_b32 v10, v10, v4\nv_lshl_add_u32 v%d, v10, 4, v9' % (8 * i, 11 + i))

def gelu4_lines(a, tmp, o, s1, vc2):
    L_ = []
    for r in range(4): L_.append('v_mul_f32 v%d, v%d, v%d' % (tmp + r, a + r, a + r))
    for r in range(4): L_.append('v_fma_f32 v%d, v%d, v%d, s%d' % (tmp + r, tmp + r, vc2, s1))
    for r in range(4): L_.append('v_mul_f32 v%d, v%d, v%d' % (tmp + r, tmp + r, a + r))
    for r in range(4): L_.append('v_exp_f32 v%d, v%d' % (tmp + r, tmp + r))
    for r in range(4): L_.append('v_add_f32 v%d, 1.0, v%d' % (tmp + r, tmp + r))
    for r in range(4): L_.append('v_rcp_f32 v%d, v%d' % (tmp + r, tmp + r))
    for r in range(4): L_.append('v_mul_f32 v%d, v%d, v%d' % (tmp + r, a + r, tmp + r))
    L_.append('v_cvt_pk_bf16_f32 v%d, v%d, v%d' % (o, tmp, tmp + 1))
    L_.append('v_cvt_pk_bf16_f32 v%d, v%d, v%d' % (o + 1, tmp + 2, tmp + 3))
    return L_

def mlp_setup(c):
    p = c.p
    gelu_consts(p, 8, 9)
    p.I('v_mov_b32 v20, s9')
    p.I('v_lshrrev_b32 v3, 5, v1')
    for q in range(4):
        p.I('v_add_u32 v4, %d, v3\nv_xor_b32 v4, v4, v1\nv_lshlrev_b32 v%d, 4, v4\nv_add_u32 v%d, 65536, v%d' % (2 * q, 14 + q, 24 + q, 14 + q))
    p.I('v_and_b32 v4, 15, v1\nv_bfe_u32 v5, v1, 4, 1\nv_lshl_add_u32 v4, v5, 5, v4')
    for par in range(2):
        p.I('v_lshlrev_b32 v6, 1, v3\nv_add_u32 v6, %d, v6\nv_add_u32 v6, v6, v5\nv_xor_b32 v6, v6, v4\nv_lshlrev_b32 v6, 4, v6\nv_lshl_add_u32 v%d, v3, 11, v6' % (4 * par, 28 + par))
    p.I('v_add_u32 v30, 65536, v28\nv_add_u32 v31, 65536, v29')
    p.I('v_lshlrev_b32 v18, 4, v1\nv_add_u32 v18, %d, v18\nv_add_u32 v19, 65536, v18' % G_BASE)
    p.I('v_lshlrev_b32 v60, 4, v4\nv_lshl_add_u32 v60, v3, 11, v60\nv_add_u32 v60, %d, v60\nv_add_u32 v61, 65536, v60' % G_BASE)
    p.I('s_lshl_b32 s6, s3, 13\nv_add_u32 v22, s6, v18\ns_add_u32 s6, s6, %d\nv_add_u32 v23, s6, v18' % (20 * 2048))
    p.I('v_lshlrev_b32 v62, 4, v4\nv_lshl_add_u32 v62, v3, 3, v62\ns_add_u32 s6, s3, 16\ns_lshl_b32 s6, s6, 11\ns_add_u32 s6, s6, %d\nv_add_u32 v62, s6, v62' % G_BASE)
    srd(p, 68, P_WS, 32 * 8 * 8 * 9216, off=L.PART)
    p.I('v_bfe_u32 v5, v1, 3, 2\nv_mul_u32_u24 v5, %d, v5\nv_and_b32 v6, 7, v1\nv_lshl_add_u32 v5, v6, 5, v5\nv_lshl_add_u32 v5, v3, 4, v5' % (8 * 9216))
    p.I('s_lshl_b32 s6, s5, 6\ns_add_u32 s6, s6, s4\ns_mul_i32 s6, s6, 9216\nv_add_u32 v21, s6, v5')
    p.I('v_bfe_u32 v5, v1, 3, 1\nv_mul_u32_u24 v5, %d, v5\nv_and_b32 v6, 7, v1\nv_lshl_add_u32 v5, v6, 5, v5\nv_lshrrev_b32 v6, 4, v1\nv_lshl_add_u32 v5, v6, 3, v5' % (8 * 9216))
    p.I('s_lshl_b32 s7, s3, 8\ns_add_u32 s7, s7, s6\ns_add_u32 s7, s7, 8192\nv_add_u32 v63, s7, v5')

def mlp_main(c):
    p = c.p
    GA, GS, GB = 64, 128, 160
    BF, SF = 224, 144
    GT, GO = 32, 40
    F = Filler(p)
    def gelu_big(acc, vaddr):
        k = 0
        for e in range(2):
            for tt in range(2):
                a = acc + 16 * (e * 2 + tt)
                for h in range(2):
                    o = GO + 4 * (k % 2)
                    for q in range(2):
                        F.add('\n'.join(gelu4_lines(a + 8 * h + 4 * q, GT + 4 * q, o + 2 * q, 8, 20)))
                    F.add('ds_write_b128 v%d, %s offset:%d' % (vaddr, vr(o, 4), e * 4096 + h * 2048 + tt * 1024))
                    k += 1
    def gelu_small():
        for tq in range(4):
            o = GO + 2 * (tq % 2)
            F.add('\n'.join(gelu4_lines(GS + 4 * tq, GT + 4 * (tq % 2), o, 8, 20)))
            F.add('ds_write_b64 v62, %s offset:%d' % (vr(o, 2), (tq >> 1) * 1024 + (tq & 1) * 256))
    step = [0]
    def big_step(accs, bregs, first):
        a = ar(4 * PERM[step[0] % RING], 4)
        for tt in range(2):
            cc = '0' if first else vr(accs[tt], 16)
            p.I('v_mfma_f32_32x32x16_bf16 %s, %s, %s, %s' % (vr(accs[tt], 16), a, vr(bregs[tt], 4), cc))
            F.tick()
        wload(c); step[0] += 1
    def small_step(acc, first):
        a = ar(4 * PERM[step[0] % RING], 4)
        for tq in range(4):
            cc = '0' if first else vr(acc + 4 * tq, 4)
            p.I('v_mfma_f32_16x16x32_bf16 %s, %s, %s, %s' % (vr(acc + 4 * tq, 4), a, vr(SF + 4 * tq, 4), cc))
        F.tick()
        wload(c); step[0] += 1
    def ld_act(ks):
        for tt in range(2):
            off = A2_BASE + (ks * 2 + tt) * 1024
            p.I('ds_read_b128 %s, v%d offset:%d' % (vr(BF + 8 * (ks % 3) + 4 * tt, 4), (14 if off < 65536 else 24) + (ks & 3), off % 65536))
    def ld_act_small(K2):
        for tq in range(4):
            off = A2_BASE + K2 * 4096 + (tq >> 1) * 1024 + (tq & 1) * 256
            p.I('ds_read_b128 %s, v%d offset:%d' % (vr(SF + 4 * tq, 4), (28 if off < 65536 else 30) + (K2 & 1), off % 65536))
    def ld_g(ksf):
        for tt in range(2):
            off = (ksf * 2 + tt) * 1024
            p.I('ds_read_b128 %s, v%d offset:%d' % (vr(BF + 8 * (ksf % 3) + 4 * tt, 4), 18 if off < 65536 else 19, off % 65536))
    def ld_g_small(K2):
        for tq in range(4):
            off = K2 * 4096 + (tq >> 1) * 1024 + (tq & 1) * 256
            p.I('ds_read_b128 %s, v%d offset:%d' % (vr(SF + 4 * tq, 4), 60 if off < 65536 else 61, off % 65536))
    def loop(acc, ntile, sacc, ldb, lds_, barrier_at=None, hook=None):
        ldb(0); ldb(1)
        for ks in range(36):
            if hook: hook(ks)
            if barrier_at is not None and ks == barrier_at:
                F.flush()
                p.I('s_waitcnt lgkmcnt(0)\ns_barrier')
                ldb(ks); ldb(ks + 1)
            nx = ks + 2
            if nx < 36 and not (barrier_at is not None and barrier_at - 2 <= ks < barrier_at): ldb(nx)
            if sacc is not None and ks % 2 == 0: lds_(ks >> 1)
            b = [BF + 8 * (ks % 3) + 4 * tt for tt in range(2)]
            for e in range(ntile):
                big_step([acc + 16 * (e * 2 + tt) for tt in range(2)], b, ks == 0)
            if sacc is not None and ks % 2 == 1: small_step(sacc, ks == 1)
    loop(GA, 2, GS, ld_act, ld_act_small)
    c.mstamp(1)
    gelu_big(GA, 22); gelu_small(); F.set_rate(144 - 6)
    loop(GB, 2, None, ld_act, None)
    F.flush()
    c.mstamp(2)
    p.I('s_waitcnt lgkmcnt(0)\ns_barrier')
    O = [64, 96, 64, 96]; OS = 128
    def publish_big(acc, e):
        Ls = []
        for tt in range(2):
            a = acc + 16 * tt
            pk = 44 + 8 * tt
            for d in range(8): Ls.append('v_cvt_pk_bf16_f32 v%d, v%d, v%d' % (pk + d, a + 2 * d, a + 2 * d + 1))
            Ls.append('s_add_u32 s7, s10, %d' % (tt * 4 * 8 * 9216 + e * 2048))
            Ls.append('buffer_store_dwordx4 %s, v21, s[68:71], s7 offen%s' % (vr(pk, 4), c.sc))
            Ls.append('buffer_store_dwordx4 %s, v21, s[68:71], s7 offen offset:256%s' % (vr(pk + 4, 4), c.sc))
        return '\n'.join(Ls)
    def publish_small():
        Ls = []
        for tq in range(4):
            a = OS + 4 * tq; pk = 32 + 2 * tq
            Ls.append('v_cvt_pk_bf16_f32 v%d, v%d, v%d' % (pk, a, a + 1)); Ls.append('v_cvt_pk_bf16_f32 v%d, v%d, v%d' % (pk + 1, a + 2, a + 3))
            Ls.append('s_mov_b32 s7, %d' % (tq * 2 * 8 * 9216))
            Ls.append('buffer_store_dwordx2 %s, v63, s[68:71], s7 offen%s' % (vr(pk, 2), c.sc))
        return '\n'.join(Ls)
    p.I('s_lshl_b32 s10, s3, 9')
    def kloop(ks0, ks1, accs, sacc, hook=None):
        ld_g(ks0); ld_g(ks0 + 1)
        for ks in range(ks0, ks1):
            if hook: hook(ks)
            if ks + 2 < ks1: ld_g(ks + 2)
            if sacc is not None and ks % 2 == 0: ld_g_small(ks >> 1)
            b = [BF + 8 * (ks % 3) + 4 * tt for tt in range(2)]
            for acc in accs: big_step([acc + 16 * tt for tt in range(2)], b, ks == 0)
            if sacc is not None and ks % 2 == 1: small_step(sacc, ks == 1)
    gelu_big(GB, 23); F.set_rate(80 + 10 - 4)
    kloop(0, 20, [O[0], O[1]], OS)
    F.flush()
    p.I('s_waitcnt lgkmcnt(0)\ns_barrier')
    kloop(20, 36, [O[0]], OS)
    c.mstamp(3)
    final_setup(c)
    F.add(publish_big(O[0], 0)); F.add(publish_small()); F.set_rate(28)
    kloop(20, 36, [O[1]], None)
    F.flush()
    final_ops(c)
    F.add(publish_big(O[1], 1)); F.set_rate(24)
    tok01 = [None]
    def hook2(ks):
        if ks == 16: F.flush(); tok01[0] = F.last_tok
        if ks == 30:
            p.wait(tok01[0]); p.I('s_barrier'); c.arrive_part(0)
    kloop(0, 36, [O[2]], None, hook=hook2)
    F.add(publish_big(O[2], 2)); F.set_rate(24)
    def hook3(ks):
        if ks == 18: c.poll_issue()
        if ks == 28:
            c.poll_check()
            final_gather(c, 0)
    kloop(0, 36, [O[3]], None, hook=hook3)
    F.flush()
    p.I(publish_big(O[3], 3))

FA, FB, FROW, FGB, FROWS, FGBS, FOOB = 4, 5, 6, 7, 8, 9, 10
PGA = 160
PS = 192
OPS = 208

def final_setup(c):
    p = c.p
    srd(p, 52, P_WS, L.S * 1152, off=L.X1); srd(p, 56, P_WS, L.S * 1152, off=L.X2)
    srd(p, 60, P_OUT, L.S * 1152); srd(p, 48, P_WS, 6 * 576 * 4, off=L.MOD)
    p.I('s_mov_b32 s99, 0xffff0000')
    p.I('s_lshl_b32 s6, s5, 3\ns_add_u32 s6, s6, s4\ns_mul_i32 s6, s6, %d\nv_lshl_add_u32 v%d, v0, 4, s6' % (8 * 9216, FA))
    p.I('v_cmp_gt_u32 vcc, 128, v0\nv_mov_b32 v%d, 0x7f000000\nv_lshlrev_b32 v%d, 3, v0\nv_add_u32 v%d, s6, v%d\nv_add_u32 v%d, 8192, v%d\nv_cndmask_b32 v%d, v%d, v%d, vcc' % (FOOB, FB, FB, FB, FB, FB, FB, FOOB, FB))
    p.I('v_bfe_u32 v11, v0, 1, 3\ns_lshl_b32 s6, s5, 6\ns_lshl_b32 s7, s4, 3\ns_add_u32 s6, s6, s7\nv_add_u32 v11, s6, v11\ns_movk_i32 s7, 1152\nv_mul_lo_u32 v11, v11, s7')
    p.I('v_bfe_u32 v12, v0, 5, 2\nv_lshlrev_b32 v12, 6, v12\nv_lshrrev_b32 v13, 7, v0\nv_lshl_add_u32 v12, v13, 5, v12\nv_and_b32 v13, 1, v0\nv_lshl_add_u32 v12, v13, 4, v12\nv_bfe_u32 v13, v0, 4, 1\nv_lshl_add_u32 v12, v13, 3, v12')
    p.I('v_lshl_add_u32 v%d, v12, 1, v11\nv_lshlrev_b32 v%d, 2, v12\nv_add_u32 v%d, %d, v%d' % (FROW, FGB, FGB, 5 * 2304, FGB))
    p.I('v_bfe_u32 v11, v0, 2, 3\nv_add_u32 v11, s6, v11\nv_mul_lo_u32 v11, v11, s7')
    p.I('v_lshrrev_b32 v12, 5, v0\nv_lshlrev_b32 v12, 4, v12\nv_and_b32 v13, 3, v0\nv_lshl_add_u32 v12, v13, 2, v12\nv_add_u32 v12, 256, v12')
    p.I('v_lshl_add_u32 v%d, v12, 1, v11\nv_lshlrev_b32 v%d, 2, v12\nv_add_u32 v%d, %d, v%d' % (FROWS, FGBS, FGBS, 5 * 2304, FGBS))
    p.I('v_cndmask_b32 v%d, v%d, v%d, vcc\nv_cndmask_b32 v%d, v%d, v%d, vcc' % (FROWS, FOOB, FROWS, FGBS, FOOB, FGBS))

X1P = [208, 24]; X2P = [212, 28]; GBP = [216, 144]; SX1, SX2, SGB = 152, 154, 156
def final_ops(c):
    p = c.p
    for k in range(2):
        p.I('buffer_load_dwordx4 %s, v%d, s[52:55], 0 offen offset:%d%s' % (vr(X1P[k], 4), FROW, 640 * k, c.sc))
        p.I('buffer_load_dwordx4 %s, v%d, s[56:59], 0 offen offset:%d%s' % (vr(X2P[k], 4), FROW, 640 * k, c.sc))
        p.I('buffer_load_dwordx4 %s, v%d, s[48:51], 0 offen offset:%d%s' % (vr(GBP[k], 4), FGB, 1280 * k, c.sc))
        p.I('buffer_load_dwordx4 %s, v%d, s[48:51], 0 offen offset:%d%s' % (vr(GBP[k] + 4, 4), FGB, 1280 * k + 16, c.sc))
    p.I('buffer_load_dwordx2 %s, v%d, s[52:55], 0 offen%s' % (vr(SX1, 2), FROWS, c.sc))
    p.I('buffer_load_dwordx2 %s, v%d, s[56:59], 0 offen%s' % (vr(SX2, 2), FROWS, c.sc))
    p.I('buffer_load_dwordx4 %s, v%d, s[48:51], 0 offen%s' % (vr(SGB, 4), FGBS, c.sc))

def final_gather(c, k):
    p = c.p
    for src in range(8):
        p.I('s_mov_b32 s7, %d\nbuffer_load_dwordx4 %s, v%d, s[68:71], s7 offen%s' % (src * 9216 + k * 4096, vr(PGA + 4 * src, 4), FA, c.sc))
    if k == 0:
        for src in range(8):
            p.I('s_mov_b32 s7, %d\nbuffer_load_dwordx2 %s, v%d, s[68:71], s7 offen%s' % (src * 9216, vr(PS + 2 * src, 2), FB, c.sc))

def final_piece(p, nd, src_reg, x1, x2, gb, out):
    AC, U = 32, 40
    for d in range(nd): unpack(p, AC + 2 * d, src_reg(0) + d, 99)
    for src in range(1, 8):
        u = U + 8 * (src % 2)
        for d in range(nd): unpack(p, u + 2 * d, src_reg(src) + d, 99)
        for d in range(nd): p.I('v_pk_add_f32 %s, %s, %s' % (vr(AC + 2 * d, 2), vr(AC + 2 * d, 2), vr(u + 2 * d, 2)))
    for d in range(nd): unpack(p, U + 2 * d, x2 + d, 99)
    for d in range(nd): p.I('v_pk_add_f32 %s, %s, %s' % (vr(AC + 2 * d, 2), vr(AC + 2 * d, 2), vr(U + 2 * d, 2)))
    for d in range(nd): unpack(p, U + 2 * d, x1 + d, 99)
    for d in range(nd): p.I('v_pk_fma_f32 %s, %s, %s, %s' % (vr(AC + 2 * d, 2), vr(AC + 2 * d, 2), vr(gb + 2 * d, 2), vr(U + 2 * d, 2)))
    for d in range(nd): p.I('v_cvt_pk_bf16_f32 v%d, v%d, v%d' % (out + d, AC + 2 * d, AC + 2 * d + 1))

def final_pair(c, k):
    p = c.p
    final_piece(p, 4, lambda src: PGA + 4 * src, X1P[k], X2P[k], GBP[k], 56)
    p.I('buffer_store_dwordx4 %s, v%d, s[60:63], 0 offen offset:%d' % (vr(56, 4), FROW, 640 * k))
    if k == 0:
        final_piece(p, 2, lambda src: PS + 2 * src, SX1, SX2, SGB, 60)
        p.I('buffer_store_dwordx2 %s, v%d, s[60:63], 0 offen' % (vr(60, 2), FROWS))
```

```python
import os
from asmlib import *
import layout as L
from mk import srd, udiv_magic, P_WS, P_W1, P_W2, P_W3, P_W4

NB, NU = 8, 12
STA, STB = 80, 90
S_IS12 = 77
S_STEP8, S_USTEP, S_IIDX = 100, 101, 78
S_LEND, S_LISS, S_LBASE = 13, 14, 15
V_OFF, V_OFFB, V_T = 176, 177, 178
SRDB = 48

def decode34(c, stask, ST):
    p = c.p
    w4 = p.label_name('L_t4'); cm = p.label_name('L_tc')
    p.I('s_cmp_ge_u32 s%d, 216\ns_cbranch_scc1 %s' % (stask, w4))
    p.I('s_mul_i32 s8, s%d, %d\ns_lshr_b32 s8, s8, 16\ns_mul_i32 s9, s8, 3\ns_sub_u32 s9, s%d, s9' % (stask, udiv_magic(3, 300), stask))
    p.I('s_mul_i32 s%d, s9, %d\ns_lshl_b32 s10, s8, 7\ns_add_u32 s%d, s%d, s10' % (ST + 4, 6 * 32 * 9216, ST + 4, ST + 4))
    p.I('s_mov_b32 s%d, %d\ns_movk_i32 s%d, 9216\ns_mov_b32 s%d, 0' % (ST + 5, 32 * 9216, ST + 6, ST + 8))
    p.I('s_mul_i32 s10, s8, %d\ns_lshr_b32 s10, s10, 16\ns_mul_i32 s11, s10, 9\ns_sub_u32 s11, s8, s11\ns_mov_b32 s12, 0' % udiv_magic(9, 100))
    p.I('s_branch %s' % cm)
    p.label(w4)
    p.I('s_sub_u32 s7, s%d, 216\ns_mul_i32 s10, s7, %d\ns_lshr_b32 s10, s10, 16\ns_mul_i32 s9, s10, 27\ns_sub_u32 s7, s7, s9' % (stask, udiv_magic(27, 600)))
    p.I('s_mul_i32 s11, s7, %d\ns_lshr_b32 s11, s11, 16\ns_mul_i32 s9, s11, 3\ns_sub_u32 s9, s7, s9' % udiv_magic(3, 32))
    p.I('s_mul_i32 s6, s10, 18\ns_mul_i32 s7, s9, 6\ns_add_u32 s6, s6, s7\ns_mul_i32 s%d, s6, %d\ns_lshl_b32 s6, s11, 7\ns_add_u32 s%d, s%d, s6' % (ST + 4, 32 * 1152, ST + 4, ST + 4))
    p.I('s_mov_b32 s%d, %d\ns_movk_i32 s%d, 1152\ns_mov_b32 s%d, 1\ns_movk_i32 s12, 162' % (ST + 5, 32 * 1152, ST + 6, ST + 8))
    p.label(cm)
    p.I('s_sub_u32 s6, s11, 5\ns_cmp_lt_u32 s11, 4\ns_cselect_b32 s6, s11, s6')
    p.I('s_lshl_b32 s7, s10, 2\ns_add_u32 s7, s7, s6\ns_mul_i32 s7, s7, 324\ns_add_u32 s7, s7, s12')
    isw4 = p.label_name('L_d4'); dd = p.label_name('L_ddone')
    p.I('s_cmp_eq_u32 s%d, 1\ns_cbranch_scc1 %s' % (ST + 8, isw4))
    p.I('s_cmp_le_u32 s11, 4\ns_cselect_b32 s%d, 5, 4\ns_cselect_b32 s8, 0, 90\ns_mov_b32 s%d, s%d' % (ST + 7, ST + 9, ST + 7))
    p.I('s_add_u32 s%d, s8, 0\ns_add_u32 s%d, s8, 2\ns_add_u32 s%d, s8, 1\ns_add_u32 s%d, s8, 3\ns_mov_b32 s8, 4' % (ST + 0, ST + 1, ST + 2, ST + 3))
    p.I('s_branch %s' % dd)
    p.label(isw4)
    p.I('s_cmp_le_u32 s11, 4\ns_cselect_b32 s%d, 3, 2\ns_cselect_b32 s%d, 0, 90\ns_cselect_b32 s%d, 54, 126\ns_mov_b32 s%d, 2' % (ST + 7, ST + 0, ST + 2, ST + 9))
    p.I('s_add_u32 s%d, s%d, 1\ns_add_u32 s%d, s%d, 1\ns_mov_b32 s8, 2' % (ST + 1, ST + 0, ST + 3, ST + 2))
    p.label(dd)
    sm = p.label_name('L_ts'); dn = p.label_name('L_td')
    p.I('s_mul_i32 s9, s9, 6')
    p.I('s_cmp_eq_u32 s11, 4\ns_cbranch_scc1 %s' % sm)
    for f in range(4):
        st = ST + 7 if f < 2 else ST + 9
        p.I('s_mul_i32 s6, s9, s%d\ns_add_u32 s6, s6, s7\ns_add_u32 s%d, s%d, s6\ns_lshl_b32 s%d, s%d, 10\ns_add_u32 s%d, s%d, %d' % (st, ST + f, ST + f, ST + f, ST + f, ST + f, ST + f, L.W34T - L.W1T))
    p.I('s_branch %s' % dn)
    p.label(sm)
    p.I('s_add_u32 s%d, s%d, 2\ns_mov_b32 s%d, s%d' % (ST + 8, ST + 8, ST + 9, ST + 7))
    p.I('s_lshl_b32 s7, s10, 2\ns_mul_i32 s7, s7, 324\ns_add_u32 s7, s7, s12\ns_add_u32 s7, s7, s8\ns_mul_i32 s6, s9, s%d\ns_add_u32 s7, s7, s6\ns_lshl_b32 s7, s7, 10\ns_add_u32 s7, s7, %d' % (ST + 7, L.W34T - L.W1T))
    for j in range(4): p.I('s_add_u32 s%d, s7, %d' % (ST + j, j * 324 * 1024))
    p.label(dn)
    p.I('s_lshl_b32 s%d, s%d, 10\ns_lshl_b32 s%d, s%d, 10' % (ST + 7, ST + 7, ST + 9, ST + 9))
    p.I('s_cmp_ge_u32 s%d, 432' % stask)
    for k in range(5): p.I('s_cselect_b32 s%d, 0x7f000000, s%d' % (ST + k, ST + k))
    for k in (5, 7, 9): p.I('s_cselect_b32 s%d, 0, s%d' % (ST + k, ST + k))

def decode12(c, stask, ST, SRD):
    p = c.p
    p.I('s_cmp_ge_u32 s%d, 27\ns_cselect_b32 s10, 1, 0\ns_cselect_b32 s7, 27, 0\ns_sub_u32 s7, s%d, s7' % (stask, stask))
    p.I('s_mul_i32 s8, s7, %d\ns_lshr_b32 s8, s8, 16\ns_mul_i32 s9, s8, 3\ns_sub_u32 s9, s7, s9' % udiv_magic(3, 32))
    p.I('s_mul_i32 s%d, s9, %d\ns_lshl_b32 s6, s8, 7\ns_add_u32 s%d, s%d, s6' % (ST + 4, 6 * 32 * 1152, ST + 4, ST + 4))
    p.I('s_mov_b32 s%d, %d\ns_movk_i32 s%d, 1152\ns_movk_i32 s%d, 1024\ns_mov_b32 s%d, 2' % (ST + 5, 32 * 1152, ST + 6, ST + 7, ST + 8))
    p.I('s_mul_i32 s7, s8, 72\ns_mul_i32 s6, s9, 6\ns_add_u32 s7, s7, s6\ns_lshl_b32 s7, s7, 10\ns_mul_i32 s6, s10, %d\ns_add_u32 s7, s7, s6' % (L.W2T - L.W1T))
    for j in range(4): p.I('s_add_u32 s%d, s7, %d' % (ST + j, j * 18 * 1024))
    p.I('s_cmp_eq_u32 s10, 1\ns_cselect_b32 s%d, s%d, s%d\ns_cselect_b32 s%d, s%d, s%d\ns_mov_b32 s%d, %d\ns_mov_b32 s%d, 0x20000' % (SRD, P_W2, P_W1, SRD + 1, P_W2 + 1, P_W1 + 1, SRD + 2, 576 * 1152, SRD + 3))

def issue(c):
    p = c.p
    l1 = p.label_name('L_is')
    p.I('s_cmp_lg_u32 s%d, 6\ns_cbranch_scc1 %s' % (S_IIDX, l1))
    p.I('v_mov_b32 v%d, v%d\ns_lshl_b32 s%d, s%d, 3\ns_mov_b32 s%d, s%d' % (V_OFF, V_OFFB, S_STEP8, STB + 6, S_USTEP, STB + 5))
    for k in range(4): p.I('s_mov_b32 s%d, s%d' % (64 + k, SRDB + k))
    p.label(l1)
    p.I('s_cmp_eq_u32 s%d, 12\ns_cselect_b32 s7, 0x7f000000, 0\nv_add_u32 v%d, s7, v%d' % (S_IIDX, V_OFF, V_OFF))
    p.I('v_mov_b32 v%d, v%d' % (V_T, V_OFF))
    for q in range(4):
        p.I('s_add_u32 m0, s%d, %d' % (S_LISS, q * 1024))
        if q: p.I('v_add_u32 v%d, s%d, v%d' % (V_T, S_STEP8, V_T))
        p.I('buffer_load_dwordx4 v%d, s[64:67], 0 offen lds' % V_T, nowait=True)
    p.I('v_add_u32 v%d, s%d, v%d\ns_add_u32 s%d, s%d, 1' % (V_OFF, S_USTEP, V_OFF, S_IIDX, S_IIDX))
    p.I('s_add_u32 s%d, s%d, 4096\ns_cmp_ge_u32 s%d, s%d\ns_cselect_b32 s%d, s%d, s%d' % (S_LISS, S_LISS, S_LISS, S_LEND, S_LISS, S_LBASE, S_LISS))

def decode_any(c, stask, ST, SRD):
    p = c.p
    la = p.label_name('L_a12'); lb = p.label_name('L_adone')
    p.I('s_cmp_ge_u32 s%d, 432\ns_cbranch_scc1 %s' % (stask, la))
    decode34(c, stask, ST)
    p.I('s_bitcmp1_b32 s%d, 0' % (ST + 8))
    for k in range(4): p.I('s_cselect_b32 s%d, s%d, s%d' % (SRD + k, 60 + k, 56 + k))
    p.I('s_branch %s' % lb)
    p.label(la)
    p.I('s_sub_u32 s%d, s%d, 432' % (stask, stask))
    decode12(c, stask, ST, SRD)
    p.I('s_cmp_ge_u32 s%d, 54' % stask)
    for k in range(5): p.I('s_cselect_b32 s%d, 0x7f000000, s%d' % (ST + k, ST + k))
    for k in (5, 7, 9): p.I('s_cselect_b32 s%d, 0, s%d' % (ST + k, ST + k))
    p.label(lb)

def prime(c, wg0):
    p = c.p
    srd(p, 56, P_W3, 576 * 9216); srd(p, 60, P_W4, 4608 * 1152)
    srd(p, 68, P_WS, L.W34T + 32 * 324 * 1024 - L.W1T, off=L.W1T)
    p.I('s_sub_u32 s78, s2, %d\ns_lshl_b32 s78, s78, 2\ns_add_u32 s78, s78, s3' % wg0)
    p.I('s_mov_b32 s79, s78\ns_add_u32 s78, s78, 216\ns_cmp_ge_u32 s79, 216\ns_cselect_b32 s78, 511, s78\ns_cselect_b32 s79, 511, s79\ns_mov_b32 s%d, 0' % 77)
    decode_any(c, 79, STA, 64)
    decode_any(c, 78, STB, SRDB)
    p.I('v_lshrrev_b32 v%d, 3, v1\nv_and_b32 v%d, 7, v1\nv_lshlrev_b32 v%d, 4, v%d' % (V_T, V_T + 1, V_T + 1, V_T + 1))
    p.I('v_mad_u32_u24 v%d, v%d, s%d, v%d\nv_add_u32 v%d, s%d, v%d' % (V_OFF, V_T, STA + 6, V_T + 1, V_OFF, STA + 4, V_OFF))
    p.I('v_mad_u32_u24 v%d, v%d, s%d, v%d\nv_add_u32 v%d, s%d, v%d' % (V_OFFB, V_T, STB + 6, V_T + 1, V_OFFB, STB + 4, V_OFFB))
    p.I('s_lshl_b32 s%d, s%d, 3\ns_mov_b32 s%d, s%d\ns_mov_b32 s%d, 0' % (S_STEP8, STA + 6, S_USTEP, STA + 5, S_IIDX))
    p.I('s_mul_i32 s%d, s3, %d\ns_mov_b32 s%d, s%d\ns_add_u32 s%d, s%d, %d' % (S_LBASE, NB * 4096, S_LISS, S_LBASE, S_LEND, S_LBASE, NB * 4096))
    pl = p.label_name('L_prime')
    p.label(pl)
    issue(c)
    p.I('s_cmp_lt_u32 s%d, %d\ns_cbranch_scc1 %s' % (S_IIDX, NB - 1, pl))
    p.cut()

def lane_consts(p):
    p.I('v_bfe_u32 v4, v1, 4, 1\nv_lshrrev_b32 v5, 5, v1\nv_bfe_u32 v9, v1, 2, 2\nv_and_b32 v10, 3, v1')
    p.I('v_lshl_add_u32 v14, v5, 3, v9\nv_lshlrev_b32 v14, 7, v14\nv_lshl_add_u32 v14, v4, 5, v14\nv_lshl_add_u32 v14, v10, 3, v14')
    p.I('v_lshl_add_u32 v15, v5, 2, v9\nv_lshlrev_b32 v15, 7, v15\nv_and_b32 v11, 1, v10\nv_lshl_add_u32 v15, v11, 5, v15\nv_lshl_add_u32 v15, v4, 4, v15\nv_lshrrev_b32 v11, 1, v10\nv_lshl_add_u32 v15, v11, 3, v15')
    p.I('v_lshrrev_b32 v11, 4, v1\nv_lshl_add_u32 v16, v11, 3, v9\nv_lshlrev_b32 v16, 7, v16\nv_lshl_add_u32 v16, v10, 3, v16')
    p.I('v_lshl_add_u32 v17, v5, 2, v4\nv_lshl_add_u32 v17, v17, 2, v9\nv_lshlrev_b32 v17, 7, v17\nv_lshl_add_u32 v17, v10, 3, v17')
    p.I('v_lshlrev_b32 v8, 4, v1')

def run(c, arrive12):
    p = c.p
    lane_consts(p)
    p.I('s_waitcnt vmcnt(0)')
    p.I('s_mov_b32 s79, 0\ns_mov_b32 s12, s%d' % S_LBASE)
    lp = p.label_name('L_ptl')
    p.label(lp)
    issue(c)
    l2 = p.label_name('L_ps')
    p.I('s_cmp_lg_u32 s79, 6\ns_cbranch_scc1 %s' % l2)
    arrive12()
    for k in (0, 1, 2, 3, 7, 8, 9): p.I('s_mov_b32 s%d, s%d' % (STA + k, STB + k))
    p.label(l2)
    p.I('s_waitcnt vmcnt(%d)' % (8 * (NB - 1)))
    R = 20
    labs = [p.label_name('L_k%d' % k) for k in range(4)]; le = p.label_name('L_ke')
    for k in range(1, 4): p.I('s_cmp_eq_u32 s%d, %d\ns_cbranch_scc1 %s' % (STA + 8, k, labs[k]))
    for k, (va, second) in enumerate(((14, 512), (15, 1024), (16, 512), (17, 1024))):
        if k: p.label(labs[k])
        p.I('v_add_u32 v10, s12, v%d' % va)
        for f in range(4):
            off = (f // 2) * 64 + (f % 2) * 2048 if k < 2 else 32 * f
            p.I('ds_read_b64_tr_b16 %s, v10 offset:%d' % (vr(R + 4 * f, 2), off), nowait=True)
            p.I('ds_read_b64_tr_b16 %s, v10 offset:%d' % (vr(R + 4 * f + 2, 2), off + second), nowait=True)
        if k < 3: p.I('s_branch %s' % le)
    p.label(le)
    p.I('s_waitcnt lgkmcnt(0)')
    for f in range(4):
        p.I('v_add_u32 v11, s%d, v8\ns_add_u32 s%d, s%d, s%d' % (STA + f, STA + f, STA + f, STA + 7 if f < 2 else STA + 9))
        p.I('buffer_store_dwordx4 %s, v11, s[68:71], 0 offen%s' % (vr(R + 4 * f, 4), c.sc), nowait=True)
    p.I('s_add_u32 s12, s12, 4096\ns_cmp_ge_u32 s12, s%d\ns_cselect_b32 s12, s%d, s12' % (S_LEND, S_LBASE))
    p.I('s_add_u32 s79, s79, 1\ns_cmp_lt_u32 s79, %d\ns_cbranch_scc1 %s' % (NU, lp))
    p.I('s_waitcnt vmcnt(0)'); p.cut()
```

```python
import sys
sys.path.insert(0, 'gen')
from asmlib import *
import layout as L
import mk
import mlp32
import pt
from mk import (srd, udiv_magic, f2u, bf16_round, LOG2E, NAME, P_Q, P_K, P_V, P_SK, P_SSMK, P_SSMD, P_W1, P_W2, P_W3, P_W4,
                P_C, P_WMOD, P_OUT, P_DBG, P_WS, unpack, gelu_consts, gelu_inplace, reduce32, reduce8, small_out_addr, gemm_small,
                Filler, gelu_tile_lines, KC_STRIDE, KCOPY, XR_BASE, XR_STRIDE, RED_BASE, kernel_header, kernel_desc, assemble)

STAMPS = False
NCONV = 192
LS = 4352
K_SH, K_TOP, K_REL = 0, 16, 17
V_SH, V_TOP, V_REL = 18, 34, 35
M_CNT, M_REL, A_CNT, A_REL, B_CNT, B_REL = 36, 37, 38, 39, 40, 41
C_H1, C_X2, C_PART = 42, 106, 170
B3_CNT, B3_REL = 210, 211
C_PART0 = 212
C_PART1 = 256
NCNT = 320
S_SYNC = 72
SPIN_MAX = 1 << 17
import os
SLEEP = int(os.environ.get('SLEEP', '1'))

class Ctx:
    def __init__(self):
        self.p = Prog(); self.mega = True; self.sc = ' sc1'; self.first_arrive_done = False
    def stamp(self, k, force=False):
        if not STAMPS: return
        if os.environ.get('FINE2') and k in (6, 7, 8, 9, 10, 11, 12, 13) and not getattr(self, 'fine', False): return
        if os.environ.get('FB') and k in (5, 6, 7, 8, 9, 10, 11, 12) and not getattr(self, 'inmlp', False): return
        if os.environ.get('CYC'):
            self.p.I('s_memtime s[76:77]\ns_waitcnt lgkmcnt(0)\nv_accvgpr_write_b32 a%d, s76' % (232 + k))
        else:
            self.p.I('s_memrealtime s[76:77]\ns_waitcnt lgkmcnt(0)\nv_accvgpr_write_b32 a%d, s76' % (232 + k))
    def mstamp(self, i):
        if 1 <= i < 4: self.stamp(17 + i)
    def stamp_out(self):
        if not STAMPS: return
        p = self.p
        self.stamp(23)
        srd(p, 48, P_WS, 1 << 20, off=L.DBG)
        p.I('s_lshl_b32 s76, s2, 2\ns_add_u32 s76, s76, s3\ns_lshl_b32 s76, s76, 7\nv_mov_b32 v2, s76')
        for k in range(24): p.I('buffer_store_dword a%d, v2, s[48:51], 0 offen offset:%d' % (232 + k, 4 * k if k < 23 else 124))

def wave0(p, lab):
    p.I('s_cmp_lg_u32 s3, 0\ns_cbranch_scc1 %s' % lab)

def atomic_ret(p):
    p.I('v_mov_b32 v253, 1\nbuffer_atomic_add v253, v252, s[%d:%d], 0 offen sc0 sc1\ns_waitcnt vmcnt(0)\nv_readfirstlane_b32 s76, v253\ns_nop 3' % (S_SYNC, S_SYNC + 3), nowait=True)

def do_arrive(c, kind, check_ready=False, **kw):
    p = c.p
    if check_ready: ready_check(c)
    p.I('s_mov_b64 exec, 1')
    done = p.label_name('L_ad')
    if kind == 'add':
        if kw.get('sgpr') is None: p.I('v_mov_b32 v252, %d' % (kw['idx'] * LS))
        else: p.I('s_mul_i32 s76, s%d, %d\ns_add_u32 s76, s76, %d\nv_mov_b32 v252, s76' % (kw['sgpr'], LS, kw['idx'] * LS))
        p.I('v_mov_b32 v253, 1\nbuffer_atomic_add v253, v252, s[%d:%d], 0 offen sc1' % (S_SYNC, S_SYNC + 3), nowait=True)
    else:
        if kind == 'two':
            p.I('s_mul_i32 s76, s%d, %d\ns_add_u32 s76, s76, %d\nv_mov_b32 v252, s76' % (kw['sgpr'], LS, kw['sh'] * LS))
            atomic_ret(p)
            p.I('s_cmp_lg_u32 s76, %d\ns_cbranch_scc1 %s' % (kw['per'] - 1, done))
            cnt, n = kw['top'], kw['nsh']
        else: cnt, n = kw['cnt'], kw['n']
        p.I('v_mov_b32 v252, %d' % (cnt * LS))
        atomic_ret(p)
        p.I('s_cmp_lg_u32 s76, %d\ns_cbranch_scc1 %s' % (n - 1, done))
        p.I('v_mov_b32 v252, %d\nv_mov_b32 v253, 1\nbuffer_store_dword v253, v252, s[%d:%d], 0 offen sc1' % (kw['rel'] * LS, S_SYNC, S_SYNC + 3), nowait=True)
    p.label(done)
    p.I('s_mov_b64 exec, -1'); p.cut()

def arrive(c, kind, check_ready=False, **kw):
    p = c.p
    p.I('s_waitcnt vmcnt(%d) lgkmcnt(0)\ns_barrier' % kw.pop('keep', 0)); p.cut()
    lab = p.label_name('L_arr')
    wave0(p, lab)
    do_arrive(c, kind, check_ready, **kw)
    p.label(lab); p.cut()

def wave_arrive(c, kind, check_ready=False, **kw):
    c.p.I('s_waitcnt vmcnt(0) lgkmcnt(0)'); c.p.cut()
    do_arrive(c, kind, check_ready, **kw)

def ready_check(c):
    p = c.p
    srd(p, 8, P_DBG, 256)
    lp = p.label_name('L_rdy'); dn = p.label_name('L_rdy_done')
    p.I('s_mov_b32 s77, 0\nv_mov_b32 v252, 0')
    p.label(lp)
    p.I('buffer_load_dword v253, v252, s[8:11], 0 offen sc1\ns_waitcnt vmcnt(0)\nv_readfirstlane_b32 s76, v253', nowait=True)
    p.I('s_nop 3\ns_cmp_lg_u32 s76, 0\ns_cbranch_scc1 %s\ns_sleep 2\ns_add_u32 s77, s77, 1\ns_cmp_lt_u32 s77, %d\ns_cbranch_scc1 %s' % (dn, SPIN_MAX, lp))
    p.label(dn); p.cut()

def wait_cnt(c, setup, nlanes):
    p = c.p
    lab = p.label_name('L_wt'); lp = p.label_name('L_poll')
    wave0(p, lab)
    setup(p)
    p.I('s_mov_b32 s77, 0')
    p.I('s_mov_b64 exec, 0x%x' % ((1 << nlanes) - 1))
    p.label(lp)
    p.I('buffer_load_dword v253, v252, s[%d:%d], 0 offen sc1\ns_waitcnt vmcnt(0)\nv_cmp_lt_u32 vcc, v253, v254' % (S_SYNC, S_SYNC + 3), nowait=True)
    p.I('s_add_u32 s77, s77, 1\ns_cmp_ge_u32 s77, %d\ns_cbranch_scc1 %s_x\ns_cbranch_vccz %s_x' % (SPIN_MAX, lp, lp))
    if SLEEP: p.I('s_sleep %d' % SLEEP)
    p.I('s_branch %s' % lp)
    p.label(lp + '_x')
    p.I('s_mov_b64 exec, -1')
    p.label(lab)
    p.I('s_barrier'); p.cut()

def monitor(c):
    p = c.p
    ready_check(c)
    p.I('v_mov_b32 v20, %d\nv_mov_b32 v21, 36' % (K_SH * LS))
    p.I('v_mul_u32_u24 v22, %d, v1\nv_add_u32 v20, v20, v22' % LS)
    p.I('v_subrev_u32 v23, 16, v1\nv_mul_u32_u24 v23, %d, v23\nv_add_u32 v23, %d, v23' % (LS, V_SH * LS))
    p.I('v_cmp_le_u32 vcc, 16, v1\nv_cndmask_b32 v20, v20, v23, vcc\nv_mov_b32 v24, 12\nv_cndmask_b32 v21, v21, v24, vcc')
    for lane, idx, tgt in ((32, M_CNT, 54), (33, A_CNT, 64), (34, B3_CNT, 63)):
        p.I('v_mov_b32 v23, %d\nv_mov_b32 v24, %d\nv_cmp_eq_u32 vcc, %d, v1\nv_cndmask_b32 v20, v20, v23, vcc\nv_cndmask_b32 v21, v21, v24, vcc' % (idx * LS, tgt, lane))
    p.I('s_mov_b32 s9, 0\ns_mov_b32 s10, 0\nv_mov_b32 v25, 1')
    lp = p.label_name('L_mon'); dn = p.label_name('L_mon_done')
    p.label(lp)
    p.I('s_mov_b64 exec, 0x3ffffffff' if False else 's_mov_b32 exec_lo, -1\ns_mov_b32 exec_hi, 7')
    p.I('buffer_load_dword v26, v20, s[%d:%d], 0 offen sc1\ns_waitcnt vmcnt(0)\nv_cmp_lt_u32 vcc, v26, v21' % (S_SYNC, S_SYNC + 3), nowait=True)
    p.I('s_nop 4\ns_mov_b64 s[6:7], vcc\ns_mov_b64 exec, 1')
    for bit, (expr, rel) in enumerate((('s_and_b32 s8, s6, 0xffff', K_REL), ('s_lshr_b32 s8, s6, 16', V_REL), ('s_and_b32 s8, s7, 1', M_REL), ('s_and_b32 s8, s7, 2', A_REL), ('s_and_b32 s8, s7, 4', B3_REL))):
        sk = p.label_name('L_ms')
        p.I('s_bitcmp1_b32 s9, %d\ns_cbranch_scc1 %s' % (bit, sk))
        p.I(expr)
        p.I('s_cmp_lg_u32 s8, 0\ns_cbranch_scc1 %s' % sk)
        p.I('v_mov_b32 v27, %d\nbuffer_store_dword v25, v27, s[%d:%d], 0 offen sc1\ns_bitset1_b32 s9, %d' % (rel * LS, S_SYNC, S_SYNC + 3, bit), nowait=True)
        p.label(sk)
    p.I('s_cmp_eq_u32 s9, 31\ns_cbranch_scc1 %s\ns_add_u32 s10, s10, 1\ns_cmp_lt_u32 s10, %d\ns_cbranch_scc1 %s' % (dn, SPIN_MAX, lp))
    p.label(dn)
    p.I('s_mov_b64 exec, -1\ns_waitcnt vmcnt(0)'); p.cut()

def wave_wait(c, *idx):
    p = c.p
    lp = p.label_name('L_ww')
    f, n = w_flags(*idx)
    f(p)
    p.I('s_mov_b32 s77, 0\ns_mov_b64 exec, 0x%x' % ((1 << n) - 1))
    p.label(lp)
    p.I('buffer_load_dword v253, v252, s[%d:%d], 0 offen sc1\ns_waitcnt vmcnt(0)\nv_cmp_lt_u32 vcc, v253, v254' % (S_SYNC, S_SYNC + 3), nowait=True)
    p.I('s_add_u32 s77, s77, 1\ns_cmp_ge_u32 s77, %d\ns_cbranch_scc1 %s_x\ns_cbranch_vccz %s_x\ns_sleep 1\ns_branch %s' % (SPIN_MAX, lp, lp, lp))
    p.label(lp + '_x')
    p.I('s_mov_b64 exec, -1'); p.cut()

def w_flags(*idx):
    def f(p):
        p.I('v_mov_b32 v252, %d\nv_mov_b32 v254, 1' % (idx[0] * LS))
        for k, i in enumerate(idx[1:]):
            p.I('v_mov_b32 v255, %d\nv_cmp_eq_u32 vcc, %d, v1\nv_cndmask_b32 v252, v252, v255, vcc' % (i * LS, k + 1))
    return f, len(idx)

def p0_kv(c, hook=None):
    p = c.p
    m9 = udiv_magic(9, 576)
    p.I('s_mul_i32 s4, s2, 3\ns_add_u32 s4, s4, s3')
    p.I('s_mul_i32 s5, s4, %d\ns_lshr_b32 s5, s5, 16' % m9)
    p.I('s_mul_i32 s6, s5, 9\ns_sub_u32 s6, s4, s6')
    srd(p, 48, P_K, L.S * 1152); srd(p, 52, P_V, L.S * 1152); srd(p, 56, P_SK, 4608)
    srd(p, 60, P_WS, L.D * 4096, off=L.XT)
    p.I('v_lshrrev_b32 v2, 3, v1\nv_and_b32 v3, 7, v1')
    p.I('s_lshl_b32 s7, s5, 5\nv_lshl_add_u32 v4, v2, 2, s7')
    p.I('s_lshl_b32 s8, s6, 7\nv_lshl_add_u32 v5, v3, 4, s8')
    p.I('s_movk_i32 s9, 1152\nv_mad_u32_u24 v6, v4, s9, v5')
    p.I('v_subrev_u32 v7, 3456, v6')
    KR, VR, SK = 8, 36, 52
    for i in range(3): p.I('buffer_load_dwordx4 %s, v7, s[48:51], 0 offen offset:%d' % (vr(KR + 4 * i, 4), 1152 * i))
    for i in range(4): p.I('buffer_load_dwordx4 %s, v6, s[48:51], 0 offen offset:%d' % (vr(KR + 4 * (3 + i), 4), 1152 * i))
    for i in range(4): p.I('buffer_load_dwordx4 %s, v6, s[52:55], 0 offen offset:%d' % (vr(VR + 4 * i, 4), 1152 * i))
    p.I('v_lshlrev_b32 v68, 2, v5')
    for i in range(4): p.I('buffer_load_dwordx4 %s, v68, s[56:59], 0 offen offset:%d' % (vr(SK + 4 * i, 4), 16 * i))
    p.I('v_lshlrev_b32 v69, 11, v5\nv_lshlrev_b32 v70, 1, v4\nv_sub_u32 v69, v69, v70\nv_add_u32 v69, 4088, v69')
    if hook: hook(c)
    p.I('s_mov_b32 s10, 0xffff0000')
    if os.environ.get('FINE2'):
        c.fine = True; c.stamp(12); p.I('s_waitcnt vmcnt(0)'); c.stamp(13); c.fine = False
    C, KP, VP, AC, OUT = 72, 80, 94, 102, 112
    for pr in range(4):
        a0, a1, b0, b1 = SK + 4 * pr, SK + 4 * pr + 1, SK + 4 * pr + 2, SK + 4 * pr + 3
        p.I('v_lshlrev_b32 v%d, 16, v%d\nv_lshlrev_b32 v%d, 16, v%d' % (C, a0, C + 1, b0))
        p.I('v_and_b32 v%d, s10, v%d\nv_and_b32 v%d, s10, v%d' % (C + 2, a0, C + 3, b0))
        p.I('v_lshlrev_b32 v%d, 16, v%d\nv_lshlrev_b32 v%d, 16, v%d' % (C + 4, a1, C + 5, b1))
        p.I('v_and_b32 v%d, s10, v%d\nv_and_b32 v%d, s10, v%d' % (C + 6, a1, C + 7, b1))
        for i in range(7):
            p.I('v_lshlrev_b32 v%d, 16, v%d\nv_and_b32 v%d, s10, v%d' % (KP + 2 * i, KR + 4 * i + pr, KP + 2 * i + 1, KR + 4 * i + pr))
        for t in range(4):
            p.I('v_lshlrev_b32 v%d, 16, v%d\nv_and_b32 v%d, s10, v%d' % (VP + 2 * t, VR + 4 * t + pr, VP + 2 * t + 1, VR + 4 * t + pr))
        for t in range(4):
            acc = vr(AC + 2 * t, 2)
            p.I('v_pk_mul_f32 %s, %s, %s' % (acc, vr(C + 6, 2), vr(KP + 2 * t, 2)))
            p.I('v_pk_fma_f32 %s, %s, %s, %s' % (acc, vr(C + 4, 2), vr(KP + 2 * (t + 1), 2), acc))
            p.I('v_pk_fma_f32 %s, %s, %s, %s' % (acc, vr(C + 2, 2), vr(KP + 2 * (t + 2), 2), acc))
            p.I('v_pk_fma_f32 %s, %s, %s, %s' % (acc, vr(C, 2), vr(KP + 2 * (t + 3), 2), acc))
            p.I('v_pk_mul_f32 %s, %s, %s' % (acc, acc, vr(VP + 2 * t, 2)))
        o = OUT + 4 * pr
        p.I('v_cvt_pk_bf16_f32 v%d, v%d, v%d' % (o, AC + 6, AC + 4))
        p.I('v_cvt_pk_bf16_f32 v%d, v%d, v%d' % (o + 1, AC + 2, AC + 0))
        p.I('v_cvt_pk_bf16_f32 v%d, v%d, v%d' % (o + 2, AC + 7, AC + 5))
        p.I('v_cvt_pk_bf16_f32 v%d, v%d, v%d' % (o + 3, AC + 3, AC + 1))
        for h in range(2):
            p.I('s_mov_b32 s11, %d' % (4096 * (2 * pr + h)))
            p.I('buffer_store_dwordx2 %s, v69, s[60:63], s11 offen%s' % (vr(o + 2 * h, 2), c.sc))

KCS8 = 8 * KCOPY
XR8 = 3 * KCS8
RED8 = XR8 + 3 * XR_STRIDE

def p1_kcopies(c):
    p = c.p
    p.I('s_mul_i32 s4, s2, %d' % (3 * 4096))
    for ch in range(3):
        p.I('s_add_u32 s5, s4, %d' % (4096 * ch))
        srd(p, 48 + 4 * ch, P_SSMK, 4096, soff=5)
    NR = 5
    D = 16
    p.I('v_lshlrev_b32 v2, 4, v1\nv_subrev_u32 v3, 128, v2')
    for ch in range(3):
        for rd in range(NR):
            r = D + 8 * (ch * NR + rd)
            if rd == 0:
                p.I('buffer_load_dwordx4 %s, v3, s[%d:%d], 0 offen' % (vr(r, 4), 48 + 4 * ch, 51 + 4 * ch))
                p.I('v_subrev_u32 v4, 112, v2\nbuffer_load_dwordx4 %s, v4, s[%d:%d], 0 offen' % (vr(r + 4, 4), 48 + 4 * ch, 51 + 4 * ch))
            else:
                p.I('v_add_u32 v4, %d, v2' % (1024 * rd - 128))
                p.I('buffer_load_dwordx4 %s, v4, s[%d:%d], 0 offen' % (vr(r, 4), 48 + 4 * ch, 51 + 4 * ch))
                p.I('buffer_load_dwordx4 %s, v4, s[%d:%d], 0 offen offset:16' % (vr(r + 4, 4), 48 + 4 * ch, 51 + 4 * ch))
    p.I('v_mov_b32 v8, 0\nv_mov_b32 v9, 0\nv_mov_b32 v10, 0\nv_mov_b32 v11, 0')
    p.I('v_lshrrev_b32 v5, 4, v1\nv_and_b32 v6, 15, v1\nv_mul_u32_u24 v5, 48, v5\nv_add_u32 v5, v5, v6\nv_lshlrev_b32 v5, 4, v5\nv_add_u32 v5, %d, v5' % (XR8 + 32 * 16))
    for ch in range(3):
        p.I('ds_write_b128 v5, v[8:11] offset:%d\nds_write_b128 v5, v[8:11] offset:%d' % (ch * XR_STRIDE, ch * XR_STRIDE + 4 * 48 * 16))
    p.I('v_add_u32 v12, %d, v2\nv_add_u32 v13, %d, v2' % (KCS8, 2 * KCS8))
    T = 140
    for ch in range(3):
        va = (2, 12, 13)[ch]
        for rd in range(NR):
            r = D + 8 * (ch * NR + rd)
            t = T + 16 * ((ch * NR + rd) % 2)
            off = 1024 * rd
            if rd == NR - 1: p.I('s_mov_b64 exec, 0xfffff')
            for k in range(4): p.I('v_alignbit_b32 v%d, v%d, v%d, 16' % (t + k, r + k + 1, r + k))
            for k in range(4): p.I('v_mov_b32 v%d, v%d' % (t + 4 + k, r + k + 1))
            for k in range(4): p.I('v_alignbit_b32 v%d, v%d, v%d, 16' % (t + 8 + k, r + k + 2, r + k + 1))
            p.I('ds_write_b128 v%d, %s offset:%d' % (va, vr(t, 4), off))
            p.I('ds_write_b128 v%d, %s offset:%d' % (va, vr(t + 4, 4), off + KCOPY))
            p.I('ds_write_b128 v%d, %s offset:%d' % (va, vr(t + 8, 4), off + 2 * KCOPY))
            p.I('ds_write_b128 v%d, %s offset:%d' % (va, vr(r + 2, 4), off + 3 * KCOPY))
            for k in range(4): p.I('v_alignbit_b32 v%d, v%d, v%d, 16' % (t + 12 + k, r + k + 3, r + k + 2))
            p.I('ds_write_b128 v%d, %s offset:%d' % (va, vr(t + 12, 4), off + 4 * KCOPY))
            u = 172 if False else None
            for k in range(4): p.I('v_mov_b32 v%d, v%d' % (t + k, r + k + 3))
            for k in range(4): p.I('v_alignbit_b32 v%d, v%d, v%d, 16' % (t + 4 + k, r + k + 4, r + k + 3))
            p.I('ds_write_b128 v%d, %s offset:%d' % (va, vr(t, 4), off + 5 * KCOPY))
            p.I('ds_write_b128 v%d, %s offset:%d' % (va, vr(t + 4, 4), off + 6 * KCOPY))
            p.I('ds_write_b128 v%d, %s offset:%d' % (va, vr(r + 4, 4), off + 7 * KCOPY))
            if rd == NR - 1: p.I('s_mov_b64 exec, -1')

def p1_main(c):
    p = c.p
    srd(p, 48, P_WS, L.D * 4096, off=L.XT); srd(p, 52, P_WS, L.D * 4096, off=L.ZT)
    p.I('s_mul_i32 s4, s2, %d\ns_lshl_b32 s5, s3, 10\ns_add_u32 s5, s5, s4\nv_lshl_add_u32 v2, v1, 4, s5' % (3 * 4096))
    for ch in range(3):
        p.I('s_movk_i32 s6, %d\nbuffer_load_dwordx4 %s, v2, s[48:51], s6 offen%s' % (4096 * ch, vr(8 + 4 * ch, 4), c.sc))
    srd(p, 60, P_SSMD, 1152)
    p.I('s_mul_i32 s8, s2, 3\ns_min_u32 s9, s3, 2\ns_add_u32 s8, s8, s9\ns_lshl_b32 s8, s8, 1\nv_mov_b32 v20, s8')
    p.I('buffer_load_ushort v23, v20, s[60:63], 0 offen')
    p.I('v_and_b32 v3, 7, v1\nv_mul_u32_u24 v3, 48, v3\nv_lshrrev_b32 v4, 3, v1\nv_add_u32 v3, v3, v4\ns_lshl_b32 s6, s3, 3\nv_add_u32 v3, s6, v3\nv_lshlrev_b32 v3, 4, v3\nv_add_u32 v3, %d, v3' % XR8)
    VA0, VB0, VA, VB = 24, 25, 26, 27
    p.I('v_and_b32 v4, 7, v1\nv_mul_u32_u24 v4, %d, v4\nv_lshrrev_b32 v5, 4, v1\nv_bfe_u32 v6, v1, 3, 1\nv_add_u32 v6, v6, v5\nv_lshl_add_u32 v%d, v6, 4, v4' % (KCOPY, VA0))
    p.I('v_mul_u32_u24 v4, 48, v5\nv_and_b32 v6, 15, v1\nv_sub_u32 v4, v4, v6\nv_add_u32 v4, 15, v4\nv_lshlrev_b32 v%d, 4, v4' % VB0)
    wg_rb_ns(p)
    wfrag_setup(c, L.W1T, 64, 160)
    for ch in range(3):
        p.I('ds_write_b128 v3, %s offset:%d' % (vr(8 + 4 * ch, 4), ch * XR_STRIDE))
    p.I('v_lshlrev_b32 v23, 16, v23')
    p.I('s_waitcnt lgkmcnt(0)\ns_barrier')
    p.cut()
    c.stamp(3)
    AS, BS1, BS0, ACC1, ACC0 = 32, 96, 112, 128, 144
    DIST = 4
    w1 = [(e, ks) for ks in range(18) for e in range(3)]
    def w1_load():
        if not w1: return
        e, ks = w1.pop(0)
        if ks % 4 == 0 and ks > 0: p.I('v_add_u32 v%d, 4096, v%d' % (160 + e, 160 + e))
        p.I('buffer_load_dwordx4 %s, v%d, s[64:67], 0 offen offset:%d%s' % (ar(4 * (e * 18 + ks), 4), 160 + e, 1024 * (ks % 4), c.sc))
    def ldA(k, rel):
        r = AS + 8 * (k % 8)
        for f in range(2): p.I('ds_read_b128 %s, v%d offset:%d' % (vr(r + 4 * f, 4), VA, 64 * rel + 32 * f))
    def ldB(base, q, ct):
        p.I('ds_read_b128 %s, v%d offset:%d' % (vr(base + 4 * (q % 4), 4), VB, ((q & 1) * 4 * 48 + (q >> 1) + 16 * (1 - ct)) * 16))
    def segment(q0, q1, cts, every):
        act = lambda q: [x for x in cts if x[1] <= q < x[2]]
        for k in range(q0, q0 + DIST + 1): ldA(k, k)
        for q in range(q0, q0 + DIST):
            for ct, a0, a1, acc, bs in act(q): ldB(bs, q, ct)
        cnt = 0
        for q in range(q0, q1):
            for idx, (ct, a0, a1, acc, bs) in enumerate(act(q)):
                for rt in range(4):
                    a = AS + 8 * ((q + rt // 2) % 8) + 4 * (rt % 2)
                    p.I('v_mfma_f32_16x16x32_bf16 %s, %s, %s, %s' % (vr(acc + 4 * rt, 4), vr(a, 4), vr(bs + 4 * (q % 4), 4), '0' if q == a0 else vr(acc + 4 * rt, 4)))
                    if idx == 0 and rt == 0 and q + DIST + 1 <= q1: ldA(q + DIST + 1, q + DIST + 1)
                    if rt == 3 and q + DIST < a1: ldB(bs, q + DIST, ct)
            cnt += 1
            if cnt % every == 0: w1_load()
    lw3 = p.label_name('L_cw3'); lj = p.label_name('L_cj')
    p.I('s_cmp_eq_u32 s3, 3\ns_cbranch_scc1 %s' % lw3)
    p.I('s_mul_i32 s14, s3, %d\nv_add_u32 v%d, s14, v%d\ns_mul_i32 s14, s3, %d\ns_add_u32 s14, s14, %d\nv_add_u32 v%d, s14, v%d' % (KCS8, VA, VA0, XR_STRIDE, XR8, VB, VB0))
    segment(0, 64, [(1, 0, 64, ACC1, BS1), (0, 0, 8, ACC0, BS0)], 1)
    while w1: w1_load()
    p.I('s_branch %s' % lj); p.cut()
    p.label(lw3)
    w1[:] = [(e, ks) for ks in range(18) for e in range(3)]
    for ch in range(3):
        p.I('v_add_u32 v%d, %d, v%d\nv_add_u32 v%d, %d, v%d' % (VA, ch * KCS8, VA0, VB, XR8 + ch * XR_STRIDE, VB0))
        segment(8, 32, [(0, 8, 32, ACC0 if ch % 2 == 0 else ACC1, BS0)], 1)
        acc = ACC0 if ch % 2 == 0 else ACC1
        p.I('v_lshlrev_b32 v2, 4, v1\nv_add_u32 v2, %d, v2' % (RED8 + 4096 * ch))
        for rt in range(4): p.I('ds_write_b128 v2, %s offset:%d' % (vr(acc + 4 * rt, 4), 1024 * rt))
    while w1: w1_load()
    p.label(lj)
    p.I('s_waitcnt lgkmcnt(0)\ns_barrier')
    p.cut()
    c.stamp(4)
    done = p.label_name('L_conv_done')
    p.I('s_cmp_eq_u32 s3, 3\ns_cbranch_scc1 %s' % done)
    p.I('s_lshl_b32 s14, s3, 12\ns_add_u32 s14, s14, %d\nv_lshl_add_u32 v2, v1, 4, s14' % RED8)
    T = 32
    for rt in range(4): p.I('ds_read_b128 %s, v2 offset:%d' % (vr(T + 4 * rt, 4), 1024 * rt))
    p.I('v_lshrrev_b32 v5, 5, v1\nv_sub_u32 v5, 1, v5\nv_mul_u32_u24 v5, 48, v5\nv_and_b32 v6, 15, v1\nv_sub_u32 v5, v5, v6\nv_add_u32 v5, 15, v5\nv_lshlrev_b32 v5, 4, v5')
    p.I('v_bfe_u32 v6, v1, 4, 1\nv_sub_u32 v6, 1, v6\nv_lshl_add_u32 v5, v6, 3, v5')
    p.I('s_mul_i32 s14, s3, %d\ns_add_u32 s14, s14, %d\nv_add_u32 v5, s14, v5' % (XR_STRIDE, XR8))
    X = 48
    for ct in range(2):
        for rt in range(4):
            p.I('ds_read_b64 %s, v5 offset:%d' % (vr(X + 8 * ct + 2 * rt, 2), (2 * (3 - rt) * 48 + 16 * (1 - ct)) * 16))
    for i in range(16): p.I('v_add_f32 v%d, v%d, v%d' % (ACC0 + i, ACC0 + i, T + i))
    p.I('s_mul_i32 s14, s2, 3\ns_add_u32 s14, s14, s3\ns_lshl_b32 s14, s14, 12')
    p.I('v_and_b32 v6, 15, v1\nv_lshl_add_u32 v6, v6, 7, s14\nv_lshrrev_b32 v7, 5, v1\nv_lshl_add_u32 v6, v7, 4, v6\nv_bfe_u32 v7, v1, 4, 1\nv_lshl_add_u32 v6, v7, 5, v6')
    p.I('s_mov_b32 s10, 0xffff0000')
    Z, U = 64, 80
    for ct in range(2):
        src = ACC0 if ct == 0 else ACC1
        for rt in range(4):
            x0, x1 = X + 8 * ct + 2 * rt, X + 8 * ct + 2 * rt + 1
            a = src + 4 * rt
            p.I('v_and_b32 v%d, s10, v%d\nv_lshlrev_b32 v%d, 16, v%d\nv_and_b32 v%d, s10, v%d\nv_lshlrev_b32 v%d, 16, v%d' % (U, x1, U + 1, x1, U + 2, x0, U + 3, x0))
            for r in range(4): p.I('v_fmac_f32 v%d, v23, v%d' % (a + r, U + r))
            zb = Z + 8 * ct + 4 * (rt // 2) + 2 * (rt % 2)
            p.I('v_cvt_pk_bf16_f32 v%d, v%d, v%d\nv_cvt_pk_bf16_f32 v%d, v%d, v%d' % (zb, a, a + 1, zb + 1, a + 2, a + 3))
        for k in range(2):
            zb = Z + 8 * ct + 4 * k
            p.I('v_permlane16_swap_b32 v%d, v%d\nv_permlane16_swap_b32 v%d, v%d' % (zb, zb + 2, zb + 1, zb + 3))
            p.I('buffer_store_dwordx4 %s, v6, s[52:55], 0 offen offset:%d%s' % (vr(zb, 4), 64 * k + 2048 * ct, c.sc))
    p.label(done)

MODW = 100
def p0_mod_loads(c, wg0):
    p = c.p
    p.I('s_sub_u32 s4, s2, %d' % wg0)
    srd(p, 8, P_C, 1152); srd(p, 52, P_WMOD, 576 * 6912)
    p.I('v_lshlrev_b32 v2, 1, v0')
    for i in range(3): p.I('buffer_load_ushort v%d, v2, s[8:11], 0 offen offset:%d' % (172 + i, 512 * i))
    p.I('v_lshrrev_b32 v8, 3, v0\nv_and_b32 v9, 7, v0')
    p.I('s_lshl_b32 s6, s4, 7\nv_lshl_add_u32 v10, v9, 4, s6\ns_movk_i32 s7, 6912\nv_mad_u32_u24 v10, v8, s7, v10')
    for i in range(18):
        p.I('buffer_load_dwordx4 %s, v10, s[52:55], 0 offen' % vr(MODW + 4 * i, 4))
        if i < 17: p.I('v_add_u32 v10, %d, v10' % (32 * 6912))

MODL = 131072
def p0_mod_compute(c, wg0):
    p = c.p
    W = MODW
    p.I('s_sub_u32 s4, s2, %d' % wg0)
    srd(p, 52, P_WS, 6 * 576 * 4, off=L.MOD)
    p.I('v_lshrrev_b32 v8, 3, v0\nv_and_b32 v9, 7, v0')
    p.I('s_mov_b32 s8, 0x%x' % f2u(-LOG2E))
    p.I('v_lshlrev_b32 v12, 2, v0\nv_add_u32 v12, %d, v12' % MODL)
    for i in range(3):
        r = 172 + i
        p.I('v_lshlrev_b32 v%d, 16, v%d' % (r, r))
        p.I('v_mul_f32 v13, s8, v%d\nv_exp_f32 v13, v13\nv_add_f32 v13, 1.0, v13\nv_rcp_f32 v13, v13\nv_mul_f32 v13, v%d, v13' % (r, r))
        bf16_round(p, 13, 13)
        p.I('ds_write_b32 v12, v13 offset:%d' % (1024 * i))
    p.I('s_waitcnt lgkmcnt(0)\ns_barrier')
    p.I('v_lshlrev_b32 v14, 2, v8\nv_add_u32 v14, %d, v14' % MODL)
    SV = 40
    for i in range(18): p.I('ds_read_b32 v%d, v14 offset:%d' % (SV + i, 128 * i))
    AC, T = 16, 24
    p.I('s_mov_b32 s10, 0xffff0000')
    for i in range(18):
        for d in range(4): unpack(p, T + 2 * d, W + 4 * i + d, 10)
        for d in range(4):
            sv = vr((SV + i) & ~1, 2)
            mods = 'op_sel_hi:[1,0,1]' if i % 2 == 0 else 'op_sel:[0,1,0] op_sel_hi:[1,1,1]'
            if i == 0: p.I('v_pk_mul_f32 %s, %s, %s op_sel_hi:[1,0]' % (vr(AC + 2 * d, 2), vr(T + 2 * d, 2), sv))
            else: p.I('v_pk_fma_f32 %s, %s, %s, %s %s' % (vr(AC + 2 * d, 2), vr(T + 2 * d, 2), sv, vr(AC + 2 * d, 2), mods))
    p.I('v_lshlrev_b32 v15, 8, v8\nv_lshl_add_u32 v15, v9, 5, v15\nv_add_u32 v15, %d, v15' % MODL)
    p.I('ds_write_b128 v15, %s offset:4096\nds_write_b128 v15, %s offset:4112' % (vr(AC, 4), vr(AC + 4, 4)))
    p.I('s_waitcnt lgkmcnt(0)\ns_barrier')
    lab = p.label_name('L_mod_skip')
    wave0(p, lab)
    p.I('v_lshlrev_b32 v14, 2, v0\nv_add_u32 v14, %d, v14' % MODL)
    W2_ = 40
    for i in range(32): p.I('ds_read_b32 v%d, v14 offset:%d' % (W2_ + i, 4096 + 256 * i))
    n = 32
    while n > 1:
        n //= 2
        for i in range(n): p.I('v_add_f32 v%d, v%d, v%d' % (W2_ + i, W2_ + i, W2_ + i + n))
    p.I('v_mov_b32 v16, v%d' % W2_)
    bf16_round(p, 16, 16)
    m9 = udiv_magic(9, 64)
    p.I('s_mul_i32 s9, s4, %d\ns_lshr_b32 s9, s9, 16' % m9)
    p.I('s_cmp_eq_u32 s9, 1\ns_cselect_b32 s11, 1, 0\ns_cmp_eq_u32 s9, 4\ns_cselect_b32 s11, 1, s11')
    p.I('v_cvt_f32_u32 v17, s11\nv_add_f32 v16, v16, v17')
    bf16_round(p, 16, 16)
    p.I('s_lshl_b32 s6, s4, 8\nv_lshl_add_u32 v18, v0, 2, s6')
    p.I('buffer_store_dword v16, v18, s[52:55], 0 offen%s' % c.sc)
    p.label(lab); p.cut()

PT_NB = 4
def pt_setup(c):
    p = c.p
    p.I('v_lshrrev_b32 v2, 3, v1\nv_and_b32 v3, 7, v1\nv_lshlrev_b32 v3, 4, v3')
    p.I('v_lshrrev_b32 v4, 4, v1\nv_bfe_u32 v5, v1, 2, 2\nv_and_b32 v9, 3, v1')
    p.I('v_lshl_add_u32 v6, v4, 3, v5\nv_lshlrev_b32 v6, 7, v6\nv_lshl_add_u32 v6, v9, 3, v6')
    p.I('v_lshl_add_u32 v7, v4, 2, v5\nv_lshlrev_b32 v7, 7, v7\nv_lshl_add_u32 v7, v9, 5, v7')
    p.I('v_lshlrev_b32 v8, 4, v1')
    p.I('s_mul_i32 s96, s3, %d' % (PT_NB * 4096))
    srd(p, 48, P_W1, 576 * 1152); srd(p, 52, P_W2, 576 * 1152); srd(p, 56, P_W3, 576 * 9216); srd(p, 60, P_W4, 4608 * 1152)
    srd(p, 68, P_WS, L.W34T + 32 * 324 * 1024 - L.W1T, off=L.W1T)

def pt_src(c, su, mode):
    p = c.p
    if mode == '12':
        p.I('s_cmp_ge_u32 s%d, 162\ns_cselect_b32 s15, 1, 0\ns_cselect_b32 s7, 162, 0\ns_sub_u32 s7, s%d, s7' % (su, su))
        p.I('s_mul_i32 s8, s7, %d\ns_lshr_b32 s8, s8, 16\ns_mul_i32 s9, s8, 9\ns_sub_u32 s9, s7, s9' % udiv_magic(9, 600))
        p.I('s_movk_i32 s11, 1152')
        p.I('s_cmp_eq_u32 s15, 1')
        for k in range(4): p.I('s_cselect_b32 s%d, s%d, s%d' % (64 + k, 52 + k, 48 + k))
        lim = 324
    else:
        p.I('s_cmp_ge_u32 s%d, 1296\ns_cselect_b32 s15, 1, 0\ns_cselect_b32 s7, 1296, 0\ns_sub_u32 s7, s%d, s7' % (su, su))
        p.I('s_mul_i32 s8, s7, %d\ns_lshr_b32 s8, s8, 20\ns_mul_i32 s12, s7, %d\ns_lshr_b32 s12, s12, 20' % (udiv_magic(72, 2600, 20), udiv_magic(9, 2600, 20)))
        p.I('s_cmp_eq_u32 s15, 1\ns_cselect_b32 s8, s12, s8\ns_cselect_b32 s12, 9, 72\ns_movk_i32 s11, 9216\ns_cselect_b32 s11, 1152, s11')
        for k in range(4): p.I('s_cselect_b32 s%d, s%d, s%d' % (64 + k, 60 + k, 56 + k))
        p.I('s_mul_i32 s9, s8, s12\ns_sub_u32 s9, s7, s9')
        lim = 2592
    p.I('s_mul_i32 s10, s8, s11\ns_lshl_b32 s10, s10, 5\ns_lshl_b32 s12, s9, 7\ns_add_u32 s10, s10, s12')
    p.I('s_cmp_ge_u32 s%d, %d\ns_cselect_b32 s10, 0x7f000000, s10' % (su, lim))

def pt_dst(c, su, mode):
    p = c.p
    m18 = udiv_magic(18, 300)
    if mode == '12':
        p.I('s_mul_i32 s12, s9, %d\ns_lshl_b32 s13, s8, 10\ns_add_u32 s12, s12, s13\ns_mul_i32 s13, s15, %d\ns_add_u32 s12, s12, s13' % (4 * 18 * 1024, L.W2T - L.W1T))
        for j in range(4): p.I('s_add_u32 s%d, s12, %d' % (80 + j, j * 18 * 1024))
        lim = 324
    else:
        w4 = p.label_name('L_d4'); dn = p.label_name('L_dd')
        p.I('s_cmp_eq_u32 s15, 1\ns_cbranch_scc1 %s' % w4)
        for j in range(4):
            p.I('s_lshl_b32 s12, s9, 2\ns_add_u32 s12, s12, %d' % j)
            p.I('s_mul_i32 s13, s12, %d\ns_lshr_b32 s13, s13, 16\ns_mul_i32 s14, s13, 36\ns_sub_u32 s12, s12, s14' % udiv_magic(36, 300))
            p.I('s_mul_i32 s14, s12, %d\ns_lshr_b32 s14, s14, 16\ns_mul_i32 s84, s14, 12\ns_sub_u32 s12, s12, s84' % udiv_magic(12, 40))
            p.I('s_mul_i32 s84, s12, %d\ns_lshr_b32 s84, s84, 16\ns_mul_i32 s85, s84, 3\ns_sub_u32 s12, s12, s85' % udiv_magic(3, 16))
            p.I('s_lshl_b32 s13, s13, 2\ns_add_u32 s13, s13, s84\ns_mul_i32 s13, s13, 324\ns_mul_i32 s14, s14, 54\ns_add_u32 s13, s13, s14\ns_mul_i32 s14, s8, 3\ns_add_u32 s13, s13, s14\ns_add_u32 s13, s13, s12\ns_lshl_b32 s13, s13, 10\ns_add_u32 s%d, s13, %d' % (80 + j, L.W34T - L.W1T))
        p.I('s_branch %s' % dn)
        p.label(w4)
        p.I('s_mul_i32 s12, s8, %d\ns_lshr_b32 s12, s12, 16\ns_mul_i32 s13, s12, 18\ns_sub_u32 s13, s8, s13' % m18)
        for j in range(4):
            p.I('s_and_b32 s14, s9, 3\ns_lshl_b32 s84, s13, 2\ns_add_u32 s84, s84, %d' % (162 + j))
            p.I('s_cmp_ge_u32 s9, 4\ns_cselect_b32 s85, 72, 0\ns_add_u32 s84, s84, s85')
            p.I('s_add_u32 s85, s13, 306\ns_cmp_eq_u32 s9, 8\ns_cselect_b32 s84, s85, s84\ns_cselect_b32 s14, %d, s14' % j)
            p.I('s_lshl_b32 s85, s12, 2\ns_add_u32 s85, s85, s14\ns_mul_i32 s85, s85, 324\ns_add_u32 s85, s85, s84\ns_lshl_b32 s85, s85, 10\ns_add_u32 s%d, s85, %d' % (80 + j, L.W34T - L.W1T))
        p.label(dn)
        lim = 2592
    p.I('s_cmp_ge_u32 s%d, %d' % (su, lim))
    for j in range(4): p.I('s_cselect_b32 s%d, 0x7f000000, s%d' % (80 + j, 80 + j))

def pt_issue(c, sbuf):
    p = c.p
    p.I('v_mad_u32_u24 v9, v2, s11, v3\nv_add_u32 v9, s10, v9\ns_lshl_b32 s12, s11, 3')
    for q in range(4):
        p.I('s_add_u32 m0, s%d, %d' % (sbuf, q * 1024))
        if q: p.I('v_add_u32 v9, s12, v9')
        p.I('buffer_load_dwordx4 v9, s[64:67], 0 offen lds', nowait=True)

def pt_process(c, sbuf, mode):
    p = c.p
    R = 16
    def reads(va, jstride, second):
        p.I('v_add_u32 v10, s%d, v%d' % (sbuf, va))
        for j in range(4):
            p.I('ds_read_b64_tr_b16 %s, v10 offset:%d' % (vr(R + 4 * j, 2), j * jstride))
            p.I('ds_read_b64_tr_b16 %s, v10 offset:%d' % (vr(R + 4 * j + 2, 2), j * jstride + second))
    if mode == '12': reads(6, 32, 512)
    else:
        lb = p.label_name('L_kb'); le = p.label_name('L_ke')
        p.I('s_cmp_eq_u32 s15, 1\ns_cbranch_scc1 %s' % lb)
        reads(6, 32, 512)
        p.I('s_branch %s' % le)
        p.label(lb)
        reads(7, 8, 2048)
        p.label(le)
    p.I('s_waitcnt lgkmcnt(0)');
    for j in range(4):
        p.I('v_add_u32 v11, s%d, v8' % (80 + j))
        if os.environ.get('NOST'): continue
        p.I('buffer_store_dwordx4 %s, v11, s[68:71], 0 offen%s' % (vr(R + 4 * j, 4), '' if os.environ.get('PLAINST') else c.sc), nowait=True)

def pretile(c, mode, su0):
    p = c.p
    p.comment('---- pretile %s' % mode)
    lim = 324 if mode == '12' else 2592
    p.I('s_mov_b32 s86, s%d\ns_mov_b32 s87, s%d\ns_mov_b32 s88, s96\ns_mov_b32 s89, s96\ns_add_u32 s90, s96, %d' % (su0, su0, PT_NB * 4096))
    def adv(r): p.I('s_add_u32 s%d, s%d, 4096\ns_cmp_ge_u32 s%d, s90\ns_cselect_b32 s%d, s96, s%d' % (r, r, r, r, r))
    for k in range(PT_NB - 1):
        pt_src(c, 86, mode); pt_issue(c, 88); adv(88); p.I('s_add_u32 s86, s86, 256')
    loop = p.label_name('L_pt'); done = p.label_name('L_pt_done')
    first = True
    p.label(loop)
    p.I('s_cmp_ge_u32 s87, %d\ns_cbranch_scc1 %s' % (lim, done))
    pt_src(c, 86, mode); pt_issue(c, 88); adv(88); p.I('s_add_u32 s86, s86, 256')
    p.I('s_waitcnt vmcnt(%d)' % (4 * (PT_NB - 1)))
    pt_src(c, 87, mode); pt_dst(c, 87, mode)
    pt_process(c, 89, mode); adv(89); p.I('s_add_u32 s87, s87, 256')
    p.I('s_branch %s' % loop)
    p.label(done); p.cut()
    p.I('s_waitcnt vmcnt(0)')

def ln_stats(p, X, ntok, nj, ST, red, stride=2):
    for j in range(nj):
        for i in range(ntok):
            x = vr(X + (i * nj + j) * stride, 2)
            if j == 0:
                p.I('v_pk_mul_f32 %s, %s, %s' % (vr(ST + 4 * i + 2, 2), x, x))
            else:
                p.I('v_pk_fma_f32 %s, %s, %s, %s' % (vr(ST + 4 * i + 2, 2), x, x, vr(ST + 4 * i + 2, 2)))
            if j == 1:
                p.I('v_pk_add_f32 %s, %s, %s' % (vr(ST + 4 * i, 2), vr(X + (i * nj) * stride, 2), x))
            elif j > 1:
                p.I('v_pk_add_f32 %s, %s, %s' % (vr(ST + 4 * i, 2), vr(ST + 4 * i, 2), x))
    for i in range(ntok):
        p.I('v_add_f32 v%d, v%d, v%d\nv_add_f32 v%d, v%d, v%d' % (ST + 4 * i, ST + 4 * i, ST + 4 * i + 1, ST + 4 * i + 2, ST + 4 * i + 2, ST + 4 * i + 3))
    red([ST + 4 * i for i in range(ntok)] + [ST + 4 * i + 2 for i in range(ntok)])
    for i in range(ntok):
        a = ST + 4 * i
        p.I('v_mul_f32 v%d, s98, v%d\nv_mul_f32 v%d, s98, v%d' % (a, a, a + 2, a + 2))
    for i in range(ntok):
        a = ST + 4 * i
        p.I('v_fma_f32 v%d, -v%d, v%d, v%d' % (a + 2, a, a, a + 2))
    for i in range(ntok):
        a = ST + 4 * i
        p.I('v_max_f32 v%d, 0, v%d' % (a + 2, a + 2))
    for i in range(ntok):
        a = ST + 4 * i
        p.I('v_add_f32 v%d, s97, v%d' % (a + 2, a + 2))
    for i in range(ntok):
        a = ST + 4 * i
        p.I('v_rsq_f32 v%d, v%d' % (a + 2, a + 2))
    for i in range(ntok):
        a = ST + 4 * i
        p.I('v_mul_f32 v%d, -v%d, v%d' % (a + 1, a, a + 2))
    for i in range(ntok):
        a = ST + 4 * i
        p.I('v_mov_b32 v%d, v%d' % (a, a + 2))

def ln_apply(p, dst, src, P):
    p.I('v_pk_fma_f32 %s, %s, %s, %s op_sel:[0,0,1] op_sel_hi:[1,0,1]' % (vr(dst, 2), vr(src, 2), vr(P, 2), vr(P, 2)))

def gemm_small2(c, lds_base, abase, ACC, BF, after_ks=None):
    p = c.p
    p.I('v_and_b32 v2, 15, v1\nv_lshrrev_b32 v8, 4, v1\nv_xor_b32 v2, v2, v8\nv_lshl_add_u32 v2, v8, 4, v2\nv_lshlrev_b32 v2, 4, v2\nv_add_u32 v2, %d, v2' % lds_base)
    def ldb(ks):
        for tt in range(2):
            p.I('ds_read_b128 %s, v2 offset:%d' % (vr(BF + 8 * (ks % 3) + 4 * tt, 4), (ks * 2 + tt) * 1024))
    ldb(0); ldb(1)
    for ks in range(18):
        if ks + 2 < 18: ldb(ks + 2)
        for e in range(3):
            for tt in range(2):
                a = ACC + 4 * (e * 2 + tt)
                p.I('v_mfma_f32_16x16x32_bf16 %s, %s, %s, %s' % (vr(a, 4), ar(abase + 4 * (e * 18 + ks), 4), vr(BF + 8 * (ks % 3) + 4 * tt, 4), '0' if ks == 0 else vr(a, 4)))
        if after_ks: after_ks(ks)

def wfrag_setup(c, wsoff, srdslot, vaddr):
    p = c.p
    srd(p, srdslot, P_WS, 36 * 18 * 1024, off=wsoff)
    p.I('s_mul_i32 s6, s5, 12\ns_mul_i32 s7, s3, 3\ns_add_u32 s6, s6, s7\ns_mul_i32 s6, s6, %d' % (18 * 1024))
    p.I('v_lshl_add_u32 v%d, v1, 4, s6\nv_add_u32 v%d, %d, v%d\nv_add_u32 v%d, %d, v%d' % (vaddr, vaddr + 1, 18 * 1024, vaddr, vaddr + 2, 36 * 1024, vaddr))

def wfrag_load(c, srdslot, vaddr, abase, ks):
    p = c.p
    for e in range(3):
        if ks % 4 == 0 and ks > 0: p.I('v_add_u32 v%d, 4096, v%d' % (vaddr + e, vaddr + e))
        p.I('buffer_load_dwordx4 %s, v%d, s[%d:%d], 0 offen offset:%d%s' % (ar(abase + 4 * (e * 18 + ks), 4), vaddr + e, srdslot, srdslot + 3, 1024 * (ks % 4), c.sc))

ZS_BASE, A1_BASE = 0, 36864
XF, GH, CB, SB, TM, ST2 = 16, 88, 160, 178, 196, 232

def wg_rb_ns(p):
    m3 = udiv_magic(3, 256)
    p.I('s_lshr_b32 s5, s2, 3\ns_mul_i32 s4, s5, %d\ns_lshr_b32 s4, s4, 16\ns_mul_i32 s6, s4, 3\ns_sub_u32 s5, s5, s6\ns_and_b32 s6, s2, 7\ns_lshl_b32 s6, s6, 3\ns_add_u32 s4, s4, s6' % m3)

def load_wfrags(c, wsoff, abase):
    p = c.p
    srd(p, 64, P_WS, 36 * 18 * 1024, off=wsoff)
    p.I('s_mul_i32 s6, s5, 12\ns_mul_i32 s7, s3, 3\ns_add_u32 s6, s6, s7\ns_mul_i32 s6, s6, %d' % (18 * 1024))
    p.I('v_lshl_add_u32 v2, v1, 4, s6')
    for e in range(3):
        for ks in range(18):
            idx = e * 18 + ks
            if idx % 4 == 0 and idx > 0: p.I('v_add_u32 v2, 4096, v2')
            p.I('buffer_load_dwordx4 %s, v2, s[64:67], 0 offen offset:%d%s' % (ar(abase + 4 * idx, 4), 1024 * (idx % 4), c.sc))

def red32(p, tmp):
    return lambda regs: reduce32(p, regs, tmp)

XP, P0S = 180, 216
PRM_BASE = 73728
HPL_BASE, HPL_RS = 86016, 400

def p2_xload(c):
    p = c.p
    wg_rb_ns(p)
    srd(p, 68, P_Q, L.S * 1152)
    p.I('v_lshrrev_b32 v172, 5, v1\nv_and_b32 v173, 31, v1')
    p.I('s_lshl_b32 s6, s4, 5\ns_lshl_b32 s7, s3, 3\ns_add_u32 s6, s6, s7\nv_lshl_add_u32 v174, v172, 2, s6')
    p.I('s_movk_i32 s7, 1152\nv_mul_lo_u32 v178, v174, s7\nv_lshl_add_u32 v178, v173, 2, v178\nv_add_u32 v179, 2304, v178')
    for i in range(4):
        for j in range(9):
            p.I('buffer_load_dword v%d, v%d, s[68:71], 0 offen offset:%d' % (XP + i * 9 + j, 178 if i < 2 else 179, (i % 2) * 1152 + 128 * j))

def p2_xstats(c):
    p = c.p
    p.I('s_mov_b32 s99, 0xffff0000\ns_mov_b32 s98, 0x%x\ns_mov_b32 s97, 0x%x' % (f2u(1.0 / 576), f2u(1e-5)))
    T = 8
    for k in range(36): unpack(p, T + 2 * k, XP + k, 99)
    ln_stats(p, T, 4, 9, P0S, red32(p, 232))

def p2_pre(c):
    p = c.p
    wg_rb_ns(p)
    srd(p, 52, P_WS, 6 * 576 * 4, off=L.MOD)
    p.I('s_mov_b32 s99, 0xffff0000\ns_mov_b32 s98, 0x%x\ns_mov_b32 s97, 0x%x' % (f2u(1.0 / 576), f2u(1e-5)))
    p.I('v_lshrrev_b32 v3, 5, v1\nv_and_b32 v4, 31, v1\nv_mov_b32 v6, v178\nv_mov_b32 v7, v179')
    p.I('v_lshlrev_b32 v8, 4, v0')
    PL = 236
    for u in range(3): p.I('s_movk_i32 s7, %d\nbuffer_load_dwordx4 %s, v8, s[52:55], s7 offen%s' % (4096 * u, vr(PL + 4 * u, 4), c.sc))
    for k in range(36):
        p.I('v_lshlrev_b32 v%d, 16, v%d\nv_and_b32 v%d, s99, v%d' % (XF + 2 * k, XP + k, XF + 2 * k + 1, XP + k))
    for i in range(4):
        for j in range(9):
            k = i * 9 + j
            ln_apply(p, GH + 2 * k, XF + 2 * k, P0S + 4 * i)
    p.I('v_add_u32 v9, %d, v8' % PRM_BASE)
    for u in range(3): p.I('ds_write_b128 v9, %s offset:%d' % (vr(PL + 4 * u, 4), 4096 * u))
    p.I('s_waitcnt lgkmcnt(0)\ns_barrier')
    p.I('v_lshlrev_b32 v10, 3, v4\nv_add_u32 v10, %d, v10' % PRM_BASE)
    for arr, dst in ((0, TM), (1, TM + 18), (2, TM + 36), (3, SB), (4, CB)):
        for j in range(9):
            p.I('ds_read_b64 %s, v10 offset:%d' % (vr(dst + 2 * j, 2), arr * 2304 + 256 * j))
    for j in range(9):
        p.I('v_pk_mul_f32 %s, %s, %s' % (vr(TM + 18 + 2 * j, 2), vr(TM + 18 + 2 * j, 2), vr(TM + 36 + 2 * j, 2)))
        p.I('v_pk_mul_f32 %s, %s, %s' % (vr(TM + 2 * j, 2), vr(TM + 2 * j, 2), vr(TM + 36 + 2 * j, 2)))
    for i in range(4):
        for j in range(9):
            g = GH + (i * 9 + j) * 2
            p.I('v_pk_fma_f32 %s, %s, %s, %s' % (vr(g, 2), vr(g, 2), vr(TM + 18 + 2 * j, 2), vr(TM + 2 * j, 2)))

def p2_main(c, abase=0):
    p = c.p
    srd(p, 48, P_WS, L.D * 4096, off=L.ZT)
    srd(p, 52, P_WS, L.S * 1152, off=L.X1); srd(p, 56, P_WS, L.S * 1152, off=L.HP); srd(p, 60, P_WS, L.S * 1152, off=L.H1)
    p.I('v_lshrrev_b32 v8, 2, v1\nv_and_b32 v9, 3, v1\nv_lshlrev_b32 v10, 13, v8\nv_lshl_add_u32 v10, v9, 4, v10\ns_lshl_b32 s6, s4, 6\nv_add_u32 v10, s6, v10')
    p.I('s_lshl_b32 s6, s3, 17\nv_add_u32 v10, s6, v10\ns_movk_i32 s8, 4096')
    for t in range(5):
        if t: p.I('v_add_u32 v10, %d, v10' % (4 * 131072))
        p.I('buffer_load_dwordx4 %s, v10, s[48:51], 0 offen%s' % (vr(TM + 8 * t, 4), c.sc))
        p.I('buffer_load_dwordx4 %s, v10, s[48:51], s8 offen%s' % (vr(TM + 8 * t + 4, 4), c.sc))
    p.I('v_bfe_u32 v11, v8, 1, 3\nv_lshlrev_b32 v12, 1, v9\nv_xor_b32 v11, v11, v12\nv_lshlrev_b32 v11, 4, v11\nv_lshl_add_u32 v11, v8, 7, v11')
    p.I('s_lshl_b32 s6, s3, 11\nv_add_u32 v11, s6, v11\nv_xor_b32 v12, 16, v11')
    p.I('s_mov_b32 s8, 0x05040100\ns_mov_b32 s9, 0x07060302')
    PO = 236
    for t in range(5):
        a, b = TM + 8 * t, TM + 8 * t + 4
        o = PO + 8 * (t % 2)
        for k in range(4):
            p.I('v_perm_b32 v%d, v%d, v%d, s8\nv_perm_b32 v%d, v%d, v%d, s9' % (o + 2 * k, b + k, a + k, o + 2 * k + 1, b + k, a + k))
        p.I('ds_write_b128 v11, %s offset:%d' % (vr(o, 4), ZS_BASE + t * 8192))
        p.I('ds_write_b128 v12, %s offset:%d' % (vr(o + 4, 4), ZS_BASE + t * 8192))
    p.I('s_waitcnt vmcnt(0) lgkmcnt(0)\ns_barrier')
    p.cut()
    c.stamp(8)
    p.I('s_lshl_b32 s6, s3, 1\nv_add_u32 v8, s6, v3\nv_bfe_u32 v9, v4, 1, 3\nv_xor_b32 v8, v8, v9\nv_lshlrev_b32 v8, 4, v8\nv_lshl_add_u32 v8, v4, 7, v8')
    Z = TM
    for j in range(9): p.I('ds_read_b128 %s, v8 offset:%d' % (vr(Z + 4 * j, 4), ZS_BASE + 4096 * j))
    U = 232
    for j in range(9):
        for i in range(4):
            unpack(p, U + 2 * i, Z + 4 * j + i, 99)
        for i in range(4):
            g = vr(GH + (i * 9 + j) * 2, 2)
            p.I('v_pk_fma_f32 %s, %s, %s, %s' % (g, g, vr(U + 2 * i, 2), vr(XF + (i * 9 + j) * 2, 2)))
        for i in range(4):
            p.I('v_cvt_pk_bf16_f32 v%d, v%d, v%d' % (XF + (i * 9 + j) * 2, GH + (i * 9 + j) * 2, GH + (i * 9 + j) * 2 + 1))
    ST = 196
    ln_stats(p, GH, 4, 9, ST, red32(p, ST + 16))
    for j in range(9):
        for i in range(4):
            g = GH + (i * 9 + j) * 2
            ln_apply(p, g, g, ST + 4 * i)
        for i in range(4):
            g = vr(GH + (i * 9 + j) * 2, 2)
            p.I('v_pk_fma_f32 %s, %s, %s, %s' % (g, g, vr(CB + 2 * j, 2), vr(SB + 2 * j, 2)))
        for i in range(4):
            p.I('v_cvt_pk_bf16_f32 v%d, v%d, v%d' % (XF + (i * 9 + j) * 2 + 1, GH + (i * 9 + j) * 2, GH + (i * 9 + j) * 2 + 1))
    ln_stats(p, GH, 4, 9, ST, red32(p, ST + 16))
    p.I('v_bfe_u32 v8, v4, 2, 2\nv_lshrrev_b32 v9, 4, v4\nv_lshlrev_b32 v9, 11, v9\ns_lshr_b32 s6, s3, 1\ns_lshl_b32 s6, s6, 10\ns_and_b32 s7, s3, 1\ns_lshl_b32 s7, s7, 7\ns_add_u32 s6, s6, s7\ns_add_u32 s6, s6, %d' % A1_BASE)
    p.I('v_add_u32 v9, s6, v9\nv_lshl_add_u32 v9, v8, 8, v9\nv_lshl_add_u32 v9, v3, 6, v9\nv_and_b32 v10, 3, v4\nv_lshl_add_u32 v9, v10, 2, v9')
    for i in range(4):
        p.I('v_xor_b32 v10, %d, v8\nv_lshl_add_u32 v%d, v10, 4, v9' % (i, 12 + i))
    for j in range(9):
        for i in range(4):
            g = GH + (i * 9 + j) * 2
            ln_apply(p, U + 2 * i, g, ST + 4 * i)
        for i in range(4):
            p.I('v_cvt_pk_bf16_f32 v%d, v%d, v%d' % (U + 2 * i, U + 2 * i, U + 2 * i + 1))
        for i in range(4):
            p.I('ds_write_b32 v%d, v%d offset:%d' % (12 + i, U + 2 * i, 4096 * j))
    p.I('s_lshl_b32 s6, s3, 3\nv_lshl_add_u32 v11, v3, 2, s6\nv_mul_u32_u24 v11, %d, v11\nv_lshl_add_u32 v11, v4, 2, v11\nv_add_u32 v11, %d, v11' % (HPL_RS, HPL_BASE))
    for jg in range(3):
        lab = p.label_name('L_st')
        p.I('s_cmp_lg_u32 s5, %d\ns_cbranch_scc1 %s' % (jg, lab))
        for j in range(3 * jg, 3 * jg + 3):
            for i in range(4):
                p.I('buffer_store_dword v%d, v%d, s[52:55], 0 offen offset:%d%s' % (XF + (i * 9 + j) * 2, 6 if i < 2 else 7, (i % 2) * 1152 + 128 * j, c.sc), nowait=True)
                p.I('ds_write_b32 v11, v%d offset:%d' % (XF + (i * 9 + j) * 2 + 1, i * HPL_RS + 128 * (j - 3 * jg)), nowait=True)
        p.label(lab)
    p.I('s_waitcnt lgkmcnt(0)\ns_barrier')
    p.cut()
    c.stamp(9)
    wfrag_setup(c, L.W2T, 64, 156)
    gemm_small2(c, A1_BASE, abase, 100, 128, after_ks=lambda ks: wfrag_load(c, 64, 156, abase, ks) if ks < 9 else None)
    ACC = 100
    gelu_consts(p, 8, 9)
    p.I('v_mov_b32 v8, s9')
    gelu_inplace(p, list(range(ACC, ACC + 24)), 160, 8, 8)
    small_out_addr(p, 9)
    for e in range(3):
        for tt in range(2):
            a = ACC + 4 * (e * 2 + tt)
            o = 190 + 2 * (e * 2 + tt)
            p.I('v_cvt_pk_bf16_f32 v%d, v%d, v%d\nv_cvt_pk_bf16_f32 v%d, v%d, v%d' % (o, a, a + 1, o + 1, a + 2, a + 3))
            p.I('buffer_store_dwordx2 %s, v%d, s[60:63], 0 offen offset:%d%s' % (vr(o, 2), 9 + tt, 32 * e, c.sc))
    for ks in range(9, 18): wfrag_load(c, 64, 156, abase, ks)

def p3_main(c, abase=0):
    p = c.p
    srd(p, 48, P_WS, L.S * 1152, off=L.H1); srd(p, 52, P_WS, L.S * 1152, off=L.HP); srd(p, 56, P_WS, L.S * 1152, off=L.X2)
    p.I('s_mov_b32 s99, 0xffff0000')
    p.I('v_lshrrev_b32 v3, 4, v1\nv_and_b32 v4, 15, v1\ns_lshr_b32 s6, s3, 1\ns_lshl_b32 s6, s6, 5\nv_lshl_add_u32 v5, v3, 3, s6')
    p.I('s_lshl_b32 s6, s4, 5\ns_and_b32 s7, s3, 1\ns_lshl_b32 s7, s7, 4\ns_add_u32 s6, s6, s7\nv_add_u32 v6, s6, v4\ns_movk_i32 s7, 1152\nv_mul_lo_u32 v6, v6, s7\nv_lshl_add_u32 v6, v5, 1, v6')
    M1, P1, M2, P2_, N2, N4, N6 = 8, 9, 10, 11, 12, 13, 14
    p.I('v_subrev_u32 v%d, 1152, v6\nv_add_u32 v%d, 1152, v6\nv_subrev_u32 v%d, 2304, v6\nv_add_u32 v%d, 2304, v6' % (M1, P1, M2, P2_))
    p.I('v_cmp_gt_u32 vcc, 16, v5\nv_cndmask_b32 v%d, v%d, v%d, vcc' % (N2, P1, M1))
    p.I('v_cmp_gt_u32 vcc, 32, v5\nv_cndmask_b32 v%d, v%d, v%d, vcc' % (N4, M2, P1))
    p.I('v_cmp_gt_u32 vcc, 48, v5\nv_cndmask_b32 v%d, v%d, v%d, vcc' % (N6, P2_, M2))
    sel = [M1, M1, N2, P1, N4, M2, N6, P2_, P2_]
    T = 16
    for n in range(9):
        p.I('buffer_load_dwordx4 %s, v%d, s[48:51], 0 offen offset:%d%s' % (vr(T + 4 * n, 4), sel[n], 128 * n, c.sc))
    small_out_addr(p, 104)
    HR = 108
    p.I('v_mul_u32_u24 v15, %d, v4\nv_lshl_add_u32 v15, v3, 3, v15\ns_mul_i32 s6, s3, 96\ns_add_u32 s6, s6, %d\nv_add_u32 v15, s6, v15' % (HPL_RS, HPL_BASE))
    for e in range(3):
        for tt in range(2):
            p.I('ds_read_b64 %s, v15 offset:%d' % (vr(HR + 2 * (e * 2 + tt), 2), tt * 16 * HPL_RS + 32 * e))
    p.I('v_xor_b32 v7, v4, v3\nv_lshl_add_u32 v7, v3, 4, v7\nv_lshlrev_b32 v7, 4, v7\ns_lshl_b32 s6, s3, 10\nv_add_u32 v7, s6, v7')
    for n in range(9): p.I('ds_write_b128 v7, %s offset:%d' % (vr(T + 4 * n, 4), 4096 * n))
    p.I('s_waitcnt lgkmcnt(0)\ns_barrier')
    c.stamp(12)
    gemm_small2(c, 0, abase, 52, 80)
    ACC = 52
    for e in range(3):
        for tt in range(2):
            a = ACC + 4 * (e * 2 + tt); h = HR + 2 * (e * 2 + tt); o = 128 + 2 * (e * 2 + tt)
            unpack(p, 120, h, 99); unpack(p, 122, h + 1, 99)
            for r in range(4): p.I('v_add_f32 v%d, v%d, v%d' % (a + r, a + r, 120 + r))
            p.I('v_cvt_pk_bf16_f32 v%d, v%d, v%d\nv_cvt_pk_bf16_f32 v%d, v%d, v%d' % (o, a, a + 1, o + 1, a + 2, a + 3))
            p.I('buffer_store_dwordx2 %s, v%d, s[56:59], 0 offen offset:%d%s' % (vr(o, 2), 104 + tt, 32 * e, c.sc))

def p4_ln2(c, RAW, X):
    p = c.p
    mlp32.ln_addr(c)
    ST = 208
    for i in range(2):
        for k in range(36):
            unpack(p, X + 2 * k, RAW + 36 * i + k, 99)
            if k % 2 == 1 and c.wn < mlp32.RING and i == 1: mlp32.wload(c)
        ln_stats_single(p, X, 36, ST)
        for k in range(36):
            ln_apply(p, X + 2 * k, X + 2 * k, ST)
            if k % 2 == 1 and c.wn < mlp32.RING: mlp32.wload(c)
        for k in range(36): p.I('v_cvt_pk_bf16_f32 v%d, v%d, v%d' % (RAW + 36 * i + k, X + 2 * k, X + 2 * k + 1))
        for j in range(8): p.I('ds_write_b128 v%d, %s offset:%d' % (11 + i, vr(RAW + 36 * i + 4 * j, 4), 8192 * j))
        p.I('v_add_u32 v13, 65536, v%d\nds_write_b128 v13, %s' % (11 + i, vr(RAW + 36 * i + 32, 4)))
    while c.wn < mlp32.RING: mlp32.wload(c)
    p.I('s_waitcnt lgkmcnt(0)\ns_barrier')

def ln_stats_single(p, X, n, ST):
    S, Q = ST + 4, ST + 8
    p.I('v_pk_add_f32 %s, %s, %s\nv_pk_add_f32 %s, %s, %s' % (vr(S, 2), vr(X, 2), vr(X + 4, 2), vr(S + 2, 2), vr(X + 2, 2), vr(X + 6, 2)))
    p.I('v_pk_mul_f32 %s, %s, %s\nv_pk_mul_f32 %s, %s, %s' % (vr(Q, 2), vr(X, 2), vr(X, 2), vr(Q + 2, 2), vr(X + 2, 2), vr(X + 2, 2)))
    for k in range(2, n):
        x = vr(X + 2 * k, 2); o = 2 * (k % 2)
        p.I('v_pk_fma_f32 %s, %s, %s, %s' % (vr(Q + o, 2), x, x, vr(Q + o, 2)))
        if k >= 4: p.I('v_pk_add_f32 %s, %s, %s' % (vr(S + o, 2), vr(S + o, 2), x))
    p.I('v_pk_add_f32 %s, %s, %s\nv_pk_add_f32 %s, %s, %s' % (vr(S, 2), vr(S, 2), vr(S + 2, 2), vr(Q, 2), vr(Q, 2), vr(Q + 2, 2)))
    p.I('v_add_f32 v%d, v%d, v%d\nv_add_f32 v%d, v%d, v%d' % (S, S, S + 1, Q, Q, Q + 1))
    reduce8(p, [S, Q])
    p.I('v_mul_f32 v%d, s98, v%d\nv_mul_f32 v%d, s98, v%d' % (S, S, Q, Q))
    p.I('v_fma_f32 v%d, -v%d, v%d, v%d\nv_max_f32 v%d, 0, v%d\nv_add_f32 v%d, s97, v%d\nv_rsq_f32 v%d, v%d' % (Q, S, S, Q, Q, Q, Q, Q, ST, Q))
    p.I('v_mul_f32 v%d, -v%d, v%d' % (ST + 1, S, ST))

def pt34_decode(c, stask, SRD, ST):
    p = c.p
    w4 = p.label_name('L_t4'); dn = p.label_name('L_td')
    p.I('s_cmp_ge_u32 s%d, 216\ns_cbranch_scc1 %s' % (stask, w4))
    p.I('s_mul_i32 s8, s%d, %d\ns_lshr_b32 s8, s8, 16\ns_mul_i32 s9, s8, 3\ns_sub_u32 s9, s%d, s9' % (stask, udiv_magic(3, 300), stask))
    for k in range(4): p.I('s_mov_b32 s%d, s%d' % (SRD + k, 56 + k))
    p.I('s_mul_i32 s%d, s9, %d\ns_lshl_b32 s10, s8, 7\ns_add_u32 s%d, s%d, s10' % (ST + 4, 6 * 32 * 9216, ST + 4, ST + 4))
    p.I('s_mov_b32 s%d, %d\ns_movk_i32 s%d, 9216\ns_movk_i32 s%d, 3072\ns_mov_b32 s%d, 0' % (ST + 5, 32 * 9216, ST + 6, ST + 7, ST + 8))
    for j in range(4):
        p.I('s_lshl_b32 s12, s8, 2\ns_add_u32 s12, s12, %d' % j)
        p.I('s_mul_i32 s13, s12, %d\ns_lshr_b32 s13, s13, 16\ns_mul_i32 s14, s13, 36\ns_sub_u32 s12, s12, s14' % udiv_magic(36, 300))
        p.I('s_mul_i32 s14, s12, %d\ns_lshr_b32 s14, s14, 16\ns_mul_i32 s10, s14, 12\ns_sub_u32 s12, s12, s10' % udiv_magic(12, 40))
        p.I('s_mul_i32 s10, s12, %d\ns_lshr_b32 s10, s10, 16\ns_mul_i32 s11, s10, 3\ns_sub_u32 s12, s12, s11' % udiv_magic(3, 16))
        p.I('s_lshl_b32 s13, s13, 2\ns_add_u32 s13, s13, s10\ns_mul_i32 s13, s13, 324\ns_mul_i32 s14, s14, 54\ns_add_u32 s13, s13, s14\ns_mul_i32 s14, s9, 18\ns_add_u32 s13, s13, s14\ns_add_u32 s13, s13, s12\ns_lshl_b32 s13, s13, 10\ns_add_u32 s%d, s13, %d' % (ST + j, L.W34T - L.W1T))
    p.I('s_branch %s' % dn)
    p.label(w4)
    p.I('s_sub_u32 s7, s%d, 216\ns_mul_i32 s8, s7, %d\ns_lshr_b32 s8, s8, 16\ns_mul_i32 s9, s8, 27\ns_sub_u32 s7, s7, s9' % (stask, udiv_magic(27, 600)))
    p.I('s_mul_i32 s9, s7, %d\ns_lshr_b32 s9, s9, 16\ns_mul_i32 s10, s9, 3\ns_sub_u32 s10, s7, s10' % udiv_magic(3, 32))
    for k in range(4): p.I('s_mov_b32 s%d, s%d' % (SRD + k, 60 + k))
    p.I('s_mul_i32 s11, s8, 18\ns_mul_i32 s12, s10, 6\ns_add_u32 s11, s11, s12\ns_mul_i32 s%d, s11, %d\ns_lshl_b32 s11, s9, 7\ns_add_u32 s%d, s%d, s11' % (ST + 4, 32 * 1152, ST + 4, ST + 4))
    p.I('s_mov_b32 s%d, %d\ns_movk_i32 s%d, 1152\ns_mov_b32 s%d, 1' % (ST + 5, 32 * 1152, ST + 6, ST + 8))
    p.I('s_cmp_eq_u32 s9, 8\ns_movk_i32 s11, 4096\ns_cselect_b32 s%d, 1024, s11' % (ST + 7))
    for j in range(4):
        p.I('s_mul_i32 s11, s10, 24\ns_add_u32 s11, s11, %d\ns_and_b32 s12, s9, 3' % (162 + j))
        p.I('s_cmp_ge_u32 s9, 4\ns_cselect_b32 s13, 72, 0\ns_add_u32 s11, s11, s13')
        p.I('s_mul_i32 s13, s10, 6\ns_add_u32 s13, s13, 306\ns_cmp_eq_u32 s9, 8\ns_cselect_b32 s11, s13, s11\ns_cselect_b32 s12, %d, s12' % j)
        p.I('s_lshl_b32 s13, s8, 2\ns_add_u32 s13, s13, s12\ns_mul_i32 s13, s13, 324\ns_add_u32 s13, s13, s11\ns_lshl_b32 s13, s13, 10\ns_add_u32 s%d, s13, %d' % (ST + j, L.W34T - L.W1T))
    p.label(dn)
    p.I('s_cmp_ge_u32 s%d, 432' % stask)
    for k in range(5): p.I('s_cselect_b32 s%d, 0x7f000000, s%d' % (ST + k, ST + k))
    p.I('s_cselect_b32 s%d, 0, s%d\ns_cselect_b32 s%d, 0, s%d' % (ST + 5, ST + 5, ST + 7, ST + 7))

def pretile34(c, swave):
    p = c.p
    NB, NU = 8, 12
    p.I('s_mul_i32 s96, s3, %d' % (NB * 4096))
    TA, TB = (64, 80), (52, 4)
    SA, SB_ = 80, 89
    regsB = 48
    p.I('s_add_u32 s79, s%d, 256' % swave)
    pt34_decode(c, swave, 64, 80)
    p.I('s_mov_b32 s15, s96')
    pt34_decode(c, 79, 52, 89)
    p.I('v_mad_u32_u24 v12, v2, s%d, v3\nv_add_u32 v12, s%d, v12' % (86, 84))
    p.I('v_mad_u32_u24 v13, v2, s%d, v3\nv_add_u32 v13, s%d, v13' % (95, 93))
    p.I('s_lshl_b32 s4, s86, 3\ns_lshl_b32 s5, s95, 3')
    def issue(n):
        A = n < 6
        va, srdn, s8r, sstep = (12, 64, 4, 85) if A else (13, 52, 5, 94)
        p.I('v_mov_b32 v9, v%d' % va)
        t = None
        for q in range(4):
            p.I('s_add_u32 m0, s15, %d' % ((n % NB) * 4096 + q * 1024))
            if q: p.I('v_add_u32 v9, s%d, v9' % s8r)
            t = p.I('buffer_load_dwordx4 v9, s[%d:%d], 0 offen lds' % (srdn, srdn + 3), nowait=True)
        p.I('v_add_u32 v%d, s%d, v%d' % (va, sstep, va))
        return t
    def process(n):
        A = n < 6
        ST = 80 if A else 89
        R = 16 + 16 * (n % 2)
        lb = p.label_name('L_kb'); le = p.label_name('L_ke')
        p.I('s_cmp_eq_u32 s%d, 1\ns_cbranch_scc1 %s' % (ST + 8, lb))
        for va, jstride, second, lab in ((6, 32, 512, None), (7, 8, 2048, lb)):
            if lab: p.label(lab)
            p.I('s_add_u32 s6, s15, %d\nv_add_u32 v10, s6, v%d' % ((n % NB) * 4096, va))
            for j in range(4):
                p.I('ds_read_b64_tr_b16 %s, v10 offset:%d' % (vr(R + 4 * j, 2), j * jstride), nowait=True)
                p.I('ds_read_b64_tr_b16 %s, v10 offset:%d' % (vr(R + 4 * j + 2, 2), j * jstride + second), nowait=True)
            if not lab: p.I('s_branch %s' % le)
        p.label(le)
        p.I('s_waitcnt lgkmcnt(0)')
        for j in range(4):
            p.I('v_add_u32 v11, s%d, v8\ns_add_u32 s%d, s%d, s%d' % (ST + j, ST + j, ST + j, ST + 7))
            p.I('buffer_store_dwordx4 %s, v11, s[68:71], 0 offen%s' % (vr(R + 4 * j, 4), c.sc), nowait=True)
    toks = [issue(n) for n in range(NB - 1)]
    for n in range(NU):
        if n + NB - 1 < NU: toks.append(issue(n + NB - 1))
        p.wait(toks[n])
        process(n)
    p.I('s_waitcnt vmcnt(0)'); p.cut()

def mlp_map(p, sslice, srb):
    p.I('s_and_b32 s%d, s2, 3\ns_lshl_b32 s%d, s%d, 1\ns_bfe_u32 s76, s2, 0x10003\ns_add_u32 s%d, s%d, s76' % (sslice, sslice, sslice, sslice, sslice))
    p.I('s_bfe_u32 s%d, s2, 0x10002\ns_lshl_b32 s%d, s%d, 4\ns_lshr_b32 s76, s2, 4\ns_add_u32 s%d, s%d, s76' % (srb, srb, srb, srb, srb))

def warm_l2(c, nparts, part_sgpr):
    p = c.p
    lines = 4 * 324 * 8 // nparts
    srd(p, 64, P_WS, 32 * 324 * 1024, off=L.W34T)
    p.I('s_mul_i32 s6, s4, %d\ns_mul_i32 s7, s%d, %d\ns_add_u32 s6, s6, s7\nv_lshl_add_u32 v2, v0, 7, s6' % (4 * 324 * 1024, part_sgpr, lines * 128))
    n = (lines + 255) // 256
    for k in range(n):
        if (k + 1) * 256 > lines:
            p.I('v_cmp_gt_u32 vcc, %d, v0\nv_mov_b32 v3, 0x7f000000\nv_cndmask_b32 v2, v3, v2, vcc' % (lines - k * 256))
        p.I('buffer_load_dword v%d, v2, s[64:67], 0 offen sc1' % (8 + k), nowait=True)
        p.I('v_add_u32 v2, 32768, v2')

def build_mega():
    c = Ctx(); p = c.p
    p.I('s_cmp_ge_u32 s2, 256\ns_cbranch_scc1 L_end')
    p.I('s_load_dwordx16 s[16:31], s[0:1], 0\ns_load_dwordx16 s[32:47], s[0:1], 64')
    p.I('v_lshrrev_b32 v2, 6, v0\nv_and_b32 v1, 63, v0')
    p.I('v_readfirstlane_b32 s3, v2')
    p.I('s_waitcnt lgkmcnt(0)')
    if STAMPS:
        for k in range(24): p.I('v_accvgpr_write_b32 a%d, 0' % (232 + k))
    c.stamp(0)
    srd(p, S_SYNC, P_WS, 2 << 20, off=L.SYNC)
    if not os.environ.get('NOCODEPF'):
        lpf = p.label_name('L_pf')
        p.I('s_cmp_lg_u32 s3, 3\ns_cbranch_scc1 %s' % lpf)
        p.I('s_getpc_b64 s[8:9]')
        p.label('L_pc_anchor')
        p.I('s_lshr_b32 s10, s2, 3\ns_mul_i32 s10, s10, CODE_PART\nv_lshl_add_u32 v2, v1, 7, s10')
        p.I('v_cmp_gt_u32 vcc, CODE_PART, v2') if False else None
        p.I('s_mov_b64 exec, CODE_MASK')
        p.I('global_load_dword v249, v2, s[8:9]', nowait=True)
        p.I('s_mov_b64 exec, -1')
        p.label(lpf); p.cut()
    p.I('s_cmp_ge_u32 s2, %d\ns_cbranch_scc1 L_pt' % NCONV)
    p.I('s_cmp_eq_u32 s3, 3\ns_cbranch_scc1 L_kc')
    p0_kv(c)
    p.I('s_mul_i32 s78, s2, 3\ns_add_u32 s78, s78, s3\ns_and_b32 s78, s78, 15')
    wave_arrive(c, 'add', check_ready=True, idx=K_SH, sgpr=78)
    p2_xload(c)
    p.I('s_waitcnt vmcnt(0)')
    p.I('s_branch L_kv_done'); p.cut()
    p.label('L_kc')
    p1_kcopies(c)
    p2_xload(c)
    p.I('s_waitcnt vmcnt(0) lgkmcnt(0)')
    p.label('L_kv_done'); p.cut()
    c.stamp(1)
    p2_xstats(c)
    c.stamp(17)
    wait_cnt(c, *w_flags(K_REL, A_REL))
    c.stamp(2)
    p1_main(c)
    c.stamp(5)
    p.I('s_and_b32 s78, s2, 15')
    arrive(c, 'add', idx=V_SH, sgpr=78)
    wave_wait(c, M_REL)
    p2_pre(c)
    c.stamp(6)
    wait_cnt(c, *w_flags(V_REL))
    c.stamp(7)
    p2_main(c)
    c.stamp(10)
    arrive(c, 'add', idx=C_H1, sgpr=4, keep=27)
    def fh(p): p.I('s_sub_u32 s6, s4, 1\nv_add_u32 v252, s6, v1\nv_max_i32 v252, 0, v252\nv_min_i32 v252, 63, v252\nv_mul_u32_u24 v252, %d, v252\nv_add_u32 v252, %d, v252\nv_mov_b32 v254, 3\nv_mov_b32 v255, %d\nv_mov_b32 v251, 1\nv_cmp_eq_u32 vcc, 3, v1\nv_cndmask_b32 v252, v252, v255, vcc\nv_cndmask_b32 v254, v254, v251, vcc' % (LS, C_H1 * LS, B3_REL * LS))
    wait_cnt(c, fh, 4)
    c.stamp(11)
    p3_main(c)
    c.stamp(13)
    mlp_map(p, 10, 11)
    mlp32.ring_setup(c, 10, 160)
    for n in range(mlp32.EARLY): mlp32.ring_load_at(c, mlp32.PERM[n], n, 160)
    arrive(c, 'add', idx=C_X2, sgpr=4, keep=mlp32.EARLY)
    p.I('s_branch L_mlp'); p.cut()
    p.label('L_pt')
    lz = p.label_name('L_zero')
    p.I('s_cmp_lg_u32 s2, 255\ns_cbranch_scc1 %s\ns_cmp_lg_u32 s3, 0\ns_cbranch_scc1 %s' % (lz, lz))
    p.I('v_mul_u32_u24 v2, %d, v1\nv_mov_b32 v3, 0' % LS)
    for k in range(NCNT // 64):
        p.I('buffer_store_dword v3, v2, s[%d:%d], 0 offen sc1\nv_add_u32 v2, %d, v2' % (S_SYNC, S_SYNC + 3, 64 * LS), nowait=True)
    srd(p, 68, P_DBG, 256)
    p.I('s_waitcnt vmcnt(0)\nv_mov_b32 v2, 0\nv_mov_b32 v3, 1\ns_mov_b64 exec, 1\nbuffer_store_dword v3, v2, s[68:71], 0 offen sc1\ns_mov_b64 exec, -1', nowait=True)
    p.label(lz); p.cut()
    pt_setup(c)
    p.I('s_sub_u32 s4, s2, %d\ns_lshl_b32 s4, s4, 2\ns_add_u32 s78, s4, s3' % NCONV)
    pretile(c, '12', 78)
    arrive(c, 'add', check_ready=True, idx=A_CNT)
    c.stamp(1)
    lmon = p.label_name('L_nomon')
    p.I('s_cmp_lg_u32 s2, 255\ns_cbranch_scc1 %s\ns_cmp_lg_u32 s3, 0\ns_cbranch_scc1 %s' % (lmon, lmon))
    monitor(c)
    p.label(lmon); p.cut()
    lm = p.label_name('L_nomod')
    p.I('s_cmp_ge_u32 s2, %d\ns_cbranch_scc1 %s' % (NCONV + 54, lm))
    p0_mod_loads(c, NCONV)
    p0_mod_compute(c, NCONV)
    arrive(c, 'add', idx=M_CNT)
    p.label(lm); p.cut()
    p.I('s_barrier')
    p.I('s_cmp_eq_u32 s2, 255\ns_cbranch_scc1 L_pt_skip')
    pt.prime(c, NCONV)
    c.stamp(2)
    def mid():
        arrive(c, 'add', idx=B3_CNT)
    pt.run(c, mid)
    arrive(c, 'last', cnt=B_CNT, n=63, rel=B_REL)
    p.label('L_pt_skip'); p.cut()
    c.stamp(3)
    wait_cnt(c, *w_flags(B_REL))
    c.stamp(4)
    mlp_map(p, 4, 5)
    p.I('s_sub_u32 s5, s2, %d\ns_lshr_b32 s5, s5, 4' % NCONV)
    warm_l2(c, 4, 5)
    p.I('s_waitcnt vmcnt(0)'); p.cut()
    mlp_map(p, 10, 11)
    mlp32.ring_setup(c, 10, 160)
    for n in range(mlp32.EARLY): mlp32.ring_load_at(c, mlp32.PERM[n], n, 160)
    p.label('L_mlp'); p.cut()
    c.stamp(14)
    mlp_map(p, 4, 5)
    def fx(p): p.I('s_lshl_b32 s6, s5, 1\nv_add_u32 v252, s6, v1\nv_mul_u32_u24 v252, %d, v252\nv_add_u32 v252, %d, v252\nv_mov_b32 v254, 3\nv_mov_b32 v255, %d\nv_mov_b32 v251, 1\nv_cmp_eq_u32 vcc, 2, v1\nv_cndmask_b32 v252, v252, v255, vcc\nv_cndmask_b32 v254, v254, v251, vcc' % (LS, C_X2 * LS, B_REL * LS))
    wait_cnt(c, fx, 3)
    c.stamp(15)
    if os.environ.get('REWARM'):
        p.I('s_lshr_b32 s79, s2, 3')
        warm_l2(c, 32, 79)
    RAW, X = mk.p4_ln(c)
    c.fine = True
    if os.environ.get('FINE2'): c.stamp(6)
    mlp32.ring_resume(c)
    if os.environ.get('FINE2'):
        c.stamp(7); p.I('s_waitcnt vmcnt(18)'); c.stamp(8); p.I('s_waitcnt vmcnt(0)'); c.stamp(9)
    p4_ln2(c, RAW, X)
    c.stamp(16)
    mlp32.mlp_setup(c)
    def arrive_part(k):
        p.I('s_mul_i32 s76, s5, %d\ns_add_u32 s76, s76, %d\ns_cmp_eq_u32 s3, 0\ns_cselect_b32 s76, s76, 0x7f000000\nv_mov_b32 v252, s76\nv_mov_b32 v253, 1\ns_mov_b64 exec, 1' % (LS, (C_PART0, C_PART1)[k] * LS))
        p.I('buffer_atomic_add v253, v252, s[%d:%d], 0 offen sc1' % (S_SYNC, S_SYNC + 3))
        p.I('s_mov_b64 exec, -1')
    def poll_issue():
        p.I('s_mul_i32 s76, s5, %d\ns_add_u32 s76, s76, %d\nv_mov_b32 v252, s76' % (LS, C_PART0 * LS))
        p.I('buffer_load_dword v253, v252, s[%d:%d], 0 offen sc1' % (S_SYNC, S_SYNC + 3))
    def poll_check():
        ok = p.label_name('L_p0ok'); lp = p.label_name('L_p0')
        p.I('v_cmp_gt_u32 vcc, 8, v253\ns_mov_b32 s77, 0\ns_nop 2\ns_cbranch_vccz %s' % ok)
        p.label(lp)
        p.I('buffer_load_dword v253, v252, s[%d:%d], 0 offen sc1\ns_waitcnt vmcnt(0)\nv_cmp_gt_u32 vcc, 8, v253' % (S_SYNC, S_SYNC + 3), nowait=True)
        p.I('s_add_u32 s77, s77, 1\ns_cmp_ge_u32 s77, %d\ns_cbranch_scc1 %s\ns_cbranch_vccnz %s' % (SPIN_MAX, ok, lp))
        p.label(ok)
    c.arrive_part, c.poll_issue, c.poll_check = arrive_part, poll_issue, poll_check
    c.inmlp = True
    mlp32.mlp_main(c)
    c.stamp(21)
    arrive(c, 'add', idx=C_PART, sgpr=5)
    mlp32.final_pair(c, 0)
    def fp(p): p.I('s_mul_i32 s6, s5, %d\ns_add_u32 s6, s6, %d\nv_mov_b32 v252, s6\nv_mov_b32 v254, 8' % (LS, C_PART * LS))
    wait_cnt(c, fp, 1)
    c.stamp(22)
    mlp32.final_gather(c, 1)
    mlp32.final_pair(c, 1)
    p.I('s_waitcnt vmcnt(0)')
    c.stamp_out()
    p.label('L_end')
    p.I('s_endpgm')
    txt = p.finalize()
    return txt

if __name__ == '__main__':
    if 'stamps' in sys.argv: STAMPS = True
    mk.STAMPS = False
    body = build_mega()
    if 'CODE_PART' in body:
        import subprocess
        t = assemble([(NAME + '_kernel', body.replace('CODE_PART', '2048').replace('CODE_MASK', '0xffff'), 256, 256, 147456, 512, 256)])
        open('_p1.s', 'w').write(t)
        subprocess.check_call(['clang', '-x', 'assembler', '-target', 'amdgcn-amd-amdhsa', '-mcpu=gfx950', '-c', '_p1.s', '-o', '_p1.o'])
        syms = subprocess.check_output(['llvm-objdump', '-t', '_p1.o'], text=True)
        ad = {l.split()[-1]: int(l.split()[0], 16) for l in syms.splitlines() if l.split() and l.split()[-1] in ('L_end', 'L_pc_anchor')}
        size = ad['L_end'] - ad['L_pc_anchor']
        nl = size // 128 // 32
        assert nl <= 32
        body = body.replace('CODE_PART', str(nl * 128)).replace('CODE_MASK', hex((1 << nl) - 1))
        print('code size', size, 'lines per part', nl)
    out = assemble([(NAME + '_kernel', body, 256, 256, 147456, 512, 256)])
    open(sys.argv[1], 'w').write(out)
```

```python
import os
from asmlib import *
import layout as L
from mk import srd, udiv_magic, f2u, P_WS, P_OUT, unpack, gelu_consts, Filler, reduce8

A2_BASE, G_BASE = 0, 73728
RING = 54
PERM = [(n % 3) * 18 + n // 3 for n in range(54)]
EARLY = 27

def w3_pos(Gl, jn, kh, kk):
    if Gl < 4: return Gl, 5 * kk + 2 * kh + jn
    return Gl - 5, 90 + 4 * kk + 2 * kh + jn
def w4_pos(Gl, jn, kh, pb):
    if Gl < 4: return Gl, (162 + 3 * pb + kh) if jn == 0 else (162 + 54 + 2 * pb + kh)
    return Gl - 5, 162 + (90 if jn == 0 else 126) + 2 * pb + kh
def w4_small_pos(pb): return 162 + 3 * pb + 2

def pt34_lane_consts(p):
    p.I('v_bfe_u32 v4, v1, 4, 1\nv_lshrrev_b32 v5, 5, v1\nv_bfe_u32 v9, v1, 2, 2\nv_and_b32 v10, 3, v1')
    p.I('v_lshl_add_u32 v14, v5, 3, v9\nv_lshlrev_b32 v14, 7, v14\nv_lshl_add_u32 v14, v4, 5, v14\nv_lshl_add_u32 v14, v10, 3, v14')
    p.I('v_lshl_add_u32 v15, v5, 2, v9\nv_lshlrev_b32 v15, 7, v15\nv_and_b32 v11, 1, v10\nv_lshl_add_u32 v15, v11, 5, v15\nv_lshl_add_u32 v15, v4, 4, v15\nv_lshrrev_b32 v11, 1, v10\nv_lshl_add_u32 v15, v11, 3, v15')
    p.I('v_lshrrev_b32 v11, 4, v1\nv_lshl_add_u32 v16, v11, 3, v9\nv_lshlrev_b32 v16, 7, v16\nv_lshl_add_u32 v16, v10, 3, v16')
    p.I('v_lshl_add_u32 v17, v5, 2, v4\nv_lshl_add_u32 v17, v17, 2, v9\nv_lshlrev_b32 v17, 7, v17\nv_lshl_add_u32 v17, v10, 3, v17')

def pt34_decode(c, stask, SRD, ST):
    p = c.p
    w4 = p.label_name('L_t4'); cm = p.label_name('L_tc')
    p.I('s_cmp_ge_u32 s%d, 216\ns_cbranch_scc1 %s' % (stask, w4))
    p.I('s_mul_i32 s8, s%d, %d\ns_lshr_b32 s8, s8, 16\ns_mul_i32 s9, s8, 3\ns_sub_u32 s9, s%d, s9' % (stask, udiv_magic(3, 300), stask))
    for k in range(4): p.I('s_mov_b32 s%d, s%d' % (SRD + k, 56 + k))
    p.I('s_mul_i32 s%d, s9, %d\ns_lshl_b32 s10, s8, 7\ns_add_u32 s%d, s%d, s10' % (ST + 4, 6 * 32 * 9216, ST + 4, ST + 4))
    p.I('s_mov_b32 s%d, %d\ns_movk_i32 s%d, 9216\ns_mov_b32 s%d, 0' % (ST + 5, 32 * 9216, ST + 6, ST + 8))
    p.I('s_mul_i32 s10, s8, %d\ns_lshr_b32 s10, s10, 16\ns_mul_i32 s11, s10, 9\ns_sub_u32 s11, s8, s11\ns_mov_b32 s12, 0' % udiv_magic(9, 100))
    p.I('s_branch %s' % cm)
    p.label(w4)
    p.I('s_sub_u32 s7, s%d, 216\ns_mul_i32 s10, s7, %d\ns_lshr_b32 s10, s10, 16\ns_mul_i32 s9, s10, 27\ns_sub_u32 s7, s7, s9' % (stask, udiv_magic(27, 600)))
    p.I('s_mul_i32 s11, s7, %d\ns_lshr_b32 s11, s11, 16\ns_mul_i32 s9, s11, 3\ns_sub_u32 s9, s7, s9' % udiv_magic(3, 32))
    for k in range(4): p.I('s_mov_b32 s%d, s%d' % (SRD + k, 60 + k))
    p.I('s_mul_i32 s13, s10, 18\ns_mul_i32 s14, s9, 6\ns_add_u32 s13, s13, s14\ns_mul_i32 s%d, s13, %d\ns_lshl_b32 s13, s11, 7\ns_add_u32 s%d, s%d, s13' % (ST + 4, 32 * 1152, ST + 4, ST + 4))
    p.I('s_mov_b32 s%d, %d\ns_movk_i32 s%d, 1152\ns_mov_b32 s%d, 1\ns_movk_i32 s12, 162' % (ST + 5, 32 * 1152, ST + 6, ST + 8))
    p.label(cm)
    p.I('s_cmp_le_u32 s11, 4\ns_cselect_b32 s13, 5, 4\ns_cselect_b32 s14, 0, 90\ns_add_u32 s12, s12, s14\ns_mul_i32 s14, s9, 6\ns_mul_i32 s14, s14, s13\ns_add_u32 s12, s12, s14\ns_lshl_b32 s%d, s13, 10' % (ST + 7))
    p.I('s_sub_u32 s14, s11, 5\ns_cmp_lt_u32 s11, 4\ns_cselect_b32 s14, s11, s14')
    sm = p.label_name('L_ts'); dn = p.label_name('L_td')
    p.I('s_cmp_eq_u32 s11, 4\ns_cbranch_scc1 %s' % sm)
    p.I('s_lshl_b32 s7, s10, 2\ns_add_u32 s7, s7, s14\ns_mul_i32 s7, s7, 324\ns_add_u32 s7, s7, s12\ns_lshl_b32 s7, s7, 10\ns_add_u32 s7, s7, %d' % (L.W34T - L.W1T))
    for jn in range(2):
        for kh in range(2): p.I('s_add_u32 s%d, s7, %d' % (ST + 2 * jn + kh, (2 * kh + jn) * 1024))
    p.I('s_branch %s' % dn)
    p.label(sm)
    p.I('s_add_u32 s%d, s%d, 2' % (ST + 8, ST + 8))
    for j in range(4):
        p.I('s_lshl_b32 s7, s10, 2\ns_add_u32 s7, s7, %d\ns_mul_i32 s7, s7, 324\ns_add_u32 s7, s7, s12\ns_add_u32 s7, s7, 4\ns_lshl_b32 s7, s7, 10\ns_add_u32 s%d, s7, %d' % (j, ST + j, L.W34T - L.W1T))
    p.label(dn)
    p.I('s_cmp_ge_u32 s%d, 432' % stask)
    for k in range(5): p.I('s_cselect_b32 s%d, 0x7f000000, s%d' % (ST + k, ST + k))
    for k in (5, 7): p.I('s_cselect_b32 s%d, 0, s%d' % (ST + k, ST + k))

def pretile34(c, swave):
    p = c.p
    NB, NU = 8, 12
    pt34_lane_consts(p)
    STA, STB = 80, 90
    p.I('s_mul_i32 s15, s3, %d' % (NB * 4096))
    p.I('s_add_u32 s79, s%d, 256' % swave)
    pt34_decode(c, swave, 64, STA)
    pt34_decode(c, 79, 52, STB)
    p.I('v_mad_u32_u24 v12, v2, s%d, v3\nv_add_u32 v12, s%d, v12' % (STA + 6, STA + 4))
    p.I('v_mad_u32_u24 v13, v2, s%d, v3\nv_add_u32 v13, s%d, v13' % (STB + 6, STB + 4))
    p.I('s_lshl_b32 s4, s%d, 3\ns_mov_b32 s5, s%d\ns_mov_b32 s78, 0\ns_mov_b32 s14, s15\ns_add_u32 s13, s15, %d' % (STA + 6, STA + 5, NB * 4096))
    def issue():
        l1 = p.label_name('L_is')
        p.I('s_cmp_lg_u32 s78, 6\ns_cbranch_scc1 %s' % l1)
        p.I('v_mov_b32 v12, v13\ns_lshl_b32 s4, s%d, 3\ns_mov_b32 s5, s%d' % (STB + 6, STB + 5))
        for k in range(4): p.I('s_mov_b32 s%d, s%d' % (64 + k, 52 + k))
        p.label(l1)
        p.I('s_cmp_eq_u32 s78, 12\ns_cselect_b32 s7, 0x7f000000, 0\nv_add_u32 v12, s7, v12')
        p.I('v_mov_b32 v9, v12')
        for q in range(4):
            p.I('s_add_u32 m0, s14, %d' % (q * 1024))
            if q: p.I('v_add_u32 v9, s4, v9')
            p.I('buffer_load_dwordx4 v9, s[64:67], 0 offen lds', nowait=True)
        p.I('v_add_u32 v12, s5, v12\ns_add_u32 s78, s78, 1\ns_add_u32 s14, s14, 4096\ns_cmp_ge_u32 s14, s13\ns_cselect_b32 s14, s15, s14')
    pl = p.label_name('L_prime')
    p.I('v_mov_b32 v11, 0x7f000000')
    p.label(pl)
    issue()
    for f in range(4): p.I('buffer_store_dwordx4 v[20:23], v11, s[68:71], 0 offen', nowait=True)
    p.I('s_cmp_lt_u32 s78, %d\ns_cbranch_scc1 %s' % (NB - 1, pl))
    p.I('s_mov_b32 s79, 0\ns_mov_b32 s12, s15')
    lp = p.label_name('L_ptl')
    p.label(lp)
    def cst(k):
        if os.environ.get('PTST'):
            l = p.label_name('L_cs')
            p.I('s_cmp_lg_u32 s79, %s\ns_cbranch_scc1 %s' % (os.environ['PTST'], l)); c.stamp(k); p.label(l)
    cst(5)
    issue()
    cst(6)
    l2 = p.label_name('L_ps')
    p.I('s_cmp_lg_u32 s79, 6\ns_cbranch_scc1 %s' % l2)
    for k in (0, 1, 2, 3, 7, 8): p.I('s_mov_b32 s%d, s%d' % (STA + k, STB + k))
    p.label(l2)
    p.I('s_waitcnt vmcnt(%d)' % (8 * (NB - 1)))
    cst(7)
    R = 20
    labs = [p.label_name('L_k%d' % k) for k in range(4)]; le = p.label_name('L_ke')
    for k in range(1, 4): p.I('s_cmp_eq_u32 s%d, %d\ns_cbranch_scc1 %s' % (STA + 8, k, labs[k]))
    for k, (va, second) in enumerate(((14, 512), (15, 1024), (16, 512), (17, 1024))):
        if k: p.label(labs[k])
        p.I('v_add_u32 v10, s12, v%d' % va)
        for f in range(4):
            off = (f // 2) * 64 + (f % 2) * 2048 if k < 2 else 32 * f
            p.I('ds_read_b64_tr_b16 %s, v10 offset:%d' % (vr(R + 4 * f, 2), off), nowait=True)
            p.I('ds_read_b64_tr_b16 %s, v10 offset:%d' % (vr(R + 4 * f + 2, 2), off + second), nowait=True)
        if k < 3: p.I('s_branch %s' % le)
    p.label(le)
    p.I('s_waitcnt lgkmcnt(0)')
    cst(8)
    for f in range(4):
        p.I('v_add_u32 v11, s%d, v8\ns_add_u32 s%d, s%d, s%d' % (STA + f, STA + f, STA + f, STA + 7))
        p.I('buffer_store_dwordx4 %s, v11, s[68:71], 0 offen%s' % (vr(R + 4 * f, 4), c.sc), nowait=True)
    cst(9)
    p.I('s_add_u32 s12, s12, 4096\ns_cmp_ge_u32 s12, s13\ns_cselect_b32 s12, s15, s12')
    p.I('s_add_u32 s79, s79, 1\ns_cmp_lt_u32 s79, %d\ns_cbranch_scc1 %s' % (NU, lp))
    p.I('s_waitcnt vmcnt(0)'); p.cut()

def ring_start(c):
    p = c.p
    srd(p, 64, P_WS, 32 * 324 * 1024, off=L.W34T)
    p.I('s_lshl_b32 s6, s4, 2\ns_add_u32 s6, s6, s3\ns_mul_i32 s6, s6, %d\nv_lshl_add_u32 v2, v1, 4, s6' % (324 * 1024))
    c.wn = 0
    for n in range(RING): wload(c)

def ring_setup(c, sslice, vaddr):
    p = c.p
    srd(p, 64, P_WS, 32 * 324 * 1024, off=L.W34T)
    p.I('s_lshl_b32 s6, s%d, 2\ns_add_u32 s6, s6, s3\ns_mul_i32 s6, s6, %d\nv_lshl_add_u32 v%d, v1, 4, s6' % (sslice, 324 * 1024, vaddr))
    c.ring_off = 0

def ring_load_at(c, slot, n, vaddr):
    p = c.p
    c.ring_map = getattr(c, 'ring_map', {})
    c.ring_map[n] = slot
    need = (n // 4) * 4096
    if need != c.ring_off:
        p.I('v_add_u32 v%d, %d, v%d' % (vaddr, need - c.ring_off, vaddr)); c.ring_off = need
    p.I('buffer_load_dwordx4 %s, v%d, s[64:67], 0 offen offset:%d%s' % (ar(4 * slot, 4), vaddr, 1024 * (n % 4), c.sc))

def ring_resume(c):
    p = c.p
    srd(p, 64, P_WS, 32 * 324 * 1024, off=L.W34T)
    p.I('s_lshl_b32 s6, s4, 2\ns_add_u32 s6, s6, s3\ns_mul_i32 s6, s6, %d\ns_add_u32 s6, s6, %d\nv_lshl_add_u32 v2, v1, 4, s6' % (324 * 1024, (EARLY // 4) * 4096))
    c.wn = EARLY
    c.ptr = [(EARLY // 4) * 4096, None]
    c.wtok = {}

def stream_order():
    o = list(range(162))
    for ks in range(20):
        pb, kh = ks >> 1, ks & 1
        o.append(162 + 3 * pb + kh); o.append(216 + 2 * pb + kh)
        if kh: o.append(162 + 3 * pb + 2)
    for ks in range(20, 36):
        pb, kh = ks >> 1, ks & 1
        o.append(162 + 3 * pb + kh)
        if kh: o.append(162 + 3 * pb + 2)
    for ks in range(20, 36): o.append(216 + ks)
    o += list(range(252, 324))
    assert sorted(o) == list(range(324))
    return o
ORDER = stream_order()
VPTR = [2, 3]

def wload(c):
    p = c.p
    n = c.wn
    if n >= 324: return
    pos = ORDER[n]
    k = 1 if 216 <= pos < 252 else 0
    need = (pos // 4) * 4096
    if c.ptr[k] is None:
        p.I('v_add_u32 v%d, %d, v%d' % (VPTR[k], need - c.ptr[0], VPTR[0]) if need >= c.ptr[0] else 'v_subrev_u32 v%d, %d, v%d' % (VPTR[k], c.ptr[0] - need, VPTR[0]))
        c.ptr[k] = need
    elif need != c.ptr[k]:
        assert need > c.ptr[k]
        p.I('v_add_u32 v%d, %d, v%d' % (VPTR[k], need - c.ptr[k], VPTR[k])); c.ptr[k] = need
    c.wtok[n] = p.I('buffer_load_dwordx4 %s, v%d, s[64:67], 0 offen offset:%d%s' % (ar(4 * PERM[n % RING], 4), VPTR[k], 1024 * (pos % 4), c.sc))
    c.wn += 1

def ln_addr(c):
    p = c.p
    p.I('v_lshrrev_b32 v7, 1, v4\nv_lshlrev_b32 v9, 11, v7\ns_lshr_b32 s6, s3, 1\ns_lshl_b32 s6, s6, 10\nv_add_u32 v9, s6, v9')
    p.I('v_and_b32 v7, 1, v4\nv_lshlrev_b32 v7, 5, v7\ns_and_b32 s6, s3, 1\ns_lshl_b32 s6, s6, 4\nv_add_u32 v7, s6, v7\nv_add_u32 v7, v7, v3')
    for i in range(2):
        p.I('v_add_u32 v10, %d, v7\nv_xor_b32 v10, v10, v4\nv_lshl_add_u32 v%d, v10, 4, v9' % (8 * i, 11 + i))

def gelu4_lines(a, tmp, o, s1, vc2):
    L_ = []
    for r in range(4): L_.append('v_mul_f32 v%d, v%d, v%d' % (tmp + r, a + r, a + r))
    for r in range(4): L_.append('v_fma_f32 v%d, v%d, v%d, s%d' % (tmp + r, tmp + r, vc2, s1))
    for r in range(4): L_.append('v_mul_f32 v%d, v%d, v%d' % (tmp + r, tmp + r, a + r))
    for r in range(4): L_.append('v_exp_f32 v%d, v%d' % (tmp + r, tmp + r))
    for r in range(4): L_.append('v_add_f32 v%d, 1.0, v%d' % (tmp + r, tmp + r))
    for r in range(4): L_.append('v_rcp_f32 v%d, v%d' % (tmp + r, tmp + r))
    for r in range(4): L_.append('v_mul_f32 v%d, v%d, v%d' % (tmp + r, a + r, tmp + r))
    L_.append('v_cvt_pk_bf16_f32 v%d, v%d, v%d' % (o, tmp, tmp + 1))
    L_.append('v_cvt_pk_bf16_f32 v%d, v%d, v%d' % (o + 1, tmp + 2, tmp + 3))
    return L_

def mlp_setup(c):
    p = c.p
    gelu_consts(p, 8, 9)
    p.I('v_mov_b32 v20, s9')
    p.I('v_lshrrev_b32 v3, 5, v1')
    for q in range(4):
        p.I('v_add_u32 v4, %d, v3\nv_xor_b32 v4, v4, v1\nv_lshlrev_b32 v%d, 4, v4\nv_add_u32 v%d, 65536, v%d' % (2 * q, 14 + q, 24 + q, 14 + q))
    p.I('v_and_b32 v4, 15, v1\nv_bfe_u32 v5, v1, 4, 1\nv_lshl_add_u32 v4, v5, 5, v4')
    for par in range(2):
        p.I('v_lshlrev_b32 v6, 1, v3\nv_add_u32 v6, %d, v6\nv_add_u32 v6, v6, v5\nv_xor_b32 v6, v6, v4\nv_lshlrev_b32 v6, 4, v6\nv_lshl_add_u32 v%d, v3, 11, v6' % (4 * par, 28 + par))
    p.I('v_add_u32 v30, 65536, v28\nv_add_u32 v31, 65536, v29')
    p.I('v_lshlrev_b32 v18, 4, v1\nv_add_u32 v18, %d, v18\nv_add_u32 v19, 65536, v18' % G_BASE)
    p.I('v_lshlrev_b32 v60, 4, v4\nv_lshl_add_u32 v60, v3, 11, v60\nv_add_u32 v60, %d, v60\nv_add_u32 v61, 65536, v60' % G_BASE)
    p.I('s_lshl_b32 s6, s3, 13\nv_add_u32 v22, s6, v18\ns_add_u32 s6, s6, %d\nv_add_u32 v23, s6, v18' % (20 * 2048))
    p.I('v_lshlrev_b32 v62, 4, v4\nv_lshl_add_u32 v62, v3, 3, v62\ns_add_u32 s6, s3, 16\ns_lshl_b32 s6, s6, 11\ns_add_u32 s6, s6, %d\nv_add_u32 v62, s6, v62' % G_BASE)
    srd(p, 68, P_WS, 32 * 8 * 8 * 9216, off=L.PART)
    p.I('v_bfe_u32 v5, v1, 3, 2\nv_mul_u32_u24 v5, %d, v5\nv_and_b32 v6, 7, v1\nv_lshl_add_u32 v5, v6, 5, v5\nv_lshl_add_u32 v5, v3, 4, v5' % (8 * 9216))
    p.I('s_lshl_b32 s6, s5, 6\ns_add_u32 s6, s6, s4\ns_mul_i32 s6, s6, 9216\nv_add_u32 v21, s6, v5')
    p.I('v_bfe_u32 v5, v1, 3, 1\nv_mul_u32_u24 v5, %d, v5\nv_and_b32 v6, 7, v1\nv_lshl_add_u32 v5, v6, 5, v5\nv_lshrrev_b32 v6, 4, v1\nv_lshl_add_u32 v5, v6, 3, v5' % (8 * 9216))
    p.I('s_lshl_b32 s7, s3, 8\ns_add_u32 s7, s7, s6\ns_add_u32 s7, s7, 8192\nv_add_u32 v63, s7, v5')

def mlp_main(c):
    p = c.p
    GA, GS, GB = 64, 128, 160
    BF, SF = 224, 144
    GT, GO = 32, 40
    F = Filler(p)
    def gelu_big(acc, vaddr):
        k = 0
        for e in range(2):
            for tt in range(2):
                a = acc + 16 * (e * 2 + tt)
                for h in range(2):
                    o = GO + 4 * (k % 2)
                    for q in range(2):
                        F.add('\n'.join(gelu4_lines(a + 8 * h + 4 * q, GT + 4 * q, o + 2 * q, 8, 20)))
                    F.add('ds_write_b128 v%d, %s offset:%d' % (vaddr, vr(o, 4), e * 4096 + h * 2048 + tt * 1024))
                    k += 1
    def gelu_small():
        for tq in range(4):
            o = GO + 2 * (tq % 2)
            F.add('\n'.join(gelu4_lines(GS + 4 * tq, GT + 4 * (tq % 2), o, 8, 20)))
            F.add('ds_write_b64 v62, %s offset:%d' % (vr(o, 2), (tq >> 1) * 1024 + (tq & 1) * 256))
    step = [0]
    def big_step(accs, bregs, first):
        a = ar(4 * PERM[step[0] % RING], 4)
        for tt in range(2):
            cc = '0' if first else vr(accs[tt], 16)
            p.I('v_mfma_f32_32x32x16_bf16 %s, %s, %s, %s' % (vr(accs[tt], 16), a, vr(bregs[tt], 4), cc))
            F.tick()
        wload(c); step[0] += 1
    def small_step(acc, first):
        a = ar(4 * PERM[step[0] % RING], 4)
        for tq in range(4):
            cc = '0' if first else vr(acc + 4 * tq, 4)
            p.I('v_mfma_f32_16x16x32_bf16 %s, %s, %s, %s' % (vr(acc + 4 * tq, 4), a, vr(SF + 4 * tq, 4), cc))
        F.tick()
        wload(c); step[0] += 1
    btok = {}
    def ld_act(ks):
        for tt in range(2):
            off = A2_BASE + (ks * 2 + tt) * 1024
            btok[ks] = p.I('ds_read_b128 %s, v%d offset:%d' % (vr(BF + 8 * (ks % 3) + 4 * tt, 4), (14 if off < 65536 else 24) + (ks & 3), off % 65536))
    def ld_act_small(K2):
        for tq in range(4):
            off = A2_BASE + K2 * 4096 + (tq >> 1) * 1024 + (tq & 1) * 256
            p.I('ds_read_b128 %s, v%d offset:%d' % (vr(SF + 4 * tq, 4), (28 if off < 65536 else 30) + (K2 & 1), off % 65536))
    def ld_g(ksf):
        for tt in range(2):
            off = (ksf * 2 + tt) * 1024
            btok[ksf] = p.I('ds_read_b128 %s, v%d offset:%d' % (vr(BF + 8 * (ksf % 3) + 4 * tt, 4), 18 if off < 65536 else 19, off % 65536))
    def ld_g_small(K2):
        for tq in range(4):
            off = K2 * 4096 + (tq >> 1) * 1024 + (tq & 1) * 256
            p.I('ds_read_b128 %s, v%d offset:%d' % (vr(SF + 4 * tq, 4), 60 if off < 65536 else 61, off % 65536))
    def loop(acc, ntile, sacc, ldb, lds_, barrier_at=None, hook=None):
        ldb(0); ldb(1)
        for ks in range(36):
            if hook: hook(ks)
            if barrier_at is not None and ks == barrier_at:
                F.flush()
                p.I('s_waitcnt lgkmcnt(0)\ns_barrier')
                ldb(ks); ldb(ks + 1)
            nx = ks + 2
            if nx < 36 and not (barrier_at is not None and barrier_at - 2 <= ks < barrier_at): ldb(nx)
            if sacc is not None and ks % 2 == 0: lds_(ks >> 1)
            b = [BF + 8 * (ks % 3) + 4 * tt for tt in range(2)]
            p.wait(btok.get(ks), c.wtok.get(step[0] + ntile - 1))
            for e in range(ntile):
                big_step([acc + 16 * (e * 2 + tt) for tt in range(2)], b, ks == 0)
            if sacc is not None and ks % 2 == 1: small_step(sacc, ks == 1)
    loop(GA, 2, GS, ld_act, ld_act_small)
    c.mstamp(1)
    gelu_big(GA, 22); gelu_small(); F.set_rate(144 - 6)
    loop(GB, 2, None, ld_act, None)
    F.flush()
    c.mstamp(2)
    p.I('s_waitcnt lgkmcnt(0)\ns_barrier')
    O = [64, 96, 64, 96]; OS = 128
    def publish_big(acc, e):
        Ls = []
        for tt in range(2):
            a = acc + 16 * tt
            pk = 44 + 8 * tt
            for d in range(8): Ls.append('v_cvt_pk_bf16_f32 v%d, v%d, v%d' % (pk + d, a + 2 * d, a + 2 * d + 1))
            Ls.append('s_add_u32 s7, s10, %d' % (tt * 4 * 8 * 9216 + e * 2048))
            Ls.append('buffer_store_dwordx4 %s, v21, s[68:71], s7 offen%s' % (vr(pk, 4), c.sc))
            Ls.append('buffer_store_dwordx4 %s, v21, s[68:71], s7 offen offset:256%s' % (vr(pk + 4, 4), c.sc))
        return '\n'.join(Ls)
    def publish_small():
        Ls = []
        for tq in range(4):
            a = OS + 4 * tq; pk = 32 + 2 * tq
            Ls.append('v_cvt_pk_bf16_f32 v%d, v%d, v%d' % (pk, a, a + 1)); Ls.append('v_cvt_pk_bf16_f32 v%d, v%d, v%d' % (pk + 1, a + 2, a + 3))
            Ls.append('s_mov_b32 s7, %d' % (tq * 2 * 8 * 9216))
            Ls.append('buffer_store_dwordx2 %s, v63, s[68:71], s7 offen%s' % (vr(pk, 2), c.sc))
        return '\n'.join(Ls)
    p.I('s_lshl_b32 s10, s3, 9')
    def kloop(ks0, ks1, accs, sacc, hook=None):
        ld_g(ks0); ld_g(ks0 + 1)
        for ks in range(ks0, ks1):
            if hook: hook(ks)
            if ks + 2 < ks1: ld_g(ks + 2)
            if sacc is not None and ks % 2 == 0: ld_g_small(ks >> 1)
            b = [BF + 8 * (ks % 3) + 4 * tt for tt in range(2)]
            p.wait(btok.get(ks), c.wtok.get(step[0] + len(accs) - 1))
            for acc in accs: big_step([acc + 16 * tt for tt in range(2)], b, ks == 0)
            if sacc is not None and ks % 2 == 1: small_step(sacc, ks == 1)
    gelu_big(GB, 23); F.set_rate(80 + 10 - 4)
    kloop(0, 20, [O[0], O[1]], OS)
    F.flush()
    p.I('s_waitcnt lgkmcnt(0)\ns_barrier')
    kloop(20, 36, [O[0]], OS)
    c.mstamp(3)
    final_setup(c)
    F.add(publish_big(O[0], 0)); F.add(publish_small()); F.set_rate(28)
    kloop(20, 36, [O[1]], None)
    F.flush()
    final_ops(c)
    F.add(publish_big(O[1], 1)); F.set_rate(24)
    tok01 = [None]
    def hook2(ks):
        if ks == 16: F.flush(); tok01[0] = F.last_tok
        if ks == 30:
            p.wait(tok01[0]); p.I('s_barrier'); c.arrive_part(0)
    kloop(0, 36, [O[2]], None, hook=hook2)
    F.add(publish_big(O[2], 2)); F.set_rate(24)
    def hook3(ks):
        if ks == 18: c.poll_issue()
        if ks == 28:
            c.poll_check()
            final_gather(c, 0)
    kloop(0, 36, [O[3]], None, hook=hook3)
    F.flush()
    p.I(publish_big(O[3], 3))

FA, FB, FROW, FGB, FROWS, FGBS, FOOB = 4, 5, 6, 7, 8, 9, 10
PGA = 160
PS = 192
OPS = 208

def final_setup(c):
    p = c.p
    srd(p, 52, P_WS, L.S * 1152, off=L.X1); srd(p, 56, P_WS, L.S * 1152, off=L.X2)
    srd(p, 60, P_OUT, L.S * 1152); srd(p, 48, P_WS, 6 * 576 * 4, off=L.MOD)
    p.I('s_mov_b32 s99, 0xffff0000')
    p.I('s_lshl_b32 s6, s5, 3\ns_add_u32 s6, s6, s4\ns_mul_i32 s6, s6, %d\nv_lshl_add_u32 v%d, v0, 4, s6' % (8 * 9216, FA))
    p.I('v_cmp_gt_u32 vcc, 128, v0\nv_mov_b32 v%d, 0x7f000000\nv_lshlrev_b32 v%d, 3, v0\nv_add_u32 v%d, s6, v%d\nv_add_u32 v%d, 8192, v%d\nv_cndmask_b32 v%d, v%d, v%d, vcc' % (FOOB, FB, FB, FB, FB, FB, FB, FOOB, FB))
    p.I('v_bfe_u32 v11, v0, 1, 3\ns_lshl_b32 s6, s5, 6\ns_lshl_b32 s7, s4, 3\ns_add_u32 s6, s6, s7\nv_add_u32 v11, s6, v11\ns_movk_i32 s7, 1152\nv_mul_lo_u32 v11, v11, s7')
    p.I('v_bfe_u32 v12, v0, 5, 2\nv_lshlrev_b32 v12, 6, v12\nv_lshrrev_b32 v13, 7, v0\nv_lshl_add_u32 v12, v13, 5, v12\nv_and_b32 v13, 1, v0\nv_lshl_add_u32 v12, v13, 4, v12\nv_bfe_u32 v13, v0, 4, 1\nv_lshl_add_u32 v12, v13, 3, v12')
    p.I('v_lshl_add_u32 v%d, v12, 1, v11\nv_lshlrev_b32 v%d, 2, v12\nv_add_u32 v%d, %d, v%d' % (FROW, FGB, FGB, 5 * 2304, FGB))
    p.I('v_bfe_u32 v11, v0, 2, 3\nv_add_u32 v11, s6, v11\nv_mul_lo_u32 v11, v11, s7')
    p.I('v_lshrrev_b32 v12, 5, v0\nv_lshlrev_b32 v12, 4, v12\nv_and_b32 v13, 3, v0\nv_lshl_add_u32 v12, v13, 2, v12\nv_add_u32 v12, 256, v12')
    p.I('v_lshl_add_u32 v%d, v12, 1, v11\nv_lshlrev_b32 v%d, 2, v12\nv_add_u32 v%d, %d, v%d' % (FROWS, FGBS, FGBS, 5 * 2304, FGBS))
    p.I('v_cndmask_b32 v%d, v%d, v%d, vcc\nv_cndmask_b32 v%d, v%d, v%d, vcc' % (FROWS, FOOB, FROWS, FGBS, FOOB, FGBS))

X1P = [208, 24]; X2P = [212, 28]; GBP = [216, 144]; SX1, SX2, SGB = 152, 154, 156
def final_ops(c):
    p = c.p
    for k in range(2):
        p.I('buffer_load_dwordx4 %s, v%d, s[52:55], 0 offen offset:%d%s' % (vr(X1P[k], 4), FROW, 640 * k, c.sc))
        p.I('buffer_load_dwordx4 %s, v%d, s[56:59], 0 offen offset:%d%s' % (vr(X2P[k], 4), FROW, 640 * k, c.sc))
        p.I('buffer_load_dwordx4 %s, v%d, s[48:51], 0 offen offset:%d%s' % (vr(GBP[k], 4), FGB, 1280 * k, c.sc))
        p.I('buffer_load_dwordx4 %s, v%d, s[48:51], 0 offen offset:%d%s' % (vr(GBP[k] + 4, 4), FGB, 1280 * k + 16, c.sc))
    p.I('buffer_load_dwordx2 %s, v%d, s[52:55], 0 offen%s' % (vr(SX1, 2), FROWS, c.sc))
    p.I('buffer_load_dwordx2 %s, v%d, s[56:59], 0 offen%s' % (vr(SX2, 2), FROWS, c.sc))
    p.I('buffer_load_dwordx4 %s, v%d, s[48:51], 0 offen%s' % (vr(SGB, 4), FGBS, c.sc))

def final_gather(c, k):
    p = c.p
    for src in range(8):
        p.I('s_mov_b32 s7, %d\nbuffer_load_dwordx4 %s, v%d, s[68:71], s7 offen%s' % (src * 9216 + k * 4096, vr(PGA + 4 * src, 4), FA, c.sc))
    if k == 0:
        for src in range(8):
            p.I('s_mov_b32 s7, %d\nbuffer_load_dwordx2 %s, v%d, s[68:71], s7 offen%s' % (src * 9216, vr(PS + 2 * src, 2), FB, c.sc))

def final_piece(p, nd, src_reg, x1, x2, gb, out):
    AC, U = 32, 40
    for d in range(nd): unpack(p, AC + 2 * d, src_reg(0) + d, 99)
    for src in range(1, 8):
        u = U + 8 * (src % 2)
        for d in range(nd): unpack(p, u + 2 * d, src_reg(src) + d, 99)
        for d in range(nd): p.I('v_pk_add_f32 %s, %s, %s' % (vr(AC + 2 * d, 2), vr(AC + 2 * d, 2), vr(u + 2 * d, 2)))
    for d in range(nd): unpack(p, U + 2 * d, x2 + d, 99)
    for d in range(nd): p.I('v_pk_add_f32 %s, %s, %s' % (vr(AC + 2 * d, 2), vr(AC + 2 * d, 2), vr(U + 2 * d, 2)))
    for d in range(nd): unpack(p, U + 2 * d, x1 + d, 99)
    for d in range(nd): p.I('v_pk_fma_f32 %s, %s, %s, %s' % (vr(AC + 2 * d, 2), vr(AC + 2 * d, 2), vr(gb + 2 * d, 2), vr(U + 2 * d, 2)))
    for d in range(nd): p.I('v_cvt_pk_bf16_f32 v%d, v%d, v%d' % (out + d, AC + 2 * d, AC + 2 * d + 1))

def final_pair(c, k):
    p = c.p
    final_piece(p, 4, lambda src: PGA + 4 * src, X1P[k], X2P[k], GBP[k], 56)
    p.I('buffer_store_dwordx4 %s, v%d, s[60:63], 0 offen offset:%d' % (vr(56, 4), FROW, 640 * k))
    if k == 0:
        final_piece(p, 2, lambda src: PS + 2 * src, SX1, SX2, SGB, 60)
        p.I('buffer_store_dwordx2 %s, v%d, s[60:63], 0 offen' % (vr(60, 2), FROWS))
```

```python
import sys
sys.path.insert(0, 'gen')
from asmlib import *
import layout as L
import mk
import mlp32
import pt
from mk import (srd, udiv_magic, f2u, bf16_round, LOG2E, NAME, P_Q, P_K, P_V, P_SK, P_SSMK, P_SSMD, P_W1, P_W2, P_W3, P_W4,
                P_C, P_WMOD, P_OUT, P_DBG, P_WS, unpack, gelu_consts, gelu_inplace, reduce32, reduce8, small_out_addr, gemm_small,
                Filler, gelu_tile_lines, KC_STRIDE, KCOPY, XR_BASE, XR_STRIDE, RED_BASE, kernel_header, kernel_desc, assemble)

STAMPS = False
NCONV = 192
LS = 4352
K_SH, K_TOP, K_REL = 0, 16, 17
V_SH, V_TOP, V_REL = 18, 34, 35
M_CNT, M_REL, A_CNT, A_REL, B_CNT, B_REL = 36, 37, 38, 39, 40, 41
C_H1, C_X2, C_PART = 42, 106, 170
B3_CNT, B3_REL = 210, 211
C_PART0 = 212
C_PART1 = 256
NCNT = 320
S_SYNC = 72
SPIN_MAX = 1 << 17
import os
TAG_H1 = os.environ.get('TAG', '0') == '1'
PROBE = os.environ.get('PROBE', '1') == '1'
import os
SLEEP = int(os.environ.get('SLEEP', '1'))

class Ctx:
    def __init__(self):
        self.p = Prog(); self.mega = True; self.sc = ' sc1'; self.first_arrive_done = False
    def stamp(self, k, force=False):
        if not STAMPS: return
        if os.environ.get('FINE2') and k in (6, 7, 8, 9, 10, 11, 12, 13) and not getattr(self, 'fine', False): return
        if os.environ.get('FB') and k in (5, 6, 7, 8, 9, 10, 11, 12) and not getattr(self, 'inmlp', False): return
        if os.environ.get('CYC'):
            self.p.I('s_memtime s[76:77]\ns_waitcnt lgkmcnt(0)\nv_accvgpr_write_b32 a%d, s76' % (232 + k))
        else:
            self.p.I('s_memrealtime s[76:77]\ns_waitcnt lgkmcnt(0)\nv_accvgpr_write_b32 a%d, s76' % (232 + k))
    def mstamp(self, i):
        if 1 <= i < 4: self.stamp(17 + i)
    def stamp_out(self):
        if not STAMPS: return
        p = self.p
        self.stamp(23)
        srd(p, 48, P_WS, 1 << 20, off=L.DBG)
        p.I('s_lshl_b32 s76, s2, 2\ns_add_u32 s76, s76, s3\ns_lshl_b32 s76, s76, 7\nv_mov_b32 v2, s76')
        for k in range(24): p.I('buffer_store_dword a%d, v2, s[48:51], 0 offen offset:%d' % (232 + k, 4 * k if k < 23 else 124))

def wave0(p, lab):
    p.I('s_cmp_lg_u32 s3, 0\ns_cbranch_scc1 %s' % lab)

def atomic_ret(p):
    p.I('v_mov_b32 v253, 1\nbuffer_atomic_add v253, v252, s[%d:%d], 0 offen sc0 sc1\ns_waitcnt vmcnt(0)\nv_readfirstlane_b32 s76, v253\ns_nop 3' % (S_SYNC, S_SYNC + 3), nowait=True)

def do_arrive(c, kind, check_ready=False, **kw):
    p = c.p
    if check_ready: ready_check(c, None if check_ready is True else check_ready)
    p.I('s_mov_b64 exec, 1')
    done = p.label_name('L_ad')
    if kind == 'add':
        if kw.get('sgpr') is None: p.I('v_mov_b32 v252, %d' % (kw['idx'] * LS))
        else: p.I('s_mul_i32 s76, s%d, %d\ns_add_u32 s76, s76, %d\nv_mov_b32 v252, s76' % (kw['sgpr'], LS, kw['idx'] * LS))
        p.I('v_mov_b32 v253, 1\nbuffer_atomic_add v253, v252, s[%d:%d], 0 offen sc1' % (S_SYNC, S_SYNC + 3), nowait=True)
    else:
        if kind == 'two':
            p.I('s_mul_i32 s76, s%d, %d\ns_add_u32 s76, s76, %d\nv_mov_b32 v252, s76' % (kw['sgpr'], LS, kw['sh'] * LS))
            atomic_ret(p)
            p.I('s_cmp_lg_u32 s76, %d\ns_cbranch_scc1 %s' % (kw['per'] - 1, done))
            cnt, n = kw['top'], kw['nsh']
        else: cnt, n = kw['cnt'], kw['n']
        p.I('v_mov_b32 v252, %d' % (cnt * LS))
        atomic_ret(p)
        p.I('s_cmp_lg_u32 s76, %d\ns_cbranch_scc1 %s' % (n - 1, done))
        p.I('v_mov_b32 v252, %d\nv_mov_b32 v253, 1\nbuffer_store_dword v253, v252, s[%d:%d], 0 offen sc1' % (kw['rel'] * LS, S_SYNC, S_SYNC + 3), nowait=True)
    p.label(done)
    p.I('s_mov_b64 exec, -1'); p.cut()

def arrive(c, kind, check_ready=False, **kw):
    p = c.p
    p.I('s_waitcnt vmcnt(%d) lgkmcnt(0)\ns_barrier' % kw.pop('keep', 0)); p.cut()
    lab = p.label_name('L_arr')
    wave0(p, lab)
    do_arrive(c, kind, check_ready, **kw)
    p.label(lab); p.cut()

def wave_arrive(c, kind, check_ready=False, **kw):
    c.p.I('s_waitcnt vmcnt(0) lgkmcnt(0)'); c.p.cut()
    do_arrive(c, kind, check_ready, **kw)

def ready_probe(c, vreg):
    p = c.p
    srd(p, 64, P_DBG, 256)
    p.I('v_mov_b32 v%d, 0\nbuffer_load_dword v%d, v%d, s[64:67], 0 offen sc1' % (vreg, vreg, vreg))

def ready_check(c, probe=None):
    p = c.p
    lp = p.label_name('L_rdy'); dn = p.label_name('L_rdy_done')
    if probe is not None:
        p.I('v_readfirstlane_b32 s76, v%d\ns_nop 3\ns_cmp_lg_u32 s76, 0\ns_cbranch_scc1 %s' % (probe, dn))
    srd(p, 8, P_DBG, 256)
    p.I('s_mov_b32 s77, 0\nv_mov_b32 v252, 0')
    p.label(lp)
    p.I('buffer_load_dword v253, v252, s[8:11], 0 offen sc1\ns_waitcnt vmcnt(0)\nv_readfirstlane_b32 s76, v253', nowait=True)
    p.I('s_nop 3\ns_cmp_lg_u32 s76, 0\ns_cbranch_scc1 %s\ns_sleep 2\ns_add_u32 s77, s77, 1\ns_cmp_lt_u32 s77, %d\ns_cbranch_scc1 %s' % (dn, SPIN_MAX, lp))
    p.label(dn); p.cut()

def wait_cnt(c, setup, nlanes):
    p = c.p
    lab = p.label_name('L_wt'); lp = p.label_name('L_poll')
    wave0(p, lab)
    setup(p)
    p.I('s_mov_b32 s77, 0')
    p.I('s_mov_b64 exec, 0x%x' % ((1 << nlanes) - 1))
    p.label(lp)
    p.I('buffer_load_dword v253, v252, s[%d:%d], 0 offen sc1\ns_waitcnt vmcnt(0)\nv_cmp_lt_u32 vcc, v253, v254' % (S_SYNC, S_SYNC + 3), nowait=True)
    p.I('s_add_u32 s77, s77, 1\ns_cmp_ge_u32 s77, %d\ns_cbranch_scc1 %s_x\ns_cbranch_vccz %s_x' % (SPIN_MAX, lp, lp))
    if SLEEP: p.I('s_sleep %d' % SLEEP)
    p.I('s_branch %s' % lp)
    p.label(lp + '_x')
    p.I('s_mov_b64 exec, -1')
    p.label(lab)
    p.I('s_barrier'); p.cut()

def monitor(c):
    p = c.p
    ready_check(c)
    p.I('v_mov_b32 v20, %d\nv_mov_b32 v21, %d' % (K_SH * LS, 36))
    p.I('v_mul_u32_u24 v22, %d, v1\nv_add_u32 v20, v20, v22' % LS)
    p.I('v_subrev_u32 v23, 16, v1\nv_mul_u32_u24 v23, %d, v23\nv_add_u32 v23, %d, v23' % (LS, V_SH * LS))
    p.I('v_cmp_le_u32 vcc, 16, v1\nv_cndmask_b32 v20, v20, v23, vcc\nv_mov_b32 v24, 12\nv_cndmask_b32 v21, v21, v24, vcc')
    for lane, idx, tgt in ((32, M_CNT, 54), (33, A_CNT, 64), (34, B3_CNT, 63)):
        p.I('v_mov_b32 v23, %d\nv_mov_b32 v24, %d\nv_cmp_eq_u32 vcc, %d, v1\nv_cndmask_b32 v20, v20, v23, vcc\nv_cndmask_b32 v21, v21, v24, vcc' % (idx * LS, tgt, lane))
    p.I('s_mov_b32 s9, 0\ns_mov_b32 s10, 0\nv_mov_b32 v25, 1')
    lp = p.label_name('L_mon'); dn = p.label_name('L_mon_done')
    p.label(lp)
    p.I('s_mov_b64 exec, 0x3ffffffff' if False else 's_mov_b32 exec_lo, -1\ns_mov_b32 exec_hi, 7')
    p.I('buffer_load_dword v26, v20, s[%d:%d], 0 offen sc1\ns_waitcnt vmcnt(0)\nv_cmp_lt_u32 vcc, v26, v21' % (S_SYNC, S_SYNC + 3), nowait=True)
    p.I('s_nop 4\ns_mov_b64 s[6:7], vcc\ns_mov_b64 exec, 1')
    for bit, (expr, rel) in enumerate((('s_and_b32 s8, s6, 0xffff', K_REL), ('s_lshr_b32 s8, s6, 16', V_REL), ('s_and_b32 s8, s7, 1', M_REL), ('s_and_b32 s8, s7, 2', A_REL), ('s_and_b32 s8, s7, 4', B3_REL))):
        sk = p.label_name('L_ms')
        p.I('s_bitcmp1_b32 s9, %d\ns_cbranch_scc1 %s' % (bit, sk))
        p.I(expr)
        p.I('s_cmp_lg_u32 s8, 0\ns_cbranch_scc1 %s' % sk)
        p.I('v_mov_b32 v27, %d\nbuffer_store_dword v25, v27, s[%d:%d], 0 offen sc1\ns_bitset1_b32 s9, %d' % (rel * LS, S_SYNC, S_SYNC + 3, bit), nowait=True)
        p.label(sk)
    p.I('s_cmp_eq_u32 s9, 31\ns_cbranch_scc1 %s\ns_add_u32 s10, s10, 1\ns_cmp_lt_u32 s10, %d\ns_cbranch_scc1 %s' % (dn, SPIN_MAX, lp))
    p.label(dn)
    p.I('s_mov_b64 exec, -1\ns_waitcnt vmcnt(0)'); p.cut()

def wave_wait(c, *idx):
    p = c.p
    lp = p.label_name('L_ww')
    f, n = w_flags(*idx)
    f(p)
    p.I('s_mov_b32 s77, 0\ns_mov_b64 exec, 0x%x' % ((1 << n) - 1))
    p.label(lp)
    p.I('buffer_load_dword v253, v252, s[%d:%d], 0 offen sc1\ns_waitcnt vmcnt(0)\nv_cmp_lt_u32 vcc, v253, v254' % (S_SYNC, S_SYNC + 3), nowait=True)
    p.I('s_add_u32 s77, s77, 1\ns_cmp_ge_u32 s77, %d\ns_cbranch_scc1 %s_x\ns_cbranch_vccz %s_x\ns_sleep 1\ns_branch %s' % (SPIN_MAX, lp, lp, lp))
    p.label(lp + '_x')
    p.I('s_mov_b64 exec, -1'); p.cut()

def around_wait(c, fn, wait):
    p = c.p
    l0 = p.label_name('L_aw0'); l1 = p.label_name('L_aw1')
    p.I('s_cmp_eq_u32 s3, 0\ns_cbranch_scc1 %s' % l0)
    st = fn(None)
    p.label(l0); p.cut()
    wait()
    p.I('s_cmp_lg_u32 s3, 0\ns_cbranch_scc1 %s' % l1)
    fn(st)
    p.label(l1); p.cut()

def w_flags(*idx):
    def f(p):
        p.I('v_mov_b32 v252, %d\nv_mov_b32 v254, 1' % (idx[0] * LS))
        for k, i in enumerate(idx[1:]):
            p.I('v_mov_b32 v255, %d\nv_cmp_eq_u32 vcc, %d, v1\nv_cndmask_b32 v252, v252, v255, vcc' % (i * LS, k + 1))
    return f, len(idx)

def kv_addr(c):
    p = c.p
    m18 = udiv_magic(18, 800)
    p.I('s_mul_i32 s4, s2, 3\ns_add_u32 s4, s4, s3')
    p.I('s_mul_i32 s5, s4, %d\ns_lshr_b32 s5, s5, 16' % m18)
    p.I('s_mul_i32 s6, s5, 18\ns_sub_u32 s6, s4, s6')
    p.I('v_lshrrev_b32 v2, 2, v1\nv_and_b32 v3, 3, v1')
    p.I('s_lshl_b32 s7, s5, 6\nv_lshl_add_u32 v4, v2, 2, s7')
    p.I('s_lshl_b32 s8, s6, 6\nv_lshl_add_u32 v5, v3, 4, s8')
    p.I('s_movk_i32 s9, 1152\nv_mad_u32_u24 v6, v4, s9, v5')
    p.I('v_subrev_u32 v7, 3456, v6')
    p.I('s_mov_b32 s50, 0x%x\ns_mov_b32 s51, 0x20000\ns_mov_b32 s54, 0x%x\ns_mov_b32 s55, 0x20000' % (L.S * 1152, L.S * 1152))

def p0_kv(c, hook=None):
    p = c.p
    p.I('s_mov_b32 s48, s%d\ns_mov_b32 s49, s%d\ns_mov_b32 s52, s%d\ns_mov_b32 s53, s%d' % (P_K, P_K + 1, P_V, P_V + 1))
    KR, VR, SK = 8, 36, 52
    for i in range(3): p.I('buffer_load_dwordx4 %s, v7, s[48:51], 0 offen offset:%d' % (vr(KR + 4 * i, 4), 1152 * i))
    for i in range(4): p.I('buffer_load_dwordx4 %s, v6, s[48:51], 0 offen offset:%d' % (vr(KR + 4 * (3 + i), 4), 1152 * i))
    for i in range(4): p.I('buffer_load_dwordx4 %s, v6, s[52:55], 0 offen offset:%d' % (vr(VR + 4 * i, 4), 1152 * i))
    srd(p, 56, P_SK, 4608)
    p.I('v_lshlrev_b32 v68, 2, v5')
    for i in range(4): p.I('buffer_load_dwordx4 %s, v68, s[56:59], 0 offen offset:%d' % (vr(SK + 4 * i, 4), 16 * i))
    srd(p, 60, P_WS, L.D * 4096, off=L.XT)
    srd(p, S_SYNC, P_WS, 2 << 20, off=L.SYNC)
    p.I('v_lshlrev_b32 v69, 11, v5\nv_lshlrev_b32 v70, 1, v4\nv_sub_u32 v69, v69, v70\nv_add_u32 v69, 4088, v69')
    if hook: hook(c)
    p.I('s_mov_b32 s10, 0xffff0000')
    c.kv_probe = True
    if os.environ.get('FINE2'):
        c.fine = True; c.stamp(12); p.I('s_waitcnt vmcnt(0)'); c.stamp(13); c.fine = False
    C, KP, VP, AC, OUT = 72, 80, 94, 102, 112
    for pr in range(4):
        if pr == 1: ready_probe(c, 140)
        a0, a1, b0, b1 = SK + 4 * pr, SK + 4 * pr + 1, SK + 4 * pr + 2, SK + 4 * pr + 3
        p.I('v_lshlrev_b32 v%d, 16, v%d\nv_lshlrev_b32 v%d, 16, v%d' % (C, a0, C + 1, b0))
        p.I('v_and_b32 v%d, s10, v%d\nv_and_b32 v%d, s10, v%d' % (C + 2, a0, C + 3, b0))
        p.I('v_lshlrev_b32 v%d, 16, v%d\nv_lshlrev_b32 v%d, 16, v%d' % (C + 4, a1, C + 5, b1))
        p.I('v_and_b32 v%d, s10, v%d\nv_and_b32 v%d, s10, v%d' % (C + 6, a1, C + 7, b1))
        for i in range(7):
            p.I('v_lshlrev_b32 v%d, 16, v%d\nv_and_b32 v%d, s10, v%d' % (KP + 2 * i, KR + 4 * i + pr, KP + 2 * i + 1, KR + 4 * i + pr))
        for t in range(4):
            p.I('v_lshlrev_b32 v%d, 16, v%d\nv_and_b32 v%d, s10, v%d' % (VP + 2 * t, VR + 4 * t + pr, VP + 2 * t + 1, VR + 4 * t + pr))
        for t in range(4):
            acc = vr(AC + 2 * t, 2)
            p.I('v_pk_mul_f32 %s, %s, %s' % (acc, vr(C + 6, 2), vr(KP + 2 * t, 2)))
            p.I('v_pk_fma_f32 %s, %s, %s, %s' % (acc, vr(C + 4, 2), vr(KP + 2 * (t + 1), 2), acc))
            p.I('v_pk_fma_f32 %s, %s, %s, %s' % (acc, vr(C + 2, 2), vr(KP + 2 * (t + 2), 2), acc))
            p.I('v_pk_fma_f32 %s, %s, %s, %s' % (acc, vr(C, 2), vr(KP + 2 * (t + 3), 2), acc))
            p.I('v_pk_mul_f32 %s, %s, %s' % (acc, acc, vr(VP + 2 * t, 2)))
        o = OUT + 4 * pr
        p.I('v_cvt_pk_bf16_f32 v%d, v%d, v%d' % (o, AC + 6, AC + 4))
        p.I('v_cvt_pk_bf16_f32 v%d, v%d, v%d' % (o + 1, AC + 2, AC + 0))
        p.I('v_cvt_pk_bf16_f32 v%d, v%d, v%d' % (o + 2, AC + 7, AC + 5))
        p.I('v_cvt_pk_bf16_f32 v%d, v%d, v%d' % (o + 3, AC + 3, AC + 1))
        for h in range(2):
            p.I('s_mov_b32 s11, %d' % (4096 * (2 * pr + h)))
            p.I('buffer_store_dwordx2 %s, v69, s[60:63], s11 offen%s' % (vr(o + 2 * h, 2), c.sc))

KCS8 = 8 * KCOPY
XR8 = 3 * KCS8
RED8 = XR8 + 3 * XR_STRIDE

def p1_kcopies(c, hook=None):
    p = c.p
    p.I('s_mul_i32 s4, s2, %d' % (3 * 4096))
    for ch in range(3):
        p.I('s_add_u32 s5, s4, %d' % (4096 * ch))
        srd(p, 48 + 4 * ch, P_SSMK, 4096, soff=5)
    NR = 5
    D = 16
    p.I('v_lshlrev_b32 v2, 4, v1\nv_subrev_u32 v3, 128, v2')
    for ch in range(3):
        for rd in range(NR):
            r = D + 8 * (ch * NR + rd)
            if rd == 0:
                p.I('buffer_load_dwordx4 %s, v3, s[%d:%d], 0 offen' % (vr(r, 4), 48 + 4 * ch, 51 + 4 * ch))
                p.I('v_subrev_u32 v4, 112, v2\nbuffer_load_dwordx4 %s, v4, s[%d:%d], 0 offen' % (vr(r + 4, 4), 48 + 4 * ch, 51 + 4 * ch))
            else:
                p.I('v_add_u32 v4, %d, v2' % (1024 * rd - 128))
                p.I('buffer_load_dwordx4 %s, v4, s[%d:%d], 0 offen' % (vr(r, 4), 48 + 4 * ch, 51 + 4 * ch))
                p.I('buffer_load_dwordx4 %s, v4, s[%d:%d], 0 offen offset:16' % (vr(r + 4, 4), 48 + 4 * ch, 51 + 4 * ch))
    if hook: hook(c)
    p.I('v_mov_b32 v8, 0\nv_mov_b32 v9, 0\nv_mov_b32 v10, 0\nv_mov_b32 v11, 0')
    p.I('v_lshrrev_b32 v5, 4, v1\nv_and_b32 v6, 15, v1\nv_mul_u32_u24 v5, 48, v5\nv_add_u32 v5, v5, v6\nv_lshlrev_b32 v5, 4, v5\nv_add_u32 v5, %d, v5' % (XR8 + 32 * 16))
    for ch in range(3):
        p.I('ds_write_b128 v5, v[8:11] offset:%d\nds_write_b128 v5, v[8:11] offset:%d' % (ch * XR_STRIDE, ch * XR_STRIDE + 4 * 48 * 16))
    p.I('v_add_u32 v12, %d, v2\nv_add_u32 v13, %d, v2' % (KCS8, 2 * KCS8))
    T = 140
    for ch in range(3):
        va = (2, 12, 13)[ch]
        for rd in range(NR):
            r = D + 8 * (ch * NR + rd)
            t = T + 16 * ((ch * NR + rd) % 2)
            off = 1024 * rd
            if rd == NR - 1: p.I('s_mov_b64 exec, 0xfffff')
            for k in range(4): p.I('v_alignbit_b32 v%d, v%d, v%d, 16' % (t + k, r + k + 1, r + k))
            for k in range(4): p.I('v_mov_b32 v%d, v%d' % (t + 4 + k, r + k + 1))
            for k in range(4): p.I('v_alignbit_b32 v%d, v%d, v%d, 16' % (t + 8 + k, r + k + 2, r + k + 1))
            p.I('ds_write_b128 v%d, %s offset:%d' % (va, vr(t, 4), off))
            p.I('ds_write_b128 v%d, %s offset:%d' % (va, vr(t + 4, 4), off + KCOPY))
            p.I('ds_write_b128 v%d, %s offset:%d' % (va, vr(t + 8, 4), off + 2 * KCOPY))
            p.I('ds_write_b128 v%d, %s offset:%d' % (va, vr(r + 2, 4), off + 3 * KCOPY))
            for k in range(4): p.I('v_alignbit_b32 v%d, v%d, v%d, 16' % (t + 12 + k, r + k + 3, r + k + 2))
            p.I('ds_write_b128 v%d, %s offset:%d' % (va, vr(t + 12, 4), off + 4 * KCOPY))
            u = 172 if False else None
            for k in range(4): p.I('v_mov_b32 v%d, v%d' % (t + k, r + k + 3))
            for k in range(4): p.I('v_alignbit_b32 v%d, v%d, v%d, 16' % (t + 4 + k, r + k + 4, r + k + 3))
            p.I('ds_write_b128 v%d, %s offset:%d' % (va, vr(t, 4), off + 5 * KCOPY))
            p.I('ds_write_b128 v%d, %s offset:%d' % (va, vr(t + 4, 4), off + 6 * KCOPY))
            p.I('ds_write_b128 v%d, %s offset:%d' % (va, vr(r + 4, 4), off + 7 * KCOPY))
            if rd == NR - 1: p.I('s_mov_b64 exec, -1')

def p1_main(c):
    p = c.p
    srd(p, 48, P_WS, L.D * 4096, off=L.XT); srd(p, 52, P_WS, L.D * 4096, off=L.ZT)
    p.I('s_mul_i32 s4, s2, %d\ns_lshl_b32 s5, s3, 10\ns_add_u32 s5, s5, s4\nv_lshl_add_u32 v2, v1, 4, s5' % (3 * 4096))
    for ch in range(3):
        p.I('s_movk_i32 s6, %d\nbuffer_load_dwordx4 %s, v2, s[48:51], s6 offen%s' % (4096 * ch, vr(8 + 4 * ch, 4), c.sc))
    srd(p, 60, P_SSMD, 1152)
    p.I('s_mul_i32 s8, s2, 3\ns_min_u32 s9, s3, 2\ns_add_u32 s8, s8, s9\ns_lshl_b32 s8, s8, 1\nv_mov_b32 v20, s8')
    p.I('buffer_load_ushort v23, v20, s[60:63], 0 offen')
    p.I('v_and_b32 v3, 7, v1\nv_mul_u32_u24 v3, 48, v3\nv_lshrrev_b32 v4, 3, v1\nv_add_u32 v3, v3, v4\ns_lshl_b32 s6, s3, 3\nv_add_u32 v3, s6, v3\nv_lshlrev_b32 v3, 4, v3\nv_add_u32 v3, %d, v3' % XR8)
    VA0, VB0, VA, VB = 24, 25, 26, 27
    p.I('v_and_b32 v4, 7, v1\nv_mul_u32_u24 v4, %d, v4\nv_lshrrev_b32 v5, 4, v1\nv_bfe_u32 v6, v1, 3, 1\nv_add_u32 v6, v6, v5\nv_lshl_add_u32 v%d, v6, 4, v4' % (KCOPY, VA0))
    p.I('v_mul_u32_u24 v4, 48, v5\nv_and_b32 v6, 15, v1\nv_sub_u32 v4, v4, v6\nv_add_u32 v4, 15, v4\nv_lshlrev_b32 v%d, 4, v4' % VB0)
    wg_rb_ns(p)
    wfrag_setup(c, L.W1T, 64, 160)
    sent = sentinel_setup(c) if TAG_H1 else []
    for ch in range(3):
        p.I('ds_write_b128 v3, %s offset:%d' % (vr(8 + 4 * ch, 4), ch * XR_STRIDE))
    p.I('v_lshlrev_b32 v23, 16, v23')
    p.I('s_waitcnt lgkmcnt(0)\ns_barrier')
    p.cut()
    c.stamp(3)
    AS, BS1, BS0, ACC1, ACC0 = 32, 96, 112, 128, 144
    DIST = int(os.environ.get('DIST', '4'))
    w1 = [(e, ks) for ks in range(18) for e in range(3)]
    sq = list(sent)
    def w1_load():
        if not w1:
            if sq: p.I(sq.pop(0))
            return
        e, ks = w1.pop(0)
        if os.environ.get('NOW1') == '2': return
        if ks % 4 == 0 and ks > 0: p.I('v_add_u32 v%d, 4096, v%d' % (160 + e, 160 + e))
        p.I('buffer_load_dwordx4 %s, v%d, s[64:67], 0 offen offset:%d%s' % (ar(4 * (e * 18 + ks), 4), 160 + e, 1024 * (ks % 4), c.sc))
    def ldA(k, rel):
        r = AS + 8 * (k % 8)
        for f in range(2): p.I('ds_read_b128 %s, v%d offset:%d' % (vr(r + 4 * f, 4), VA, 64 * rel + 32 * f))
    def ldB(base, q, ct):
        p.I('ds_read_b128 %s, v%d offset:%d' % (vr(base + 4 * (q % 4), 4), VB, ((q & 1) * 4 * 48 + (q >> 1) + 16 * (1 - ct)) * 16))
    def segment(q0, q1, cts, every):
        act = lambda q: [x for x in cts if x[1] <= q < x[2]]
        for k in range(q0, q0 + DIST + 1): ldA(k, k)
        for q in range(q0, q0 + DIST):
            for ct, a0, a1, acc, bs in act(q): ldB(bs, q, ct)
        cnt = 0
        for q in range(q0, q1):
            for idx, (ct, a0, a1, acc, bs) in enumerate(act(q)):
                for rt in range(4):
                    a = AS + 8 * ((q + rt // 2) % 8) + 4 * (rt % 2)
                    p.I('v_mfma_f32_16x16x32_bf16 %s, %s, %s, %s' % (vr(acc + 4 * rt, 4), vr(a, 4), vr(bs + 4 * (q % 4), 4), '0' if q == a0 else vr(acc + 4 * rt, 4)))
                    if idx == 0 and rt == 0 and q + DIST + 1 <= q1: ldA(q + DIST + 1, q + DIST + 1)
                    if rt == 3 and q + DIST < a1: ldB(bs, q + DIST, ct)
            cnt += 1
            if cnt % every == 0 and os.environ.get('NOW1') != '1': w1_load()
    lw3 = p.label_name('L_cw3'); lj = p.label_name('L_cj')
    p.I('s_cmp_eq_u32 s3, 3\ns_cbranch_scc1 %s' % lw3)
    p.I('s_mul_i32 s14, s3, %d\nv_add_u32 v%d, s14, v%d\ns_mul_i32 s14, s3, %d\ns_add_u32 s14, s14, %d\nv_add_u32 v%d, s14, v%d' % (KCS8, VA, VA0, XR_STRIDE, XR8, VB, VB0))
    segment(0, 64, [(1, 0, 64, ACC1, BS1), (0, 0, 8, ACC0, BS0)], 1)
    while w1 or sq: w1_load()
    p.I('s_branch %s' % lj); p.cut()
    p.label(lw3)
    w1[:] = [(e, ks) for ks in range(18) for e in range(3)]
    sq[:] = list(sent)
    for ch in range(3):
        p.I('v_add_u32 v%d, %d, v%d\nv_add_u32 v%d, %d, v%d' % (VA, ch * KCS8, VA0, VB, XR8 + ch * XR_STRIDE, VB0))
        segment(8, 32, [(0, 8, 32, ACC0 if ch % 2 == 0 else ACC1, BS0)], 1)
        acc = ACC0 if ch % 2 == 0 else ACC1
        p.I('v_lshlrev_b32 v2, 4, v1\nv_add_u32 v2, %d, v2' % (RED8 + 4096 * ch))
        for rt in range(4): p.I('ds_write_b128 v2, %s offset:%d' % (vr(acc + 4 * rt, 4), 1024 * rt))
    while w1 or sq: w1_load()
    p.label(lj)
    p.I('s_waitcnt lgkmcnt(0)\ns_barrier')
    p.cut()
    c.stamp(4)
    done = p.label_name('L_conv_done')
    p.I('s_cmp_eq_u32 s3, 3\ns_cbranch_scc1 %s' % done)
    p.I('s_lshl_b32 s14, s3, 12\ns_add_u32 s14, s14, %d\nv_lshl_add_u32 v2, v1, 4, s14' % RED8)
    T = 32
    for rt in range(4): p.I('ds_read_b128 %s, v2 offset:%d' % (vr(T + 4 * rt, 4), 1024 * rt))
    p.I('v_lshrrev_b32 v5, 5, v1\nv_sub_u32 v5, 1, v5\nv_mul_u32_u24 v5, 48, v5\nv_and_b32 v6, 15, v1\nv_sub_u32 v5, v5, v6\nv_add_u32 v5, 15, v5\nv_lshlrev_b32 v5, 4, v5')
    p.I('v_bfe_u32 v6, v1, 4, 1\nv_sub_u32 v6, 1, v6\nv_lshl_add_u32 v5, v6, 3, v5')
    p.I('s_mul_i32 s14, s3, %d\ns_add_u32 s14, s14, %d\nv_add_u32 v5, s14, v5' % (XR_STRIDE, XR8))
    X = 48
    for ct in range(2):
        for rt in range(4):
            p.I('ds_read_b64 %s, v5 offset:%d' % (vr(X + 8 * ct + 2 * rt, 2), (2 * (3 - rt) * 48 + 16 * (1 - ct)) * 16))
    for i in range(16): p.I('v_add_f32 v%d, v%d, v%d' % (ACC0 + i, ACC0 + i, T + i))
    p.I('s_mul_i32 s14, s2, 3\ns_add_u32 s14, s14, s3\ns_lshl_b32 s14, s14, 12')
    p.I('v_and_b32 v6, 7, v1\nv_lshl_add_u32 v6, v6, 7, s14\nv_lshrrev_b32 v7, 5, v1\nv_lshl_add_u32 v6, v7, 4, v6\nv_bfe_u32 v7, v1, 4, 1\nv_lshl_add_u32 v6, v7, 5, v6\nv_bfe_u32 v7, v1, 3, 1\nv_lshl_add_u32 v6, v7, 6, v6')
    p.I('s_mov_b32 s10, 0xffff0000')
    Z, U = 64, 80
    for ct in range(2):
        src = ACC0 if ct == 0 else ACC1
        for rt in range(4):
            x0, x1 = X + 8 * ct + 2 * rt, X + 8 * ct + 2 * rt + 1
            a = src + 4 * rt
            p.I('v_and_b32 v%d, s10, v%d\nv_lshlrev_b32 v%d, 16, v%d\nv_and_b32 v%d, s10, v%d\nv_lshlrev_b32 v%d, 16, v%d' % (U, x1, U + 1, x1, U + 2, x0, U + 3, x0))
            for r in range(4): p.I('v_fmac_f32 v%d, v23, v%d' % (a + r, U + r))
            zb = Z + 8 * ct + 4 * (rt // 2) + 2 * (rt % 2)
            p.I('v_cvt_pk_bf16_f32 v%d, v%d, v%d\nv_cvt_pk_bf16_f32 v%d, v%d, v%d' % (zb, a, a + 1, zb + 1, a + 2, a + 3))
        P0_, P1_ = Z + 8 * ct, Z + 8 * ct + 4
        for zb in (P0_, P1_):
            p.I('v_permlane16_swap_b32 v%d, v%d\nv_permlane16_swap_b32 v%d, v%d' % (zb, zb + 2, zb + 1, zb + 3))
        T_ = 84
        for k in range(4): p.I('v_mov_b32 v%d, v%d' % (T_ + k, P0_ + k))
        for k in range(4): p.I('v_mov_b32_dpp v%d, v%d row_ror:8 row_mask:0xf bank_mask:0xc' % (P0_ + k, P1_ + k))
        for k in range(4): p.I('v_mov_b32_dpp v%d, v%d row_ror:8 row_mask:0xf bank_mask:0x3' % (P1_ + k, T_ + k))
        p.I('buffer_store_dwordx4 %s, v6, s[52:55], 0 offen offset:%d%s' % (vr(P0_, 4), 2048 * ct, c.sc))
        p.I('buffer_store_dwordx4 %s, v6, s[52:55], 0 offen offset:%d%s' % (vr(P1_, 4), 2048 * ct + 1024, c.sc))
    p.label(done)

MODW = 100
def p0_mod_loads(c, wg0):
    p = c.p
    p.I('s_sub_u32 s4, s2, %d' % wg0)
    srd(p, 8, P_C, 1152); srd(p, 52, P_WMOD, 576 * 6912)
    p.I('v_lshlrev_b32 v2, 1, v0')
    for i in range(3): p.I('buffer_load_ushort v%d, v2, s[8:11], 0 offen offset:%d' % (172 + i, 512 * i))
    p.I('v_lshrrev_b32 v8, 3, v0\nv_and_b32 v9, 7, v0')
    p.I('s_lshl_b32 s6, s4, 7\nv_lshl_add_u32 v10, v9, 4, s6\ns_movk_i32 s7, 6912\nv_mad_u32_u24 v10, v8, s7, v10')
    for i in range(18):
        p.I('buffer_load_dwordx4 %s, v10, s[52:55], 0 offen' % vr(MODW + 4 * i, 4))
        if i < 17: p.I('v_add_u32 v10, %d, v10' % (32 * 6912))

MODL = 131072
def p0_mod_compute(c, wg0):
    p = c.p
    W = MODW
    p.I('s_sub_u32 s4, s2, %d' % wg0)
    srd(p, 52, P_WS, 6 * 576 * 4, off=L.MOD)
    p.I('v_lshrrev_b32 v8, 3, v0\nv_and_b32 v9, 7, v0')
    p.I('s_mov_b32 s8, 0x%x' % f2u(-LOG2E))
    p.I('v_lshlrev_b32 v12, 2, v0\nv_add_u32 v12, %d, v12' % MODL)
    for i in range(3):
        r = 172 + i
        p.I('v_lshlrev_b32 v%d, 16, v%d' % (r, r))
        p.I('v_mul_f32 v13, s8, v%d\nv_exp_f32 v13, v13\nv_add_f32 v13, 1.0, v13\nv_rcp_f32 v13, v13\nv_mul_f32 v13, v%d, v13' % (r, r))
        bf16_round(p, 13, 13)
        p.I('ds_write_b32 v12, v13 offset:%d' % (1024 * i))
    p.I('s_waitcnt lgkmcnt(0)\ns_barrier')
    p.I('v_lshlrev_b32 v14, 2, v8\nv_add_u32 v14, %d, v14' % MODL)
    SV = 40
    for i in range(18): p.I('ds_read_b32 v%d, v14 offset:%d' % (SV + i, 128 * i))
    AC, T = 16, 24
    p.I('s_mov_b32 s10, 0xffff0000')
    for i in range(18):
        for d in range(4): unpack(p, T + 2 * d, W + 4 * i + d, 10)
        for d in range(4):
            sv = vr((SV + i) & ~1, 2)
            mods = 'op_sel_hi:[1,0,1]' if i % 2 == 0 else 'op_sel:[0,1,0] op_sel_hi:[1,1,1]'
            if i == 0: p.I('v_pk_mul_f32 %s, %s, %s op_sel_hi:[1,0]' % (vr(AC + 2 * d, 2), vr(T + 2 * d, 2), sv))
            else: p.I('v_pk_fma_f32 %s, %s, %s, %s %s' % (vr(AC + 2 * d, 2), vr(T + 2 * d, 2), sv, vr(AC + 2 * d, 2), mods))
    p.I('v_lshlrev_b32 v15, 8, v8\nv_lshl_add_u32 v15, v9, 5, v15\nv_add_u32 v15, %d, v15' % MODL)
    p.I('ds_write_b128 v15, %s offset:4096\nds_write_b128 v15, %s offset:4112' % (vr(AC, 4), vr(AC + 4, 4)))
    p.I('s_waitcnt lgkmcnt(0)\ns_barrier')
    lab = p.label_name('L_mod_skip')
    wave0(p, lab)
    p.I('v_lshlrev_b32 v14, 2, v0\nv_add_u32 v14, %d, v14' % MODL)
    W2_ = 40
    for i in range(32): p.I('ds_read_b32 v%d, v14 offset:%d' % (W2_ + i, 4096 + 256 * i))
    n = 32
    while n > 1:
        n //= 2
        for i in range(n): p.I('v_add_f32 v%d, v%d, v%d' % (W2_ + i, W2_ + i, W2_ + i + n))
    p.I('v_mov_b32 v16, v%d' % W2_)
    bf16_round(p, 16, 16)
    m9 = udiv_magic(9, 64)
    p.I('s_mul_i32 s9, s4, %d\ns_lshr_b32 s9, s9, 16' % m9)
    p.I('s_cmp_eq_u32 s9, 1\ns_cselect_b32 s11, 1, 0\ns_cmp_eq_u32 s9, 4\ns_cselect_b32 s11, 1, s11')
    p.I('v_cvt_f32_u32 v17, s11\nv_add_f32 v16, v16, v17')
    bf16_round(p, 16, 16)
    p.I('s_lshl_b32 s6, s4, 8\nv_lshl_add_u32 v18, v0, 2, s6')
    p.I('buffer_store_dword v16, v18, s[52:55], 0 offen%s' % c.sc)
    p.label(lab); p.cut()

PT_NB = 4
def pt_setup(c):
    p = c.p
    p.I('v_lshrrev_b32 v2, 3, v1\nv_and_b32 v3, 7, v1\nv_lshlrev_b32 v3, 4, v3')
    p.I('v_lshrrev_b32 v4, 4, v1\nv_bfe_u32 v5, v1, 2, 2\nv_and_b32 v9, 3, v1')
    p.I('v_lshl_add_u32 v6, v4, 3, v5\nv_lshlrev_b32 v6, 7, v6\nv_lshl_add_u32 v6, v9, 3, v6')
    p.I('v_lshl_add_u32 v7, v4, 2, v5\nv_lshlrev_b32 v7, 7, v7\nv_lshl_add_u32 v7, v9, 5, v7')
    p.I('v_lshlrev_b32 v8, 4, v1')
    p.I('s_mul_i32 s96, s3, %d' % (PT_NB * 4096))
    srd(p, 48, P_W1, 576 * 1152); srd(p, 52, P_W2, 576 * 1152); srd(p, 56, P_W3, 576 * 9216); srd(p, 60, P_W4, 4608 * 1152)
    srd(p, 68, P_WS, L.W34T + 32 * 324 * 1024 - L.W1T, off=L.W1T)

def pt_src(c, su, mode):
    p = c.p
    if mode == '12':
        p.I('s_cmp_ge_u32 s%d, 162\ns_cselect_b32 s15, 1, 0\ns_cselect_b32 s7, 162, 0\ns_sub_u32 s7, s%d, s7' % (su, su))
        p.I('s_mul_i32 s8, s7, %d\ns_lshr_b32 s8, s8, 16\ns_mul_i32 s9, s8, 9\ns_sub_u32 s9, s7, s9' % udiv_magic(9, 600))
        p.I('s_movk_i32 s11, 1152')
        p.I('s_cmp_eq_u32 s15, 1')
        for k in range(4): p.I('s_cselect_b32 s%d, s%d, s%d' % (64 + k, 52 + k, 48 + k))
        lim = 324
    else:
        p.I('s_cmp_ge_u32 s%d, 1296\ns_cselect_b32 s15, 1, 0\ns_cselect_b32 s7, 1296, 0\ns_sub_u32 s7, s%d, s7' % (su, su))
        p.I('s_mul_i32 s8, s7, %d\ns_lshr_b32 s8, s8, 20\ns_mul_i32 s12, s7, %d\ns_lshr_b32 s12, s12, 20' % (udiv_magic(72, 2600, 20), udiv_magic(9, 2600, 20)))
        p.I('s_cmp_eq_u32 s15, 1\ns_cselect_b32 s8, s12, s8\ns_cselect_b32 s12, 9, 72\ns_movk_i32 s11, 9216\ns_cselect_b32 s11, 1152, s11')
        for k in range(4): p.I('s_cselect_b32 s%d, s%d, s%d' % (64 + k, 60 + k, 56 + k))
        p.I('s_mul_i32 s9, s8, s12\ns_sub_u32 s9, s7, s9')
        lim = 2592
    p.I('s_mul_i32 s10, s8, s11\ns_lshl_b32 s10, s10, 5\ns_lshl_b32 s12, s9, 7\ns_add_u32 s10, s10, s12')
    p.I('s_cmp_ge_u32 s%d, %d\ns_cselect_b32 s10, 0x7f000000, s10' % (su, lim))

def pt_dst(c, su, mode):
    p = c.p
    m18 = udiv_magic(18, 300)
    if mode == '12':
        p.I('s_mul_i32 s12, s9, %d\ns_lshl_b32 s13, s8, 10\ns_add_u32 s12, s12, s13\ns_mul_i32 s13, s15, %d\ns_add_u32 s12, s12, s13' % (4 * 18 * 1024, L.W2T - L.W1T))
        for j in range(4): p.I('s_add_u32 s%d, s12, %d' % (80 + j, j * 18 * 1024))
        lim = 324
    else:
        w4 = p.label_name('L_d4'); dn = p.label_name('L_dd')
        p.I('s_cmp_eq_u32 s15, 1\ns_cbranch_scc1 %s' % w4)
        for j in range(4):
            p.I('s_lshl_b32 s12, s9, 2\ns_add_u32 s12, s12, %d' % j)
            p.I('s_mul_i32 s13, s12, %d\ns_lshr_b32 s13, s13, 16\ns_mul_i32 s14, s13, 36\ns_sub_u32 s12, s12, s14' % udiv_magic(36, 300))
            p.I('s_mul_i32 s14, s12, %d\ns_lshr_b32 s14, s14, 16\ns_mul_i32 s84, s14, 12\ns_sub_u32 s12, s12, s84' % udiv_magic(12, 40))
            p.I('s_mul_i32 s84, s12, %d\ns_lshr_b32 s84, s84, 16\ns_mul_i32 s85, s84, 3\ns_sub_u32 s12, s12, s85' % udiv_magic(3, 16))
            p.I('s_lshl_b32 s13, s13, 2\ns_add_u32 s13, s13, s84\ns_mul_i32 s13, s13, 324\ns_mul_i32 s14, s14, 54\ns_add_u32 s13, s13, s14\ns_mul_i32 s14, s8, 3\ns_add_u32 s13, s13, s14\ns_add_u32 s13, s13, s12\ns_lshl_b32 s13, s13, 10\ns_add_u32 s%d, s13, %d' % (80 + j, L.W34T - L.W1T))
        p.I('s_branch %s' % dn)
        p.label(w4)
        p.I('s_mul_i32 s12, s8, %d\ns_lshr_b32 s12, s12, 16\ns_mul_i32 s13, s12, 18\ns_sub_u32 s13, s8, s13' % m18)
        for j in range(4):
            p.I('s_and_b32 s14, s9, 3\ns_lshl_b32 s84, s13, 2\ns_add_u32 s84, s84, %d' % (162 + j))
            p.I('s_cmp_ge_u32 s9, 4\ns_cselect_b32 s85, 72, 0\ns_add_u32 s84, s84, s85')
            p.I('s_add_u32 s85, s13, 306\ns_cmp_eq_u32 s9, 8\ns_cselect_b32 s84, s85, s84\ns_cselect_b32 s14, %d, s14' % j)
            p.I('s_lshl_b32 s85, s12, 2\ns_add_u32 s85, s85, s14\ns_mul_i32 s85, s85, 324\ns_add_u32 s85, s85, s84\ns_lshl_b32 s85, s85, 10\ns_add_u32 s%d, s85, %d' % (80 + j, L.W34T - L.W1T))
        p.label(dn)
        lim = 2592
    p.I('s_cmp_ge_u32 s%d, %d' % (su, lim))
    for j in range(4): p.I('s_cselect_b32 s%d, 0x7f000000, s%d' % (80 + j, 80 + j))

def pt_issue(c, sbuf):
    p = c.p
    p.I('v_mad_u32_u24 v9, v2, s11, v3\nv_add_u32 v9, s10, v9\ns_lshl_b32 s12, s11, 3')
    for q in range(4):
        p.I('s_add_u32 m0, s%d, %d' % (sbuf, q * 1024))
        if q: p.I('v_add_u32 v9, s12, v9')
        p.I('buffer_load_dwordx4 v9, s[64:67], 0 offen lds', nowait=True)

def pt_process(c, sbuf, mode):
    p = c.p
    R = 16
    def reads(va, jstride, second):
        p.I('v_add_u32 v10, s%d, v%d' % (sbuf, va))
        for j in range(4):
            p.I('ds_read_b64_tr_b16 %s, v10 offset:%d' % (vr(R + 4 * j, 2), j * jstride))
            p.I('ds_read_b64_tr_b16 %s, v10 offset:%d' % (vr(R + 4 * j + 2, 2), j * jstride + second))
    if mode == '12': reads(6, 32, 512)
    else:
        lb = p.label_name('L_kb'); le = p.label_name('L_ke')
        p.I('s_cmp_eq_u32 s15, 1\ns_cbranch_scc1 %s' % lb)
        reads(6, 32, 512)
        p.I('s_branch %s' % le)
        p.label(lb)
        reads(7, 8, 2048)
        p.label(le)
    p.I('s_waitcnt lgkmcnt(0)');
    for j in range(4):
        p.I('v_add_u32 v11, s%d, v8' % (80 + j))
        if os.environ.get('NOST'): continue
        p.I('buffer_store_dwordx4 %s, v11, s[68:71], 0 offen%s' % (vr(R + 4 * j, 4), '' if os.environ.get('PLAINST') else c.sc), nowait=True)

def pretile(c, mode, su0):
    p = c.p
    p.comment('---- pretile %s' % mode)
    lim = 324 if mode == '12' else 2592
    p.I('s_mov_b32 s86, s%d\ns_mov_b32 s87, s%d\ns_mov_b32 s88, s96\ns_mov_b32 s89, s96\ns_add_u32 s90, s96, %d' % (su0, su0, PT_NB * 4096))
    def adv(r): p.I('s_add_u32 s%d, s%d, 4096\ns_cmp_ge_u32 s%d, s90\ns_cselect_b32 s%d, s96, s%d' % (r, r, r, r, r))
    for k in range(PT_NB - 1):
        pt_src(c, 86, mode); pt_issue(c, 88); adv(88); p.I('s_add_u32 s86, s86, 256')
    loop = p.label_name('L_pt'); done = p.label_name('L_pt_done')
    first = True
    p.label(loop)
    p.I('s_cmp_ge_u32 s87, %d\ns_cbranch_scc1 %s' % (lim, done))
    pt_src(c, 86, mode); pt_issue(c, 88); adv(88); p.I('s_add_u32 s86, s86, 256')
    p.I('s_waitcnt vmcnt(%d)' % (4 * (PT_NB - 1)))
    pt_src(c, 87, mode); pt_dst(c, 87, mode)
    pt_process(c, 89, mode); adv(89); p.I('s_add_u32 s87, s87, 256')
    p.I('s_branch %s' % loop)
    p.label(done); p.cut()
    p.I('s_waitcnt vmcnt(0)')

def ln_stats(p, X, ntok, nj, ST, red, stride=2):
    for j in range(nj):
        for i in range(ntok):
            x = vr(X + (i * nj + j) * stride, 2)
            if j == 0:
                p.I('v_pk_mul_f32 %s, %s, %s' % (vr(ST + 4 * i + 2, 2), x, x))
            else:
                p.I('v_pk_fma_f32 %s, %s, %s, %s' % (vr(ST + 4 * i + 2, 2), x, x, vr(ST + 4 * i + 2, 2)))
            if j == 1:
                p.I('v_pk_add_f32 %s, %s, %s' % (vr(ST + 4 * i, 2), vr(X + (i * nj) * stride, 2), x))
            elif j > 1:
                p.I('v_pk_add_f32 %s, %s, %s' % (vr(ST + 4 * i, 2), vr(ST + 4 * i, 2), x))
    for i in range(ntok):
        p.I('v_add_f32 v%d, v%d, v%d\nv_add_f32 v%d, v%d, v%d' % (ST + 4 * i, ST + 4 * i, ST + 4 * i + 1, ST + 4 * i + 2, ST + 4 * i + 2, ST + 4 * i + 3))
    red([ST + 4 * i for i in range(ntok)] + [ST + 4 * i + 2 for i in range(ntok)])
    for i in range(ntok):
        a = ST + 4 * i
        p.I('v_mul_f32 v%d, s98, v%d\nv_mul_f32 v%d, s98, v%d' % (a, a, a + 2, a + 2))
    for i in range(ntok):
        a = ST + 4 * i
        p.I('v_fma_f32 v%d, -v%d, v%d, v%d' % (a + 2, a, a, a + 2))
    for i in range(ntok):
        a = ST + 4 * i
        p.I('v_max_f32 v%d, 0, v%d' % (a + 2, a + 2))
    for i in range(ntok):
        a = ST + 4 * i
        p.I('v_add_f32 v%d, s97, v%d' % (a + 2, a + 2))
    for i in range(ntok):
        a = ST + 4 * i
        p.I('v_rsq_f32 v%d, v%d' % (a + 2, a + 2))
    for i in range(ntok):
        a = ST + 4 * i
        p.I('v_mul_f32 v%d, -v%d, v%d' % (a + 1, a, a + 2))
    for i in range(ntok):
        a = ST + 4 * i
        p.I('v_mov_b32 v%d, v%d' % (a, a + 2))

def ln_apply(p, dst, src, P):
    p.I('v_pk_fma_f32 %s, %s, %s, %s op_sel:[0,0,1] op_sel_hi:[1,0,1]' % (vr(dst, 2), vr(src, 2), vr(P, 2), vr(P, 2)))

def gemm_small2(c, lds_base, abase, ACC, BF, after_ks=None):
    p = c.p
    p.I('v_and_b32 v2, 15, v1\nv_lshrrev_b32 v8, 4, v1\nv_xor_b32 v2, v2, v8\nv_lshl_add_u32 v2, v8, 4, v2\nv_lshlrev_b32 v2, 4, v2\nv_add_u32 v2, %d, v2' % lds_base)
    def ldb(ks):
        for tt in range(2):
            p.I('ds_read_b128 %s, v2 offset:%d' % (vr(BF + 8 * (ks % 3) + 4 * tt, 4), (ks * 2 + tt) * 1024))
    ldb(0); ldb(1)
    for ks in range(18):
        if ks + 2 < 18: ldb(ks + 2)
        for e in range(3):
            for tt in range(2):
                a = ACC + 4 * (e * 2 + tt)
                p.I('v_mfma_f32_16x16x32_bf16 %s, %s, %s, %s' % (vr(a, 4), ar(abase + 4 * (e * 18 + ks), 4), vr(BF + 8 * (ks % 3) + 4 * tt, 4), '0' if ks == 0 else vr(a, 4)))
        if after_ks: after_ks(ks)

def wfrag_setup(c, wsoff, srdslot, vaddr):
    p = c.p
    srd(p, srdslot, P_WS, 36 * 18 * 1024, off=wsoff)
    p.I('s_mul_i32 s6, s5, 12\ns_mul_i32 s7, s3, 3\ns_add_u32 s6, s6, s7\ns_mul_i32 s6, s6, %d' % (18 * 1024))
    p.I('v_lshl_add_u32 v%d, v1, 4, s6\nv_add_u32 v%d, %d, v%d\nv_add_u32 v%d, %d, v%d' % (vaddr, vaddr + 1, 18 * 1024, vaddr, vaddr + 2, 36 * 1024, vaddr))

def wfrag_load(c, srdslot, vaddr, abase, ks):
    p = c.p
    for e in range(3):
        if ks % 4 == 0 and ks > 0: p.I('v_add_u32 v%d, 4096, v%d' % (vaddr + e, vaddr + e))
        p.I('buffer_load_dwordx4 %s, v%d, s[%d:%d], 0 offen offset:%d%s' % (ar(abase + 4 * (e * 18 + ks), 4), vaddr + e, srdslot, srdslot + 3, 1024 * (ks % 4), c.sc))

ZS_BASE, A1_BASE = 0, 36864
XF, GH, CB, SB, TM, ST2 = 16, 88, 160, 178, 196, 232

def wg_rb_ns(p):
    m3 = udiv_magic(3, 256)
    p.I('s_lshr_b32 s5, s2, 3\ns_mul_i32 s4, s5, %d\ns_lshr_b32 s4, s4, 16\ns_mul_i32 s6, s4, 3\ns_sub_u32 s5, s5, s6\ns_and_b32 s6, s2, 7\ns_lshl_b32 s6, s6, 3\ns_add_u32 s4, s4, s6' % m3)

def load_wfrags(c, wsoff, abase):
    p = c.p
    srd(p, 64, P_WS, 36 * 18 * 1024, off=wsoff)
    p.I('s_mul_i32 s6, s5, 12\ns_mul_i32 s7, s3, 3\ns_add_u32 s6, s6, s7\ns_mul_i32 s6, s6, %d' % (18 * 1024))
    p.I('v_lshl_add_u32 v2, v1, 4, s6')
    for e in range(3):
        for ks in range(18):
            idx = e * 18 + ks
            if idx % 4 == 0 and idx > 0: p.I('v_add_u32 v2, 4096, v2')
            p.I('buffer_load_dwordx4 %s, v2, s[64:67], 0 offen offset:%d%s' % (ar(abase + 4 * idx, 4), 1024 * (idx % 4), c.sc))

def red32(p, tmp):
    return lambda regs: reduce32(p, regs, tmp)

XP, P0S = 180, 216
PRM_BASE = 73728
HPL_BASE, HPL_RS = 86016, 400

def p2_xload(c):
    p = c.p
    wg_rb_ns(p)
    srd(p, 68, P_Q, L.S * 1152)
    p.I('v_lshrrev_b32 v172, 5, v1\nv_and_b32 v173, 31, v1')
    p.I('s_lshl_b32 s6, s4, 5\ns_lshl_b32 s7, s3, 3\ns_add_u32 s6, s6, s7\nv_lshl_add_u32 v174, v172, 2, s6')
    p.I('s_movk_i32 s7, 1152\nv_mul_lo_u32 v178, v174, s7\nv_lshl_add_u32 v178, v173, 2, v178\nv_add_u32 v179, 2304, v178')
    for i in range(4):
        for j in range(9):
            p.I('buffer_load_dword v%d, v%d, s[68:71], 0 offen offset:%d' % (XP + i * 9 + j, 178 if i < 2 else 179, (i % 2) * 1152 + 128 * j))

def p2_xstats(c):
    p = c.p
    p.I('s_mov_b32 s99, 0xffff0000\ns_mov_b32 s98, 0x%x\ns_mov_b32 s97, 0x%x' % (f2u(1.0 / 576), f2u(1e-5)))
    T = 8
    for k in range(36): unpack(p, T + 2 * k, XP + k, 99)
    ln_stats(p, T, 4, 9, P0S, red32(p, 232))

def p2_pre(c):
    p = c.p
    wg_rb_ns(p)
    srd(p, 52, P_WS, 6 * 576 * 4, off=L.MOD)
    p.I('s_mov_b32 s99, 0xffff0000\ns_mov_b32 s98, 0x%x\ns_mov_b32 s97, 0x%x' % (f2u(1.0 / 576), f2u(1e-5)))
    p.I('v_lshrrev_b32 v3, 5, v1\nv_and_b32 v4, 31, v1\nv_mov_b32 v6, v178\nv_mov_b32 v7, v179')
    p.I('v_lshlrev_b32 v8, 4, v0')
    PL = 236
    for u in range(3): p.I('s_movk_i32 s7, %d\nbuffer_load_dwordx4 %s, v8, s[52:55], s7 offen%s' % (4096 * u, vr(PL + 4 * u, 4), c.sc))
    for k in range(36):
        p.I('v_lshlrev_b32 v%d, 16, v%d\nv_and_b32 v%d, s99, v%d' % (XF + 2 * k, XP + k, XF + 2 * k + 1, XP + k))
    for i in range(4):
        for j in range(9):
            k = i * 9 + j
            ln_apply(p, GH + 2 * k, XF + 2 * k, P0S + 4 * i)
    p.I('v_add_u32 v9, %d, v8' % PRM_BASE)
    for u in range(3): p.I('ds_write_b128 v9, %s offset:%d' % (vr(PL + 4 * u, 4), 4096 * u))
    p.I('s_waitcnt lgkmcnt(0)\ns_barrier')
    p.I('v_lshlrev_b32 v10, 3, v4\nv_add_u32 v10, %d, v10' % PRM_BASE)
    for arr, dst in ((0, TM), (1, TM + 18), (2, TM + 36), (3, SB), (4, CB)):
        for j in range(9):
            p.I('ds_read_b64 %s, v10 offset:%d' % (vr(dst + 2 * j, 2), arr * 2304 + 256 * j))
    for j in range(9):
        p.I('v_pk_mul_f32 %s, %s, %s' % (vr(TM + 18 + 2 * j, 2), vr(TM + 18 + 2 * j, 2), vr(TM + 36 + 2 * j, 2)))
        p.I('v_pk_mul_f32 %s, %s, %s' % (vr(TM + 2 * j, 2), vr(TM + 2 * j, 2), vr(TM + 36 + 2 * j, 2)))
    for i in range(4):
        for j in range(9):
            g = GH + (i * 9 + j) * 2
            p.I('v_pk_fma_f32 %s, %s, %s, %s' % (vr(g, 2), vr(g, 2), vr(TM + 18 + 2 * j, 2), vr(TM + 2 * j, 2)))

OUTS_BASE, OUTS_RS = 100352, 400
def tile_out(c, packed, srdslot):
    p = c.p
    p.I('v_and_b32 v2, 15, v1\nv_mul_u32_u24 v2, %d, v2\nv_lshrrev_b32 v3, 4, v1\nv_lshl_add_u32 v2, v3, 3, v2\ns_mul_i32 s6, s3, 96\ns_add_u32 s6, s6, %d\nv_add_u32 v2, s6, v2' % (OUTS_RS, OUTS_BASE))
    for (e, tt), r in packed.items():
        p.I('ds_write_b64 v2, %s offset:%d' % (vr(r, 2), tt * 16 * OUTS_RS + 32 * e))
    m24 = udiv_magic(24, 768)
    AD = 204
    for u in range(3):
        p.I('v_add_u32 v4, %d, v0\nv_mul_u32_u24 v5, %d, v4\nv_lshrrev_b32 v5, 16, v5\nv_mul_u32_u24 v6, 24, v5\nv_sub_u32 v6, v4, v6' % (256 * u, m24))
        p.I('v_mul_u32_u24 v7, %d, v5\nv_lshl_add_u32 v7, v6, 4, v7\nv_add_u32 v%d, %d, v7' % (OUTS_RS, AD + u, OUTS_BASE))
        p.I('s_lshl_b32 s6, s4, 5\nv_add_u32 v5, s6, v5\ns_movk_i32 s7, 1152\nv_mul_lo_u32 v5, v5, s7\nv_lshl_add_u32 v5, v6, 4, v5\ns_mul_i32 s6, s5, 384\nv_add_u32 v%d, s6, v5' % (AD + 3 + u))
    p.I('s_waitcnt lgkmcnt(0)\ns_barrier')
    D = 212
    for u in range(3): p.I('ds_read_b128 %s, v%d' % (vr(D + 4 * u, 4), AD + u))
    for u in range(3): p.I('buffer_store_dwordx4 %s, v%d, s[%d:%d], 0 offen%s' % (vr(D + 4 * u, 4), AD + 3 + u, srdslot, srdslot + 3, c.sc))

def sentinel_setup(c):
    p = c.p
    m24 = udiv_magic(24, 768)
    p.I('v_mov_b32 v168, -1\nv_mov_b32 v169, -1\nv_mov_b32 v170, -1\nv_mov_b32 v171, -1')
    srd(p, 56, P_WS, L.S * 1152, off=L.H1); srd(p, 68, P_WS, L.S * 1152, off=L.X2)
    for u in range(3):
        p.I('v_add_u32 v4, %d, v0\nv_mul_u32_u24 v5, %d, v4\nv_lshrrev_b32 v5, 16, v5\nv_mul_u32_u24 v6, 24, v5\nv_sub_u32 v6, v4, v6' % (256 * u, m24))
        p.I('s_lshl_b32 s6, s4, 5\nv_add_u32 v5, s6, v5\ns_movk_i32 s7, 1152\nv_mul_lo_u32 v5, v5, s7\nv_lshl_add_u32 v5, v6, 4, v5\ns_mul_i32 s6, s5, 384\nv_add_u32 v%d, s6, v5' % (164 + u))
    return ['buffer_store_dwordx4 v[168:171], v%d, s[%d:%d], 0 offen sc1' % (164 + u, sl, sl + 3) for sl in (56, 68) for u in range(3)]

def tagged_loads(c, loads, regs, probe=None):
    p = c.p
    lp = p.label_name('L_tag'); ok = p.label_name('L_tagok')
    p.I('s_mov_b32 s77, 0')
    if probe:
        lq = p.label_name('L_tagp'); qk = p.label_name('L_tagpok')
        p.label(lq)
        p.I(probe + '\ns_waitcnt vmcnt(0)', nowait=True)
        p.I('v_cmp_eq_u32 vcc, -1, v%d\ns_add_u32 s77, s77, 1\ns_nop 1\ns_cbranch_vccz %s\ns_cmp_ge_u32 s77, %d\ns_cbranch_scc1 %s\ns_sleep 4\ns_branch %s' % (regs[-1] + 3, qk, SPIN_MAX, qk, lq))
        p.label(qk); p.cut()
    p.label(lp)
    loads()
    p.I('s_waitcnt vmcnt(0)'); p.cut()
    chk = [r + 1 for r in regs] + [r + 3 for r in regs]
    p.I('v_max_u32 v251, v%d, v%d' % (chk[0], chk[1]))
    rest = chk[2:]
    while len(rest) >= 2:
        p.I('v_max3_u32 v251, v251, v%d, v%d' % (rest[0], rest[1])); rest = rest[2:]
    for r in rest: p.I('v_max_u32 v251, v251, v%d' % r)
    p.I('v_cmp_eq_u32 vcc, -1, v251\ns_add_u32 s77, s77, 1\ns_nop 1\ns_cbranch_vccz %s\ns_cmp_ge_u32 s77, %d\ns_cbranch_scc1 %s\ns_sleep 2\ns_branch %s' % (ok, SPIN_MAX, ok, lp))
    p.label(ok); p.cut()

def p2_main(c, abase=0):
    p = c.p
    srd(p, 48, P_WS, L.D * 4096, off=L.ZT)
    srd(p, 52, P_WS, L.S * 1152, off=L.X1); srd(p, 56, P_WS, L.S * 1152, off=L.HP); srd(p, 60, P_WS, L.S * 1152, off=L.H1)
    p.I('v_lshrrev_b32 v8, 2, v1\nv_and_b32 v9, 3, v1\nv_lshlrev_b32 v10, 13, v8\nv_lshl_add_u32 v10, v9, 4, v10\ns_lshl_b32 s6, s4, 6\nv_add_u32 v10, s6, v10')
    p.I('s_lshl_b32 s6, s3, 17\nv_add_u32 v10, s6, v10\ns_movk_i32 s8, 4096')
    for t in range(5):
        if t: p.I('v_add_u32 v10, %d, v10' % (4 * 131072))
        p.I('buffer_load_dwordx4 %s, v10, s[48:51], 0 offen%s' % (vr(TM + 8 * t, 4), c.sc))
        p.I('buffer_load_dwordx4 %s, v10, s[48:51], s8 offen%s' % (vr(TM + 8 * t + 4, 4), c.sc))
    p.I('v_bfe_u32 v11, v8, 1, 3\nv_lshlrev_b32 v12, 1, v9\nv_xor_b32 v11, v11, v12\nv_lshlrev_b32 v11, 4, v11\nv_lshl_add_u32 v11, v8, 7, v11')
    p.I('s_lshl_b32 s6, s3, 11\nv_add_u32 v11, s6, v11\nv_xor_b32 v12, 16, v11')
    p.I('s_mov_b32 s8, 0x05040100\ns_mov_b32 s9, 0x07060302')
    PO = 236
    for t in range(5):
        a, b = TM + 8 * t, TM + 8 * t + 4
        o = PO + 8 * (t % 2)
        for k in range(4):
            p.I('v_perm_b32 v%d, v%d, v%d, s8\nv_perm_b32 v%d, v%d, v%d, s9' % (o + 2 * k, b + k, a + k, o + 2 * k + 1, b + k, a + k))
        p.I('ds_write_b128 v11, %s offset:%d' % (vr(o, 4), ZS_BASE + t * 8192))
        p.I('ds_write_b128 v12, %s offset:%d' % (vr(o + 4, 4), ZS_BASE + t * 8192))
    p.I('s_waitcnt vmcnt(0) lgkmcnt(0)\ns_barrier')
    p.cut()
    c.stamp(8)
    p.I('s_lshl_b32 s6, s3, 1\nv_add_u32 v8, s6, v3\nv_bfe_u32 v9, v4, 1, 3\nv_xor_b32 v8, v8, v9\nv_lshlrev_b32 v8, 4, v8\nv_lshl_add_u32 v8, v4, 7, v8')
    Z = TM
    for j in range(9): p.I('ds_read_b128 %s, v8 offset:%d' % (vr(Z + 4 * j, 4), ZS_BASE + 4096 * j))
    U = 232
    for j in range(9):
        for i in range(4):
            unpack(p, U + 2 * i, Z + 4 * j + i, 99)
        for i in range(4):
            g = vr(GH + (i * 9 + j) * 2, 2)
            p.I('v_pk_fma_f32 %s, %s, %s, %s' % (g, g, vr(U + 2 * i, 2), vr(XF + (i * 9 + j) * 2, 2)))
        for i in range(4):
            p.I('v_cvt_pk_bf16_f32 v%d, v%d, v%d' % (XF + (i * 9 + j) * 2, GH + (i * 9 + j) * 2, GH + (i * 9 + j) * 2 + 1))
    ST = 196
    ln_stats(p, GH, 4, 9, ST, red32(p, ST + 16))
    for j in range(9):
        for i in range(4):
            g = GH + (i * 9 + j) * 2
            ln_apply(p, g, g, ST + 4 * i)
        for i in range(4):
            g = vr(GH + (i * 9 + j) * 2, 2)
            p.I('v_pk_fma_f32 %s, %s, %s, %s' % (g, g, vr(CB + 2 * j, 2), vr(SB + 2 * j, 2)))
        for i in range(4):
            p.I('v_cvt_pk_bf16_f32 v%d, v%d, v%d' % (XF + (i * 9 + j) * 2 + 1, GH + (i * 9 + j) * 2, GH + (i * 9 + j) * 2 + 1))
    ln_stats(p, GH, 4, 9, ST, red32(p, ST + 16))
    p.I('v_bfe_u32 v8, v4, 2, 2\nv_lshrrev_b32 v9, 4, v4\nv_lshlrev_b32 v9, 11, v9\ns_lshr_b32 s6, s3, 1\ns_lshl_b32 s6, s6, 10\ns_and_b32 s7, s3, 1\ns_lshl_b32 s7, s7, 7\ns_add_u32 s6, s6, s7\ns_add_u32 s6, s6, %d' % A1_BASE)
    p.I('v_add_u32 v9, s6, v9\nv_lshl_add_u32 v9, v8, 8, v9\nv_lshl_add_u32 v9, v3, 6, v9\nv_and_b32 v10, 3, v4\nv_lshl_add_u32 v9, v10, 2, v9')
    for i in range(4):
        p.I('v_xor_b32 v10, %d, v8\nv_lshl_add_u32 v%d, v10, 4, v9' % (i, 12 + i))
    for j in range(9):
        for i in range(4):
            g = GH + (i * 9 + j) * 2
            ln_apply(p, U + 2 * i, g, ST + 4 * i)
        for i in range(4):
            p.I('v_cvt_pk_bf16_f32 v%d, v%d, v%d' % (U + 2 * i, U + 2 * i, U + 2 * i + 1))
        for i in range(4):
            p.I('ds_write_b32 v%d, v%d offset:%d' % (12 + i, U + 2 * i, 4096 * j))
    p.I('s_lshl_b32 s6, s3, 3\nv_lshl_add_u32 v11, v3, 2, s6\nv_mul_u32_u24 v11, %d, v11\nv_lshl_add_u32 v11, v4, 2, v11\nv_add_u32 v11, %d, v11' % (HPL_RS, HPL_BASE))
    for jg in range(3):
        lab = p.label_name('L_st')
        p.I('s_cmp_lg_u32 s5, %d\ns_cbranch_scc1 %s' % (jg, lab))
        for j in range(3 * jg, 3 * jg + 3):
            for i in range(4):
                p.I('buffer_store_dword v%d, v%d, s[52:55], 0 offen offset:%d%s' % (XF + (i * 9 + j) * 2, 6 if i < 2 else 7, (i % 2) * 1152 + 128 * j, c.sc), nowait=True)
                p.I('ds_write_b32 v11, v%d offset:%d' % (XF + (i * 9 + j) * 2 + 1, i * HPL_RS + 128 * (j - 3 * jg)), nowait=True)
        p.label(lab)
    p.I('s_waitcnt lgkmcnt(0)\ns_barrier')
    p.cut()
    c.stamp(9)
    wfrag_setup(c, L.W2T, 64, 156)
    gemm_small2(c, A1_BASE, abase, 100, 128, after_ks=lambda ks: wfrag_load(c, 64, 156, abase, ks) if ks < 9 else None)
    ACC = 100
    gelu_consts(p, 8, 9)
    p.I('v_mov_b32 v8, s9')
    gelu_inplace(p, list(range(ACC, ACC + 24)), 160, 8, 8)
    pk = {}
    for e in range(3):
        for tt in range(2):
            a = ACC + 4 * (e * 2 + tt)
            o = 190 + 2 * (e * 2 + tt)
            p.I('v_cvt_pk_bf16_f32 v%d, v%d, v%d\nv_cvt_pk_bf16_f32 v%d, v%d, v%d' % (o, a, a + 1, o + 1, a + 2, a + 3))
            pk[(e, tt)] = o
    tile_out(c, pk, 60)

def p3_main(c, abase=0):
    p = c.p
    srd(p, 48, P_WS, L.S * 1152, off=L.H1); srd(p, 52, P_WS, L.S * 1152, off=L.HP); srd(p, 56, P_WS, L.S * 1152, off=L.X2)
    p.I('s_mov_b32 s99, 0xffff0000')
    p.I('v_lshrrev_b32 v3, 4, v1\nv_and_b32 v4, 15, v1\ns_lshr_b32 s6, s3, 1\ns_lshl_b32 s6, s6, 5\nv_lshl_add_u32 v5, v3, 3, s6')
    p.I('s_lshl_b32 s6, s4, 5\ns_and_b32 s7, s3, 1\ns_lshl_b32 s7, s7, 4\ns_add_u32 s6, s6, s7\nv_add_u32 v6, s6, v4\ns_movk_i32 s7, 1152\nv_mul_lo_u32 v6, v6, s7\nv_lshl_add_u32 v6, v5, 1, v6')
    M1, P1, M2, P2_, N2, N4, N6 = 8, 9, 10, 11, 12, 13, 14
    p.I('v_subrev_u32 v%d, 1152, v6\nv_add_u32 v%d, 1152, v6\nv_subrev_u32 v%d, 2304, v6\nv_add_u32 v%d, 2304, v6' % (M1, P1, M2, P2_))
    p.I('v_cmp_gt_u32 vcc, 16, v5\nv_cndmask_b32 v%d, v%d, v%d, vcc' % (N2, P1, M1))
    p.I('v_cmp_gt_u32 vcc, 32, v5\nv_cndmask_b32 v%d, v%d, v%d, vcc' % (N4, M2, P1))
    p.I('v_cmp_gt_u32 vcc, 48, v5\nv_cndmask_b32 v%d, v%d, v%d, vcc' % (N6, P2_, M2))
    sel = [M1, M1, N2, P1, N4, M2, N6, P2_, P2_]
    T = 16
    def h1loads():
        for n in range(9):
            p.I('buffer_load_dwordx4 %s, v%d, s[48:51], 0 offen offset:%d%s' % (vr(T + 4 * n, 4), sel[n], 128 * n, c.sc))
    if TAG_H1: tagged_loads(c, h1loads, [T + 4 * n for n in range(9)])
    else: h1loads()
    HR = 108
    p.I('v_mul_u32_u24 v15, %d, v4\nv_lshl_add_u32 v15, v3, 3, v15\ns_mul_i32 s6, s3, 96\ns_add_u32 s6, s6, %d\nv_add_u32 v15, s6, v15' % (HPL_RS, HPL_BASE))
    for e in range(3):
        for tt in range(2):
            p.I('ds_read_b64 %s, v15 offset:%d' % (vr(HR + 2 * (e * 2 + tt), 2), tt * 16 * HPL_RS + 32 * e))
    p.I('v_xor_b32 v7, v4, v3\nv_lshl_add_u32 v7, v3, 4, v7\nv_lshlrev_b32 v7, 4, v7\ns_lshl_b32 s6, s3, 10\nv_add_u32 v7, s6, v7')
    for n in range(9): p.I('ds_write_b128 v7, %s offset:%d' % (vr(T + 4 * n, 4), 4096 * n))
    p.I('s_waitcnt lgkmcnt(0)\ns_barrier')
    c.stamp(12)
    gemm_small2(c, 0, abase, 52, 80)
    ACC = 52
    pk = {}
    for e in range(3):
        for tt in range(2):
            a = ACC + 4 * (e * 2 + tt); h = HR + 2 * (e * 2 + tt); o = 128 + 2 * (e * 2 + tt)
            unpack(p, 120, h, 99); unpack(p, 122, h + 1, 99)
            for r in range(4): p.I('v_add_f32 v%d, v%d, v%d' % (a + r, a + r, 120 + r))
            p.I('v_cvt_pk_bf16_f32 v%d, v%d, v%d\nv_cvt_pk_bf16_f32 v%d, v%d, v%d' % (o, a, a + 1, o + 1, a + 2, a + 3))
            pk[(e, tt)] = o
    tile_out(c, pk, 56)

def p4_ln(c):
    p = c.p
    srd(p, 48, P_WS, L.S * 1152, off=L.X2)
    p.I('s_mov_b32 s99, 0xffff0000\ns_mov_b32 s98, 0x%x\ns_mov_b32 s97, 0x%x' % (f2u(1.0 / 576), f2u(1e-5)))
    p.I('v_lshrrev_b32 v3, 3, v1\nv_and_b32 v4, 7, v1')
    p.I('s_lshl_b32 s6, s5, 6\ns_lshl_b32 s7, s3, 4\ns_add_u32 s6, s6, s7\nv_add_u32 v5, s6, v3\ns_movk_i32 s7, 1152\nv_mul_lo_u32 v5, v5, s7\nv_lshl_add_u32 v5, v4, 4, v5\nv_add_u32 v6, %d, v5' % (8 * 1152))
    RAW, X = 64, 136
    def loads():
        for i in range(2):
            for j in range(9):
                p.I('buffer_load_dwordx4 %s, v%d, s[48:51], 0 offen offset:%d%s' % (vr(RAW + 36 * i + 4 * j, 4), 5 + i, 128 * j, c.sc))
    if TAG_H1: tagged_loads(c, loads, [RAW + 4 * k for k in range(18)], probe=('buffer_load_dwordx4 %s, v6, s[48:51], 0 offen offset:1024%s' % (vr(RAW + 68, 4), c.sc)) if PROBE else None)
    else: loads()
    return RAW, X

def p4_ln2(c, RAW, X):
    p = c.p
    mlp32.ln_addr(c)
    ST = 208
    for i in range(2):
        for k in range(36):
            unpack(p, X + 2 * k, RAW + 36 * i + k, 99)
            if k % 2 == 1 and c.wn < mlp32.RING and i == 1: mlp32.wload(c)
        ln_stats_single(p, X, 36, ST)
        for k in range(36):
            ln_apply(p, X + 2 * k, X + 2 * k, ST)
            if k % 2 == 1 and c.wn < mlp32.RING: mlp32.wload(c)
        for k in range(36): p.I('v_cvt_pk_bf16_f32 v%d, v%d, v%d' % (RAW + 36 * i + k, X + 2 * k, X + 2 * k + 1))
        for j in range(8): p.I('ds_write_b128 v%d, %s offset:%d' % (11 + i, vr(RAW + 36 * i + 4 * j, 4), 8192 * j))
        p.I('v_add_u32 v13, 65536, v%d\nds_write_b128 v13, %s' % (11 + i, vr(RAW + 36 * i + 32, 4)))
    while c.wn < mlp32.RING: mlp32.wload(c)
    p.I('s_waitcnt lgkmcnt(0)\ns_barrier')

def ln_stats_single(p, X, n, ST):
    S, Q = ST + 4, ST + 8
    p.I('v_pk_add_f32 %s, %s, %s\nv_pk_add_f32 %s, %s, %s' % (vr(S, 2), vr(X, 2), vr(X + 4, 2), vr(S + 2, 2), vr(X + 2, 2), vr(X + 6, 2)))
    p.I('v_pk_mul_f32 %s, %s, %s\nv_pk_mul_f32 %s, %s, %s' % (vr(Q, 2), vr(X, 2), vr(X, 2), vr(Q + 2, 2), vr(X + 2, 2), vr(X + 2, 2)))
    for k in range(2, n):
        x = vr(X + 2 * k, 2); o = 2 * (k % 2)
        p.I('v_pk_fma_f32 %s, %s, %s, %s' % (vr(Q + o, 2), x, x, vr(Q + o, 2)))
        if k >= 4: p.I('v_pk_add_f32 %s, %s, %s' % (vr(S + o, 2), vr(S + o, 2), x))
    p.I('v_pk_add_f32 %s, %s, %s\nv_pk_add_f32 %s, %s, %s' % (vr(S, 2), vr(S, 2), vr(S + 2, 2), vr(Q, 2), vr(Q, 2), vr(Q + 2, 2)))
    p.I('v_add_f32 v%d, v%d, v%d\nv_add_f32 v%d, v%d, v%d' % (S, S, S + 1, Q, Q, Q + 1))
    reduce8(p, [S, Q])
    p.I('v_mul_f32 v%d, s98, v%d\nv_mul_f32 v%d, s98, v%d' % (S, S, Q, Q))
    p.I('v_fma_f32 v%d, -v%d, v%d, v%d\nv_max_f32 v%d, 0, v%d\nv_add_f32 v%d, s97, v%d\nv_rsq_f32 v%d, v%d' % (Q, S, S, Q, Q, Q, Q, Q, ST, Q))
    p.I('v_mul_f32 v%d, -v%d, v%d' % (ST + 1, S, ST))

def pt34_decode(c, stask, SRD, ST):
    p = c.p
    w4 = p.label_name('L_t4'); dn = p.label_name('L_td')
    p.I('s_cmp_ge_u32 s%d, 216\ns_cbranch_scc1 %s' % (stask, w4))
    p.I('s_mul_i32 s8, s%d, %d\ns_lshr_b32 s8, s8, 16\ns_mul_i32 s9, s8, 3\ns_sub_u32 s9, s%d, s9' % (stask, udiv_magic(3, 300), stask))
    for k in range(4): p.I('s_mov_b32 s%d, s%d' % (SRD + k, 56 + k))
    p.I('s_mul_i32 s%d, s9, %d\ns_lshl_b32 s10, s8, 7\ns_add_u32 s%d, s%d, s10' % (ST + 4, 6 * 32 * 9216, ST + 4, ST + 4))
    p.I('s_mov_b32 s%d, %d\ns_movk_i32 s%d, 9216\ns_movk_i32 s%d, 3072\ns_mov_b32 s%d, 0' % (ST + 5, 32 * 9216, ST + 6, ST + 7, ST + 8))
    for j in range(4):
        p.I('s_lshl_b32 s12, s8, 2\ns_add_u32 s12, s12, %d' % j)
        p.I('s_mul_i32 s13, s12, %d\ns_lshr_b32 s13, s13, 16\ns_mul_i32 s14, s13, 36\ns_sub_u32 s12, s12, s14' % udiv_magic(36, 300))
        p.I('s_mul_i32 s14, s12, %d\ns_lshr_b32 s14, s14, 16\ns_mul_i32 s10, s14, 12\ns_sub_u32 s12, s12, s10' % udiv_magic(12, 40))
        p.I('s_mul_i32 s10, s12, %d\ns_lshr_b32 s10, s10, 16\ns_mul_i32 s11, s10, 3\ns_sub_u32 s12, s12, s11' % udiv_magic(3, 16))
        p.I('s_lshl_b32 s13, s13, 2\ns_add_u32 s13, s13, s10\ns_mul_i32 s13, s13, 324\ns_mul_i32 s14, s14, 54\ns_add_u32 s13, s13, s14\ns_mul_i32 s14, s9, 18\ns_add_u32 s13, s13, s14\ns_add_u32 s13, s13, s12\ns_lshl_b32 s13, s13, 10\ns_add_u32 s%d, s13, %d' % (ST + j, L.W34T - L.W1T))
    p.I('s_branch %s' % dn)
    p.label(w4)
    p.I('s_sub_u32 s7, s%d, 216\ns_mul_i32 s8, s7, %d\ns_lshr_b32 s8, s8, 16\ns_mul_i32 s9, s8, 27\ns_sub_u32 s7, s7, s9' % (stask, udiv_magic(27, 600)))
    p.I('s_mul_i32 s9, s7, %d\ns_lshr_b32 s9, s9, 16\ns_mul_i32 s10, s9, 3\ns_sub_u32 s10, s7, s10' % udiv_magic(3, 32))
    for k in range(4): p.I('s_mov_b32 s%d, s%d' % (SRD + k, 60 + k))
    p.I('s_mul_i32 s11, s8, 18\ns_mul_i32 s12, s10, 6\ns_add_u32 s11, s11, s12\ns_mul_i32 s%d, s11, %d\ns_lshl_b32 s11, s9, 7\ns_add_u32 s%d, s%d, s11' % (ST + 4, 32 * 1152, ST + 4, ST + 4))
    p.I('s_mov_b32 s%d, %d\ns_movk_i32 s%d, 1152\ns_mov_b32 s%d, 1' % (ST + 5, 32 * 1152, ST + 6, ST + 8))
    p.I('s_cmp_eq_u32 s9, 8\ns_movk_i32 s11, 4096\ns_cselect_b32 s%d, 1024, s11' % (ST + 7))
    for j in range(4):
        p.I('s_mul_i32 s11, s10, 24\ns_add_u32 s11, s11, %d\ns_and_b32 s12, s9, 3' % (162 + j))
        p.I('s_cmp_ge_u32 s9, 4\ns_cselect_b32 s13, 72, 0\ns_add_u32 s11, s11, s13')
        p.I('s_mul_i32 s13, s10, 6\ns_add_u32 s13, s13, 306\ns_cmp_eq_u32 s9, 8\ns_cselect_b32 s11, s13, s11\ns_cselect_b32 s12, %d, s12' % j)
        p.I('s_lshl_b32 s13, s8, 2\ns_add_u32 s13, s13, s12\ns_mul_i32 s13, s13, 324\ns_add_u32 s13, s13, s11\ns_lshl_b32 s13, s13, 10\ns_add_u32 s%d, s13, %d' % (ST + j, L.W34T - L.W1T))
    p.label(dn)
    p.I('s_cmp_ge_u32 s%d, 432' % stask)
    for k in range(5): p.I('s_cselect_b32 s%d, 0x7f000000, s%d' % (ST + k, ST + k))
    p.I('s_cselect_b32 s%d, 0, s%d\ns_cselect_b32 s%d, 0, s%d' % (ST + 5, ST + 5, ST + 7, ST + 7))

def pretile34(c, swave):
    p = c.p
    NB, NU = 8, 12
    p.I('s_mul_i32 s96, s3, %d' % (NB * 4096))
    TA, TB = (64, 80), (52, 4)
    SA, SB_ = 80, 89
    regsB = 48
    p.I('s_add_u32 s79, s%d, 256' % swave)
    pt34_decode(c, swave, 64, 80)
    p.I('s_mov_b32 s15, s96')
    pt34_decode(c, 79, 52, 89)
    p.I('v_mad_u32_u24 v12, v2, s%d, v3\nv_add_u32 v12, s%d, v12' % (86, 84))
    p.I('v_mad_u32_u24 v13, v2, s%d, v3\nv_add_u32 v13, s%d, v13' % (95, 93))
    p.I('s_lshl_b32 s4, s86, 3\ns_lshl_b32 s5, s95, 3')
    def issue(n):
        A = n < 6
        va, srdn, s8r, sstep = (12, 64, 4, 85) if A else (13, 52, 5, 94)
        p.I('v_mov_b32 v9, v%d' % va)
        t = None
        for q in range(4):
            p.I('s_add_u32 m0, s15, %d' % ((n % NB) * 4096 + q * 1024))
            if q: p.I('v_add_u32 v9, s%d, v9' % s8r)
            t = p.I('buffer_load_dwordx4 v9, s[%d:%d], 0 offen lds' % (srdn, srdn + 3), nowait=True)
        p.I('v_add_u32 v%d, s%d, v%d' % (va, sstep, va))
        return t
    def process(n):
        A = n < 6
        ST = 80 if A else 89
        R = 16 + 16 * (n % 2)
        lb = p.label_name('L_kb'); le = p.label_name('L_ke')
        p.I('s_cmp_eq_u32 s%d, 1\ns_cbranch_scc1 %s' % (ST + 8, lb))
        for va, jstride, second, lab in ((6, 32, 512, None), (7, 8, 2048, lb)):
            if lab: p.label(lab)
            p.I('s_add_u32 s6, s15, %d\nv_add_u32 v10, s6, v%d' % ((n % NB) * 4096, va))
            for j in range(4):
                p.I('ds_read_b64_tr_b16 %s, v10 offset:%d' % (vr(R + 4 * j, 2), j * jstride), nowait=True)
                p.I('ds_read_b64_tr_b16 %s, v10 offset:%d' % (vr(R + 4 * j + 2, 2), j * jstride + second), nowait=True)
            if not lab: p.I('s_branch %s' % le)
        p.label(le)
        p.I('s_waitcnt lgkmcnt(0)')
        for j in range(4):
            p.I('v_add_u32 v11, s%d, v8\ns_add_u32 s%d, s%d, s%d' % (ST + j, ST + j, ST + j, ST + 7))
            p.I('buffer_store_dwordx4 %s, v11, s[68:71], 0 offen%s' % (vr(R + 4 * j, 4), c.sc), nowait=True)
    toks = [issue(n) for n in range(NB - 1)]
    for n in range(NU):
        if n + NB - 1 < NU: toks.append(issue(n + NB - 1))
        p.wait(toks[n])
        process(n)
    p.I('s_waitcnt vmcnt(0)'); p.cut()

def mlp_map(p, sslice, srb):
    p.I('s_and_b32 s%d, s2, 3\ns_lshl_b32 s%d, s%d, 1\ns_bfe_u32 s76, s2, 0x10003\ns_add_u32 s%d, s%d, s76' % (sslice, sslice, sslice, sslice, sslice))
    p.I('s_bfe_u32 s%d, s2, 0x10002\ns_lshl_b32 s%d, s%d, 4\ns_lshr_b32 s76, s2, 4\ns_add_u32 s%d, s%d, s76' % (srb, srb, srb, srb, srb))

def warm_l2(c, nparts, part_sgpr):
    p = c.p
    lines = 4 * 324 * 8 // nparts
    srd(p, 64, P_WS, 32 * 324 * 1024, off=L.W34T)
    p.I('s_mul_i32 s6, s4, %d\ns_mul_i32 s7, s%d, %d\ns_add_u32 s6, s6, s7\nv_lshl_add_u32 v2, v0, 7, s6' % (4 * 324 * 1024, part_sgpr, lines * 128))
    n = (lines + 255) // 256
    for k in range(n):
        if (k + 1) * 256 > lines:
            p.I('v_cmp_gt_u32 vcc, %d, v0\nv_mov_b32 v3, 0x7f000000\nv_cndmask_b32 v2, v3, v2, vcc' % (lines - k * 256))
        p.I('buffer_load_dword v%d, v2, s[64:67], 0 offen sc1' % (8 + k), nowait=True)
        p.I('v_add_u32 v2, 32768, v2')

def build_mega():
    c = Ctx(); p = c.p
    p.label('L_code_start')
    p.I('s_load_dwordx16 s[16:31], s[0:1], 0\ns_load_dwordx16 s[32:47], s[0:1], 64')
    p.I('v_lshrrev_b32 v2, 6, v0\nv_and_b32 v1, 63, v0')
    p.I('v_readfirstlane_b32 s3, v2')
    p.I('s_cmp_ge_u32 s2, 256\ns_cbranch_scc1 L_end')
    kv_addr(c)
    p.I('s_waitcnt lgkmcnt(0)')
    if STAMPS:
        for k in range(24): p.I('v_accvgpr_write_b32 a%d, 0' % (232 + k))
    c.stamp(0)
    def code_prefetch():
        if os.environ.get('NOCODEPF'): return
        p.I('s_getpc_b64 s[8:9]')
        p.label('L_pc_anchor_%d' % c.npf); c.npf += 1
        p.I('s_sub_u32 s8, s8, (L_pc_anchor_%d - L_code_start)\ns_subb_u32 s9, s9, 0' % (c.npf - 1))
        p.I('s_lshr_b32 s10, s2, 3\ns_mul_i32 s10, s10, CODE_PART\nv_lshl_add_u32 v248, v1, 7, s10')
        p.I('s_mov_b64 exec, CODE_MASK')
        p.I('global_load_dword v249, v248, s[8:9]', nowait=True)
        p.I('s_mov_b64 exec, -1')
    c.npf = 0
    c.code_prefetch = code_prefetch
    p.I('s_cmp_ge_u32 s2, %d\ns_cbranch_scc1 L_pt' % NCONV)
    def fx(p): p.I('s_lshl_b32 s6, s5, 1\nv_add_u32 v252, s6, v1\nv_mul_u32_u24 v252, %d, v252\nv_add_u32 v252, %d, v252\nv_mov_b32 v254, 3\nv_mov_b32 v255, %d\nv_mov_b32 v251, 1\nv_cmp_eq_u32 vcc, 2, v1\nv_cndmask_b32 v252, v252, v255, vcc\nv_cndmask_b32 v254, v254, v251, vcc' % (LS, C_X2 * LS, B_REL * LS))
    p.I('s_cmp_eq_u32 s3, 3\ns_cbranch_scc1 L_kc')
    p0_kv(c)
    p.I('s_mul_i32 s78, s2, 3\ns_add_u32 s78, s78, s3\ns_and_b32 s78, s78, 15')
    wave_arrive(c, 'add', check_ready=140, idx=K_SH, sgpr=78)
    p2_xload(c)
    p.I('s_waitcnt vmcnt(0)')
    p.I('s_branch L_kv_done'); p.cut()
    p.label('L_kc')
    srd(p, S_SYNC, P_WS, 2 << 20, off=L.SYNC)
    def hook3(c):
        c.code_prefetch()
        p2_xload(c)
    p1_kcopies(c, hook=hook3)
    p.I('s_waitcnt vmcnt(0) lgkmcnt(0)')
    p.label('L_kv_done'); p.cut()
    c.stamp(1)
    p2_xstats(c)
    c.stamp(17)
    wait_cnt(c, *w_flags(K_REL, A_REL))
    c.stamp(2)
    p1_main(c)
    c.stamp(5)
    p.I('s_and_b32 s78, s2, 15')
    arrive(c, 'add', idx=V_SH, sgpr=78)
    wave_wait(c, M_REL)
    p2_pre(c)
    c.stamp(6)
    wait_cnt(c, *w_flags(V_REL))
    c.stamp(7)
    p2_main(c)
    c.stamp(10)
    if TAG_H1:
        for ks in range(9, 18): wfrag_load(c, 64, 156, 0, ks)
        p.I('s_waitcnt lgkmcnt(0)\ns_barrier'); p.cut()
    else:
        arrive(c, 'add', idx=C_H1, sgpr=4)
        def fh(p): p.I('s_sub_u32 s6, s4, 1\nv_add_u32 v252, s6, v1\nv_max_i32 v252, 0, v252\nv_min_i32 v252, 63, v252\nv_mul_u32_u24 v252, %d, v252\nv_add_u32 v252, %d, v252\nv_mov_b32 v254, 3' % (LS, C_H1 * LS))
        def w2late(st):
            for ks in range(9, 18): wfrag_load(c, 64, 156, 0, ks)
        around_wait(c, w2late, lambda: wait_cnt(c, fh, 3))
    c.stamp(11)
    p3_main(c)
    c.stamp(13)
    if TAG_H1:
        wave_wait(c, B3_REL, B_REL)
        mlp_map(p, 10, 11)
        mlp32.ring_setup(c, 10, 160)
        for n in range(mlp32.EARLY): mlp32.ring_load_at(c, mlp32.PERM[n], n, 160)
        mlp_map(p, 4, 5)
        p.I('s_waitcnt lgkmcnt(0)\ns_barrier'); p.cut()
    else:
        arrive(c, 'add', idx=C_X2, sgpr=4)
        wave_wait(c, B3_REL)
        mlp_map(p, 10, 11)
        mlp32.ring_setup(c, 10, 160)
        def early(st):
            c.ring_off = 0
            for n in range(mlp32.EARLY): mlp32.ring_load_at(c, mlp32.PERM[n], n, 160)
        mlp_map(p, 4, 5)
        around_wait(c, early, lambda: wait_cnt(c, fx, 3))
    p.I('s_branch L_mlp2'); p.cut()
    p.label('L_pt')
    srd(p, S_SYNC, P_WS, 2 << 20, off=L.SYNC)
    lpf = p.label_name('L_pf')
    p.I('s_cmp_lg_u32 s3, 3\ns_cbranch_scc1 %s' % lpf)
    c.code_prefetch()
    p.label(lpf); p.cut()
    lz = p.label_name('L_zero')
    p.I('s_cmp_lg_u32 s2, 255\ns_cbranch_scc1 %s\ns_cmp_lg_u32 s3, 0\ns_cbranch_scc1 %s' % (lz, lz))
    p.I('v_mul_u32_u24 v2, %d, v1\nv_mov_b32 v3, 0' % LS)
    for k in range(NCNT // 64):
        p.I('buffer_store_dword v3, v2, s[%d:%d], 0 offen sc1\nv_add_u32 v2, %d, v2' % (S_SYNC, S_SYNC + 3, 64 * LS), nowait=True)
    srd(p, 68, P_DBG, 256)
    p.I('s_waitcnt vmcnt(0)\nv_mov_b32 v2, 0\nv_mov_b32 v3, 1\ns_mov_b64 exec, 1\nbuffer_store_dword v3, v2, s[68:71], 0 offen sc1\ns_mov_b64 exec, -1', nowait=True)
    p.label(lz); p.cut()
    pt_setup(c)
    p.I('s_sub_u32 s4, s2, %d\ns_lshl_b32 s4, s4, 2\ns_add_u32 s78, s4, s3' % NCONV)
    pretile(c, '12', 78)
    arrive(c, 'add', check_ready=True, idx=A_CNT)
    c.stamp(1)
    lmon = p.label_name('L_nomon')
    p.I('s_cmp_lg_u32 s2, 255\ns_cbranch_scc1 %s\ns_cmp_lg_u32 s3, 0\ns_cbranch_scc1 %s' % (lmon, lmon))
    monitor(c)
    p.label(lmon); p.cut()
    lm = p.label_name('L_nomod')
    p.I('s_cmp_ge_u32 s2, %d\ns_cbranch_scc1 %s' % (NCONV + 54, lm))
    p0_mod_loads(c, NCONV)
    p0_mod_compute(c, NCONV)
    arrive(c, 'add', idx=M_CNT)
    p.label(lm); p.cut()
    p.I('s_barrier')
    p.I('s_cmp_eq_u32 s2, 255\ns_cbranch_scc1 L_pt_skip')
    pt.prime(c, NCONV)
    c.stamp(2)
    def mid():
        arrive(c, 'add', idx=B3_CNT)
    pt.run(c, mid)
    arrive(c, 'last', cnt=B_CNT, n=63, rel=B_REL)
    p.label('L_pt_skip'); p.cut()
    c.stamp(3)
    wait_cnt(c, *w_flags(B_REL))
    c.stamp(4)
    mlp_map(p, 4, 5)
    p.I('s_sub_u32 s5, s2, %d\ns_lshr_b32 s5, s5, 4' % NCONV)
    warm_l2(c, 4, 5)
    p.I('s_waitcnt vmcnt(0)'); p.cut()
    mlp_map(p, 10, 11)
    mlp32.ring_setup(c, 10, 160)
    for n in range(mlp32.EARLY): mlp32.ring_load_at(c, mlp32.PERM[n], n, 160)
    p.label('L_mlp'); p.cut()
    c.stamp(14)
    mlp_map(p, 4, 5)
    if TAG_H1: wait_cnt(c, *w_flags(V_REL, B_REL))
    else: wait_cnt(c, fx, 3)
    p.label('L_mlp2'); p.cut()
    c.stamp(15)
    if os.environ.get('REWARM'):
        p.I('s_lshr_b32 s79, s2, 3')
        warm_l2(c, 32, 79)
    RAW, X = p4_ln(c)
    c.fine = True
    if os.environ.get('FINE2'): c.stamp(6)
    mlp32.ring_resume(c)
    if os.environ.get('FINE2'):
        c.stamp(7); p.I('s_waitcnt vmcnt(18)'); c.stamp(8); p.I('s_waitcnt vmcnt(0)'); c.stamp(9)
    p4_ln2(c, RAW, X)
    c.stamp(16)
    mlp32.mlp_setup(c)
    def arrive_part(k):
        p.I('s_mul_i32 s76, s5, %d\ns_add_u32 s76, s76, %d\ns_cmp_eq_u32 s3, 0\ns_cselect_b32 s76, s76, 0x7f000000\nv_mov_b32 v252, s76\nv_mov_b32 v253, 1\ns_mov_b64 exec, 1' % (LS, (C_PART0, C_PART1)[k] * LS))
        p.I('buffer_atomic_add v253, v252, s[%d:%d], 0 offen sc1' % (S_SYNC, S_SYNC + 3))
        p.I('s_mov_b64 exec, -1')
    def poll_issue():
        p.I('s_mul_i32 s76, s5, %d\ns_add_u32 s76, s76, %d\nv_mov_b32 v252, s76' % (LS, C_PART0 * LS))
        p.I('buffer_load_dword v253, v252, s[%d:%d], 0 offen sc1' % (S_SYNC, S_SYNC + 3))
    def poll_check():
        ok = p.label_name('L_p0ok'); lp = p.label_name('L_p0')
        p.I('v_cmp_gt_u32 vcc, 8, v253\ns_mov_b32 s77, 0\ns_nop 2\ns_cbranch_vccz %s' % ok)
        p.label(lp)
        p.I('buffer_load_dword v253, v252, s[%d:%d], 0 offen sc1\ns_waitcnt vmcnt(0)\nv_cmp_gt_u32 vcc, 8, v253' % (S_SYNC, S_SYNC + 3), nowait=True)
        p.I('s_add_u32 s77, s77, 1\ns_cmp_ge_u32 s77, %d\ns_cbranch_scc1 %s\ns_cbranch_vccnz %s' % (SPIN_MAX, ok, lp))
        p.label(ok)
    c.arrive_part, c.poll_issue, c.poll_check = arrive_part, poll_issue, poll_check
    c.inmlp = True
    mlp32.mlp_main(c)
    c.stamp(21)
    arrive(c, 'add', idx=C_PART, sgpr=5)
    mlp32.final_pair(c, 0)
    def fp(p): p.I('s_mul_i32 s6, s5, %d\ns_add_u32 s6, s6, %d\nv_mov_b32 v252, s6\nv_mov_b32 v254, 8' % (LS, C_PART * LS))
    wait_cnt(c, fp, 1)
    c.stamp(22)
    mlp32.final_gather(c, 1)
    mlp32.final_pair(c, 1)
    p.I('s_waitcnt vmcnt(0)')
    c.stamp_out()
    p.label('L_end')
    p.I('s_endpgm')
    txt = p.finalize()
    return txt

if __name__ == '__main__':
    if 'stamps' in sys.argv: STAMPS = True
    mk.STAMPS = False
    body = build_mega()
    if 'CODE_PART' in body:
        import subprocess
        t = assemble([(NAME + '_kernel', body.replace('CODE_PART', '2048').replace('CODE_MASK', '0xffff'), 256, 256, 147456, 512, 256)])
        open('_p1.s', 'w').write(t)
        subprocess.check_call(['clang', '-x', 'assembler', '-target', 'amdgcn-amd-amdhsa', '-mcpu=gfx950', '-c', '_p1.s', '-o', '_p1.o'])
        syms = subprocess.check_output(['llvm-objdump', '-t', '_p1.o'], text=True)
        ad = {l.split()[-1]: int(l.split()[0], 16) for l in syms.splitlines() if l.split() and l.split()[-1] in ('L_end', 'L_code_start')}
        size = ad['L_end'] - ad['L_code_start']
        nl = size // 128 // 32
        assert nl <= 32
        body = body.replace('CODE_PART', str(nl * 128)).replace('CODE_MASK', hex((1 << nl) - 1))
        print('code size', size, 'lines per part', nl)
    out = assemble([(NAME + '_kernel', body, 256, 256, 147456, 512, 256)])
    open(sys.argv[1], 'w').write(out)
```

```python
import sys
sys.path.insert(0, 'gen')
from asmlib import *
import layout as L
import mk
import mlp32
import pt
from mk import (srd, udiv_magic, f2u, bf16_round, LOG2E, NAME, P_Q, P_K, P_V, P_SK, P_SSMK, P_SSMD, P_W1, P_W2, P_W3, P_W4,
                P_C, P_WMOD, P_OUT, P_DBG, P_WS, unpack, gelu_consts, gelu_inplace, reduce32, reduce8, small_out_addr, gemm_small,
                Filler, gelu_tile_lines, KC_STRIDE, KCOPY, XR_BASE, XR_STRIDE, RED_BASE, kernel_header, kernel_desc, assemble)

STAMPS = False
NCONV = 192
LS = 4352
K_SH, K_TOP, K_REL = 0, 16, 17
V_SH, V_TOP, V_REL = 18, 34, 35
M_CNT, M_REL, A_CNT, A_REL, B_CNT, B_REL = 36, 37, 38, 39, 40, 41
C_H1, C_X2, C_PART = 42, 106, 170
B3_CNT, B3_REL = 210, 211
C_PART0 = 212
C_PART1 = 256
NCNT = 320
S_SYNC = 72
SPIN_MAX = 1 << 17
import os
TAG_H1 = os.environ.get('TAG', '0') == '1'
PROBE = os.environ.get('PROBE', '1') == '1'
import os
SLEEP = int(os.environ.get('SLEEP', '1'))

class Ctx:
    def __init__(self):
        self.p = Prog(); self.mega = True; self.sc = ' sc1'; self.first_arrive_done = False
    def stamp(self, k, force=False):
        if not STAMPS: return
        if os.environ.get('FINE2') and k in (6, 7, 8, 9, 10, 11, 12, 13) and not getattr(self, 'fine', False): return
        if os.environ.get('FB') and k in (5, 6, 7, 8, 9, 10, 11, 12) and not getattr(self, 'inmlp', False): return
        if os.environ.get('CYC'):
            self.p.I('s_memtime s[76:77]\ns_waitcnt lgkmcnt(0)\nv_accvgpr_write_b32 a%d, s76' % (232 + k))
        else:
            self.p.I('s_memrealtime s[76:77]\ns_waitcnt lgkmcnt(0)\nv_accvgpr_write_b32 a%d, s76' % (232 + k))
    def mstamp(self, i):
        if 1 <= i < 4: self.stamp(17 + i)
    def stamp_out(self):
        if not STAMPS: return
        p = self.p
        self.stamp(23)
        if os.environ.get('DBGST'):
            l = p.label_name('L_dbgst')
            p.I('s_cmp_lg_u32 s2, 7\ns_cbranch_scc1 %s\ns_cmp_lg_u32 s3, 0\ns_cbranch_scc1 %s' % (l, l))
            srd(p, 48, P_DBG, 256)
            p.I('v_accvgpr_read_b32 v3, a232\nv_mov_b32 v2, 0')
            for i, k in enumerate((1, 2, 4, 5, 7, 9, 10, 11, 13, 15, 16, 19, 21, 22, 23)):
                p.I('v_accvgpr_read_b32 v4, a%d\nv_sub_u32 v4, v4, v3\ns_mov_b64 exec, 1\nbuffer_store_dword v4, v2, s[48:51], 0 offen offset:%d\ns_mov_b64 exec, -1' % (232 + k, 4 * (i + 1)))
            p.label(l)
            return
        srd(p, 48, P_WS, 1 << 20, off=L.DBG)
        p.I('s_lshl_b32 s76, s2, 2\ns_add_u32 s76, s76, s3\ns_lshl_b32 s76, s76, 7\nv_mov_b32 v2, s76')
        for k in range(24): p.I('buffer_store_dword a%d, v2, s[48:51], 0 offen offset:%d' % (232 + k, 4 * k if k < 23 else 124))

def wave0(p, lab):
    p.I('s_cmp_lg_u32 s3, 0\ns_cbranch_scc1 %s' % lab)

def atomic_ret(p):
    p.I('v_mov_b32 v253, 1\nbuffer_atomic_add v253, v252, s[%d:%d], 0 offen sc0 sc1\ns_waitcnt vmcnt(0)\nv_readfirstlane_b32 s76, v253\ns_nop 3' % (S_SYNC, S_SYNC + 3), nowait=True)

def do_arrive(c, kind, check_ready=False, **kw):
    p = c.p
    if check_ready: ready_check(c, None if check_ready is True else check_ready)
    p.I('s_mov_b64 exec, 1')
    done = p.label_name('L_ad')
    if kind == 'add':
        if kw.get('sgpr') is None: p.I('v_mov_b32 v252, %d' % (kw['idx'] * LS))
        else: p.I('s_mul_i32 s76, s%d, %d\ns_add_u32 s76, s76, %d\nv_mov_b32 v252, s76' % (kw['sgpr'], LS, kw['idx'] * LS))
        p.I('v_mov_b32 v253, 1\nbuffer_atomic_add v253, v252, s[%d:%d], 0 offen sc1' % (S_SYNC, S_SYNC + 3), nowait=True)
    else:
        if kind == 'two':
            p.I('s_mul_i32 s76, s%d, %d\ns_add_u32 s76, s76, %d\nv_mov_b32 v252, s76' % (kw['sgpr'], LS, kw['sh'] * LS))
            atomic_ret(p)
            p.I('s_cmp_lg_u32 s76, %d\ns_cbranch_scc1 %s' % (kw['per'] - 1, done))
            cnt, n = kw['top'], kw['nsh']
        else: cnt, n = kw['cnt'], kw['n']
        p.I('v_mov_b32 v252, %d' % (cnt * LS))
        atomic_ret(p)
        p.I('s_cmp_lg_u32 s76, %d\ns_cbranch_scc1 %s' % (n - 1, done))
        p.I('v_mov_b32 v252, %d\nv_mov_b32 v253, 1\nbuffer_store_dword v253, v252, s[%d:%d], 0 offen sc1' % (kw['rel'] * LS, S_SYNC, S_SYNC + 3), nowait=True)
    p.label(done)
    p.I('s_mov_b64 exec, -1'); p.cut()

def arrive(c, kind, check_ready=False, **kw):
    p = c.p
    p.I('s_waitcnt vmcnt(%d) lgkmcnt(0)\ns_barrier' % kw.pop('keep', 0)); p.cut()
    lab = p.label_name('L_arr')
    wave0(p, lab)
    do_arrive(c, kind, check_ready, **kw)
    p.label(lab); p.cut()

def wave_arrive(c, kind, check_ready=False, **kw):
    c.p.I('s_waitcnt vmcnt(0) lgkmcnt(0)'); c.p.cut()
    do_arrive(c, kind, check_ready, **kw)

def ready_probe(c, vreg):
    p = c.p
    srd(p, 64, P_DBG, 256)
    p.I('v_mov_b32 v%d, 0\nbuffer_load_dword v%d, v%d, s[64:67], 0 offen sc1' % (vreg, vreg, vreg))

def ready_check(c, probe=None):
    p = c.p
    lp = p.label_name('L_rdy'); dn = p.label_name('L_rdy_done')
    if probe is not None:
        p.I('v_readfirstlane_b32 s76, v%d\ns_nop 3\ns_cmp_lg_u32 s76, 0\ns_cbranch_scc1 %s' % (probe, dn))
    srd(p, 8, P_DBG, 256)
    p.I('s_mov_b32 s77, 0\nv_mov_b32 v252, 0')
    p.label(lp)
    p.I('buffer_load_dword v253, v252, s[8:11], 0 offen sc1\ns_waitcnt vmcnt(0)\nv_readfirstlane_b32 s76, v253', nowait=True)
    p.I('s_nop 3\ns_cmp_lg_u32 s76, 0\ns_cbranch_scc1 %s\ns_sleep 2\ns_add_u32 s77, s77, 1\ns_cmp_lt_u32 s77, %d\ns_cbranch_scc1 %s' % (dn, SPIN_MAX, lp))
    p.label(dn); p.cut()

def wait_cnt(c, setup, nlanes):
    p = c.p
    lab = p.label_name('L_wt'); lp = p.label_name('L_poll')
    wave0(p, lab)
    setup(p)
    p.I('s_mov_b32 s77, 0')
    p.I('s_mov_b64 exec, 0x%x' % ((1 << nlanes) - 1))
    p.label(lp)
    p.I('buffer_load_dword v253, v252, s[%d:%d], 0 offen sc1\ns_waitcnt vmcnt(0)\nv_cmp_lt_u32 vcc, v253, v254' % (S_SYNC, S_SYNC + 3), nowait=True)
    p.I('s_add_u32 s77, s77, 1\ns_cmp_ge_u32 s77, %d\ns_cbranch_scc1 %s_x\ns_cbranch_vccz %s_x' % (SPIN_MAX, lp, lp))
    if SLEEP: p.I('s_sleep %d' % SLEEP)
    p.I('s_branch %s' % lp)
    p.label(lp + '_x')
    p.I('s_mov_b64 exec, -1')
    p.label(lab)
    p.I('s_barrier'); p.cut()

def monitor(c):
    p = c.p
    ready_check(c)
    p.I('v_mov_b32 v20, %d\nv_mov_b32 v21, %d' % (K_SH * LS, 36))
    p.I('v_mul_u32_u24 v22, %d, v1\nv_add_u32 v20, v20, v22' % LS)
    p.I('v_subrev_u32 v23, 16, v1\nv_mul_u32_u24 v23, %d, v23\nv_add_u32 v23, %d, v23' % (LS, V_SH * LS))
    p.I('v_cmp_le_u32 vcc, 16, v1\nv_cndmask_b32 v20, v20, v23, vcc\nv_mov_b32 v24, 12\nv_cndmask_b32 v21, v21, v24, vcc')
    for lane, idx, tgt in ((32, M_CNT, 54), (33, A_CNT, 64), (34, B3_CNT, 63)):
        p.I('v_mov_b32 v23, %d\nv_mov_b32 v24, %d\nv_cmp_eq_u32 vcc, %d, v1\nv_cndmask_b32 v20, v20, v23, vcc\nv_cndmask_b32 v21, v21, v24, vcc' % (idx * LS, tgt, lane))
    p.I('s_mov_b32 s9, 0\ns_mov_b32 s10, 0\nv_mov_b32 v25, 1')
    lp = p.label_name('L_mon'); dn = p.label_name('L_mon_done')
    p.label(lp)
    p.I('s_mov_b64 exec, 0x3ffffffff' if False else 's_mov_b32 exec_lo, -1\ns_mov_b32 exec_hi, 7')
    p.I('buffer_load_dword v26, v20, s[%d:%d], 0 offen sc1\ns_waitcnt vmcnt(0)\nv_cmp_lt_u32 vcc, v26, v21' % (S_SYNC, S_SYNC + 3), nowait=True)
    p.I('s_nop 4\ns_mov_b64 s[6:7], vcc\ns_mov_b64 exec, 1')
    for bit, (expr, rel) in enumerate((('s_and_b32 s8, s6, 0xffff', K_REL), ('s_lshr_b32 s8, s6, 16', V_REL), ('s_and_b32 s8, s7, 1', M_REL), ('s_and_b32 s8, s7, 2', A_REL), ('s_and_b32 s8, s7, 4', B3_REL))):
        sk = p.label_name('L_ms')
        p.I('s_bitcmp1_b32 s9, %d\ns_cbranch_scc1 %s' % (bit, sk))
        p.I(expr)
        p.I('s_cmp_lg_u32 s8, 0\ns_cbranch_scc1 %s' % sk)
        p.I('v_mov_b32 v27, %d\nbuffer_store_dword v25, v27, s[%d:%d], 0 offen sc1\ns_bitset1_b32 s9, %d' % (rel * LS, S_SYNC, S_SYNC + 3, bit), nowait=True)
        p.label(sk)
    p.I('s_cmp_eq_u32 s9, 31\ns_cbranch_scc1 %s\ns_add_u32 s10, s10, 1\ns_cmp_lt_u32 s10, %d\ns_cbranch_scc1 %s' % (dn, SPIN_MAX, lp))
    p.label(dn)
    p.I('s_mov_b64 exec, -1\ns_waitcnt vmcnt(0)'); p.cut()

def wave_wait(c, *idx):
    p = c.p
    lp = p.label_name('L_ww')
    f, n = w_flags(*idx)
    f(p)
    p.I('s_mov_b32 s77, 0\ns_mov_b64 exec, 0x%x' % ((1 << n) - 1))
    p.label(lp)
    p.I('buffer_load_dword v253, v252, s[%d:%d], 0 offen sc1\ns_waitcnt vmcnt(0)\nv_cmp_lt_u32 vcc, v253, v254' % (S_SYNC, S_SYNC + 3), nowait=True)
    p.I('s_add_u32 s77, s77, 1\ns_cmp_ge_u32 s77, %d\ns_cbranch_scc1 %s_x\ns_cbranch_vccz %s_x\ns_sleep 1\ns_branch %s' % (SPIN_MAX, lp, lp, lp))
    p.label(lp + '_x')
    p.I('s_mov_b64 exec, -1'); p.cut()

def around_wait(c, fn, wait):
    p = c.p
    l0 = p.label_name('L_aw0'); l1 = p.label_name('L_aw1')
    p.I('s_cmp_eq_u32 s3, 0\ns_cbranch_scc1 %s' % l0)
    st = fn(None)
    p.label(l0); p.cut()
    wait()
    p.I('s_cmp_lg_u32 s3, 0\ns_cbranch_scc1 %s' % l1)
    fn(st)
    p.label(l1); p.cut()

def w_flags(*idx):
    def f(p):
        p.I('v_mov_b32 v252, %d\nv_mov_b32 v254, 1' % (idx[0] * LS))
        for k, i in enumerate(idx[1:]):
            p.I('v_mov_b32 v255, %d\nv_cmp_eq_u32 vcc, %d, v1\nv_cndmask_b32 v252, v252, v255, vcc' % (i * LS, k + 1))
    return f, len(idx)

def kv_addr(c):
    p = c.p
    m18 = udiv_magic(18, 800)
    p.I('s_mul_i32 s4, s2, 3\ns_add_u32 s4, s4, s3')
    p.I('s_mul_i32 s5, s4, %d\ns_lshr_b32 s5, s5, 16' % m18)
    p.I('s_mul_i32 s6, s5, 18\ns_sub_u32 s6, s4, s6')
    p.I('v_lshrrev_b32 v2, 2, v1\nv_and_b32 v3, 3, v1')
    p.I('s_lshl_b32 s7, s5, 6\nv_lshl_add_u32 v4, v2, 2, s7')
    p.I('s_lshl_b32 s8, s6, 6\nv_lshl_add_u32 v5, v3, 4, s8')
    p.I('s_movk_i32 s9, 1152\nv_mad_u32_u24 v6, v4, s9, v5')
    p.I('v_subrev_u32 v7, 3456, v6')
    p.I('s_mov_b32 s50, 0x%x\ns_mov_b32 s51, 0x20000\ns_mov_b32 s54, 0x%x\ns_mov_b32 s55, 0x20000' % (L.S * 1152, L.S * 1152))

def p0_kv(c, hook=None):
    p = c.p
    p.I('s_mov_b32 s48, s%d\ns_mov_b32 s49, s%d\ns_mov_b32 s52, s%d\ns_mov_b32 s53, s%d' % (P_K, P_K + 1, P_V, P_V + 1))
    KR, VR, SK = 8, 36, 52
    for i in range(3): p.I('buffer_load_dwordx4 %s, v7, s[48:51], 0 offen offset:%d' % (vr(KR + 4 * i, 4), 1152 * i))
    for i in range(4): p.I('buffer_load_dwordx4 %s, v6, s[48:51], 0 offen offset:%d' % (vr(KR + 4 * (3 + i), 4), 1152 * i))
    for i in range(4): p.I('buffer_load_dwordx4 %s, v6, s[52:55], 0 offen offset:%d' % (vr(VR + 4 * i, 4), 1152 * i))
    srd(p, 56, P_SK, 4608)
    p.I('v_lshlrev_b32 v68, 2, v5')
    for i in range(4): p.I('buffer_load_dwordx4 %s, v68, s[56:59], 0 offen offset:%d' % (vr(SK + 4 * i, 4), 16 * i))
    srd(p, 60, P_WS, L.D * 4096, off=L.XT)
    srd(p, S_SYNC, P_WS, 2 << 20, off=L.SYNC)
    p.I('v_lshlrev_b32 v69, 11, v5\nv_lshlrev_b32 v70, 1, v4\nv_sub_u32 v69, v69, v70\nv_add_u32 v69, 4088, v69')
    if hook: hook(c)
    p.I('s_mov_b32 s10, 0xffff0000')
    c.kv_probe = True
    if os.environ.get('FINE2'):
        c.fine = True; c.stamp(12); p.I('s_waitcnt vmcnt(0)'); c.stamp(13); c.fine = False
    C, KP, VP, AC, OUT = 72, 80, 94, 102, 112
    for pr in range(4):
        if pr == 1: ready_probe(c, 140)
        a0, a1, b0, b1 = SK + 4 * pr, SK + 4 * pr + 1, SK + 4 * pr + 2, SK + 4 * pr + 3
        p.I('v_lshlrev_b32 v%d, 16, v%d\nv_lshlrev_b32 v%d, 16, v%d' % (C, a0, C + 1, b0))
        p.I('v_and_b32 v%d, s10, v%d\nv_and_b32 v%d, s10, v%d' % (C + 2, a0, C + 3, b0))
        p.I('v_lshlrev_b32 v%d, 16, v%d\nv_lshlrev_b32 v%d, 16, v%d' % (C + 4, a1, C + 5, b1))
        p.I('v_and_b32 v%d, s10, v%d\nv_and_b32 v%d, s10, v%d' % (C + 6, a1, C + 7, b1))
        for i in range(7):
            p.I('v_lshlrev_b32 v%d, 16, v%d\nv_and_b32 v%d, s10, v%d' % (KP + 2 * i, KR + 4 * i + pr, KP + 2 * i + 1, KR + 4 * i + pr))
        for t in range(4):
            p.I('v_lshlrev_b32 v%d, 16, v%d\nv_and_b32 v%d, s10, v%d' % (VP + 2 * t, VR + 4 * t + pr, VP + 2 * t + 1, VR + 4 * t + pr))
        for t in range(4):
            acc = vr(AC + 2 * t, 2)
            p.I('v_pk_mul_f32 %s, %s, %s' % (acc, vr(C + 6, 2), vr(KP + 2 * t, 2)))
            p.I('v_pk_fma_f32 %s, %s, %s, %s' % (acc, vr(C + 4, 2), vr(KP + 2 * (t + 1), 2), acc))
            p.I('v_pk_fma_f32 %s, %s, %s, %s' % (acc, vr(C + 2, 2), vr(KP + 2 * (t + 2), 2), acc))
            p.I('v_pk_fma_f32 %s, %s, %s, %s' % (acc, vr(C, 2), vr(KP + 2 * (t + 3), 2), acc))
            p.I('v_pk_mul_f32 %s, %s, %s' % (acc, acc, vr(VP + 2 * t, 2)))
        o = OUT + 4 * pr
        p.I('v_cvt_pk_bf16_f32 v%d, v%d, v%d' % (o, AC + 6, AC + 4))
        p.I('v_cvt_pk_bf16_f32 v%d, v%d, v%d' % (o + 1, AC + 2, AC + 0))
        p.I('v_cvt_pk_bf16_f32 v%d, v%d, v%d' % (o + 2, AC + 7, AC + 5))
        p.I('v_cvt_pk_bf16_f32 v%d, v%d, v%d' % (o + 3, AC + 3, AC + 1))
        for h in range(2):
            p.I('s_mov_b32 s11, %d' % (4096 * (2 * pr + h)))
            p.I('buffer_store_dwordx2 %s, v69, s[60:63], s11 offen%s' % (vr(o + 2 * h, 2), c.sc))

KCS8 = 8 * KCOPY
XR8 = 3 * KCS8
RED8 = XR8 + 3 * XR_STRIDE

def p1_kcopies(c, hook=None):
    p = c.p
    p.I('s_mul_i32 s4, s2, %d' % (3 * 4096))
    for ch in range(3):
        p.I('s_add_u32 s5, s4, %d' % (4096 * ch))
        srd(p, 48 + 4 * ch, P_SSMK, 4096, soff=5)
    NR = 5
    D = 16
    p.I('v_lshlrev_b32 v2, 4, v1\nv_subrev_u32 v3, 128, v2')
    for ch in range(3):
        for rd in range(NR):
            r = D + 8 * (ch * NR + rd)
            if rd == 0:
                p.I('buffer_load_dwordx4 %s, v3, s[%d:%d], 0 offen' % (vr(r, 4), 48 + 4 * ch, 51 + 4 * ch))
                p.I('v_subrev_u32 v4, 112, v2\nbuffer_load_dwordx4 %s, v4, s[%d:%d], 0 offen' % (vr(r + 4, 4), 48 + 4 * ch, 51 + 4 * ch))
            else:
                p.I('v_add_u32 v4, %d, v2' % (1024 * rd - 128))
                p.I('buffer_load_dwordx4 %s, v4, s[%d:%d], 0 offen' % (vr(r, 4), 48 + 4 * ch, 51 + 4 * ch))
                p.I('buffer_load_dwordx4 %s, v4, s[%d:%d], 0 offen offset:16' % (vr(r + 4, 4), 48 + 4 * ch, 51 + 4 * ch))
    if hook: hook(c)
    p.I('v_mov_b32 v8, 0\nv_mov_b32 v9, 0\nv_mov_b32 v10, 0\nv_mov_b32 v11, 0')
    p.I('v_lshrrev_b32 v5, 4, v1\nv_and_b32 v6, 15, v1\nv_mul_u32_u24 v5, 48, v5\nv_add_u32 v5, v5, v6\nv_lshlrev_b32 v5, 4, v5\nv_add_u32 v5, %d, v5' % (XR8 + 32 * 16))
    for ch in range(3):
        p.I('ds_write_b128 v5, v[8:11] offset:%d\nds_write_b128 v5, v[8:11] offset:%d' % (ch * XR_STRIDE, ch * XR_STRIDE + 4 * 48 * 16))
    p.I('v_add_u32 v12, %d, v2\nv_add_u32 v13, %d, v2' % (KCS8, 2 * KCS8))
    T = 140
    for ch in range(3):
        va = (2, 12, 13)[ch]
        for rd in range(NR):
            r = D + 8 * (ch * NR + rd)
            t = T + 16 * ((ch * NR + rd) % 2)
            off = 1024 * rd
            if rd == NR - 1: p.I('s_mov_b64 exec, 0xfffff')
            for k in range(4): p.I('v_alignbit_b32 v%d, v%d, v%d, 16' % (t + k, r + k + 1, r + k))
            for k in range(4): p.I('v_mov_b32 v%d, v%d' % (t + 4 + k, r + k + 1))
            for k in range(4): p.I('v_alignbit_b32 v%d, v%d, v%d, 16' % (t + 8 + k, r + k + 2, r + k + 1))
            p.I('ds_write_b128 v%d, %s offset:%d' % (va, vr(t, 4), off))
            p.I('ds_write_b128 v%d, %s offset:%d' % (va, vr(t + 4, 4), off + KCOPY))
            p.I('ds_write_b128 v%d, %s offset:%d' % (va, vr(t + 8, 4), off + 2 * KCOPY))
            p.I('ds_write_b128 v%d, %s offset:%d' % (va, vr(r + 2, 4), off + 3 * KCOPY))
            for k in range(4): p.I('v_alignbit_b32 v%d, v%d, v%d, 16' % (t + 12 + k, r + k + 3, r + k + 2))
            p.I('ds_write_b128 v%d, %s offset:%d' % (va, vr(t + 12, 4), off + 4 * KCOPY))
            u = 172 if False else None
            for k in range(4): p.I('v_mov_b32 v%d, v%d' % (t + k, r + k + 3))
            for k in range(4): p.I('v_alignbit_b32 v%d, v%d, v%d, 16' % (t + 4 + k, r + k + 4, r + k + 3))
            p.I('ds_write_b128 v%d, %s offset:%d' % (va, vr(t, 4), off + 5 * KCOPY))
            p.I('ds_write_b128 v%d, %s offset:%d' % (va, vr(t + 4, 4), off + 6 * KCOPY))
            p.I('ds_write_b128 v%d, %s offset:%d' % (va, vr(r + 4, 4), off + 7 * KCOPY))
            if rd == NR - 1: p.I('s_mov_b64 exec, -1')

def p1_main(c):
    p = c.p
    srd(p, 48, P_WS, L.D * 4096, off=L.XT); srd(p, 52, P_WS, L.D * 4096, off=L.ZT)
    p.I('s_mul_i32 s4, s2, %d\ns_lshl_b32 s5, s3, 10\ns_add_u32 s5, s5, s4\nv_lshl_add_u32 v2, v1, 4, s5' % (3 * 4096))
    for ch in range(3):
        p.I('s_movk_i32 s6, %d\nbuffer_load_dwordx4 %s, v2, s[48:51], s6 offen%s' % (4096 * ch, vr(8 + 4 * ch, 4), c.sc))
    srd(p, 60, P_SSMD, 1152)
    p.I('s_mul_i32 s8, s2, 3\ns_min_u32 s9, s3, 2\ns_add_u32 s8, s8, s9\ns_lshl_b32 s8, s8, 1\nv_mov_b32 v20, s8')
    p.I('buffer_load_ushort v23, v20, s[60:63], 0 offen')
    p.I('v_and_b32 v3, 7, v1\nv_mul_u32_u24 v3, 48, v3\nv_lshrrev_b32 v4, 3, v1\nv_add_u32 v3, v3, v4\ns_lshl_b32 s6, s3, 3\nv_add_u32 v3, s6, v3\nv_lshlrev_b32 v3, 4, v3\nv_add_u32 v3, %d, v3' % XR8)
    VA0, VB0, VA, VB = 24, 25, 26, 27
    p.I('v_and_b32 v4, 7, v1\nv_mul_u32_u24 v4, %d, v4\nv_lshrrev_b32 v5, 4, v1\nv_bfe_u32 v6, v1, 3, 1\nv_add_u32 v6, v6, v5\nv_lshl_add_u32 v%d, v6, 4, v4' % (KCOPY, VA0))
    p.I('v_mul_u32_u24 v4, 48, v5\nv_and_b32 v6, 15, v1\nv_sub_u32 v4, v4, v6\nv_add_u32 v4, 15, v4\nv_lshlrev_b32 v%d, 4, v4' % VB0)
    wg_rb_ns(p)
    wfrag_setup(c, L.W1T, 64, 160)
    sent = sentinel_setup(c) if TAG_H1 else []
    for ch in range(3):
        p.I('ds_write_b128 v3, %s offset:%d' % (vr(8 + 4 * ch, 4), ch * XR_STRIDE))
    p.I('v_lshlrev_b32 v23, 16, v23')
    p.I('s_waitcnt lgkmcnt(0)\ns_barrier')
    p.cut()
    c.stamp(3)
    AS, BS1, BS0, ACC1, ACC0 = 32, 96, 112, 128, 144
    DIST = int(os.environ.get('DIST', '4'))
    w1 = [(e, ks) for ks in range(18) for e in range(3)]
    sq = list(sent)
    def w1_load():
        if not w1:
            if sq: p.I(sq.pop(0))
            return
        e, ks = w1.pop(0)
        if os.environ.get('NOW1') == '2': return
        if ks % 4 == 0 and ks > 0: p.I('v_add_u32 v%d, 4096, v%d' % (160 + e, 160 + e))
        p.I('buffer_load_dwordx4 %s, v%d, s[64:67], 0 offen offset:%d%s' % (ar(4 * (e * 18 + ks), 4), 160 + e, 1024 * (ks % 4), c.sc))
    def ldA(k, rel):
        r = AS + 8 * (k % 8)
        for f in range(2): p.I('ds_read_b128 %s, v%d offset:%d' % (vr(r + 4 * f, 4), VA, 64 * rel + 32 * f))
    def ldB(base, q, ct):
        p.I('ds_read_b128 %s, v%d offset:%d' % (vr(base + 4 * (q % 4), 4), VB, ((q & 1) * 4 * 48 + (q >> 1) + 16 * (1 - ct)) * 16))
    def segment(q0, q1, cts, every):
        act = lambda q: [x for x in cts if x[1] <= q < x[2]]
        for k in range(q0, q0 + DIST + 1): ldA(k, k)
        for q in range(q0, q0 + DIST):
            for ct, a0, a1, acc, bs in act(q): ldB(bs, q, ct)
        cnt = 0
        for q in range(q0, q1):
            for idx, (ct, a0, a1, acc, bs) in enumerate(act(q)):
                for rt in range(4):
                    a = AS + 8 * ((q + rt // 2) % 8) + 4 * (rt % 2)
                    p.I('v_mfma_f32_16x16x32_bf16 %s, %s, %s, %s' % (vr(acc + 4 * rt, 4), vr(a, 4), vr(bs + 4 * (q % 4), 4), '0' if q == a0 else vr(acc + 4 * rt, 4)))
                    if idx == 0 and rt == 0 and q + DIST + 1 <= q1: ldA(q + DIST + 1, q + DIST + 1)
                    if rt == 3 and q + DIST < a1: ldB(bs, q + DIST, ct)
            cnt += 1
            if cnt % every == 0 and os.environ.get('NOW1') != '1': w1_load()
    lw3 = p.label_name('L_cw3'); lj = p.label_name('L_cj')
    p.I('s_cmp_eq_u32 s3, 3\ns_cbranch_scc1 %s' % lw3)
    p.I('s_mul_i32 s14, s3, %d\nv_add_u32 v%d, s14, v%d\ns_mul_i32 s14, s3, %d\ns_add_u32 s14, s14, %d\nv_add_u32 v%d, s14, v%d' % (KCS8, VA, VA0, XR_STRIDE, XR8, VB, VB0))
    segment(0, 64, [(1, 0, 64, ACC1, BS1), (0, 0, 8, ACC0, BS0)], 1)
    while w1 or sq: w1_load()
    p.I('s_branch %s' % lj); p.cut()
    p.label(lw3)
    w1[:] = [(e, ks) for ks in range(18) for e in range(3)]
    sq[:] = list(sent)
    for ch in range(3):
        p.I('v_add_u32 v%d, %d, v%d\nv_add_u32 v%d, %d, v%d' % (VA, ch * KCS8, VA0, VB, XR8 + ch * XR_STRIDE, VB0))
        segment(8, 32, [(0, 8, 32, ACC0 if ch % 2 == 0 else ACC1, BS0)], 1)
        acc = ACC0 if ch % 2 == 0 else ACC1
        p.I('v_lshlrev_b32 v2, 4, v1\nv_add_u32 v2, %d, v2' % (RED8 + 4096 * ch))
        for rt in range(4): p.I('ds_write_b128 v2, %s offset:%d' % (vr(acc + 4 * rt, 4), 1024 * rt))
    while w1 or sq: w1_load()
    p.label(lj)
    p.I('s_waitcnt lgkmcnt(0)\ns_barrier')
    p.cut()
    c.stamp(4)
    done = p.label_name('L_conv_done')
    p.I('s_cmp_eq_u32 s3, 3\ns_cbranch_scc1 %s' % done)
    p.I('s_lshl_b32 s14, s3, 12\ns_add_u32 s14, s14, %d\nv_lshl_add_u32 v2, v1, 4, s14' % RED8)
    T = 32
    for rt in range(4): p.I('ds_read_b128 %s, v2 offset:%d' % (vr(T + 4 * rt, 4), 1024 * rt))
    p.I('v_lshrrev_b32 v5, 5, v1\nv_sub_u32 v5, 1, v5\nv_mul_u32_u24 v5, 48, v5\nv_and_b32 v6, 15, v1\nv_sub_u32 v5, v5, v6\nv_add_u32 v5, 15, v5\nv_lshlrev_b32 v5, 4, v5')
    p.I('v_bfe_u32 v6, v1, 4, 1\nv_sub_u32 v6, 1, v6\nv_lshl_add_u32 v5, v6, 3, v5')
    p.I('s_mul_i32 s14, s3, %d\ns_add_u32 s14, s14, %d\nv_add_u32 v5, s14, v5' % (XR_STRIDE, XR8))
    X = 48
    for ct in range(2):
        for rt in range(4):
            p.I('ds_read_b64 %s, v5 offset:%d' % (vr(X + 8 * ct + 2 * rt, 2), (2 * (3 - rt) * 48 + 16 * (1 - ct)) * 16))
    for i in range(16): p.I('v_add_f32 v%d, v%d, v%d' % (ACC0 + i, ACC0 + i, T + i))
    p.I('s_mul_i32 s14, s2, 3\ns_add_u32 s14, s14, s3\ns_lshl_b32 s14, s14, 12')
    p.I('v_and_b32 v6, 7, v1\nv_lshl_add_u32 v6, v6, 7, s14\nv_lshrrev_b32 v7, 5, v1\nv_lshl_add_u32 v6, v7, 4, v6\nv_bfe_u32 v7, v1, 4, 1\nv_lshl_add_u32 v6, v7, 5, v6\nv_bfe_u32 v7, v1, 3, 1\nv_lshl_add_u32 v6, v7, 6, v6')
    p.I('s_mov_b32 s10, 0xffff0000')
    Z, U = 64, 80
    for ct in range(2):
        src = ACC0 if ct == 0 else ACC1
        for rt in range(4):
            x0, x1 = X + 8 * ct + 2 * rt, X + 8 * ct + 2 * rt + 1
            a = src + 4 * rt
            p.I('v_and_b32 v%d, s10, v%d\nv_lshlrev_b32 v%d, 16, v%d\nv_and_b32 v%d, s10, v%d\nv_lshlrev_b32 v%d, 16, v%d' % (U, x1, U + 1, x1, U + 2, x0, U + 3, x0))
            for r in range(4): p.I('v_fmac_f32 v%d, v23, v%d' % (a + r, U + r))
            zb = Z + 8 * ct + 4 * (rt // 2) + 2 * (rt % 2)
            p.I('v_cvt_pk_bf16_f32 v%d, v%d, v%d\nv_cvt_pk_bf16_f32 v%d, v%d, v%d' % (zb, a, a + 1, zb + 1, a + 2, a + 3))
        P0_, P1_ = Z + 8 * ct, Z + 8 * ct + 4
        for zb in (P0_, P1_):
            p.I('v_permlane16_swap_b32 v%d, v%d\nv_permlane16_swap_b32 v%d, v%d' % (zb, zb + 2, zb + 1, zb + 3))
        T_ = 84
        for k in range(4): p.I('v_mov_b32 v%d, v%d' % (T_ + k, P0_ + k))
        for k in range(4): p.I('v_mov_b32_dpp v%d, v%d row_ror:8 row_mask:0xf bank_mask:0xc' % (P0_ + k, P1_ + k))
        for k in range(4): p.I('v_mov_b32_dpp v%d, v%d row_ror:8 row_mask:0xf bank_mask:0x3' % (P1_ + k, T_ + k))
        p.I('buffer_store_dwordx4 %s, v6, s[52:55], 0 offen offset:%d%s' % (vr(P0_, 4), 2048 * ct, c.sc))
        p.I('buffer_store_dwordx4 %s, v6, s[52:55], 0 offen offset:%d%s' % (vr(P1_, 4), 2048 * ct + 1024, c.sc))
    p.label(done)

MODW = 100
def p0_mod_loads(c, wg0):
    p = c.p
    p.I('s_sub_u32 s4, s2, %d' % wg0)
    srd(p, 8, P_C, 1152); srd(p, 52, P_WMOD, 576 * 6912)
    p.I('v_lshlrev_b32 v2, 1, v0')
    for i in range(3): p.I('buffer_load_ushort v%d, v2, s[8:11], 0 offen offset:%d' % (172 + i, 512 * i))
    p.I('v_lshrrev_b32 v8, 3, v0\nv_and_b32 v9, 7, v0')
    p.I('s_lshl_b32 s6, s4, 7\nv_lshl_add_u32 v10, v9, 4, s6\ns_movk_i32 s7, 6912\nv_mad_u32_u24 v10, v8, s7, v10')
    for i in range(18):
        p.I('buffer_load_dwordx4 %s, v10, s[52:55], 0 offen' % vr(MODW + 4 * i, 4))
        if i < 17: p.I('v_add_u32 v10, %d, v10' % (32 * 6912))

MODL = 131072
def p0_mod_compute(c, wg0):
    p = c.p
    W = MODW
    p.I('s_sub_u32 s4, s2, %d' % wg0)
    srd(p, 52, P_WS, 6 * 576 * 4, off=L.MOD)
    p.I('v_lshrrev_b32 v8, 3, v0\nv_and_b32 v9, 7, v0')
    p.I('s_mov_b32 s8, 0x%x' % f2u(-LOG2E))
    p.I('v_lshlrev_b32 v12, 2, v0\nv_add_u32 v12, %d, v12' % MODL)
    for i in range(3):
        r = 172 + i
        p.I('v_lshlrev_b32 v%d, 16, v%d' % (r, r))
        p.I('v_mul_f32 v13, s8, v%d\nv_exp_f32 v13, v13\nv_add_f32 v13, 1.0, v13\nv_rcp_f32 v13, v13\nv_mul_f32 v13, v%d, v13' % (r, r))
        bf16_round(p, 13, 13)
        p.I('ds_write_b32 v12, v13 offset:%d' % (1024 * i))
    p.I('s_waitcnt lgkmcnt(0)\ns_barrier')
    p.I('v_lshlrev_b32 v14, 2, v8\nv_add_u32 v14, %d, v14' % MODL)
    SV = 40
    for i in range(18): p.I('ds_read_b32 v%d, v14 offset:%d' % (SV + i, 128 * i))
    AC, T = 16, 24
    p.I('s_mov_b32 s10, 0xffff0000')
    for i in range(18):
        for d in range(4): unpack(p, T + 2 * d, W + 4 * i + d, 10)
        for d in range(4):
            sv = vr((SV + i) & ~1, 2)
            mods = 'op_sel_hi:[1,0,1]' if i % 2 == 0 else 'op_sel:[0,1,0] op_sel_hi:[1,1,1]'
            if i == 0: p.I('v_pk_mul_f32 %s, %s, %s op_sel_hi:[1,0]' % (vr(AC + 2 * d, 2), vr(T + 2 * d, 2), sv))
            else: p.I('v_pk_fma_f32 %s, %s, %s, %s %s' % (vr(AC + 2 * d, 2), vr(T + 2 * d, 2), sv, vr(AC + 2 * d, 2), mods))
    p.I('v_lshlrev_b32 v15, 8, v8\nv_lshl_add_u32 v15, v9, 5, v15\nv_add_u32 v15, %d, v15' % MODL)
    p.I('ds_write_b128 v15, %s offset:4096\nds_write_b128 v15, %s offset:4112' % (vr(AC, 4), vr(AC + 4, 4)))
    p.I('s_waitcnt lgkmcnt(0)\ns_barrier')
    lab = p.label_name('L_mod_skip')
    wave0(p, lab)
    p.I('v_lshlrev_b32 v14, 2, v0\nv_add_u32 v14, %d, v14' % MODL)
    W2_ = 40
    for i in range(32): p.I('ds_read_b32 v%d, v14 offset:%d' % (W2_ + i, 4096 + 256 * i))
    n = 32
    while n > 1:
        n //= 2
        for i in range(n): p.I('v_add_f32 v%d, v%d, v%d' % (W2_ + i, W2_ + i, W2_ + i + n))
    p.I('v_mov_b32 v16, v%d' % W2_)
    bf16_round(p, 16, 16)
    m9 = udiv_magic(9, 64)
    p.I('s_mul_i32 s9, s4, %d\ns_lshr_b32 s9, s9, 16' % m9)
    p.I('s_cmp_eq_u32 s9, 1\ns_cselect_b32 s11, 1, 0\ns_cmp_eq_u32 s9, 4\ns_cselect_b32 s11, 1, s11')
    p.I('v_cvt_f32_u32 v17, s11\nv_add_f32 v16, v16, v17')
    bf16_round(p, 16, 16)
    p.I('s_lshl_b32 s6, s4, 8\nv_lshl_add_u32 v18, v0, 2, s6')
    p.I('buffer_store_dword v16, v18, s[52:55], 0 offen%s' % c.sc)
    p.label(lab); p.cut()

PT_NB = 4
def pt_setup(c):
    p = c.p
    p.I('v_lshrrev_b32 v2, 3, v1\nv_and_b32 v3, 7, v1\nv_lshlrev_b32 v3, 4, v3')
    p.I('v_lshrrev_b32 v4, 4, v1\nv_bfe_u32 v5, v1, 2, 2\nv_and_b32 v9, 3, v1')
    p.I('v_lshl_add_u32 v6, v4, 3, v5\nv_lshlrev_b32 v6, 7, v6\nv_lshl_add_u32 v6, v9, 3, v6')
    p.I('v_lshl_add_u32 v7, v4, 2, v5\nv_lshlrev_b32 v7, 7, v7\nv_lshl_add_u32 v7, v9, 5, v7')
    p.I('v_lshlrev_b32 v8, 4, v1')
    p.I('s_mul_i32 s96, s3, %d' % (PT_NB * 4096))
    srd(p, 48, P_W1, 576 * 1152); srd(p, 52, P_W2, 576 * 1152); srd(p, 56, P_W3, 576 * 9216); srd(p, 60, P_W4, 4608 * 1152)
    srd(p, 68, P_WS, L.W34T + 32 * 324 * 1024 - L.W1T, off=L.W1T)

def pt_src(c, su, mode):
    p = c.p
    if mode == '12':
        p.I('s_cmp_ge_u32 s%d, 162\ns_cselect_b32 s15, 1, 0\ns_cselect_b32 s7, 162, 0\ns_sub_u32 s7, s%d, s7' % (su, su))
        p.I('s_mul_i32 s8, s7, %d\ns_lshr_b32 s8, s8, 16\ns_mul_i32 s9, s8, 9\ns_sub_u32 s9, s7, s9' % udiv_magic(9, 600))
        p.I('s_movk_i32 s11, 1152')
        p.I('s_cmp_eq_u32 s15, 1')
        for k in range(4): p.I('s_cselect_b32 s%d, s%d, s%d' % (64 + k, 52 + k, 48 + k))
        lim = 324
    else:
        p.I('s_cmp_ge_u32 s%d, 1296\ns_cselect_b32 s15, 1, 0\ns_cselect_b32 s7, 1296, 0\ns_sub_u32 s7, s%d, s7' % (su, su))
        p.I('s_mul_i32 s8, s7, %d\ns_lshr_b32 s8, s8, 20\ns_mul_i32 s12, s7, %d\ns_lshr_b32 s12, s12, 20' % (udiv_magic(72, 2600, 20), udiv_magic(9, 2600, 20)))
        p.I('s_cmp_eq_u32 s15, 1\ns_cselect_b32 s8, s12, s8\ns_cselect_b32 s12, 9, 72\ns_movk_i32 s11, 9216\ns_cselect_b32 s11, 1152, s11')
        for k in range(4): p.I('s_cselect_b32 s%d, s%d, s%d' % (64 + k, 60 + k, 56 + k))
        p.I('s_mul_i32 s9, s8, s12\ns_sub_u32 s9, s7, s9')
        lim = 2592
    p.I('s_mul_i32 s10, s8, s11\ns_lshl_b32 s10, s10, 5\ns_lshl_b32 s12, s9, 7\ns_add_u32 s10, s10, s12')
    p.I('s_cmp_ge_u32 s%d, %d\ns_cselect_b32 s10, 0x7f000000, s10' % (su, lim))

def pt_dst(c, su, mode):
    p = c.p
    m18 = udiv_magic(18, 300)
    if mode == '12':
        p.I('s_mul_i32 s12, s9, %d\ns_lshl_b32 s13, s8, 10\ns_add_u32 s12, s12, s13\ns_mul_i32 s13, s15, %d\ns_add_u32 s12, s12, s13' % (4 * 18 * 1024, L.W2T - L.W1T))
        for j in range(4): p.I('s_add_u32 s%d, s12, %d' % (80 + j, j * 18 * 1024))
        lim = 324
    else:
        w4 = p.label_name('L_d4'); dn = p.label_name('L_dd')
        p.I('s_cmp_eq_u32 s15, 1\ns_cbranch_scc1 %s' % w4)
        for j in range(4):
            p.I('s_lshl_b32 s12, s9, 2\ns_add_u32 s12, s12, %d' % j)
            p.I('s_mul_i32 s13, s12, %d\ns_lshr_b32 s13, s13, 16\ns_mul_i32 s14, s13, 36\ns_sub_u32 s12, s12, s14' % udiv_magic(36, 300))
            p.I('s_mul_i32 s14, s12, %d\ns_lshr_b32 s14, s14, 16\ns_mul_i32 s84, s14, 12\ns_sub_u32 s12, s12, s84' % udiv_magic(12, 40))
            p.I('s_mul_i32 s84, s12, %d\ns_lshr_b32 s84, s84, 16\ns_mul_i32 s85, s84, 3\ns_sub_u32 s12, s12, s85' % udiv_magic(3, 16))
            p.I('s_lshl_b32 s13, s13, 2\ns_add_u32 s13, s13, s84\ns_mul_i32 s13, s13, 324\ns_mul_i32 s14, s14, 54\ns_add_u32 s13, s13, s14\ns_mul_i32 s14, s8, 3\ns_add_u32 s13, s13, s14\ns_add_u32 s13, s13, s12\ns_lshl_b32 s13, s13, 10\ns_add_u32 s%d, s13, %d' % (80 + j, L.W34T - L.W1T))
        p.I('s_branch %s' % dn)
        p.label(w4)
        p.I('s_mul_i32 s12, s8, %d\ns_lshr_b32 s12, s12, 16\ns_mul_i32 s13, s12, 18\ns_sub_u32 s13, s8, s13' % m18)
        for j in range(4):
            p.I('s_and_b32 s14, s9, 3\ns_lshl_b32 s84, s13, 2\ns_add_u32 s84, s84, %d' % (162 + j))
            p.I('s_cmp_ge_u32 s9, 4\ns_cselect_b32 s85, 72, 0\ns_add_u32 s84, s84, s85')
            p.I('s_add_u32 s85, s13, 306\ns_cmp_eq_u32 s9, 8\ns_cselect_b32 s84, s85, s84\ns_cselect_b32 s14, %d, s14' % j)
            p.I('s_lshl_b32 s85, s12, 2\ns_add_u32 s85, s85, s14\ns_mul_i32 s85, s85, 324\ns_add_u32 s85, s85, s84\ns_lshl_b32 s85, s85, 10\ns_add_u32 s%d, s85, %d' % (80 + j, L.W34T - L.W1T))
        p.label(dn)
        lim = 2592
    p.I('s_cmp_ge_u32 s%d, %d' % (su, lim))
    for j in range(4): p.I('s_cselect_b32 s%d, 0x7f000000, s%d' % (80 + j, 80 + j))

def pt_issue(c, sbuf):
    p = c.p
    p.I('v_mad_u32_u24 v9, v2, s11, v3\nv_add_u32 v9, s10, v9\ns_lshl_b32 s12, s11, 3')
    for q in range(4):
        p.I('s_add_u32 m0, s%d, %d' % (sbuf, q * 1024))
        if q: p.I('v_add_u32 v9, s12, v9')
        p.I('buffer_load_dwordx4 v9, s[64:67], 0 offen lds', nowait=True)

def pt_process(c, sbuf, mode):
    p = c.p
    R = 16
    def reads(va, jstride, second):
        p.I('v_add_u32 v10, s%d, v%d' % (sbuf, va))
        for j in range(4):
            p.I('ds_read_b64_tr_b16 %s, v10 offset:%d' % (vr(R + 4 * j, 2), j * jstride))
            p.I('ds_read_b64_tr_b16 %s, v10 offset:%d' % (vr(R + 4 * j + 2, 2), j * jstride + second))
    if mode == '12': reads(6, 32, 512)
    else:
        lb = p.label_name('L_kb'); le = p.label_name('L_ke')
        p.I('s_cmp_eq_u32 s15, 1\ns_cbranch_scc1 %s' % lb)
        reads(6, 32, 512)
        p.I('s_branch %s' % le)
        p.label(lb)
        reads(7, 8, 2048)
        p.label(le)
    p.I('s_waitcnt lgkmcnt(0)');
    for j in range(4):
        p.I('v_add_u32 v11, s%d, v8' % (80 + j))
        if os.environ.get('NOST'): continue
        p.I('buffer_store_dwordx4 %s, v11, s[68:71], 0 offen%s' % (vr(R + 4 * j, 4), '' if os.environ.get('PLAINST') else c.sc), nowait=True)

def pretile(c, mode, su0):
    p = c.p
    p.comment('---- pretile %s' % mode)
    lim = 324 if mode == '12' else 2592
    p.I('s_mov_b32 s86, s%d\ns_mov_b32 s87, s%d\ns_mov_b32 s88, s96\ns_mov_b32 s89, s96\ns_add_u32 s90, s96, %d' % (su0, su0, PT_NB * 4096))
    def adv(r): p.I('s_add_u32 s%d, s%d, 4096\ns_cmp_ge_u32 s%d, s90\ns_cselect_b32 s%d, s96, s%d' % (r, r, r, r, r))
    for k in range(PT_NB - 1):
        pt_src(c, 86, mode); pt_issue(c, 88); adv(88); p.I('s_add_u32 s86, s86, 256')
    loop = p.label_name('L_pt'); done = p.label_name('L_pt_done')
    first = True
    p.label(loop)
    p.I('s_cmp_ge_u32 s87, %d\ns_cbranch_scc1 %s' % (lim, done))
    pt_src(c, 86, mode); pt_issue(c, 88); adv(88); p.I('s_add_u32 s86, s86, 256')
    p.I('s_waitcnt vmcnt(%d)' % (4 * (PT_NB - 1)))
    pt_src(c, 87, mode); pt_dst(c, 87, mode)
    pt_process(c, 89, mode); adv(89); p.I('s_add_u32 s87, s87, 256')
    p.I('s_branch %s' % loop)
    p.label(done); p.cut()
    p.I('s_waitcnt vmcnt(0)')

def ln_stats(p, X, ntok, nj, ST, red, stride=2):
    for j in range(nj):
        for i in range(ntok):
            x = vr(X + (i * nj + j) * stride, 2)
            if j == 0:
                p.I('v_pk_mul_f32 %s, %s, %s' % (vr(ST + 4 * i + 2, 2), x, x))
            else:
                p.I('v_pk_fma_f32 %s, %s, %s, %s' % (vr(ST + 4 * i + 2, 2), x, x, vr(ST + 4 * i + 2, 2)))
            if j == 1:
                p.I('v_pk_add_f32 %s, %s, %s' % (vr(ST + 4 * i, 2), vr(X + (i * nj) * stride, 2), x))
            elif j > 1:
                p.I('v_pk_add_f32 %s, %s, %s' % (vr(ST + 4 * i, 2), vr(ST + 4 * i, 2), x))
    for i in range(ntok):
        p.I('v_add_f32 v%d, v%d, v%d\nv_add_f32 v%d, v%d, v%d' % (ST + 4 * i, ST + 4 * i, ST + 4 * i + 1, ST + 4 * i + 2, ST + 4 * i + 2, ST + 4 * i + 3))
    red([ST + 4 * i for i in range(ntok)] + [ST + 4 * i + 2 for i in range(ntok)])
    for i in range(ntok):
        a = ST + 4 * i
        p.I('v_mul_f32 v%d, s98, v%d\nv_mul_f32 v%d, s98, v%d' % (a, a, a + 2, a + 2))
    for i in range(ntok):
        a = ST + 4 * i
        p.I('v_fma_f32 v%d, -v%d, v%d, v%d' % (a + 2, a, a, a + 2))
    for i in range(ntok):
        a = ST + 4 * i
        p.I('v_max_f32 v%d, 0, v%d' % (a + 2, a + 2))
    for i in range(ntok):
        a = ST + 4 * i
        p.I('v_add_f32 v%d, s97, v%d' % (a + 2, a + 2))
    for i in range(ntok):
        a = ST + 4 * i
        p.I('v_rsq_f32 v%d, v%d' % (a + 2, a + 2))
    for i in range(ntok):
        a = ST + 4 * i
        p.I('v_mul_f32 v%d, -v%d, v%d' % (a + 1, a, a + 2))
    for i in range(ntok):
        a = ST + 4 * i
        p.I('v_mov_b32 v%d, v%d' % (a, a + 2))

def ln_apply(p, dst, src, P):
    p.I('v_pk_fma_f32 %s, %s, %s, %s op_sel:[0,0,1] op_sel_hi:[1,0,1]' % (vr(dst, 2), vr(src, 2), vr(P, 2), vr(P, 2)))

def gemm_small2(c, lds_base, abase, ACC, BF, after_ks=None):
    p = c.p
    p.I('v_and_b32 v2, 15, v1\nv_lshrrev_b32 v8, 4, v1\nv_xor_b32 v2, v2, v8\nv_lshl_add_u32 v2, v8, 4, v2\nv_lshlrev_b32 v2, 4, v2\nv_add_u32 v2, %d, v2' % lds_base)
    def ldb(ks):
        for tt in range(2):
            p.I('ds_read_b128 %s, v2 offset:%d' % (vr(BF + 8 * (ks % 3) + 4 * tt, 4), (ks * 2 + tt) * 1024))
    ldb(0); ldb(1)
    for ks in range(18):
        if ks + 2 < 18: ldb(ks + 2)
        for e in range(3):
            for tt in range(2):
                a = ACC + 4 * (e * 2 + tt)
                p.I('v_mfma_f32_16x16x32_bf16 %s, %s, %s, %s' % (vr(a, 4), ar(abase + 4 * (e * 18 + ks), 4), vr(BF + 8 * (ks % 3) + 4 * tt, 4), '0' if ks == 0 else vr(a, 4)))
        if after_ks: after_ks(ks)

def wfrag_setup(c, wsoff, srdslot, vaddr):
    p = c.p
    srd(p, srdslot, P_WS, 36 * 18 * 1024, off=wsoff)
    p.I('s_mul_i32 s6, s5, 12\ns_mul_i32 s7, s3, 3\ns_add_u32 s6, s6, s7\ns_mul_i32 s6, s6, %d' % (18 * 1024))
    p.I('v_lshl_add_u32 v%d, v1, 4, s6\nv_add_u32 v%d, %d, v%d\nv_add_u32 v%d, %d, v%d' % (vaddr, vaddr + 1, 18 * 1024, vaddr, vaddr + 2, 36 * 1024, vaddr))

def wfrag_load(c, srdslot, vaddr, abase, ks):
    p = c.p
    for e in range(3):
        if ks % 4 == 0 and ks > 0: p.I('v_add_u32 v%d, 4096, v%d' % (vaddr + e, vaddr + e))
        p.I('buffer_load_dwordx4 %s, v%d, s[%d:%d], 0 offen offset:%d%s' % (ar(abase + 4 * (e * 18 + ks), 4), vaddr + e, srdslot, srdslot + 3, 1024 * (ks % 4), c.sc))

ZS_BASE, A1_BASE = 0, 36864
XF, GH, CB, SB, TM, ST2 = 16, 88, 160, 178, 196, 232

def wg_rb_ns(p):
    m3 = udiv_magic(3, 256)
    p.I('s_lshr_b32 s5, s2, 3\ns_mul_i32 s4, s5, %d\ns_lshr_b32 s4, s4, 16\ns_mul_i32 s6, s4, 3\ns_sub_u32 s5, s5, s6\ns_and_b32 s6, s2, 7\ns_lshl_b32 s6, s6, 3\ns_add_u32 s4, s4, s6' % m3)

def load_wfrags(c, wsoff, abase):
    p = c.p
    srd(p, 64, P_WS, 36 * 18 * 1024, off=wsoff)
    p.I('s_mul_i32 s6, s5, 12\ns_mul_i32 s7, s3, 3\ns_add_u32 s6, s6, s7\ns_mul_i32 s6, s6, %d' % (18 * 1024))
    p.I('v_lshl_add_u32 v2, v1, 4, s6')
    for e in range(3):
        for ks in range(18):
            idx = e * 18 + ks
            if idx % 4 == 0 and idx > 0: p.I('v_add_u32 v2, 4096, v2')
            p.I('buffer_load_dwordx4 %s, v2, s[64:67], 0 offen offset:%d%s' % (ar(abase + 4 * idx, 4), 1024 * (idx % 4), c.sc))

def red32(p, tmp):
    return lambda regs: reduce32(p, regs, tmp)

XP, P0S = 180, 216
PRM_BASE = 73728
HPL_BASE, HPL_RS = 86016, 400

def p2_xload(c):
    p = c.p
    wg_rb_ns(p)
    srd(p, 68, P_Q, L.S * 1152)
    p.I('v_lshrrev_b32 v172, 5, v1\nv_and_b32 v173, 31, v1')
    p.I('s_lshl_b32 s6, s4, 5\ns_lshl_b32 s7, s3, 3\ns_add_u32 s6, s6, s7\nv_lshl_add_u32 v174, v172, 2, s6')
    p.I('s_movk_i32 s7, 1152\nv_mul_lo_u32 v178, v174, s7\nv_lshl_add_u32 v178, v173, 2, v178\nv_add_u32 v179, 2304, v178')
    for i in range(4):
        for j in range(9):
            p.I('buffer_load_dword v%d, v%d, s[68:71], 0 offen offset:%d' % (XP + i * 9 + j, 178 if i < 2 else 179, (i % 2) * 1152 + 128 * j))

def p2_xstats(c):
    p = c.p
    p.I('s_mov_b32 s99, 0xffff0000\ns_mov_b32 s98, 0x%x\ns_mov_b32 s97, 0x%x' % (f2u(1.0 / 576), f2u(1e-5)))
    T = 8
    for k in range(36): unpack(p, T + 2 * k, XP + k, 99)
    ln_stats(p, T, 4, 9, P0S, red32(p, 232))

def p2_pre(c):
    p = c.p
    wg_rb_ns(p)
    srd(p, 52, P_WS, 6 * 576 * 4, off=L.MOD)
    p.I('s_mov_b32 s99, 0xffff0000\ns_mov_b32 s98, 0x%x\ns_mov_b32 s97, 0x%x' % (f2u(1.0 / 576), f2u(1e-5)))
    p.I('v_lshrrev_b32 v3, 5, v1\nv_and_b32 v4, 31, v1\nv_mov_b32 v6, v178\nv_mov_b32 v7, v179')
    p.I('v_lshlrev_b32 v8, 4, v0')
    PL = 236
    for u in range(3): p.I('s_movk_i32 s7, %d\nbuffer_load_dwordx4 %s, v8, s[52:55], s7 offen%s' % (4096 * u, vr(PL + 4 * u, 4), c.sc))
    for k in range(36):
        p.I('v_lshlrev_b32 v%d, 16, v%d\nv_and_b32 v%d, s99, v%d' % (XF + 2 * k, XP + k, XF + 2 * k + 1, XP + k))
    for i in range(4):
        for j in range(9):
            k = i * 9 + j
            ln_apply(p, GH + 2 * k, XF + 2 * k, P0S + 4 * i)
    p.I('v_add_u32 v9, %d, v8' % PRM_BASE)
    for u in range(3): p.I('ds_write_b128 v9, %s offset:%d' % (vr(PL + 4 * u, 4), 4096 * u))
    p.I('s_waitcnt lgkmcnt(0)\ns_barrier')
    p.I('v_lshlrev_b32 v10, 3, v4\nv_add_u32 v10, %d, v10' % PRM_BASE)
    for arr, dst in ((0, TM), (1, TM + 18), (2, TM + 36), (3, SB), (4, CB)):
        for j in range(9):
            p.I('ds_read_b64 %s, v10 offset:%d' % (vr(dst + 2 * j, 2), arr * 2304 + 256 * j))
    for j in range(9):
        p.I('v_pk_mul_f32 %s, %s, %s' % (vr(TM + 18 + 2 * j, 2), vr(TM + 18 + 2 * j, 2), vr(TM + 36 + 2 * j, 2)))
        p.I('v_pk_mul_f32 %s, %s, %s' % (vr(TM + 2 * j, 2), vr(TM + 2 * j, 2), vr(TM + 36 + 2 * j, 2)))
    for i in range(4):
        for j in range(9):
            g = GH + (i * 9 + j) * 2
            p.I('v_pk_fma_f32 %s, %s, %s, %s' % (vr(g, 2), vr(g, 2), vr(TM + 18 + 2 * j, 2), vr(TM + 2 * j, 2)))

OUTS_BASE, OUTS_RS = 100352, 400
def tile_out(c, packed, srdslot):
    p = c.p
    p.I('v_and_b32 v2, 15, v1\nv_mul_u32_u24 v2, %d, v2\nv_lshrrev_b32 v3, 4, v1\nv_lshl_add_u32 v2, v3, 3, v2\ns_mul_i32 s6, s3, 96\ns_add_u32 s6, s6, %d\nv_add_u32 v2, s6, v2' % (OUTS_RS, OUTS_BASE))
    for (e, tt), r in packed.items():
        p.I('ds_write_b64 v2, %s offset:%d' % (vr(r, 2), tt * 16 * OUTS_RS + 32 * e))
    m24 = udiv_magic(24, 768)
    AD = 204
    for u in range(3):
        p.I('v_add_u32 v4, %d, v0\nv_mul_u32_u24 v5, %d, v4\nv_lshrrev_b32 v5, 16, v5\nv_mul_u32_u24 v6, 24, v5\nv_sub_u32 v6, v4, v6' % (256 * u, m24))
        p.I('v_mul_u32_u24 v7, %d, v5\nv_lshl_add_u32 v7, v6, 4, v7\nv_add_u32 v%d, %d, v7' % (OUTS_RS, AD + u, OUTS_BASE))
        p.I('s_lshl_b32 s6, s4, 5\nv_add_u32 v5, s6, v5\ns_movk_i32 s7, 1152\nv_mul_lo_u32 v5, v5, s7\nv_lshl_add_u32 v5, v6, 4, v5\ns_mul_i32 s6, s5, 384\nv_add_u32 v%d, s6, v5' % (AD + 3 + u))
    p.I('s_waitcnt lgkmcnt(0)\ns_barrier')
    D = 212
    for u in range(3): p.I('ds_read_b128 %s, v%d' % (vr(D + 4 * u, 4), AD + u))
    for u in range(3): p.I('buffer_store_dwordx4 %s, v%d, s[%d:%d], 0 offen%s' % (vr(D + 4 * u, 4), AD + 3 + u, srdslot, srdslot + 3, c.sc))

def sentinel_setup(c):
    p = c.p
    m24 = udiv_magic(24, 768)
    p.I('v_mov_b32 v168, -1\nv_mov_b32 v169, -1\nv_mov_b32 v170, -1\nv_mov_b32 v171, -1')
    srd(p, 56, P_WS, L.S * 1152, off=L.H1); srd(p, 68, P_WS, L.S * 1152, off=L.X2)
    for u in range(3):
        p.I('v_add_u32 v4, %d, v0\nv_mul_u32_u24 v5, %d, v4\nv_lshrrev_b32 v5, 16, v5\nv_mul_u32_u24 v6, 24, v5\nv_sub_u32 v6, v4, v6' % (256 * u, m24))
        p.I('s_lshl_b32 s6, s4, 5\nv_add_u32 v5, s6, v5\ns_movk_i32 s7, 1152\nv_mul_lo_u32 v5, v5, s7\nv_lshl_add_u32 v5, v6, 4, v5\ns_mul_i32 s6, s5, 384\nv_add_u32 v%d, s6, v5' % (164 + u))
    return ['buffer_store_dwordx4 v[168:171], v%d, s[%d:%d], 0 offen sc1' % (164 + u, sl, sl + 3) for sl in (56, 68) for u in range(3)]

def tagged_loads(c, loads, regs, probe=None):
    p = c.p
    lp = p.label_name('L_tag'); ok = p.label_name('L_tagok')
    p.I('s_mov_b32 s77, 0')
    if probe:
        lq = p.label_name('L_tagp'); qk = p.label_name('L_tagpok')
        p.label(lq)
        p.I(probe + '\ns_waitcnt vmcnt(0)', nowait=True)
        p.I('v_cmp_eq_u32 vcc, -1, v%d\ns_add_u32 s77, s77, 1\ns_nop 1\ns_cbranch_vccz %s\ns_cmp_ge_u32 s77, %d\ns_cbranch_scc1 %s\ns_sleep 4\ns_branch %s' % (regs[-1] + 3, qk, SPIN_MAX, qk, lq))
        p.label(qk); p.cut()
    p.label(lp)
    loads()
    p.I('s_waitcnt vmcnt(0)'); p.cut()
    chk = [r + 1 for r in regs] + [r + 3 for r in regs]
    p.I('v_max_u32 v251, v%d, v%d' % (chk[0], chk[1]))
    rest = chk[2:]
    while len(rest) >= 2:
        p.I('v_max3_u32 v251, v251, v%d, v%d' % (rest[0], rest[1])); rest = rest[2:]
    for r in rest: p.I('v_max_u32 v251, v251, v%d' % r)
    p.I('v_cmp_eq_u32 vcc, -1, v251\ns_add_u32 s77, s77, 1\ns_nop 1\ns_cbranch_vccz %s\ns_cmp_ge_u32 s77, %d\ns_cbranch_scc1 %s\ns_sleep 2\ns_branch %s' % (ok, SPIN_MAX, ok, lp))
    p.label(ok); p.cut()

def p2_main(c, abase=0):
    p = c.p
    srd(p, 48, P_WS, L.D * 4096, off=L.ZT)
    srd(p, 52, P_WS, L.S * 1152, off=L.X1); srd(p, 56, P_WS, L.S * 1152, off=L.HP); srd(p, 60, P_WS, L.S * 1152, off=L.H1)
    p.I('v_lshrrev_b32 v8, 2, v1\nv_and_b32 v9, 3, v1\nv_lshlrev_b32 v10, 13, v8\nv_lshl_add_u32 v10, v9, 4, v10\ns_lshl_b32 s6, s4, 6\nv_add_u32 v10, s6, v10')
    p.I('s_lshl_b32 s6, s3, 17\nv_add_u32 v10, s6, v10\ns_movk_i32 s8, 4096')
    for t in range(5):
        if t: p.I('v_add_u32 v10, %d, v10' % (4 * 131072))
        p.I('buffer_load_dwordx4 %s, v10, s[48:51], 0 offen%s' % (vr(TM + 8 * t, 4), c.sc))
        p.I('buffer_load_dwordx4 %s, v10, s[48:51], s8 offen%s' % (vr(TM + 8 * t + 4, 4), c.sc))
    p.I('v_bfe_u32 v11, v8, 1, 3\nv_lshlrev_b32 v12, 1, v9\nv_xor_b32 v11, v11, v12\nv_lshlrev_b32 v11, 4, v11\nv_lshl_add_u32 v11, v8, 7, v11')
    p.I('s_lshl_b32 s6, s3, 11\nv_add_u32 v11, s6, v11\nv_xor_b32 v12, 16, v11')
    p.I('s_mov_b32 s8, 0x05040100\ns_mov_b32 s9, 0x07060302')
    PO = 236
    for t in range(5):
        a, b = TM + 8 * t, TM + 8 * t + 4
        o = PO + 8 * (t % 2)
        for k in range(4):
            p.I('v_perm_b32 v%d, v%d, v%d, s8\nv_perm_b32 v%d, v%d, v%d, s9' % (o + 2 * k, b + k, a + k, o + 2 * k + 1, b + k, a + k))
        p.I('ds_write_b128 v11, %s offset:%d' % (vr(o, 4), ZS_BASE + t * 8192))
        p.I('ds_write_b128 v12, %s offset:%d' % (vr(o + 4, 4), ZS_BASE + t * 8192))
    p.I('s_waitcnt vmcnt(0) lgkmcnt(0)\ns_barrier')
    p.cut()
    c.stamp(8)
    p.I('s_lshl_b32 s6, s3, 1\nv_add_u32 v8, s6, v3\nv_bfe_u32 v9, v4, 1, 3\nv_xor_b32 v8, v8, v9\nv_lshlrev_b32 v8, 4, v8\nv_lshl_add_u32 v8, v4, 7, v8')
    Z = TM
    for j in range(9): p.I('ds_read_b128 %s, v8 offset:%d' % (vr(Z + 4 * j, 4), ZS_BASE + 4096 * j))
    U = 232
    for j in range(9):
        for i in range(4):
            unpack(p, U + 2 * i, Z + 4 * j + i, 99)
        for i in range(4):
            g = vr(GH + (i * 9 + j) * 2, 2)
            p.I('v_pk_fma_f32 %s, %s, %s, %s' % (g, g, vr(U + 2 * i, 2), vr(XF + (i * 9 + j) * 2, 2)))
        for i in range(4):
            p.I('v_cvt_pk_bf16_f32 v%d, v%d, v%d' % (XF + (i * 9 + j) * 2, GH + (i * 9 + j) * 2, GH + (i * 9 + j) * 2 + 1))
    ST = 196
    ln_stats(p, GH, 4, 9, ST, red32(p, ST + 16))
    for j in range(9):
        for i in range(4):
            g = GH + (i * 9 + j) * 2
            ln_apply(p, g, g, ST + 4 * i)
        for i in range(4):
            g = vr(GH + (i * 9 + j) * 2, 2)
            p.I('v_pk_fma_f32 %s, %s, %s, %s' % (g, g, vr(CB + 2 * j, 2), vr(SB + 2 * j, 2)))
        for i in range(4):
            p.I('v_cvt_pk_bf16_f32 v%d, v%d, v%d' % (XF + (i * 9 + j) * 2 + 1, GH + (i * 9 + j) * 2, GH + (i * 9 + j) * 2 + 1))
    ln_stats(p, GH, 4, 9, ST, red32(p, ST + 16))
    p.I('v_bfe_u32 v8, v4, 2, 2\nv_lshrrev_b32 v9, 4, v4\nv_lshlrev_b32 v9, 11, v9\ns_lshr_b32 s6, s3, 1\ns_lshl_b32 s6, s6, 10\ns_and_b32 s7, s3, 1\ns_lshl_b32 s7, s7, 7\ns_add_u32 s6, s6, s7\ns_add_u32 s6, s6, %d' % A1_BASE)
    p.I('v_add_u32 v9, s6, v9\nv_lshl_add_u32 v9, v8, 8, v9\nv_lshl_add_u32 v9, v3, 6, v9\nv_and_b32 v10, 3, v4\nv_lshl_add_u32 v9, v10, 2, v9')
    for i in range(4):
        p.I('v_xor_b32 v10, %d, v8\nv_lshl_add_u32 v%d, v10, 4, v9' % (i, 12 + i))
    for j in range(9):
        for i in range(4):
            g = GH + (i * 9 + j) * 2
            ln_apply(p, U + 2 * i, g, ST + 4 * i)
        for i in range(4):
            p.I('v_cvt_pk_bf16_f32 v%d, v%d, v%d' % (U + 2 * i, U + 2 * i, U + 2 * i + 1))
        for i in range(4):
            p.I('ds_write_b32 v%d, v%d offset:%d' % (12 + i, U + 2 * i, 4096 * j))
    p.I('s_lshl_b32 s6, s3, 3\nv_lshl_add_u32 v11, v3, 2, s6\nv_mul_u32_u24 v11, %d, v11\nv_lshl_add_u32 v11, v4, 2, v11\nv_add_u32 v11, %d, v11' % (HPL_RS, HPL_BASE))
    for jg in range(3):
        lab = p.label_name('L_st')
        p.I('s_cmp_lg_u32 s5, %d\ns_cbranch_scc1 %s' % (jg, lab))
        for j in range(3 * jg, 3 * jg + 3):
            for i in range(4):
                p.I('buffer_store_dword v%d, v%d, s[52:55], 0 offen offset:%d%s' % (XF + (i * 9 + j) * 2, 6 if i < 2 else 7, (i % 2) * 1152 + 128 * j, c.sc), nowait=True)
                p.I('ds_write_b32 v11, v%d offset:%d' % (XF + (i * 9 + j) * 2 + 1, i * HPL_RS + 128 * (j - 3 * jg)), nowait=True)
        p.label(lab)
    p.I('s_waitcnt lgkmcnt(0)\ns_barrier')
    p.cut()
    c.stamp(9)
    wfrag_setup(c, L.W2T, 64, 156)
    gemm_small2(c, A1_BASE, abase, 100, 128, after_ks=lambda ks: wfrag_load(c, 64, 156, abase, ks) if ks < 9 else None)
    ACC = 100
    gelu_consts(p, 8, 9)
    p.I('v_mov_b32 v8, s9')
    gelu_inplace(p, list(range(ACC, ACC + 24)), 160, 8, 8)
    pk = {}
    for e in range(3):
        for tt in range(2):
            a = ACC + 4 * (e * 2 + tt)
            o = 190 + 2 * (e * 2 + tt)
            p.I('v_cvt_pk_bf16_f32 v%d, v%d, v%d\nv_cvt_pk_bf16_f32 v%d, v%d, v%d' % (o, a, a + 1, o + 1, a + 2, a + 3))
            pk[(e, tt)] = o
    tile_out(c, pk, 60)

def p3_main(c, abase=0):
    p = c.p
    srd(p, 48, P_WS, L.S * 1152, off=L.H1); srd(p, 52, P_WS, L.S * 1152, off=L.HP); srd(p, 56, P_WS, L.S * 1152, off=L.X2)
    p.I('s_mov_b32 s99, 0xffff0000')
    p.I('v_lshrrev_b32 v3, 4, v1\nv_and_b32 v4, 15, v1\ns_lshr_b32 s6, s3, 1\ns_lshl_b32 s6, s6, 5\nv_lshl_add_u32 v5, v3, 3, s6')
    p.I('s_lshl_b32 s6, s4, 5\ns_and_b32 s7, s3, 1\ns_lshl_b32 s7, s7, 4\ns_add_u32 s6, s6, s7\nv_add_u32 v6, s6, v4\ns_movk_i32 s7, 1152\nv_mul_lo_u32 v6, v6, s7\nv_lshl_add_u32 v6, v5, 1, v6')
    M1, P1, M2, P2_, N2, N4, N6 = 8, 9, 10, 11, 12, 13, 14
    p.I('v_subrev_u32 v%d, 1152, v6\nv_add_u32 v%d, 1152, v6\nv_subrev_u32 v%d, 2304, v6\nv_add_u32 v%d, 2304, v6' % (M1, P1, M2, P2_))
    p.I('v_cmp_gt_u32 vcc, 16, v5\nv_cndmask_b32 v%d, v%d, v%d, vcc' % (N2, P1, M1))
    p.I('v_cmp_gt_u32 vcc, 32, v5\nv_cndmask_b32 v%d, v%d, v%d, vcc' % (N4, M2, P1))
    p.I('v_cmp_gt_u32 vcc, 48, v5\nv_cndmask_b32 v%d, v%d, v%d, vcc' % (N6, P2_, M2))
    sel = [M1, M1, N2, P1, N4, M2, N6, P2_, P2_]
    T = 16
    def h1loads():
        for n in range(9):
            p.I('buffer_load_dwordx4 %s, v%d, s[48:51], 0 offen offset:%d%s' % (vr(T + 4 * n, 4), sel[n], 128 * n, c.sc))
    if TAG_H1: tagged_loads(c, h1loads, [T + 4 * n for n in range(9)])
    else: h1loads()
    HR = 108
    p.I('v_mul_u32_u24 v15, %d, v4\nv_lshl_add_u32 v15, v3, 3, v15\ns_mul_i32 s6, s3, 96\ns_add_u32 s6, s6, %d\nv_add_u32 v15, s6, v15' % (HPL_RS, HPL_BASE))
    for e in range(3):
        for tt in range(2):
            p.I('ds_read_b64 %s, v15 offset:%d' % (vr(HR + 2 * (e * 2 + tt), 2), tt * 16 * HPL_RS + 32 * e))
    p.I('v_xor_b32 v7, v4, v3\nv_lshl_add_u32 v7, v3, 4, v7\nv_lshlrev_b32 v7, 4, v7\ns_lshl_b32 s6, s3, 10\nv_add_u32 v7, s6, v7')
    for n in range(9): p.I('ds_write_b128 v7, %s offset:%d' % (vr(T + 4 * n, 4), 4096 * n))
    p.I('s_waitcnt lgkmcnt(0)\ns_barrier')
    c.stamp(12)
    gemm_small2(c, 0, abase, 52, 80)
    ACC = 52
    pk = {}
    for e in range(3):
        for tt in range(2):
            a = ACC + 4 * (e * 2 + tt); h = HR + 2 * (e * 2 + tt); o = 128 + 2 * (e * 2 + tt)
            unpack(p, 120, h, 99); unpack(p, 122, h + 1, 99)
            for r in range(4): p.I('v_add_f32 v%d, v%d, v%d' % (a + r, a + r, 120 + r))
            p.I('v_cvt_pk_bf16_f32 v%d, v%d, v%d\nv_cvt_pk_bf16_f32 v%d, v%d, v%d' % (o, a, a + 1, o + 1, a + 2, a + 3))
            pk[(e, tt)] = o
    tile_out(c, pk, 56)

def p4_ln(c):
    p = c.p
    srd(p, 48, P_WS, L.S * 1152, off=L.X2)
    p.I('s_mov_b32 s99, 0xffff0000\ns_mov_b32 s98, 0x%x\ns_mov_b32 s97, 0x%x' % (f2u(1.0 / 576), f2u(1e-5)))
    p.I('v_lshrrev_b32 v3, 3, v1\nv_and_b32 v4, 7, v1')
    p.I('s_lshl_b32 s6, s5, 6\ns_lshl_b32 s7, s3, 4\ns_add_u32 s6, s6, s7\nv_add_u32 v5, s6, v3\ns_movk_i32 s7, 1152\nv_mul_lo_u32 v5, v5, s7\nv_lshl_add_u32 v5, v4, 4, v5\nv_add_u32 v6, %d, v5' % (8 * 1152))
    RAW, X = 64, 136
    def loads():
        for i in range(2):
            for j in range(9):
                p.I('buffer_load_dwordx4 %s, v%d, s[48:51], 0 offen offset:%d%s' % (vr(RAW + 36 * i + 4 * j, 4), 5 + i, 128 * j, c.sc))
    if TAG_H1: tagged_loads(c, loads, [RAW + 4 * k for k in range(18)], probe=('buffer_load_dwordx4 %s, v6, s[48:51], 0 offen offset:1024%s' % (vr(RAW + 68, 4), c.sc)) if PROBE else None)
    else: loads()
    return RAW, X

def p4_ln2(c, RAW, X):
    p = c.p
    mlp32.ln_addr(c)
    ST = 208
    for i in range(2):
        for k in range(36):
            unpack(p, X + 2 * k, RAW + 36 * i + k, 99)
            if k % 2 == 1 and c.wn < mlp32.RING and i == 1: mlp32.wload(c)
        ln_stats_single(p, X, 36, ST)
        for k in range(36):
            ln_apply(p, X + 2 * k, X + 2 * k, ST)
            if k % 2 == 1 and c.wn < mlp32.RING: mlp32.wload(c)
        for k in range(36): p.I('v_cvt_pk_bf16_f32 v%d, v%d, v%d' % (RAW + 36 * i + k, X + 2 * k, X + 2 * k + 1))
        for j in range(8): p.I('ds_write_b128 v%d, %s offset:%d' % (11 + i, vr(RAW + 36 * i + 4 * j, 4), 8192 * j))
        p.I('v_add_u32 v13, 65536, v%d\nds_write_b128 v13, %s' % (11 + i, vr(RAW + 36 * i + 32, 4)))
    while c.wn < mlp32.RING: mlp32.wload(c)
    p.I('s_waitcnt lgkmcnt(0)\ns_barrier')

def ln_stats_single(p, X, n, ST):
    S, Q = ST + 4, ST + 8
    p.I('v_pk_add_f32 %s, %s, %s\nv_pk_add_f32 %s, %s, %s' % (vr(S, 2), vr(X, 2), vr(X + 4, 2), vr(S + 2, 2), vr(X + 2, 2), vr(X + 6, 2)))
    p.I('v_pk_mul_f32 %s, %s, %s\nv_pk_mul_f32 %s, %s, %s' % (vr(Q, 2), vr(X, 2), vr(X, 2), vr(Q + 2, 2), vr(X + 2, 2), vr(X + 2, 2)))
    for k in range(2, n):
        x = vr(X + 2 * k, 2); o = 2 * (k % 2)
        p.I('v_pk_fma_f32 %s, %s, %s, %s' % (vr(Q + o, 2), x, x, vr(Q + o, 2)))
        if k >= 4: p.I('v_pk_add_f32 %s, %s, %s' % (vr(S + o, 2), vr(S + o, 2), x))
    p.I('v_pk_add_f32 %s, %s, %s\nv_pk_add_f32 %s, %s, %s' % (vr(S, 2), vr(S, 2), vr(S + 2, 2), vr(Q, 2), vr(Q, 2), vr(Q + 2, 2)))
    p.I('v_add_f32 v%d, v%d, v%d\nv_add_f32 v%d, v%d, v%d' % (S, S, S + 1, Q, Q, Q + 1))
    reduce8(p, [S, Q])
    p.I('v_mul_f32 v%d, s98, v%d\nv_mul_f32 v%d, s98, v%d' % (S, S, Q, Q))
    p.I('v_fma_f32 v%d, -v%d, v%d, v%d\nv_max_f32 v%d, 0, v%d\nv_add_f32 v%d, s97, v%d\nv_rsq_f32 v%d, v%d' % (Q, S, S, Q, Q, Q, Q, Q, ST, Q))
    p.I('v_mul_f32 v%d, -v%d, v%d' % (ST + 1, S, ST))

def pt34_decode(c, stask, SRD, ST):
    p = c.p
    w4 = p.label_name('L_t4'); dn = p.label_name('L_td')
    p.I('s_cmp_ge_u32 s%d, 216\ns_cbranch_scc1 %s' % (stask, w4))
    p.I('s_mul_i32 s8, s%d, %d\ns_lshr_b32 s8, s8, 16\ns_mul_i32 s9, s8, 3\ns_sub_u32 s9, s%d, s9' % (stask, udiv_magic(3, 300), stask))
    for k in range(4): p.I('s_mov_b32 s%d, s%d' % (SRD + k, 56 + k))
    p.I('s_mul_i32 s%d, s9, %d\ns_lshl_b32 s10, s8, 7\ns_add_u32 s%d, s%d, s10' % (ST + 4, 6 * 32 * 9216, ST + 4, ST + 4))
    p.I('s_mov_b32 s%d, %d\ns_movk_i32 s%d, 9216\ns_movk_i32 s%d, 3072\ns_mov_b32 s%d, 0' % (ST + 5, 32 * 9216, ST + 6, ST + 7, ST + 8))
    for j in range(4):
        p.I('s_lshl_b32 s12, s8, 2\ns_add_u32 s12, s12, %d' % j)
        p.I('s_mul_i32 s13, s12, %d\ns_lshr_b32 s13, s13, 16\ns_mul_i32 s14, s13, 36\ns_sub_u32 s12, s12, s14' % udiv_magic(36, 300))
        p.I('s_mul_i32 s14, s12, %d\ns_lshr_b32 s14, s14, 16\ns_mul_i32 s10, s14, 12\ns_sub_u32 s12, s12, s10' % udiv_magic(12, 40))
        p.I('s_mul_i32 s10, s12, %d\ns_lshr_b32 s10, s10, 16\ns_mul_i32 s11, s10, 3\ns_sub_u32 s12, s12, s11' % udiv_magic(3, 16))
        p.I('s_lshl_b32 s13, s13, 2\ns_add_u32 s13, s13, s10\ns_mul_i32 s13, s13, 324\ns_mul_i32 s14, s14, 54\ns_add_u32 s13, s13, s14\ns_mul_i32 s14, s9, 18\ns_add_u32 s13, s13, s14\ns_add_u32 s13, s13, s12\ns_lshl_b32 s13, s13, 10\ns_add_u32 s%d, s13, %d' % (ST + j, L.W34T - L.W1T))
    p.I('s_branch %s' % dn)
    p.label(w4)
    p.I('s_sub_u32 s7, s%d, 216\ns_mul_i32 s8, s7, %d\ns_lshr_b32 s8, s8, 16\ns_mul_i32 s9, s8, 27\ns_sub_u32 s7, s7, s9' % (stask, udiv_magic(27, 600)))
    p.I('s_mul_i32 s9, s7, %d\ns_lshr_b32 s9, s9, 16\ns_mul_i32 s10, s9, 3\ns_sub_u32 s10, s7, s10' % udiv_magic(3, 32))
    for k in range(4): p.I('s_mov_b32 s%d, s%d' % (SRD + k, 60 + k))
    p.I('s_mul_i32 s11, s8, 18\ns_mul_i32 s12, s10, 6\ns_add_u32 s11, s11, s12\ns_mul_i32 s%d, s11, %d\ns_lshl_b32 s11, s9, 7\ns_add_u32 s%d, s%d, s11' % (ST + 4, 32 * 1152, ST + 4, ST + 4))
    p.I('s_mov_b32 s%d, %d\ns_movk_i32 s%d, 1152\ns_mov_b32 s%d, 1' % (ST + 5, 32 * 1152, ST + 6, ST + 8))
    p.I('s_cmp_eq_u32 s9, 8\ns_movk_i32 s11, 4096\ns_cselect_b32 s%d, 1024, s11' % (ST + 7))
    for j in range(4):
        p.I('s_mul_i32 s11, s10, 24\ns_add_u32 s11, s11, %d\ns_and_b32 s12, s9, 3' % (162 + j))
        p.I('s_cmp_ge_u32 s9, 4\ns_cselect_b32 s13, 72, 0\ns_add_u32 s11, s11, s13')
        p.I('s_mul_i32 s13, s10, 6\ns_add_u32 s13, s13, 306\ns_cmp_eq_u32 s9, 8\ns_cselect_b32 s11, s13, s11\ns_cselect_b32 s12, %d, s12' % j)
        p.I('s_lshl_b32 s13, s8, 2\ns_add_u32 s13, s13, s12\ns_mul_i32 s13, s13, 324\ns_add_u32 s13, s13, s11\ns_lshl_b32 s13, s13, 10\ns_add_u32 s%d, s13, %d' % (ST + j, L.W34T - L.W1T))
    p.label(dn)
    p.I('s_cmp_ge_u32 s%d, 432' % stask)
    for k in range(5): p.I('s_cselect_b32 s%d, 0x7f000000, s%d' % (ST + k, ST + k))
    p.I('s_cselect_b32 s%d, 0, s%d\ns_cselect_b32 s%d, 0, s%d' % (ST + 5, ST + 5, ST + 7, ST + 7))

def pretile34(c, swave):
    p = c.p
    NB, NU = 8, 12
    p.I('s_mul_i32 s96, s3, %d' % (NB * 4096))
    TA, TB = (64, 80), (52, 4)
    SA, SB_ = 80, 89
    regsB = 48
    p.I('s_add_u32 s79, s%d, 256' % swave)
    pt34_decode(c, swave, 64, 80)
    p.I('s_mov_b32 s15, s96')
    pt34_decode(c, 79, 52, 89)
    p.I('v_mad_u32_u24 v12, v2, s%d, v3\nv_add_u32 v12, s%d, v12' % (86, 84))
    p.I('v_mad_u32_u24 v13, v2, s%d, v3\nv_add_u32 v13, s%d, v13' % (95, 93))
    p.I('s_lshl_b32 s4, s86, 3\ns_lshl_b32 s5, s95, 3')
    def issue(n):
        A = n < 6
        va, srdn, s8r, sstep = (12, 64, 4, 85) if A else (13, 52, 5, 94)
        p.I('v_mov_b32 v9, v%d' % va)
        t = None
        for q in range(4):
            p.I('s_add_u32 m0, s15, %d' % ((n % NB) * 4096 + q * 1024))
            if q: p.I('v_add_u32 v9, s%d, v9' % s8r)
            t = p.I('buffer_load_dwordx4 v9, s[%d:%d], 0 offen lds' % (srdn, srdn + 3), nowait=True)
        p.I('v_add_u32 v%d, s%d, v%d' % (va, sstep, va))
        return t
    def process(n):
        A = n < 6
        ST = 80 if A else 89
        R = 16 + 16 * (n % 2)
        lb = p.label_name('L_kb'); le = p.label_name('L_ke')
        p.I('s_cmp_eq_u32 s%d, 1\ns_cbranch_scc1 %s' % (ST + 8, lb))
        for va, jstride, second, lab in ((6, 32, 512, None), (7, 8, 2048, lb)):
            if lab: p.label(lab)
            p.I('s_add_u32 s6, s15, %d\nv_add_u32 v10, s6, v%d' % ((n % NB) * 4096, va))
            for j in range(4):
                p.I('ds_read_b64_tr_b16 %s, v10 offset:%d' % (vr(R + 4 * j, 2), j * jstride), nowait=True)
                p.I('ds_read_b64_tr_b16 %s, v10 offset:%d' % (vr(R + 4 * j + 2, 2), j * jstride + second), nowait=True)
            if not lab: p.I('s_branch %s' % le)
        p.label(le)
        p.I('s_waitcnt lgkmcnt(0)')
        for j in range(4):
            p.I('v_add_u32 v11, s%d, v8\ns_add_u32 s%d, s%d, s%d' % (ST + j, ST + j, ST + j, ST + 7))
            p.I('buffer_store_dwordx4 %s, v11, s[68:71], 0 offen%s' % (vr(R + 4 * j, 4), c.sc), nowait=True)
    toks = [issue(n) for n in range(NB - 1)]
    for n in range(NU):
        if n + NB - 1 < NU: toks.append(issue(n + NB - 1))
        p.wait(toks[n])
        process(n)
    p.I('s_waitcnt vmcnt(0)'); p.cut()

def mlp_map(p, sslice, srb):
    p.I('s_and_b32 s%d, s2, 3\ns_lshl_b32 s%d, s%d, 1\ns_bfe_u32 s76, s2, 0x10003\ns_add_u32 s%d, s%d, s76' % (sslice, sslice, sslice, sslice, sslice))
    p.I('s_bfe_u32 s%d, s2, 0x10002\ns_lshl_b32 s%d, s%d, 4\ns_lshr_b32 s76, s2, 4\ns_add_u32 s%d, s%d, s76' % (srb, srb, srb, srb, srb))

def warm_l2(c, nparts, part_sgpr):
    p = c.p
    lines = 4 * 324 * 8 // nparts
    srd(p, 64, P_WS, 32 * 324 * 1024, off=L.W34T)
    p.I('s_mul_i32 s6, s4, %d\ns_mul_i32 s7, s%d, %d\ns_add_u32 s6, s6, s7\nv_lshl_add_u32 v2, v0, 7, s6' % (4 * 324 * 1024, part_sgpr, lines * 128))
    n = (lines + 255) // 256
    for k in range(n):
        if (k + 1) * 256 > lines:
            p.I('v_cmp_gt_u32 vcc, %d, v0\nv_mov_b32 v3, 0x7f000000\nv_cndmask_b32 v2, v3, v2, vcc' % (lines - k * 256))
        p.I('buffer_load_dword v%d, v2, s[64:67], 0 offen sc1' % (8 + k), nowait=True)
        p.I('v_add_u32 v2, 32768, v2')

def build_mega():
    c = Ctx(); p = c.p
    p.label('L_code_start')
    p.I('s_load_dwordx16 s[16:31], s[0:1], 0\ns_load_dwordx16 s[32:47], s[0:1], 64')
    p.I('v_lshrrev_b32 v2, 6, v0\nv_and_b32 v1, 63, v0')
    p.I('v_readfirstlane_b32 s3, v2')
    p.I('s_cmp_ge_u32 s2, 256\ns_cbranch_scc1 L_end')
    kv_addr(c)
    p.I('s_waitcnt lgkmcnt(0)')
    if STAMPS:
        for k in range(24): p.I('v_accvgpr_write_b32 a%d, 0' % (232 + k))
    c.stamp(0)
    def code_prefetch():
        if os.environ.get('NOCODEPF'): return
        p.I('s_getpc_b64 s[8:9]')
        p.label('L_pc_anchor_%d' % c.npf); c.npf += 1
        p.I('s_sub_u32 s8, s8, (L_pc_anchor_%d - L_code_start)\ns_subb_u32 s9, s9, 0' % (c.npf - 1))
        p.I('s_lshr_b32 s10, s2, 3\ns_mul_i32 s10, s10, CODE_PART\nv_lshl_add_u32 v248, v1, 7, s10')
        p.I('s_mov_b64 exec, CODE_MASK')
        p.I('global_load_dword v249, v248, s[8:9]', nowait=True)
        p.I('s_mov_b64 exec, -1')
    c.npf = 0
    c.code_prefetch = code_prefetch
    p.I('s_cmp_ge_u32 s2, %d\ns_cbranch_scc1 L_pt' % NCONV)
    def fx(p): p.I('s_lshl_b32 s6, s5, 1\nv_add_u32 v252, s6, v1\nv_mul_u32_u24 v252, %d, v252\nv_add_u32 v252, %d, v252\nv_mov_b32 v254, 3\nv_mov_b32 v255, %d\nv_mov_b32 v251, 1\nv_cmp_eq_u32 vcc, 2, v1\nv_cndmask_b32 v252, v252, v255, vcc\nv_cndmask_b32 v254, v254, v251, vcc' % (LS, C_X2 * LS, B_REL * LS))
    p.I('s_cmp_eq_u32 s3, 3\ns_cbranch_scc1 L_kc')
    p0_kv(c)
    p.I('s_mul_i32 s78, s2, 3\ns_add_u32 s78, s78, s3\ns_and_b32 s78, s78, 15')
    wave_arrive(c, 'add', check_ready=140, idx=K_SH, sgpr=78)
    p2_xload(c)
    p.I('s_waitcnt vmcnt(0)')
    p.I('s_branch L_kv_done'); p.cut()
    p.label('L_kc')
    srd(p, S_SYNC, P_WS, 2 << 20, off=L.SYNC)
    def hook3(c):
        c.code_prefetch()
        p2_xload(c)
    p1_kcopies(c, hook=hook3)
    p.I('s_waitcnt vmcnt(0) lgkmcnt(0)')
    p.label('L_kv_done'); p.cut()
    c.stamp(1)
    p2_xstats(c)
    c.stamp(17)
    wait_cnt(c, *w_flags(K_REL, A_REL))
    c.stamp(2)
    p1_main(c)
    c.stamp(5)
    p.I('s_and_b32 s78, s2, 15')
    arrive(c, 'add', idx=V_SH, sgpr=78)
    wave_wait(c, M_REL)
    p2_pre(c)
    c.stamp(6)
    wait_cnt(c, *w_flags(V_REL))
    c.stamp(7)
    p2_main(c)
    c.stamp(10)
    if TAG_H1:
        for ks in range(9, 18): wfrag_load(c, 64, 156, 0, ks)
        p.I('s_waitcnt lgkmcnt(0)\ns_barrier'); p.cut()
    else:
        arrive(c, 'add', idx=C_H1, sgpr=4)
        def fh(p): p.I('s_sub_u32 s6, s4, 1\nv_add_u32 v252, s6, v1\nv_max_i32 v252, 0, v252\nv_min_i32 v252, 63, v252\nv_mul_u32_u24 v252, %d, v252\nv_add_u32 v252, %d, v252\nv_mov_b32 v254, 3' % (LS, C_H1 * LS))
        def w2late(st):
            for ks in range(9, 18): wfrag_load(c, 64, 156, 0, ks)
        around_wait(c, w2late, lambda: wait_cnt(c, fh, 3))
    c.stamp(11)
    p3_main(c)
    c.stamp(13)
    if TAG_H1:
        wave_wait(c, B3_REL, B_REL)
        mlp_map(p, 10, 11)
        mlp32.ring_setup(c, 10, 160)
        for n in range(mlp32.EARLY): mlp32.ring_load_at(c, mlp32.PERM[n], n, 160)
        mlp_map(p, 4, 5)
        p.I('s_waitcnt lgkmcnt(0)\ns_barrier'); p.cut()
    else:
        arrive(c, 'add', idx=C_X2, sgpr=4)
        wave_wait(c, B3_REL)
        mlp_map(p, 10, 11)
        mlp32.ring_setup(c, 10, 160)
        def early(st):
            c.ring_off = 0
            for n in range(mlp32.EARLY): mlp32.ring_load_at(c, mlp32.PERM[n], n, 160)
        mlp_map(p, 4, 5)
        around_wait(c, early, lambda: wait_cnt(c, fx, 3))
    p.I('s_branch L_mlp2'); p.cut()
    p.label('L_pt')
    srd(p, S_SYNC, P_WS, 2 << 20, off=L.SYNC)
    lpf = p.label_name('L_pf')
    p.I('s_cmp_lg_u32 s3, 3\ns_cbranch_scc1 %s' % lpf)
    c.code_prefetch()
    p.label(lpf); p.cut()
    lz = p.label_name('L_zero')
    p.I('s_cmp_lg_u32 s2, 255\ns_cbranch_scc1 %s\ns_cmp_lg_u32 s3, 0\ns_cbranch_scc1 %s' % (lz, lz))
    p.I('v_mul_u32_u24 v2, %d, v1\nv_mov_b32 v3, 0' % LS)
    for k in range(NCNT // 64):
        p.I('buffer_store_dword v3, v2, s[%d:%d], 0 offen sc1\nv_add_u32 v2, %d, v2' % (S_SYNC, S_SYNC + 3, 64 * LS), nowait=True)
    srd(p, 68, P_DBG, 256)
    p.I('s_waitcnt vmcnt(0)\nv_mov_b32 v2, 0\nv_mov_b32 v3, 1\ns_mov_b64 exec, 1\nbuffer_store_dword v3, v2, s[68:71], 0 offen sc1\ns_mov_b64 exec, -1', nowait=True)
    p.label(lz); p.cut()
    pt_setup(c)
    p.I('s_sub_u32 s4, s2, %d\ns_lshl_b32 s4, s4, 2\ns_add_u32 s78, s4, s3' % NCONV)
    pretile(c, '12', 78)
    arrive(c, 'add', check_ready=True, idx=A_CNT)
    c.stamp(1)
    lmon = p.label_name('L_nomon')
    p.I('s_cmp_lg_u32 s2, 255\ns_cbranch_scc1 %s\ns_cmp_lg_u32 s3, 0\ns_cbranch_scc1 %s' % (lmon, lmon))
    monitor(c)
    p.label(lmon); p.cut()
    lm = p.label_name('L_nomod')
    p.I('s_cmp_ge_u32 s2, %d\ns_cbranch_scc1 %s' % (NCONV + 54, lm))
    p0_mod_loads(c, NCONV)
    p0_mod_compute(c, NCONV)
    arrive(c, 'add', idx=M_CNT)
    p.label(lm); p.cut()
    p.I('s_barrier')
    p.I('s_cmp_eq_u32 s2, 255\ns_cbranch_scc1 L_pt_skip')
    pt.prime(c, NCONV)
    c.stamp(2)
    def mid():
        arrive(c, 'add', idx=B3_CNT)
    pt.run(c, mid)
    arrive(c, 'last', cnt=B_CNT, n=63, rel=B_REL)
    p.label('L_pt_skip'); p.cut()
    c.stamp(3)
    wait_cnt(c, *w_flags(B_REL))
    c.stamp(4)
    mlp_map(p, 4, 5)
    p.I('s_sub_u32 s5, s2, %d\ns_lshr_b32 s5, s5, 4' % NCONV)
    warm_l2(c, 4, 5)
    p.I('s_waitcnt vmcnt(0)'); p.cut()
    mlp_map(p, 10, 11)
    mlp32.ring_setup(c, 10, 160)
    for n in range(mlp32.EARLY): mlp32.ring_load_at(c, mlp32.PERM[n], n, 160)
    p.label('L_mlp'); p.cut()
    c.stamp(14)
    mlp_map(p, 4, 5)
    if TAG_H1: wait_cnt(c, *w_flags(V_REL, B_REL))
    else: wait_cnt(c, fx, 3)
    p.label('L_mlp2'); p.cut()
    c.stamp(15)
    if os.environ.get('REWARM'):
        p.I('s_lshr_b32 s79, s2, 3')
        warm_l2(c, 32, 79)
    RAW, X = p4_ln(c)
    c.fine = True
    if os.environ.get('FINE2'): c.stamp(6)
    mlp32.ring_resume(c)
    if os.environ.get('FINE2'):
        c.stamp(7); p.I('s_waitcnt vmcnt(18)'); c.stamp(8); p.I('s_waitcnt vmcnt(0)'); c.stamp(9)
    p4_ln2(c, RAW, X)
    c.stamp(16)
    mlp32.mlp_setup(c)
    def arrive_part(k):
        p.I('s_mul_i32 s76, s5, %d\ns_add_u32 s76, s76, %d\ns_cmp_eq_u32 s3, 0\ns_cselect_b32 s76, s76, 0x7f000000\nv_mov_b32 v252, s76\nv_mov_b32 v253, 1\ns_mov_b64 exec, 1' % (LS, (C_PART0, C_PART1)[k] * LS))
        p.I('buffer_atomic_add v253, v252, s[%d:%d], 0 offen sc1' % (S_SYNC, S_SYNC + 3))
        p.I('s_mov_b64 exec, -1')
    def poll_issue():
        p.I('s_mul_i32 s76, s5, %d\ns_add_u32 s76, s76, %d\nv_mov_b32 v252, s76' % (LS, C_PART0 * LS))
        p.I('buffer_load_dword v253, v252, s[%d:%d], 0 offen sc1' % (S_SYNC, S_SYNC + 3))
    def poll_check():
        ok = p.label_name('L_p0ok'); lp = p.label_name('L_p0')
        p.I('v_cmp_gt_u32 vcc, 8, v253\ns_mov_b32 s77, 0\ns_nop 2\ns_cbranch_vccz %s' % ok)
        p.label(lp)
        p.I('buffer_load_dword v253, v252, s[%d:%d], 0 offen sc1\ns_waitcnt vmcnt(0)\nv_cmp_gt_u32 vcc, 8, v253' % (S_SYNC, S_SYNC + 3), nowait=True)
        p.I('s_add_u32 s77, s77, 1\ns_cmp_ge_u32 s77, %d\ns_cbranch_scc1 %s\ns_cbranch_vccnz %s' % (SPIN_MAX, ok, lp))
        p.label(ok)
    c.arrive_part, c.poll_issue, c.poll_check = arrive_part, poll_issue, poll_check
    c.inmlp = True
    mlp32.mlp_main(c)
    c.stamp(21)
    arrive(c, 'add', idx=C_PART, sgpr=5)
    mlp32.final_pair(c, 0)
    def fp(p): p.I('s_mul_i32 s6, s5, %d\ns_add_u32 s6, s6, %d\nv_mov_b32 v252, s6\nv_mov_b32 v254, 8' % (LS, C_PART * LS))
    wait_cnt(c, fp, 1)
    c.stamp(22)
    mlp32.final_gather(c, 1)
    mlp32.final_pair(c, 1)
    p.I('s_waitcnt vmcnt(0)')
    c.stamp_out()
    p.label('L_end')
    p.I('s_endpgm')
    txt = p.finalize()
    return txt

if __name__ == '__main__':
    if 'stamps' in sys.argv: STAMPS = True
    mk.STAMPS = False
    body = build_mega()
    if 'CODE_PART' in body:
        import subprocess
        t = assemble([(NAME + '_kernel', body.replace('CODE_PART', '2048').replace('CODE_MASK', '0xffff'), 256, 256, 147456, 512, 256)])
        open('_p1.s', 'w').write(t)
        subprocess.check_call(['clang', '-x', 'assembler', '-target', 'amdgcn-amd-amdhsa', '-mcpu=gfx950', '-c', '_p1.s', '-o', '_p1.o'])
        syms = subprocess.check_output(['llvm-objdump', '-t', '_p1.o'], text=True)
        ad = {l.split()[-1]: int(l.split()[0], 16) for l in syms.splitlines() if l.split() and l.split()[-1] in ('L_end', 'L_code_start')}
        size = ad['L_end'] - ad['L_code_start']
        nl = size // 128 // 32
        assert nl <= 32
        body = body.replace('CODE_PART', str(nl * 128)).replace('CODE_MASK', hex((1 << nl) - 1))
        print('code size', size, 'lines per part', nl)
    out = assemble([(NAME + '_kernel', body, 256, 256, 147456, 512, 256)])
    open(sys.argv[1], 'w').write(out)
```

```python
import os
from asmlib import *
import layout as L
from mk import srd, udiv_magic, f2u, P_WS, P_OUT, unpack, gelu_consts, Filler, reduce8

A2_BASE, G_BASE = 0, 73728
RING = 54
PERM = [(n % 3) * 18 + n // 3 for n in range(54)]
EARLY = 27

def w3_pos(Gl, jn, kh, kk):
    if Gl < 4: return Gl, 5 * kk + 2 * kh + jn
    return Gl - 5, 90 + 4 * kk + 2 * kh + jn
def w4_pos(Gl, jn, kh, pb):
    if Gl < 4: return Gl, (162 + 3 * pb + kh) if jn == 0 else (162 + 54 + 2 * pb + kh)
    return Gl - 5, 162 + (90 if jn == 0 else 126) + 2 * pb + kh
def w4_small_pos(pb): return 162 + 3 * pb + 2

def pt34_lane_consts(p):
    p.I('v_bfe_u32 v4, v1, 4, 1\nv_lshrrev_b32 v5, 5, v1\nv_bfe_u32 v9, v1, 2, 2\nv_and_b32 v10, 3, v1')
    p.I('v_lshl_add_u32 v14, v5, 3, v9\nv_lshlrev_b32 v14, 7, v14\nv_lshl_add_u32 v14, v4, 5, v14\nv_lshl_add_u32 v14, v10, 3, v14')
    p.I('v_lshl_add_u32 v15, v5, 2, v9\nv_lshlrev_b32 v15, 7, v15\nv_and_b32 v11, 1, v10\nv_lshl_add_u32 v15, v11, 5, v15\nv_lshl_add_u32 v15, v4, 4, v15\nv_lshrrev_b32 v11, 1, v10\nv_lshl_add_u32 v15, v11, 3, v15')
    p.I('v_lshrrev_b32 v11, 4, v1\nv_lshl_add_u32 v16, v11, 3, v9\nv_lshlrev_b32 v16, 7, v16\nv_lshl_add_u32 v16, v10, 3, v16')
    p.I('v_lshl_add_u32 v17, v5, 2, v4\nv_lshl_add_u32 v17, v17, 2, v9\nv_lshlrev_b32 v17, 7, v17\nv_lshl_add_u32 v17, v10, 3, v17')

def pt34_decode(c, stask, SRD, ST):
    p = c.p
    w4 = p.label_name('L_t4'); cm = p.label_name('L_tc')
    p.I('s_cmp_ge_u32 s%d, 216\ns_cbranch_scc1 %s' % (stask, w4))
    p.I('s_mul_i32 s8, s%d, %d\ns_lshr_b32 s8, s8, 16\ns_mul_i32 s9, s8, 3\ns_sub_u32 s9, s%d, s9' % (stask, udiv_magic(3, 300), stask))
    for k in range(4): p.I('s_mov_b32 s%d, s%d' % (SRD + k, 56 + k))
    p.I('s_mul_i32 s%d, s9, %d\ns_lshl_b32 s10, s8, 7\ns_add_u32 s%d, s%d, s10' % (ST + 4, 6 * 32 * 9216, ST + 4, ST + 4))
    p.I('s_mov_b32 s%d, %d\ns_movk_i32 s%d, 9216\ns_mov_b32 s%d, 0' % (ST + 5, 32 * 9216, ST + 6, ST + 8))
    p.I('s_mul_i32 s10, s8, %d\ns_lshr_b32 s10, s10, 16\ns_mul_i32 s11, s10, 9\ns_sub_u32 s11, s8, s11\ns_mov_b32 s12, 0' % udiv_magic(9, 100))
    p.I('s_branch %s' % cm)
    p.label(w4)
    p.I('s_sub_u32 s7, s%d, 216\ns_mul_i32 s10, s7, %d\ns_lshr_b32 s10, s10, 16\ns_mul_i32 s9, s10, 27\ns_sub_u32 s7, s7, s9' % (stask, udiv_magic(27, 600)))
    p.I('s_mul_i32 s11, s7, %d\ns_lshr_b32 s11, s11, 16\ns_mul_i32 s9, s11, 3\ns_sub_u32 s9, s7, s9' % udiv_magic(3, 32))
    for k in range(4): p.I('s_mov_b32 s%d, s%d' % (SRD + k, 60 + k))
    p.I('s_mul_i32 s13, s10, 18\ns_mul_i32 s14, s9, 6\ns_add_u32 s13, s13, s14\ns_mul_i32 s%d, s13, %d\ns_lshl_b32 s13, s11, 7\ns_add_u32 s%d, s%d, s13' % (ST + 4, 32 * 1152, ST + 4, ST + 4))
    p.I('s_mov_b32 s%d, %d\ns_movk_i32 s%d, 1152\ns_mov_b32 s%d, 1\ns_movk_i32 s12, 162' % (ST + 5, 32 * 1152, ST + 6, ST + 8))
    p.label(cm)
    p.I('s_cmp_le_u32 s11, 4\ns_cselect_b32 s13, 5, 4\ns_cselect_b32 s14, 0, 90\ns_add_u32 s12, s12, s14\ns_mul_i32 s14, s9, 6\ns_mul_i32 s14, s14, s13\ns_add_u32 s12, s12, s14\ns_lshl_b32 s%d, s13, 10' % (ST + 7))
    p.I('s_sub_u32 s14, s11, 5\ns_cmp_lt_u32 s11, 4\ns_cselect_b32 s14, s11, s14')
    sm = p.label_name('L_ts'); dn = p.label_name('L_td')
    p.I('s_cmp_eq_u32 s11, 4\ns_cbranch_scc1 %s' % sm)
    p.I('s_lshl_b32 s7, s10, 2\ns_add_u32 s7, s7, s14\ns_mul_i32 s7, s7, 324\ns_add_u32 s7, s7, s12\ns_lshl_b32 s7, s7, 10\ns_add_u32 s7, s7, %d' % (L.W34T - L.W1T))
    for jn in range(2):
        for kh in range(2): p.I('s_add_u32 s%d, s7, %d' % (ST + 2 * jn + kh, (2 * kh + jn) * 1024))
    p.I('s_branch %s' % dn)
    p.label(sm)
    p.I('s_add_u32 s%d, s%d, 2' % (ST + 8, ST + 8))
    for j in range(4):
        p.I('s_lshl_b32 s7, s10, 2\ns_add_u32 s7, s7, %d\ns_mul_i32 s7, s7, 324\ns_add_u32 s7, s7, s12\ns_add_u32 s7, s7, 4\ns_lshl_b32 s7, s7, 10\ns_add_u32 s%d, s7, %d' % (j, ST + j, L.W34T - L.W1T))
    p.label(dn)
    p.I('s_cmp_ge_u32 s%d, 432' % stask)
    for k in range(5): p.I('s_cselect_b32 s%d, 0x7f000000, s%d' % (ST + k, ST + k))
    for k in (5, 7): p.I('s_cselect_b32 s%d, 0, s%d' % (ST + k, ST + k))

def pretile34(c, swave):
    p = c.p
    NB, NU = 8, 12
    pt34_lane_consts(p)
    STA, STB = 80, 90
    p.I('s_mul_i32 s15, s3, %d' % (NB * 4096))
    p.I('s_add_u32 s79, s%d, 256' % swave)
    pt34_decode(c, swave, 64, STA)
    pt34_decode(c, 79, 52, STB)
    p.I('v_mad_u32_u24 v12, v2, s%d, v3\nv_add_u32 v12, s%d, v12' % (STA + 6, STA + 4))
    p.I('v_mad_u32_u24 v13, v2, s%d, v3\nv_add_u32 v13, s%d, v13' % (STB + 6, STB + 4))
    p.I('s_lshl_b32 s4, s%d, 3\ns_mov_b32 s5, s%d\ns_mov_b32 s78, 0\ns_mov_b32 s14, s15\ns_add_u32 s13, s15, %d' % (STA + 6, STA + 5, NB * 4096))
    def issue():
        l1 = p.label_name('L_is')
        p.I('s_cmp_lg_u32 s78, 6\ns_cbranch_scc1 %s' % l1)
        p.I('v_mov_b32 v12, v13\ns_lshl_b32 s4, s%d, 3\ns_mov_b32 s5, s%d' % (STB + 6, STB + 5))
        for k in range(4): p.I('s_mov_b32 s%d, s%d' % (64 + k, 52 + k))
        p.label(l1)
        p.I('s_cmp_eq_u32 s78, 12\ns_cselect_b32 s7, 0x7f000000, 0\nv_add_u32 v12, s7, v12')
        p.I('v_mov_b32 v9, v12')
        for q in range(4):
            p.I('s_add_u32 m0, s14, %d' % (q * 1024))
            if q: p.I('v_add_u32 v9, s4, v9')
            p.I('buffer_load_dwordx4 v9, s[64:67], 0 offen lds', nowait=True)
        p.I('v_add_u32 v12, s5, v12\ns_add_u32 s78, s78, 1\ns_add_u32 s14, s14, 4096\ns_cmp_ge_u32 s14, s13\ns_cselect_b32 s14, s15, s14')
    pl = p.label_name('L_prime')
    p.I('v_mov_b32 v11, 0x7f000000')
    p.label(pl)
    issue()
    for f in range(4): p.I('buffer_store_dwordx4 v[20:23], v11, s[68:71], 0 offen', nowait=True)
    p.I('s_cmp_lt_u32 s78, %d\ns_cbranch_scc1 %s' % (NB - 1, pl))
    p.I('s_mov_b32 s79, 0\ns_mov_b32 s12, s15')
    lp = p.label_name('L_ptl')
    p.label(lp)
    def cst(k):
        if os.environ.get('PTST'):
            l = p.label_name('L_cs')
            p.I('s_cmp_lg_u32 s79, %s\ns_cbranch_scc1 %s' % (os.environ['PTST'], l)); c.stamp(k); p.label(l)
    cst(5)
    issue()
    cst(6)
    l2 = p.label_name('L_ps')
    p.I('s_cmp_lg_u32 s79, 6\ns_cbranch_scc1 %s' % l2)
    for k in (0, 1, 2, 3, 7, 8): p.I('s_mov_b32 s%d, s%d' % (STA + k, STB + k))
    p.label(l2)
    p.I('s_waitcnt vmcnt(%d)' % (8 * (NB - 1)))
    cst(7)
    R = 20
    labs = [p.label_name('L_k%d' % k) for k in range(4)]; le = p.label_name('L_ke')
    for k in range(1, 4): p.I('s_cmp_eq_u32 s%d, %d\ns_cbranch_scc1 %s' % (STA + 8, k, labs[k]))
    for k, (va, second) in enumerate(((14, 512), (15, 1024), (16, 512), (17, 1024))):
        if k: p.label(labs[k])
        p.I('v_add_u32 v10, s12, v%d' % va)
        for f in range(4):
            off = (f // 2) * 64 + (f % 2) * 2048 if k < 2 else 32 * f
            p.I('ds_read_b64_tr_b16 %s, v10 offset:%d' % (vr(R + 4 * f, 2), off), nowait=True)
            p.I('ds_read_b64_tr_b16 %s, v10 offset:%d' % (vr(R + 4 * f + 2, 2), off + second), nowait=True)
        if k < 3: p.I('s_branch %s' % le)
    p.label(le)
    p.I('s_waitcnt lgkmcnt(0)')
    cst(8)
    for f in range(4):
        p.I('v_add_u32 v11, s%d, v8\ns_add_u32 s%d, s%d, s%d' % (STA + f, STA + f, STA + f, STA + 7))
        p.I('buffer_store_dwordx4 %s, v11, s[68:71], 0 offen%s' % (vr(R + 4 * f, 4), c.sc), nowait=True)
    cst(9)
    p.I('s_add_u32 s12, s12, 4096\ns_cmp_ge_u32 s12, s13\ns_cselect_b32 s12, s15, s12')
    p.I('s_add_u32 s79, s79, 1\ns_cmp_lt_u32 s79, %d\ns_cbranch_scc1 %s' % (NU, lp))
    p.I('s_waitcnt vmcnt(0)'); p.cut()

def ring_start(c):
    p = c.p
    srd(p, 64, P_WS, 32 * 324 * 1024, off=L.W34T)
    p.I('s_lshl_b32 s6, s4, 2\ns_add_u32 s6, s6, s3\ns_mul_i32 s6, s6, %d\nv_lshl_add_u32 v2, v1, 4, s6' % (324 * 1024))
    c.wn = 0
    for n in range(RING): wload(c)

def ring_setup(c, sslice, vaddr):
    p = c.p
    srd(p, 64, P_WS, 32 * 324 * 1024, off=L.W34T)
    p.I('s_lshl_b32 s6, s%d, 2\ns_add_u32 s6, s6, s3\ns_mul_i32 s6, s6, %d\nv_lshl_add_u32 v%d, v1, 4, s6' % (sslice, 324 * 1024, vaddr))
    c.ring_off = 0

def ring_load_at(c, slot, n, vaddr):
    p = c.p
    c.ring_map = getattr(c, 'ring_map', {})
    c.ring_map[n] = slot
    need = (n // 4) * 4096
    if need != c.ring_off:
        p.I('v_add_u32 v%d, %d, v%d' % (vaddr, need - c.ring_off, vaddr)); c.ring_off = need
    p.I('buffer_load_dwordx4 %s, v%d, s[64:67], 0 offen offset:%d%s' % (ar(4 * slot, 4), vaddr, 1024 * (n % 4), c.sc))

def ring_resume(c):
    p = c.p
    srd(p, 64, P_WS, 32 * 324 * 1024, off=L.W34T)
    p.I('s_lshl_b32 s6, s4, 2\ns_add_u32 s6, s6, s3\ns_mul_i32 s6, s6, %d\ns_add_u32 s6, s6, %d\nv_lshl_add_u32 v2, v1, 4, s6' % (324 * 1024, (EARLY // 4) * 4096))
    c.wn = EARLY
    c.ptr = [(EARLY // 4) * 4096, None]
    c.wtok = {}

def stream_order():
    o = list(range(162))
    for ks in range(20):
        pb, kh = ks >> 1, ks & 1
        o.append(162 + 3 * pb + kh); o.append(216 + 2 * pb + kh)
        if kh: o.append(162 + 3 * pb + 2)
    for ks in range(20, 36):
        pb, kh = ks >> 1, ks & 1
        o.append(162 + 3 * pb + kh)
        if kh: o.append(162 + 3 * pb + 2)
    for ks in range(20, 36): o.append(216 + ks)
    o += list(range(252, 324))
    assert sorted(o) == list(range(324))
    return o
ORDER = stream_order()
VPTR = [2, 3]

def wload(c):
    p = c.p
    n = c.wn
    if n >= 324: return
    pos = ORDER[n]
    k = 1 if 216 <= pos < 252 else 0
    need = (pos // 4) * 4096
    if c.ptr[k] is None:
        p.I('v_add_u32 v%d, %d, v%d' % (VPTR[k], need - c.ptr[0], VPTR[0]) if need >= c.ptr[0] else 'v_subrev_u32 v%d, %d, v%d' % (VPTR[k], c.ptr[0] - need, VPTR[0]))
        c.ptr[k] = need
    elif need != c.ptr[k]:
        assert need > c.ptr[k]
        p.I('v_add_u32 v%d, %d, v%d' % (VPTR[k], need - c.ptr[k], VPTR[k])); c.ptr[k] = need
    c.wtok[n] = p.I('buffer_load_dwordx4 %s, v%d, s[64:67], 0 offen offset:%d%s' % (ar(4 * PERM[n % RING], 4), VPTR[k], 1024 * (pos % 4), c.sc))
    c.wn += 1

def ln_addr(c):
    p = c.p
    p.I('v_lshrrev_b32 v7, 1, v4\nv_lshlrev_b32 v9, 11, v7\ns_lshr_b32 s6, s3, 1\ns_lshl_b32 s6, s6, 10\nv_add_u32 v9, s6, v9')
    p.I('v_and_b32 v7, 1, v4\nv_lshlrev_b32 v7, 5, v7\ns_and_b32 s6, s3, 1\ns_lshl_b32 s6, s6, 4\nv_add_u32 v7, s6, v7\nv_add_u32 v7, v7, v3')
    for i in range(2):
        p.I('v_add_u32 v10, %d, v7\nv_xor_b32 v10, v10, v4\nv_lshl_add_u32 v%d, v10, 4, v9' % (8 * i, 11 + i))

def gelu4_lines(a, tmp, o, s1, vc2):
    L_ = []
    for r in range(4): L_.append('v_mul_f32 v%d, v%d, v%d' % (tmp + r, a + r, a + r))
    for r in range(4): L_.append('v_fma_f32 v%d, v%d, v%d, s%d' % (tmp + r, tmp + r, vc2, s1))
    for r in range(4): L_.append('v_mul_f32 v%d, v%d, v%d' % (tmp + r, tmp + r, a + r))
    for r in range(4): L_.append('v_exp_f32 v%d, v%d' % (tmp + r, tmp + r))
    for r in range(4): L_.append('v_add_f32 v%d, 1.0, v%d' % (tmp + r, tmp + r))
    for r in range(4): L_.append('v_rcp_f32 v%d, v%d' % (tmp + r, tmp + r))
    for r in range(4): L_.append('v_mul_f32 v%d, v%d, v%d' % (tmp + r, a + r, tmp + r))
    L_.append('v_cvt_pk_bf16_f32 v%d, v%d, v%d' % (o, tmp, tmp + 1))
    L_.append('v_cvt_pk_bf16_f32 v%d, v%d, v%d' % (o + 1, tmp + 2, tmp + 3))
    return L_

def mlp_setup(c):
    p = c.p
    gelu_consts(p, 8, 9)
    p.I('v_mov_b32 v20, s9')
    p.I('v_lshrrev_b32 v3, 5, v1')
    for q in range(4):
        p.I('v_add_u32 v4, %d, v3\nv_xor_b32 v4, v4, v1\nv_lshlrev_b32 v%d, 4, v4\nv_add_u32 v%d, 65536, v%d' % (2 * q, 14 + q, 24 + q, 14 + q))
    p.I('v_and_b32 v4, 15, v1\nv_bfe_u32 v5, v1, 4, 1\nv_lshl_add_u32 v4, v5, 5, v4')
    for par in range(2):
        p.I('v_lshlrev_b32 v6, 1, v3\nv_add_u32 v6, %d, v6\nv_add_u32 v6, v6, v5\nv_xor_b32 v6, v6, v4\nv_lshlrev_b32 v6, 4, v6\nv_lshl_add_u32 v%d, v3, 11, v6' % (4 * par, 28 + par))
    p.I('v_add_u32 v30, 65536, v28\nv_add_u32 v31, 65536, v29')
    p.I('v_lshlrev_b32 v18, 4, v1\nv_add_u32 v18, %d, v18\nv_add_u32 v19, 65536, v18' % G_BASE)
    p.I('v_lshlrev_b32 v60, 4, v4\nv_lshl_add_u32 v60, v3, 11, v60\nv_add_u32 v60, %d, v60\nv_add_u32 v61, 65536, v60' % G_BASE)
    p.I('s_lshl_b32 s6, s3, 13\nv_add_u32 v22, s6, v18\ns_add_u32 s6, s6, %d\nv_add_u32 v23, s6, v18' % (20 * 2048))
    p.I('v_lshlrev_b32 v62, 4, v4\nv_lshl_add_u32 v62, v3, 3, v62\ns_add_u32 s6, s3, 16\ns_lshl_b32 s6, s6, 11\ns_add_u32 s6, s6, %d\nv_add_u32 v62, s6, v62' % G_BASE)
    srd(p, 68, P_WS, 32 * 8 * 8 * 9216, off=L.PART)
    p.I('v_bfe_u32 v5, v1, 3, 2\nv_mul_u32_u24 v5, %d, v5\nv_and_b32 v6, 7, v1\nv_lshl_add_u32 v5, v6, 5, v5\nv_lshl_add_u32 v5, v3, 4, v5' % (8 * 9216))
    p.I('s_lshl_b32 s6, s5, 6\ns_add_u32 s6, s6, s4\ns_mul_i32 s6, s6, 9216\nv_add_u32 v21, s6, v5')
    p.I('v_bfe_u32 v5, v1, 3, 1\nv_mul_u32_u24 v5, %d, v5\nv_and_b32 v6, 7, v1\nv_lshl_add_u32 v5, v6, 5, v5\nv_lshrrev_b32 v6, 4, v1\nv_lshl_add_u32 v5, v6, 3, v5' % (8 * 9216))
    p.I('s_lshl_b32 s7, s3, 8\ns_add_u32 s7, s7, s6\ns_add_u32 s7, s7, 8192\nv_add_u32 v63, s7, v5')

def mlp_main(c):
    p = c.p
    GA, GS, GB = 64, 128, 160
    BF, SF = 224, 144
    GT, GO = 32, 40
    F = Filler(p)
    def gelu_big(acc, vaddr):
        k = 0
        for e in range(2):
            for tt in range(2):
                a = acc + 16 * (e * 2 + tt)
                for h in range(2):
                    o = GO + 4 * (k % 2)
                    for q in range(2):
                        F.add('\n'.join(gelu4_lines(a + 8 * h + 4 * q, GT + 4 * q, o + 2 * q, 8, 20)))
                    F.add('ds_write_b128 v%d, %s offset:%d' % (vaddr, vr(o, 4), e * 4096 + h * 2048 + tt * 1024))
                    k += 1
    def gelu_small():
        for tq in range(4):
            o = GO + 2 * (tq % 2)
            F.add('\n'.join(gelu4_lines(GS + 4 * tq, GT + 4 * (tq % 2), o, 8, 20)))
            F.add('ds_write_b64 v62, %s offset:%d' % (vr(o, 2), (tq >> 1) * 1024 + (tq & 1) * 256))
    step = [0]
    def big_step(accs, bregs, first):
        a = ar(4 * PERM[step[0] % RING], 4)
        for tt in range(2):
            cc = '0' if first else vr(accs[tt], 16)
            p.I('v_mfma_f32_32x32x16_bf16 %s, %s, %s, %s' % (vr(accs[tt], 16), a, vr(bregs[tt], 4), cc))
            F.tick()
        wload(c); step[0] += 1
    def small_step(acc, first):
        a = ar(4 * PERM[step[0] % RING], 4)
        for tq in range(4):
            cc = '0' if first else vr(acc + 4 * tq, 4)
            p.I('v_mfma_f32_16x16x32_bf16 %s, %s, %s, %s' % (vr(acc + 4 * tq, 4), a, vr(SF + 4 * tq, 4), cc))
        F.tick()
        wload(c); step[0] += 1
    btok = {}
    def ld_act(ks):
        for tt in range(2):
            off = A2_BASE + (ks * 2 + tt) * 1024
            btok[ks] = p.I('ds_read_b128 %s, v%d offset:%d' % (vr(BF + 8 * (ks % 3) + 4 * tt, 4), (14 if off < 65536 else 24) + (ks & 3), off % 65536))
    def ld_act_small(K2):
        for tq in range(4):
            off = A2_BASE + K2 * 4096 + (tq >> 1) * 1024 + (tq & 1) * 256
            p.I('ds_read_b128 %s, v%d offset:%d' % (vr(SF + 4 * tq, 4), (28 if off < 65536 else 30) + (K2 & 1), off % 65536))
    def ld_g(ksf):
        for tt in range(2):
            off = (ksf * 2 + tt) * 1024
            btok[ksf] = p.I('ds_read_b128 %s, v%d offset:%d' % (vr(BF + 8 * (ksf % 3) + 4 * tt, 4), 18 if off < 65536 else 19, off % 65536))
    def ld_g_small(K2):
        for tq in range(4):
            off = K2 * 4096 + (tq >> 1) * 1024 + (tq & 1) * 256
            p.I('ds_read_b128 %s, v%d offset:%d' % (vr(SF + 4 * tq, 4), 60 if off < 65536 else 61, off % 65536))
    def loop(acc, ntile, sacc, ldb, lds_, barrier_at=None, hook=None):
        ldb(0); ldb(1)
        for ks in range(36):
            if hook: hook(ks)
            if barrier_at is not None and ks == barrier_at:
                F.flush()
                p.I('s_waitcnt lgkmcnt(0)\ns_barrier')
                ldb(ks); ldb(ks + 1)
            nx = ks + 2
            if nx < 36 and not (barrier_at is not None and barrier_at - 2 <= ks < barrier_at): ldb(nx)
            if sacc is not None and ks % 2 == 0: lds_(ks >> 1)
            b = [BF + 8 * (ks % 3) + 4 * tt for tt in range(2)]
            p.wait(btok.get(ks), c.wtok.get(step[0] + ntile - 1))
            for e in range(ntile):
                big_step([acc + 16 * (e * 2 + tt) for tt in range(2)], b, ks == 0)
            if sacc is not None and ks % 2 == 1: small_step(sacc, ks == 1)
    final_setup(c, F); F.set_rate(120)
    loop(GA, 2, GS, ld_act, ld_act_small)
    F.flush()
    c.mstamp(1)
    gelu_big(GA, 22); gelu_small(); F.set_rate(144 - 6)
    loop(GB, 2, None, ld_act, None)
    F.flush()
    c.mstamp(2)
    p.I('s_waitcnt lgkmcnt(0)\ns_barrier')
    O = [64, 96, 64, 96]; OS = 128
    def publish_big(acc, e):
        Ls = []
        for tt in range(2):
            a = acc + 16 * tt
            pk = 44 + 8 * tt
            for d in range(8): Ls.append('v_cvt_pk_bf16_f32 v%d, v%d, v%d' % (pk + d, a + 2 * d, a + 2 * d + 1))
            Ls.append('s_add_u32 s7, s10, %d' % (tt * 4 * 8 * 9216 + e * 2048))
            Ls.append('buffer_store_dwordx4 %s, v21, s[68:71], s7 offen%s' % (vr(pk, 4), c.sc))
            Ls.append('buffer_store_dwordx4 %s, v21, s[68:71], s7 offen offset:256%s' % (vr(pk + 4, 4), c.sc))
        return '\n'.join(Ls)
    def publish_small():
        Ls = []
        for tq in range(4):
            a = OS + 4 * tq; pk = 32 + 2 * tq
            Ls.append('v_cvt_pk_bf16_f32 v%d, v%d, v%d' % (pk, a, a + 1)); Ls.append('v_cvt_pk_bf16_f32 v%d, v%d, v%d' % (pk + 1, a + 2, a + 3))
            Ls.append('s_mov_b32 s7, %d' % (tq * 2 * 8 * 9216))
            Ls.append('buffer_store_dwordx2 %s, v63, s[68:71], s7 offen%s' % (vr(pk, 2), c.sc))
        return '\n'.join(Ls)
    p.I('s_lshl_b32 s10, s3, 9')
    def kloop(ks0, ks1, accs, sacc, hook=None):
        ld_g(ks0); ld_g(ks0 + 1)
        for ks in range(ks0, ks1):
            if hook: hook(ks)
            if ks + 2 < ks1: ld_g(ks + 2)
            if sacc is not None and ks % 2 == 0: ld_g_small(ks >> 1)
            b = [BF + 8 * (ks % 3) + 4 * tt for tt in range(2)]
            p.wait(btok.get(ks), c.wtok.get(step[0] + len(accs) - 1))
            for acc in accs: big_step([acc + 16 * tt for tt in range(2)], b, ks == 0)
            if sacc is not None and ks % 2 == 1: small_step(sacc, ks == 1)
    gelu_big(GB, 23); F.set_rate(80 + 10 - 4)
    kloop(0, 20, [O[0], O[1]], OS)
    F.flush()
    p.I('s_waitcnt lgkmcnt(0)\ns_barrier')
    kloop(20, 36, [O[0]], OS)
    c.mstamp(3)
    F.add(publish_big(O[0], 0)); F.add(publish_small()); F.set_rate(28)
    kloop(20, 36, [O[1]], None)
    F.flush()
    if os.environ.get('FB'): c.stamp(5)
    final_ops(c)
    F.add(publish_big(O[1], 1)); F.set_rate(24)
    tok01 = [None]
    def hook2(ks):
        if ks == 16: F.flush(); tok01[0] = F.last_tok
        if ks == 30:
            if os.environ.get('FB'): c.stamp(6)
            p.wait(tok01[0]); p.I('s_barrier'); c.arrive_part(0)
            if os.environ.get('FB'): c.stamp(7)
    kloop(0, 36, [O[2]], None, hook=hook2)
    if os.environ.get('FB'): c.stamp(8)
    F.add(publish_big(O[2], 2)); F.set_rate(24)
    def hook3(ks):
        if ks == 18: c.poll_issue()
        if ks == 28:
            if os.environ.get('FB'): c.stamp(11)
            c.poll_check()
            if os.environ.get('FB'): c.stamp(12)
            final_gather(c, 0)
            if os.environ.get('FB'): c.stamp(9)
    kloop(0, 36, [O[3]], None, hook=hook3)
    F.flush()
    p.I(publish_big(O[3], 3))

FA, FB, FROW, FGB, FROWS, FGBS, FOOB = 4, 5, 6, 7, 8, 9, 10
PGA = 160
PS = 192
OPS = 208

class _Collect:
    def __init__(self, F): self.F = F
    def I(self, text, nowait=False): self.F.add(text)

def final_setup(c, F=None):
    p = c.p if F is None else _Collect(F)
    srd(p, 52, P_WS, L.S * 1152, off=L.X1); srd(p, 56, P_WS, L.S * 1152, off=L.X2)
    srd(p, 60, P_OUT, L.S * 1152); srd(p, 48, P_WS, 6 * 576 * 4, off=L.MOD)
    p.I('s_mov_b32 s99, 0xffff0000')
    p.I('s_lshl_b32 s6, s5, 3\ns_add_u32 s6, s6, s4\ns_mul_i32 s6, s6, %d\nv_lshl_add_u32 v%d, v0, 4, s6' % (8 * 9216, FA))
    p.I('v_cmp_gt_u32 vcc, 128, v0\nv_mov_b32 v%d, 0x7f000000\nv_lshlrev_b32 v%d, 3, v0\nv_add_u32 v%d, s6, v%d\nv_add_u32 v%d, 8192, v%d\nv_cndmask_b32 v%d, v%d, v%d, vcc' % (FOOB, FB, FB, FB, FB, FB, FB, FOOB, FB))
    p.I('v_bfe_u32 v11, v0, 1, 3\ns_lshl_b32 s6, s5, 6\ns_lshl_b32 s7, s4, 3\ns_add_u32 s6, s6, s7\nv_add_u32 v11, s6, v11\ns_movk_i32 s7, 1152\nv_mul_lo_u32 v11, v11, s7')
    p.I('v_bfe_u32 v12, v0, 5, 2\nv_lshlrev_b32 v12, 6, v12\nv_lshrrev_b32 v13, 7, v0\nv_lshl_add_u32 v12, v13, 5, v12\nv_and_b32 v13, 1, v0\nv_lshl_add_u32 v12, v13, 4, v12\nv_bfe_u32 v13, v0, 4, 1\nv_lshl_add_u32 v12, v13, 3, v12')
    p.I('v_lshl_add_u32 v%d, v12, 1, v11\nv_lshlrev_b32 v%d, 2, v12\nv_add_u32 v%d, %d, v%d' % (FROW, FGB, FGB, 5 * 2304, FGB))
    p.I('v_bfe_u32 v11, v0, 2, 3\nv_add_u32 v11, s6, v11\nv_mul_lo_u32 v11, v11, s7')
    p.I('v_lshrrev_b32 v12, 5, v0\nv_lshlrev_b32 v12, 4, v12\nv_and_b32 v13, 3, v0\nv_lshl_add_u32 v12, v13, 2, v12\nv_add_u32 v12, 256, v12')
    p.I('v_lshl_add_u32 v%d, v12, 1, v11\nv_lshlrev_b32 v%d, 2, v12\nv_add_u32 v%d, %d, v%d' % (FROWS, FGBS, FGBS, 5 * 2304, FGBS))
    p.I('v_cndmask_b32 v%d, v%d, v%d, vcc\nv_cndmask_b32 v%d, v%d, v%d, vcc' % (FROWS, FOOB, FROWS, FGBS, FOOB, FGBS))

X1P = [208, 24]; X2P = [212, 28]; GBP = [216, 144]; SX1, SX2, SGB = 152, 154, 156
def final_ops(c):
    p = c.p
    for k in range(2):
        p.I('buffer_load_dwordx4 %s, v%d, s[52:55], 0 offen offset:%d%s' % (vr(X1P[k], 4), FROW, 640 * k, c.sc))
        p.I('buffer_load_dwordx4 %s, v%d, s[56:59], 0 offen offset:%d%s' % (vr(X2P[k], 4), FROW, 640 * k, c.sc))
        p.I('buffer_load_dwordx4 %s, v%d, s[48:51], 0 offen offset:%d%s' % (vr(GBP[k], 4), FGB, 1280 * k, c.sc))
        p.I('buffer_load_dwordx4 %s, v%d, s[48:51], 0 offen offset:%d%s' % (vr(GBP[k] + 4, 4), FGB, 1280 * k + 16, c.sc))
    p.I('buffer_load_dwordx2 %s, v%d, s[52:55], 0 offen%s' % (vr(SX1, 2), FROWS, c.sc))
    p.I('buffer_load_dwordx2 %s, v%d, s[56:59], 0 offen%s' % (vr(SX2, 2), FROWS, c.sc))
    p.I('buffer_load_dwordx4 %s, v%d, s[48:51], 0 offen%s' % (vr(SGB, 4), FGBS, c.sc))

def final_gather(c, k):
    p = c.p
    for src in range(8):
        p.I('s_mov_b32 s7, %d\nbuffer_load_dwordx4 %s, v%d, s[68:71], s7 offen%s' % (src * 9216 + k * 4096, vr(PGA + 4 * src, 4), FA, c.sc))
    if k == 0:
        for src in range(8):
            p.I('s_mov_b32 s7, %d\nbuffer_load_dwordx2 %s, v%d, s[68:71], s7 offen%s' % (src * 9216, vr(PS + 2 * src, 2), FB, c.sc))

def final_piece(p, nd, src_reg, x1, x2, gb, out):
    AC, U = 32, 40
    for d in range(nd): unpack(p, AC + 2 * d, src_reg(0) + d, 99)
    for src in range(1, 8):
        u = U + 8 * (src % 2)
        for d in range(nd): unpack(p, u + 2 * d, src_reg(src) + d, 99)
        for d in range(nd): p.I('v_pk_add_f32 %s, %s, %s' % (vr(AC + 2 * d, 2), vr(AC + 2 * d, 2), vr(u + 2 * d, 2)))
    for d in range(nd): unpack(p, U + 2 * d, x2 + d, 99)
    for d in range(nd): p.I('v_pk_add_f32 %s, %s, %s' % (vr(AC + 2 * d, 2), vr(AC + 2 * d, 2), vr(U + 2 * d, 2)))
    for d in range(nd): unpack(p, U + 2 * d, x1 + d, 99)
    for d in range(nd): p.I('v_pk_fma_f32 %s, %s, %s, %s' % (vr(AC + 2 * d, 2), vr(AC + 2 * d, 2), vr(gb + 2 * d, 2), vr(U + 2 * d, 2)))
    for d in range(nd): p.I('v_cvt_pk_bf16_f32 v%d, v%d, v%d' % (out + d, AC + 2 * d, AC + 2 * d + 1))

def final_pair(c, k):
    p = c.p
    final_piece(p, 4, lambda src: PGA + 4 * src, X1P[k], X2P[k], GBP[k], 56)
    p.I('buffer_store_dwordx4 %s, v%d, s[60:63], 0 offen offset:%d' % (vr(56, 4), FROW, 640 * k))
    if k == 0:
        final_piece(p, 2, lambda src: PS + 2 * src, SX1, SX2, SGB, 60)
        p.I('buffer_store_dwordx2 %s, v%d, s[60:63], 0 offen' % (vr(60, 2), FROWS))
```

```python
import sys
sys.path.insert(0, 'gen')
from asmlib import *
import layout as L
import mk
import mlp32
import pt
from mk import (srd, udiv_magic, f2u, bf16_round, LOG2E, NAME, P_Q, P_K, P_V, P_SK, P_SSMK, P_SSMD, P_W1, P_W2, P_W3, P_W4,
                P_C, P_WMOD, P_OUT, P_DBG, P_WS, unpack, gelu_consts, gelu_inplace, reduce32, reduce8, small_out_addr, gemm_small,
                Filler, gelu_tile_lines, KC_STRIDE, KCOPY, XR_BASE, XR_STRIDE, RED_BASE, kernel_header, kernel_desc, assemble)

STAMPS = False
NCONV = 192
LS = 4352
K_SH, K_TOP, K_REL = 0, 16, 17
V_SH, V_TOP, V_REL = 18, 34, 35
M_CNT, M_REL, A_CNT, A_REL, B_CNT, B_REL = 36, 37, 38, 39, 40, 41
C_H1, C_X2, C_PART = 42, 106, 170
B3_CNT, B3_REL = 210, 211
C_PART0 = 212
C_PART1 = 256
NCNT = 320
S_SYNC = 72
SPIN_MAX = 1 << 17
import os
TAG_H1 = os.environ.get('TAG', '0') == '1'
PROBE = os.environ.get('PROBE', '1') == '1'
TAGZ = os.environ.get('TAGZ', '1') == '1'
import os
SLEEP = int(os.environ.get('SLEEP', '1'))

class Ctx:
    def __init__(self):
        self.p = Prog(); self.mega = True; self.sc = ' sc1'; self.first_arrive_done = False
    def stamp(self, k, force=False):
        if not STAMPS: return
        if os.environ.get('FINE2') and k in (6, 7, 8, 9, 10, 11, 12, 13) and not getattr(self, 'fine', False): return
        if os.environ.get('FB') and k in (5, 6, 7, 8, 9, 10, 11, 12) and not getattr(self, 'inmlp', False): return
        if os.environ.get('CYC'):
            self.p.I('s_memtime s[76:77]\ns_waitcnt lgkmcnt(0)\nv_accvgpr_write_b32 a%d, s76' % (232 + k))
        else:
            self.p.I('s_memrealtime s[76:77]\ns_waitcnt lgkmcnt(0)\nv_accvgpr_write_b32 a%d, s76' % (232 + k))
    def mstamp(self, i):
        if 1 <= i < 4: self.stamp(17 + i)
    def stamp_out(self):
        if not STAMPS: return
        p = self.p
        self.stamp(23)
        if os.environ.get('DBGST'):
            l = p.label_name('L_dbgst')
            p.I('s_cmp_lg_u32 s2, 7\ns_cbranch_scc1 %s\ns_cmp_lg_u32 s3, 0\ns_cbranch_scc1 %s' % (l, l))
            srd(p, 48, P_DBG, 256)
            p.I('v_accvgpr_read_b32 v3, a232\nv_mov_b32 v2, 0')
            for i, k in enumerate((1, 2, 4, 5, 7, 9, 10, 11, 13, 15, 16, 19, 21, 22, 23)):
                p.I('v_accvgpr_read_b32 v4, a%d\nv_sub_u32 v4, v4, v3\ns_mov_b64 exec, 1\nbuffer_store_dword v4, v2, s[48:51], 0 offen offset:%d\ns_mov_b64 exec, -1' % (232 + k, 4 * (i + 1)))
            p.label(l)
            return
        srd(p, 48, P_WS, 1 << 20, off=L.DBG)
        p.I('s_lshl_b32 s76, s2, 2\ns_add_u32 s76, s76, s3\ns_lshl_b32 s76, s76, 7\nv_mov_b32 v2, s76')
        for k in range(24): p.I('buffer_store_dword a%d, v2, s[48:51], 0 offen offset:%d' % (232 + k, 4 * k if k < 23 else 124))

def wave0(p, lab):
    p.I('s_cmp_lg_u32 s3, 0\ns_cbranch_scc1 %s' % lab)

def atomic_ret(p):
    p.I('v_mov_b32 v253, 1\nbuffer_atomic_add v253, v252, s[%d:%d], 0 offen sc0 sc1\ns_waitcnt vmcnt(0)\nv_readfirstlane_b32 s76, v253\ns_nop 3' % (S_SYNC, S_SYNC + 3), nowait=True)

def do_arrive(c, kind, check_ready=False, **kw):
    p = c.p
    if check_ready: ready_check(c, None if check_ready is True else check_ready)
    p.I('s_mov_b64 exec, 1')
    done = p.label_name('L_ad')
    if kind == 'add':
        if kw.get('sgpr') is None: p.I('v_mov_b32 v252, %d' % (kw['idx'] * LS))
        else: p.I('s_mul_i32 s76, s%d, %d\ns_add_u32 s76, s76, %d\nv_mov_b32 v252, s76' % (kw['sgpr'], LS, kw['idx'] * LS))
        p.I('v_mov_b32 v253, 1\nbuffer_atomic_add v253, v252, s[%d:%d], 0 offen sc1' % (S_SYNC, S_SYNC + 3), nowait=True)
    else:
        if kind == 'two':
            p.I('s_mul_i32 s76, s%d, %d\ns_add_u32 s76, s76, %d\nv_mov_b32 v252, s76' % (kw['sgpr'], LS, kw['sh'] * LS))
            atomic_ret(p)
            p.I('s_cmp_lg_u32 s76, %d\ns_cbranch_scc1 %s' % (kw['per'] - 1, done))
            cnt, n = kw['top'], kw['nsh']
        else: cnt, n = kw['cnt'], kw['n']
        p.I('v_mov_b32 v252, %d' % (cnt * LS))
        atomic_ret(p)
        p.I('s_cmp_lg_u32 s76, %d\ns_cbranch_scc1 %s' % (n - 1, done))
        p.I('v_mov_b32 v252, %d\nv_mov_b32 v253, 1\nbuffer_store_dword v253, v252, s[%d:%d], 0 offen sc1' % (kw['rel'] * LS, S_SYNC, S_SYNC + 3), nowait=True)
    p.label(done)
    p.I('s_mov_b64 exec, -1'); p.cut()

def arrive(c, kind, check_ready=False, **kw):
    p = c.p
    p.I('s_waitcnt vmcnt(%d) lgkmcnt(0)\ns_barrier' % kw.pop('keep', 0)); p.cut()
    lab = p.label_name('L_arr')
    wave0(p, lab)
    do_arrive(c, kind, check_ready, **kw)
    p.label(lab); p.cut()

def wave_arrive(c, kind, check_ready=False, **kw):
    c.p.I('s_waitcnt vmcnt(0) lgkmcnt(0)'); c.p.cut()
    do_arrive(c, kind, check_ready, **kw)

def ready_probe(c, vreg):
    p = c.p
    srd(p, 64, P_DBG, 256)
    p.I('v_mov_b32 v%d, 0\nbuffer_load_dword v%d, v%d, s[64:67], 0 offen sc1' % (vreg, vreg, vreg))

def ready_check(c, probe=None):
    p = c.p
    lp = p.label_name('L_rdy'); dn = p.label_name('L_rdy_done')
    if probe is not None:
        p.I('v_readfirstlane_b32 s76, v%d\ns_nop 3\ns_cmp_lg_u32 s76, 0\ns_cbranch_scc1 %s' % (probe, dn))
    srd(p, 8, P_DBG, 256)
    p.I('s_mov_b32 s77, 0\nv_mov_b32 v252, 0')
    p.label(lp)
    p.I('buffer_load_dword v253, v252, s[8:11], 0 offen sc1\ns_waitcnt vmcnt(0)\nv_readfirstlane_b32 s76, v253', nowait=True)
    p.I('s_nop 3\ns_cmp_lg_u32 s76, 0\ns_cbranch_scc1 %s\ns_sleep 2\ns_add_u32 s77, s77, 1\ns_cmp_lt_u32 s77, %d\ns_cbranch_scc1 %s' % (dn, SPIN_MAX, lp))
    p.label(dn); p.cut()

def wait_cnt(c, setup, nlanes):
    p = c.p
    lab = p.label_name('L_wt'); lp = p.label_name('L_poll')
    wave0(p, lab)
    setup(p)
    p.I('s_mov_b32 s77, 0')
    p.I('s_mov_b64 exec, 0x%x' % ((1 << nlanes) - 1))
    p.label(lp)
    p.I('buffer_load_dword v253, v252, s[%d:%d], 0 offen sc1\ns_waitcnt vmcnt(0)\nv_cmp_lt_u32 vcc, v253, v254' % (S_SYNC, S_SYNC + 3), nowait=True)
    p.I('s_add_u32 s77, s77, 1\ns_cmp_ge_u32 s77, %d\ns_cbranch_scc1 %s_x\ns_cbranch_vccz %s_x' % (SPIN_MAX, lp, lp))
    if SLEEP: p.I('s_sleep %d' % SLEEP)
    p.I('s_branch %s' % lp)
    p.label(lp + '_x')
    p.I('s_mov_b64 exec, -1')
    p.label(lab)
    p.I('s_barrier'); p.cut()

def monitor(c):
    p = c.p
    ready_check(c)
    p.I('v_mov_b32 v20, %d\nv_mov_b32 v21, %d' % (K_SH * LS, 36))
    p.I('v_mul_u32_u24 v22, %d, v1\nv_add_u32 v20, v20, v22' % LS)
    p.I('v_subrev_u32 v23, 16, v1\nv_mul_u32_u24 v23, %d, v23\nv_add_u32 v23, %d, v23' % (LS, V_SH * LS))
    p.I('v_cmp_le_u32 vcc, 16, v1\nv_cndmask_b32 v20, v20, v23, vcc\nv_mov_b32 v24, %d\nv_cndmask_b32 v21, v21, v24, vcc' % ((48 if TAG_H1 else 0) if TAGZ else 12))
    for lane, idx, tgt in ((32, M_CNT, 54), (33, A_CNT, 64), (34, B3_CNT, 63)):
        p.I('v_mov_b32 v23, %d\nv_mov_b32 v24, %d\nv_cmp_eq_u32 vcc, %d, v1\nv_cndmask_b32 v20, v20, v23, vcc\nv_cndmask_b32 v21, v21, v24, vcc' % (idx * LS, tgt, lane))
    p.I('s_mov_b32 s9, 0\ns_mov_b32 s10, 0\nv_mov_b32 v25, 1')
    lp = p.label_name('L_mon'); dn = p.label_name('L_mon_done')
    p.label(lp)
    p.I('s_mov_b64 exec, 0x3ffffffff' if False else 's_mov_b32 exec_lo, -1\ns_mov_b32 exec_hi, 7')
    p.I('buffer_load_dword v26, v20, s[%d:%d], 0 offen sc1\ns_waitcnt vmcnt(0)\nv_cmp_lt_u32 vcc, v26, v21' % (S_SYNC, S_SYNC + 3), nowait=True)
    p.I('s_nop 4\ns_mov_b64 s[6:7], vcc\ns_mov_b64 exec, 1')
    for bit, (expr, rel) in enumerate((('s_and_b32 s8, s6, 0xffff', K_REL), ('s_lshr_b32 s8, s6, 16', V_REL), ('s_and_b32 s8, s7, 1', M_REL), ('s_and_b32 s8, s7, 2', A_REL), ('s_and_b32 s8, s7, 4', B3_REL))):
        sk = p.label_name('L_ms')
        p.I('s_bitcmp1_b32 s9, %d\ns_cbranch_scc1 %s' % (bit, sk))
        p.I(expr)
        p.I('s_cmp_lg_u32 s8, 0\ns_cbranch_scc1 %s' % sk)
        p.I('v_mov_b32 v27, %d\nbuffer_store_dword v25, v27, s[%d:%d], 0 offen sc1\ns_bitset1_b32 s9, %d' % (rel * LS, S_SYNC, S_SYNC + 3, bit), nowait=True)
        p.label(sk)
    p.I('s_cmp_eq_u32 s9, 31\ns_cbranch_scc1 %s\ns_add_u32 s10, s10, 1\ns_cmp_lt_u32 s10, %d\ns_cbranch_scc1 %s' % (dn, SPIN_MAX, lp))
    p.label(dn)
    p.I('s_mov_b64 exec, -1\ns_waitcnt vmcnt(0)'); p.cut()

def wave_wait(c, *idx):
    p = c.p
    lp = p.label_name('L_ww')
    f, n = w_flags(*idx)
    f(p)
    p.I('s_mov_b32 s77, 0\ns_mov_b64 exec, 0x%x' % ((1 << n) - 1))
    p.label(lp)
    p.I('buffer_load_dword v253, v252, s[%d:%d], 0 offen sc1\ns_waitcnt vmcnt(0)\nv_cmp_lt_u32 vcc, v253, v254' % (S_SYNC, S_SYNC + 3), nowait=True)
    p.I('s_add_u32 s77, s77, 1\ns_cmp_ge_u32 s77, %d\ns_cbranch_scc1 %s_x\ns_cbranch_vccz %s_x\ns_sleep 1\ns_branch %s' % (SPIN_MAX, lp, lp, lp))
    p.label(lp + '_x')
    p.I('s_mov_b64 exec, -1'); p.cut()

def around_wait(c, fn, wait):
    p = c.p
    l0 = p.label_name('L_aw0'); l1 = p.label_name('L_aw1')
    p.I('s_cmp_eq_u32 s3, 0\ns_cbranch_scc1 %s' % l0)
    st = fn(None)
    p.label(l0); p.cut()
    wait()
    p.I('s_cmp_lg_u32 s3, 0\ns_cbranch_scc1 %s' % l1)
    fn(st)
    p.label(l1); p.cut()

def w_flags(*idx):
    def f(p):
        p.I('v_mov_b32 v252, %d\nv_mov_b32 v254, 1' % (idx[0] * LS))
        for k, i in enumerate(idx[1:]):
            p.I('v_mov_b32 v255, %d\nv_cmp_eq_u32 vcc, %d, v1\nv_cndmask_b32 v252, v252, v255, vcc' % (i * LS, k + 1))
    return f, len(idx)

def kv_addr(c):
    p = c.p
    m18 = udiv_magic(18, 800)
    p.I('s_mul_i32 s4, s2, 3\ns_add_u32 s4, s4, s3')
    p.I('s_mul_i32 s5, s4, %d\ns_lshr_b32 s5, s5, 16' % m18)
    p.I('s_mul_i32 s6, s5, 18\ns_sub_u32 s6, s4, s6')
    p.I('v_lshrrev_b32 v2, 2, v1\nv_and_b32 v3, 3, v1')
    p.I('s_lshl_b32 s7, s5, 6\nv_lshl_add_u32 v4, v2, 2, s7')
    p.I('s_lshl_b32 s8, s6, 6\nv_lshl_add_u32 v5, v3, 4, s8')
    p.I('s_movk_i32 s9, 1152\nv_mad_u32_u24 v6, v4, s9, v5')
    p.I('v_subrev_u32 v7, 3456, v6')
    p.I('s_mov_b32 s50, 0x%x\ns_mov_b32 s51, 0x20000\ns_mov_b32 s54, 0x%x\ns_mov_b32 s55, 0x20000' % (L.S * 1152, L.S * 1152))

def p0_kv(c, hook=None):
    p = c.p
    p.I('s_mov_b32 s48, s%d\ns_mov_b32 s49, s%d\ns_mov_b32 s52, s%d\ns_mov_b32 s53, s%d' % (P_K, P_K + 1, P_V, P_V + 1))
    KR, VR, SK = 8, 36, 52
    for i in range(3): p.I('buffer_load_dwordx4 %s, v7, s[48:51], 0 offen offset:%d' % (vr(KR + 4 * i, 4), 1152 * i))
    for i in range(4): p.I('buffer_load_dwordx4 %s, v6, s[48:51], 0 offen offset:%d' % (vr(KR + 4 * (3 + i), 4), 1152 * i))
    for i in range(4): p.I('buffer_load_dwordx4 %s, v6, s[52:55], 0 offen offset:%d' % (vr(VR + 4 * i, 4), 1152 * i))
    srd(p, 56, P_SK, 4608)
    p.I('v_lshlrev_b32 v68, 2, v5')
    for i in range(4): p.I('buffer_load_dwordx4 %s, v68, s[56:59], 0 offen offset:%d' % (vr(SK + 4 * i, 4), 16 * i))
    srd(p, 60, P_WS, L.D * 4096, off=L.XT)
    srd(p, S_SYNC, P_WS, 2 << 20, off=L.SYNC)
    if TAGZ:
        srd(p, 64, P_WS, L.D * 4096, off=L.ZT)
        p.I('v_mov_b32 v144, -1\nv_mov_b32 v145, -1\nv_mov_b32 v146, -1\nv_mov_b32 v147, -1')
        p.I('s_lshl_b32 s11, s4, 12\nv_lshl_add_u32 v148, v1, 4, s11')
        for u in range(4): p.I('buffer_store_dwordx4 v[144:147], v148, s[64:67], 0 offen offset:%d sc1' % (1024 * u))
    p.I('v_lshlrev_b32 v69, 11, v5\nv_lshlrev_b32 v70, 1, v4\nv_sub_u32 v69, v69, v70\nv_add_u32 v69, 4088, v69')
    if hook: hook(c)
    p.I('s_mov_b32 s10, 0xffff0000')
    c.kv_probe = True
    if os.environ.get('FINE2'):
        c.fine = True; c.stamp(12); p.I('s_waitcnt vmcnt(0)'); c.stamp(13); c.fine = False
    C, KP, VP, AC, OUT = 72, 80, 94, 102, 112
    for pr in range(4):
        if pr == 1: ready_probe(c, 140)
        a0, a1, b0, b1 = SK + 4 * pr, SK + 4 * pr + 1, SK + 4 * pr + 2, SK + 4 * pr + 3
        p.I('v_lshlrev_b32 v%d, 16, v%d\nv_lshlrev_b32 v%d, 16, v%d' % (C, a0, C + 1, b0))
        p.I('v_and_b32 v%d, s10, v%d\nv_and_b32 v%d, s10, v%d' % (C + 2, a0, C + 3, b0))
        p.I('v_lshlrev_b32 v%d, 16, v%d\nv_lshlrev_b32 v%d, 16, v%d' % (C + 4, a1, C + 5, b1))
        p.I('v_and_b32 v%d, s10, v%d\nv_and_b32 v%d, s10, v%d' % (C + 6, a1, C + 7, b1))
        for i in range(7):
            p.I('v_lshlrev_b32 v%d, 16, v%d\nv_and_b32 v%d, s10, v%d' % (KP + 2 * i, KR + 4 * i + pr, KP + 2 * i + 1, KR + 4 * i + pr))
        for t in range(4):
            p.I('v_lshlrev_b32 v%d, 16, v%d\nv_and_b32 v%d, s10, v%d' % (VP + 2 * t, VR + 4 * t + pr, VP + 2 * t + 1, VR + 4 * t + pr))
        for t in range(4):
            acc = vr(AC + 2 * t, 2)
            p.I('v_pk_mul_f32 %s, %s, %s' % (acc, vr(C + 6, 2), vr(KP + 2 * t, 2)))
            p.I('v_pk_fma_f32 %s, %s, %s, %s' % (acc, vr(C + 4, 2), vr(KP + 2 * (t + 1), 2), acc))
            p.I('v_pk_fma_f32 %s, %s, %s, %s' % (acc, vr(C + 2, 2), vr(KP + 2 * (t + 2), 2), acc))
            p.I('v_pk_fma_f32 %s, %s, %s, %s' % (acc, vr(C, 2), vr(KP + 2 * (t + 3), 2), acc))
            p.I('v_pk_mul_f32 %s, %s, %s' % (acc, acc, vr(VP + 2 * t, 2)))
        o = OUT + 4 * pr
        p.I('v_cvt_pk_bf16_f32 v%d, v%d, v%d' % (o, AC + 6, AC + 4))
        p.I('v_cvt_pk_bf16_f32 v%d, v%d, v%d' % (o + 1, AC + 2, AC + 0))
        p.I('v_cvt_pk_bf16_f32 v%d, v%d, v%d' % (o + 2, AC + 7, AC + 5))
        p.I('v_cvt_pk_bf16_f32 v%d, v%d, v%d' % (o + 3, AC + 3, AC + 1))
        for h in range(2):
            p.I('s_mov_b32 s11, %d' % (4096 * (2 * pr + h)))
            p.I('buffer_store_dwordx2 %s, v69, s[60:63], s11 offen%s' % (vr(o + 2 * h, 2), c.sc))

KCS8 = 8 * KCOPY
XR8 = 3 * KCS8
RED8 = XR8 + 3 * XR_STRIDE

def p1_kcopies(c, hook=None):
    p = c.p
    p.I('s_mul_i32 s4, s2, %d' % (3 * 4096))
    for ch in range(3):
        p.I('s_add_u32 s5, s4, %d' % (4096 * ch))
        srd(p, 48 + 4 * ch, P_SSMK, 4096, soff=5)
    NR = 5
    D = 16
    p.I('v_lshlrev_b32 v2, 4, v1\nv_subrev_u32 v3, 128, v2')
    for ch in range(3):
        for rd in range(NR):
            r = D + 8 * (ch * NR + rd)
            if rd == 0:
                p.I('buffer_load_dwordx4 %s, v3, s[%d:%d], 0 offen' % (vr(r, 4), 48 + 4 * ch, 51 + 4 * ch))
                p.I('v_subrev_u32 v4, 112, v2\nbuffer_load_dwordx4 %s, v4, s[%d:%d], 0 offen' % (vr(r + 4, 4), 48 + 4 * ch, 51 + 4 * ch))
            else:
                p.I('v_add_u32 v4, %d, v2' % (1024 * rd - 128))
                p.I('buffer_load_dwordx4 %s, v4, s[%d:%d], 0 offen' % (vr(r, 4), 48 + 4 * ch, 51 + 4 * ch))
                p.I('buffer_load_dwordx4 %s, v4, s[%d:%d], 0 offen offset:16' % (vr(r + 4, 4), 48 + 4 * ch, 51 + 4 * ch))
    if hook: hook(c)
    p.I('v_mov_b32 v8, 0\nv_mov_b32 v9, 0\nv_mov_b32 v10, 0\nv_mov_b32 v11, 0')
    p.I('v_lshrrev_b32 v5, 4, v1\nv_and_b32 v6, 15, v1\nv_mul_u32_u24 v5, 48, v5\nv_add_u32 v5, v5, v6\nv_lshlrev_b32 v5, 4, v5\nv_add_u32 v5, %d, v5' % (XR8 + 32 * 16))
    for ch in range(3):
        p.I('ds_write_b128 v5, v[8:11] offset:%d\nds_write_b128 v5, v[8:11] offset:%d' % (ch * XR_STRIDE, ch * XR_STRIDE + 4 * 48 * 16))
    p.I('v_add_u32 v12, %d, v2\nv_add_u32 v13, %d, v2' % (KCS8, 2 * KCS8))
    T = 140
    for ch in range(3):
        va = (2, 12, 13)[ch]
        for rd in range(NR):
            r = D + 8 * (ch * NR + rd)
            t = T + 16 * ((ch * NR + rd) % 2)
            off = 1024 * rd
            if rd == NR - 1: p.I('s_mov_b64 exec, 0xfffff')
            for k in range(4): p.I('v_alignbit_b32 v%d, v%d, v%d, 16' % (t + k, r + k + 1, r + k))
            for k in range(4): p.I('v_mov_b32 v%d, v%d' % (t + 4 + k, r + k + 1))
            for k in range(4): p.I('v_alignbit_b32 v%d, v%d, v%d, 16' % (t + 8 + k, r + k + 2, r + k + 1))
            p.I('ds_write_b128 v%d, %s offset:%d' % (va, vr(t, 4), off))
            p.I('ds_write_b128 v%d, %s offset:%d' % (va, vr(t + 4, 4), off + KCOPY))
            p.I('ds_write_b128 v%d, %s offset:%d' % (va, vr(t + 8, 4), off + 2 * KCOPY))
            p.I('ds_write_b128 v%d, %s offset:%d' % (va, vr(r + 2, 4), off + 3 * KCOPY))
            for k in range(4): p.I('v_alignbit_b32 v%d, v%d, v%d, 16' % (t + 12 + k, r + k + 3, r + k + 2))
            p.I('ds_write_b128 v%d, %s offset:%d' % (va, vr(t + 12, 4), off + 4 * KCOPY))
            u = 172 if False else None
            for k in range(4): p.I('v_mov_b32 v%d, v%d' % (t + k, r + k + 3))
            for k in range(4): p.I('v_alignbit_b32 v%d, v%d, v%d, 16' % (t + 4 + k, r + k + 4, r + k + 3))
            p.I('ds_write_b128 v%d, %s offset:%d' % (va, vr(t, 4), off + 5 * KCOPY))
            p.I('ds_write_b128 v%d, %s offset:%d' % (va, vr(t + 4, 4), off + 6 * KCOPY))
            p.I('ds_write_b128 v%d, %s offset:%d' % (va, vr(r + 4, 4), off + 7 * KCOPY))
            if rd == NR - 1: p.I('s_mov_b64 exec, -1')

def p1_main(c):
    p = c.p
    srd(p, 48, P_WS, L.D * 4096, off=L.XT); srd(p, 52, P_WS, L.D * 4096, off=L.ZT)
    p.I('s_mul_i32 s4, s2, %d\ns_lshl_b32 s5, s3, 10\ns_add_u32 s5, s5, s4\nv_lshl_add_u32 v2, v1, 4, s5' % (3 * 4096))
    for ch in range(3):
        p.I('s_movk_i32 s6, %d\nbuffer_load_dwordx4 %s, v2, s[48:51], s6 offen%s' % (4096 * ch, vr(8 + 4 * ch, 4), c.sc))
    srd(p, 60, P_SSMD, 1152)
    p.I('s_mul_i32 s8, s2, 3\ns_min_u32 s9, s3, 2\ns_add_u32 s8, s8, s9\ns_lshl_b32 s8, s8, 1\nv_mov_b32 v20, s8')
    p.I('buffer_load_ushort v23, v20, s[60:63], 0 offen')
    p.I('v_and_b32 v3, 7, v1\nv_mul_u32_u24 v3, 48, v3\nv_lshrrev_b32 v4, 3, v1\nv_add_u32 v3, v3, v4\ns_lshl_b32 s6, s3, 3\nv_add_u32 v3, s6, v3\nv_lshlrev_b32 v3, 4, v3\nv_add_u32 v3, %d, v3' % XR8)
    VA0, VB0, VA, VB = 24, 25, 26, 27
    p.I('v_and_b32 v4, 7, v1\nv_mul_u32_u24 v4, %d, v4\nv_lshrrev_b32 v5, 4, v1\nv_bfe_u32 v6, v1, 3, 1\nv_add_u32 v6, v6, v5\nv_lshl_add_u32 v%d, v6, 4, v4' % (KCOPY, VA0))
    p.I('v_mul_u32_u24 v4, 48, v5\nv_and_b32 v6, 15, v1\nv_sub_u32 v4, v4, v6\nv_add_u32 v4, 15, v4\nv_lshlrev_b32 v%d, 4, v4' % VB0)
    wg_rb_ns(p)
    wfrag_setup(c, L.W1T, 64, 160)
    sent = sentinel_setup(c) if TAG_H1 else []
    for ch in range(3):
        p.I('ds_write_b128 v3, %s offset:%d' % (vr(8 + 4 * ch, 4), ch * XR_STRIDE))
    p.I('v_lshlrev_b32 v23, 16, v23')
    p.I('s_waitcnt lgkmcnt(0)\ns_barrier')
    p.cut()
    c.stamp(3)
    AS, BS1, BS0, ACC1, ACC0 = 32, 96, 112, 128, 144
    DIST = int(os.environ.get('DIST', '4'))
    w1 = [(e, ks) for ks in range(18) for e in range(3)]
    sq = list(sent)
    def w1_load():
        if not w1:
            if sq: p.I(sq.pop(0))
            return
        e, ks = w1.pop(0)
        if os.environ.get('NOW1') == '2': return
        if ks % 4 == 0 and ks > 0: p.I('v_add_u32 v%d, 4096, v%d' % (160 + e, 160 + e))
        p.I('buffer_load_dwordx4 %s, v%d, s[64:67], 0 offen offset:%d%s' % (ar(4 * (e * 18 + ks), 4), 160 + e, 1024 * (ks % 4), c.sc))
    def ldA(k, rel):
        r = AS + 8 * (k % 8)
        for f in range(2): p.I('ds_read_b128 %s, v%d offset:%d' % (vr(r + 4 * f, 4), VA, 64 * rel + 32 * f))
    def ldB(base, q, ct):
        p.I('ds_read_b128 %s, v%d offset:%d' % (vr(base + 4 * (q % 4), 4), VB, ((q & 1) * 4 * 48 + (q >> 1) + 16 * (1 - ct)) * 16))
    def segment(q0, q1, cts, every):
        act = lambda q: [x for x in cts if x[1] <= q < x[2]]
        for k in range(q0, q0 + DIST + 1): ldA(k, k)
        for q in range(q0, q0 + DIST):
            for ct, a0, a1, acc, bs in act(q): ldB(bs, q, ct)
        cnt = 0
        for q in range(q0, q1):
            for idx, (ct, a0, a1, acc, bs) in enumerate(act(q)):
                for rt in range(4):
                    a = AS + 8 * ((q + rt // 2) % 8) + 4 * (rt % 2)
                    p.I('v_mfma_f32_16x16x32_bf16 %s, %s, %s, %s' % (vr(acc + 4 * rt, 4), vr(a, 4), vr(bs + 4 * (q % 4), 4), '0' if q == a0 else vr(acc + 4 * rt, 4)))
                    if idx == 0 and rt == 0 and q + DIST + 1 <= q1: ldA(q + DIST + 1, q + DIST + 1)
                    if rt == 3 and q + DIST < a1: ldB(bs, q + DIST, ct)
            cnt += 1
            if cnt % every == 0 and os.environ.get('NOW1') != '1': w1_load()
    lw3 = p.label_name('L_cw3'); lj = p.label_name('L_cj')
    p.I('s_cmp_eq_u32 s3, 3\ns_cbranch_scc1 %s' % lw3)
    p.I('s_mul_i32 s14, s3, %d\nv_add_u32 v%d, s14, v%d\ns_mul_i32 s14, s3, %d\ns_add_u32 s14, s14, %d\nv_add_u32 v%d, s14, v%d' % (KCS8, VA, VA0, XR_STRIDE, XR8, VB, VB0))
    segment(0, 64, [(1, 0, 64, ACC1, BS1), (0, 0, 8, ACC0, BS0)], 1)
    while w1 or sq: w1_load()
    p.I('v_mov_b32 v174, %d\nbuffer_load_dword v174, v174, s[%d:%d], 0 offen sc1' % (M_REL * LS, S_SYNC, S_SYNC + 3))
    p.I('s_branch %s' % lj); p.cut()
    p.label(lw3)
    w1[:] = [(e, ks) for ks in range(18) for e in range(3)]
    sq[:] = list(sent)
    for ch in range(3):
        p.I('v_add_u32 v%d, %d, v%d\nv_add_u32 v%d, %d, v%d' % (VA, ch * KCS8, VA0, VB, XR8 + ch * XR_STRIDE, VB0))
        segment(8, 32, [(0, 8, 32, ACC0 if ch % 2 == 0 else ACC1, BS0)], 1)
        acc = ACC0 if ch % 2 == 0 else ACC1
        p.I('v_lshlrev_b32 v2, 4, v1\nv_add_u32 v2, %d, v2' % (RED8 + 4096 * ch))
        for rt in range(4): p.I('ds_write_b128 v2, %s offset:%d' % (vr(acc + 4 * rt, 4), 1024 * rt))
    while w1 or sq: w1_load()
    p.I('v_mov_b32 v174, %d\nbuffer_load_dword v174, v174, s[%d:%d], 0 offen sc1' % (M_REL * LS, S_SYNC, S_SYNC + 3))
    p.label(lj)
    p.I('s_waitcnt vmcnt(0) lgkmcnt(0)\ns_barrier')
    p.cut()
    c.stamp(4)
    ok = p.label_name('L_mok')
    p.I('v_readfirstlane_b32 s76, v174\ns_nop 3\ns_cmp_lg_u32 s76, 0\ns_cbranch_scc1 %s' % ok)
    wave_wait(c, M_REL)
    p.label(ok); p.cut()
    if TAGZ and TAG_H1:
        p.I('s_and_b32 s78, s2, 15')
        do_arrive(c, 'add', idx=V_SH, sgpr=78)
    srd(p, 56, P_WS, 6 * 576 * 4, off=L.MOD)
    p.I('v_lshlrev_b32 v8, 4, v0')
    for u in range(3): p.I('s_movk_i32 s7, %d\nbuffer_load_dwordx4 %s, v8, s[56:59], s7 offen%s' % (4096 * u, vr(236 + 4 * u, 4), c.sc))
    done = p.label_name('L_conv_done')
    p.I('s_cmp_eq_u32 s3, 3\ns_cbranch_scc1 %s' % done)
    p.I('s_lshl_b32 s14, s3, 12\ns_add_u32 s14, s14, %d\nv_lshl_add_u32 v2, v1, 4, s14' % RED8)
    T = 32
    for rt in range(4): p.I('ds_read_b128 %s, v2 offset:%d' % (vr(T + 4 * rt, 4), 1024 * rt))
    p.I('v_lshrrev_b32 v5, 5, v1\nv_sub_u32 v5, 1, v5\nv_mul_u32_u24 v5, 48, v5\nv_and_b32 v6, 15, v1\nv_sub_u32 v5, v5, v6\nv_add_u32 v5, 15, v5\nv_lshlrev_b32 v5, 4, v5')
    p.I('v_bfe_u32 v6, v1, 4, 1\nv_sub_u32 v6, 1, v6\nv_lshl_add_u32 v5, v6, 3, v5')
    p.I('s_mul_i32 s14, s3, %d\ns_add_u32 s14, s14, %d\nv_add_u32 v5, s14, v5' % (XR_STRIDE, XR8))
    X = 48
    for ct in range(2):
        for rt in range(4):
            p.I('ds_read_b64 %s, v5 offset:%d' % (vr(X + 8 * ct + 2 * rt, 2), (2 * (3 - rt) * 48 + 16 * (1 - ct)) * 16))
    for i in range(16): p.I('v_add_f32 v%d, v%d, v%d' % (ACC0 + i, ACC0 + i, T + i))
    p.I('s_mul_i32 s14, s2, 3\ns_add_u32 s14, s14, s3\ns_lshl_b32 s14, s14, 12')
    p.I('v_and_b32 v6, 7, v1\nv_lshl_add_u32 v6, v6, 7, s14\nv_lshrrev_b32 v7, 5, v1\nv_lshl_add_u32 v6, v7, 4, v6\nv_bfe_u32 v7, v1, 4, 1\nv_lshl_add_u32 v6, v7, 5, v6\nv_bfe_u32 v7, v1, 3, 1\nv_lshl_add_u32 v6, v7, 6, v6')
    p.I('s_mov_b32 s10, 0xffff0000')
    Z, U = 64, 80
    for ct in range(2):
        src = ACC0 if ct == 0 else ACC1
        for rt in range(4):
            x0, x1 = X + 8 * ct + 2 * rt, X + 8 * ct + 2 * rt + 1
            a = src + 4 * rt
            p.I('v_and_b32 v%d, s10, v%d\nv_lshlrev_b32 v%d, 16, v%d\nv_and_b32 v%d, s10, v%d\nv_lshlrev_b32 v%d, 16, v%d' % (U, x1, U + 1, x1, U + 2, x0, U + 3, x0))
            for r in range(4): p.I('v_fmac_f32 v%d, v23, v%d' % (a + r, U + r))
            zb = Z + 8 * ct + 4 * (rt // 2) + 2 * (rt % 2)
            p.I('v_cvt_pk_bf16_f32 v%d, v%d, v%d\nv_cvt_pk_bf16_f32 v%d, v%d, v%d' % (zb, a, a + 1, zb + 1, a + 2, a + 3))
        P0_, P1_ = Z + 8 * ct, Z + 8 * ct + 4
        for zb in (P0_, P1_):
            p.I('v_permlane16_swap_b32 v%d, v%d\nv_permlane16_swap_b32 v%d, v%d' % (zb, zb + 2, zb + 1, zb + 3))
        T_ = 84
        for k in range(4): p.I('v_mov_b32 v%d, v%d' % (T_ + k, P0_ + k))
        for k in range(4): p.I('v_mov_b32_dpp v%d, v%d row_ror:8 row_mask:0xf bank_mask:0xc' % (P0_ + k, P1_ + k))
        for k in range(4): p.I('v_mov_b32_dpp v%d, v%d row_ror:8 row_mask:0xf bank_mask:0x3' % (P1_ + k, T_ + k))
        p.I('buffer_store_dwordx4 %s, v6, s[52:55], 0 offen offset:%d%s' % (vr(P0_, 4), 2048 * ct, c.sc))
        p.I('buffer_store_dwordx4 %s, v6, s[52:55], 0 offen offset:%d%s' % (vr(P1_, 4), 2048 * ct + 1024, c.sc))
    p.label(done)

MODW = 100
def p0_mod_loads(c, wg0):
    p = c.p
    p.I('s_sub_u32 s4, s2, %d' % wg0)
    srd(p, 8, P_C, 1152); srd(p, 52, P_WMOD, 576 * 6912)
    p.I('v_lshlrev_b32 v2, 1, v0')
    for i in range(3): p.I('buffer_load_ushort v%d, v2, s[8:11], 0 offen offset:%d' % (172 + i, 512 * i))
    p.I('v_lshrrev_b32 v8, 3, v0\nv_and_b32 v9, 7, v0')
    p.I('s_lshl_b32 s6, s4, 7\nv_lshl_add_u32 v10, v9, 4, s6\ns_movk_i32 s7, 6912\nv_mad_u32_u24 v10, v8, s7, v10')
    for i in range(18):
        p.I('buffer_load_dwordx4 %s, v10, s[52:55], 0 offen' % vr(MODW + 4 * i, 4))
        if i < 17: p.I('v_add_u32 v10, %d, v10' % (32 * 6912))

MODL = 131072
def p0_mod_compute(c, wg0):
    p = c.p
    W = MODW
    p.I('s_sub_u32 s4, s2, %d' % wg0)
    srd(p, 52, P_WS, 6 * 576 * 4, off=L.MOD)
    p.I('v_lshrrev_b32 v8, 3, v0\nv_and_b32 v9, 7, v0')
    p.I('s_mov_b32 s8, 0x%x' % f2u(-LOG2E))
    p.I('v_lshlrev_b32 v12, 2, v0\nv_add_u32 v12, %d, v12' % MODL)
    for i in range(3):
        r = 172 + i
        p.I('v_lshlrev_b32 v%d, 16, v%d' % (r, r))
        p.I('v_mul_f32 v13, s8, v%d\nv_exp_f32 v13, v13\nv_add_f32 v13, 1.0, v13\nv_rcp_f32 v13, v13\nv_mul_f32 v13, v%d, v13' % (r, r))
        bf16_round(p, 13, 13)
        p.I('ds_write_b32 v12, v13 offset:%d' % (1024 * i))
    p.I('s_waitcnt lgkmcnt(0)\ns_barrier')
    p.I('v_lshlrev_b32 v14, 2, v8\nv_add_u32 v14, %d, v14' % MODL)
    SV = 40
    for i in range(18): p.I('ds_read_b32 v%d, v14 offset:%d' % (SV + i, 128 * i))
    AC, T = 16, 24
    p.I('s_mov_b32 s10, 0xffff0000')
    for i in range(18):
        for d in range(4): unpack(p, T + 2 * d, W + 4 * i + d, 10)
        for d in range(4):
            sv = vr((SV + i) & ~1, 2)
            mods = 'op_sel_hi:[1,0,1]' if i % 2 == 0 else 'op_sel:[0,1,0] op_sel_hi:[1,1,1]'
            if i == 0: p.I('v_pk_mul_f32 %s, %s, %s op_sel_hi:[1,0]' % (vr(AC + 2 * d, 2), vr(T + 2 * d, 2), sv))
            else: p.I('v_pk_fma_f32 %s, %s, %s, %s %s' % (vr(AC + 2 * d, 2), vr(T + 2 * d, 2), sv, vr(AC + 2 * d, 2), mods))
    p.I('v_lshlrev_b32 v15, 8, v8\nv_lshl_add_u32 v15, v9, 5, v15\nv_add_u32 v15, %d, v15' % MODL)
    p.I('ds_write_b128 v15, %s offset:4096\nds_write_b128 v15, %s offset:4112' % (vr(AC, 4), vr(AC + 4, 4)))
    p.I('s_waitcnt lgkmcnt(0)\ns_barrier')
    lab = p.label_name('L_mod_skip')
    wave0(p, lab)
    p.I('v_lshlrev_b32 v14, 2, v0\nv_add_u32 v14, %d, v14' % MODL)
    W2_ = 40
    for i in range(32): p.I('ds_read_b32 v%d, v14 offset:%d' % (W2_ + i, 4096 + 256 * i))
    n = 32
    while n > 1:
        n //= 2
        for i in range(n): p.I('v_add_f32 v%d, v%d, v%d' % (W2_ + i, W2_ + i, W2_ + i + n))
    p.I('v_mov_b32 v16, v%d' % W2_)
    bf16_round(p, 16, 16)
    m9 = udiv_magic(9, 64)
    p.I('s_mul_i32 s9, s4, %d\ns_lshr_b32 s9, s9, 16' % m9)
    p.I('s_cmp_eq_u32 s9, 1\ns_cselect_b32 s11, 1, 0\ns_cmp_eq_u32 s9, 4\ns_cselect_b32 s11, 1, s11')
    p.I('v_cvt_f32_u32 v17, s11\nv_add_f32 v16, v16, v17')
    bf16_round(p, 16, 16)
    p.I('s_lshl_b32 s6, s4, 8\nv_lshl_add_u32 v18, v0, 2, s6')
    p.I('buffer_store_dword v16, v18, s[52:55], 0 offen%s' % c.sc)
    p.label(lab); p.cut()

PT_NB = 4
def pt_setup(c):
    p = c.p
    p.I('v_lshrrev_b32 v2, 3, v1\nv_and_b32 v3, 7, v1\nv_lshlrev_b32 v3, 4, v3')
    p.I('v_lshrrev_b32 v4, 4, v1\nv_bfe_u32 v5, v1, 2, 2\nv_and_b32 v9, 3, v1')
    p.I('v_lshl_add_u32 v6, v4, 3, v5\nv_lshlrev_b32 v6, 7, v6\nv_lshl_add_u32 v6, v9, 3, v6')
    p.I('v_lshl_add_u32 v7, v4, 2, v5\nv_lshlrev_b32 v7, 7, v7\nv_lshl_add_u32 v7, v9, 5, v7')
    p.I('v_lshlrev_b32 v8, 4, v1')
    p.I('s_mul_i32 s96, s3, %d' % (PT_NB * 4096))
    srd(p, 48, P_W1, 576 * 1152); srd(p, 52, P_W2, 576 * 1152); srd(p, 56, P_W3, 576 * 9216); srd(p, 60, P_W4, 4608 * 1152)
    srd(p, 68, P_WS, L.W34T + 32 * 324 * 1024 - L.W1T, off=L.W1T)

def pt_src(c, su, mode):
    p = c.p
    if mode == '12':
        p.I('s_cmp_ge_u32 s%d, 162\ns_cselect_b32 s15, 1, 0\ns_cselect_b32 s7, 162, 0\ns_sub_u32 s7, s%d, s7' % (su, su))
        p.I('s_mul_i32 s8, s7, %d\ns_lshr_b32 s8, s8, 16\ns_mul_i32 s9, s8, 9\ns_sub_u32 s9, s7, s9' % udiv_magic(9, 600))
        p.I('s_movk_i32 s11, 1152')
        p.I('s_cmp_eq_u32 s15, 1')
        for k in range(4): p.I('s_cselect_b32 s%d, s%d, s%d' % (64 + k, 52 + k, 48 + k))
        lim = 324
    else:
        p.I('s_cmp_ge_u32 s%d, 1296\ns_cselect_b32 s15, 1, 0\ns_cselect_b32 s7, 1296, 0\ns_sub_u32 s7, s%d, s7' % (su, su))
        p.I('s_mul_i32 s8, s7, %d\ns_lshr_b32 s8, s8, 20\ns_mul_i32 s12, s7, %d\ns_lshr_b32 s12, s12, 20' % (udiv_magic(72, 2600, 20), udiv_magic(9, 2600, 20)))
        p.I('s_cmp_eq_u32 s15, 1\ns_cselect_b32 s8, s12, s8\ns_cselect_b32 s12, 9, 72\ns_movk_i32 s11, 9216\ns_cselect_b32 s11, 1152, s11')
        for k in range(4): p.I('s_cselect_b32 s%d, s%d, s%d' % (64 + k, 60 + k, 56 + k))
        p.I('s_mul_i32 s9, s8, s12\ns_sub_u32 s9, s7, s9')
        lim = 2592
    p.I('s_mul_i32 s10, s8, s11\ns_lshl_b32 s10, s10, 5\ns_lshl_b32 s12, s9, 7\ns_add_u32 s10, s10, s12')
    p.I('s_cmp_ge_u32 s%d, %d\ns_cselect_b32 s10, 0x7f000000, s10' % (su, lim))

def pt_dst(c, su, mode):
    p = c.p
    m18 = udiv_magic(18, 300)
    if mode == '12':
        p.I('s_mul_i32 s12, s9, %d\ns_lshl_b32 s13, s8, 10\ns_add_u32 s12, s12, s13\ns_mul_i32 s13, s15, %d\ns_add_u32 s12, s12, s13' % (4 * 18 * 1024, L.W2T - L.W1T))
        for j in range(4): p.I('s_add_u32 s%d, s12, %d' % (80 + j, j * 18 * 1024))
        lim = 324
    else:
        w4 = p.label_name('L_d4'); dn = p.label_name('L_dd')
        p.I('s_cmp_eq_u32 s15, 1\ns_cbranch_scc1 %s' % w4)
        for j in range(4):
            p.I('s_lshl_b32 s12, s9, 2\ns_add_u32 s12, s12, %d' % j)
            p.I('s_mul_i32 s13, s12, %d\ns_lshr_b32 s13, s13, 16\ns_mul_i32 s14, s13, 36\ns_sub_u32 s12, s12, s14' % udiv_magic(36, 300))
            p.I('s_mul_i32 s14, s12, %d\ns_lshr_b32 s14, s14, 16\ns_mul_i32 s84, s14, 12\ns_sub_u32 s12, s12, s84' % udiv_magic(12, 40))
            p.I('s_mul_i32 s84, s12, %d\ns_lshr_b32 s84, s84, 16\ns_mul_i32 s85, s84, 3\ns_sub_u32 s12, s12, s85' % udiv_magic(3, 16))
            p.I('s_lshl_b32 s13, s13, 2\ns_add_u32 s13, s13, s84\ns_mul_i32 s13, s13, 324\ns_mul_i32 s14, s14, 54\ns_add_u32 s13, s13, s14\ns_mul_i32 s14, s8, 3\ns_add_u32 s13, s13, s14\ns_add_u32 s13, s13, s12\ns_lshl_b32 s13, s13, 10\ns_add_u32 s%d, s13, %d' % (80 + j, L.W34T - L.W1T))
        p.I('s_branch %s' % dn)
        p.label(w4)
        p.I('s_mul_i32 s12, s8, %d\ns_lshr_b32 s12, s12, 16\ns_mul_i32 s13, s12, 18\ns_sub_u32 s13, s8, s13' % m18)
        for j in range(4):
            p.I('s_and_b32 s14, s9, 3\ns_lshl_b32 s84, s13, 2\ns_add_u32 s84, s84, %d' % (162 + j))
            p.I('s_cmp_ge_u32 s9, 4\ns_cselect_b32 s85, 72, 0\ns_add_u32 s84, s84, s85')
            p.I('s_add_u32 s85, s13, 306\ns_cmp_eq_u32 s9, 8\ns_cselect_b32 s84, s85, s84\ns_cselect_b32 s14, %d, s14' % j)
            p.I('s_lshl_b32 s85, s12, 2\ns_add_u32 s85, s85, s14\ns_mul_i32 s85, s85, 324\ns_add_u32 s85, s85, s84\ns_lshl_b32 s85, s85, 10\ns_add_u32 s%d, s85, %d' % (80 + j, L.W34T - L.W1T))
        p.label(dn)
        lim = 2592
    p.I('s_cmp_ge_u32 s%d, %d' % (su, lim))
    for j in range(4): p.I('s_cselect_b32 s%d, 0x7f000000, s%d' % (80 + j, 80 + j))

def pt_issue(c, sbuf):
    p = c.p
    p.I('v_mad_u32_u24 v9, v2, s11, v3\nv_add_u32 v9, s10, v9\ns_lshl_b32 s12, s11, 3')
    for q in range(4):
        p.I('s_add_u32 m0, s%d, %d' % (sbuf, q * 1024))
        if q: p.I('v_add_u32 v9, s12, v9')
        p.I('buffer_load_dwordx4 v9, s[64:67], 0 offen lds', nowait=True)

def pt_process(c, sbuf, mode):
    p = c.p
    R = 16
    def reads(va, jstride, second):
        p.I('v_add_u32 v10, s%d, v%d' % (sbuf, va))
        for j in range(4):
            p.I('ds_read_b64_tr_b16 %s, v10 offset:%d' % (vr(R + 4 * j, 2), j * jstride))
            p.I('ds_read_b64_tr_b16 %s, v10 offset:%d' % (vr(R + 4 * j + 2, 2), j * jstride + second))
    if mode == '12': reads(6, 32, 512)
    else:
        lb = p.label_name('L_kb'); le = p.label_name('L_ke')
        p.I('s_cmp_eq_u32 s15, 1\ns_cbranch_scc1 %s' % lb)
        reads(6, 32, 512)
        p.I('s_branch %s' % le)
        p.label(lb)
        reads(7, 8, 2048)
        p.label(le)
    p.I('s_waitcnt lgkmcnt(0)');
    for j in range(4):
        p.I('v_add_u32 v11, s%d, v8' % (80 + j))
        if os.environ.get('NOST'): continue
        p.I('buffer_store_dwordx4 %s, v11, s[68:71], 0 offen%s' % (vr(R + 4 * j, 4), '' if os.environ.get('PLAINST') else c.sc), nowait=True)

def pretile(c, mode, su0):
    p = c.p
    p.comment('---- pretile %s' % mode)
    lim = 324 if mode == '12' else 2592
    p.I('s_mov_b32 s86, s%d\ns_mov_b32 s87, s%d\ns_mov_b32 s88, s96\ns_mov_b32 s89, s96\ns_add_u32 s90, s96, %d' % (su0, su0, PT_NB * 4096))
    def adv(r): p.I('s_add_u32 s%d, s%d, 4096\ns_cmp_ge_u32 s%d, s90\ns_cselect_b32 s%d, s96, s%d' % (r, r, r, r, r))
    for k in range(PT_NB - 1):
        pt_src(c, 86, mode); pt_issue(c, 88); adv(88); p.I('s_add_u32 s86, s86, 256')
    loop = p.label_name('L_pt'); done = p.label_name('L_pt_done')
    first = True
    p.label(loop)
    p.I('s_cmp_ge_u32 s87, %d\ns_cbranch_scc1 %s' % (lim, done))
    pt_src(c, 86, mode); pt_issue(c, 88); adv(88); p.I('s_add_u32 s86, s86, 256')
    p.I('s_waitcnt vmcnt(%d)' % (4 * (PT_NB - 1)))
    pt_src(c, 87, mode); pt_dst(c, 87, mode)
    pt_process(c, 89, mode); adv(89); p.I('s_add_u32 s87, s87, 256')
    p.I('s_branch %s' % loop)
    p.label(done); p.cut()
    p.I('s_waitcnt vmcnt(0)')

def ln_stats(p, X, ntok, nj, ST, red, stride=2):
    for j in range(nj):
        for i in range(ntok):
            x = vr(X + (i * nj + j) * stride, 2)
            if j == 0:
                p.I('v_pk_mul_f32 %s, %s, %s' % (vr(ST + 4 * i + 2, 2), x, x))
            else:
                p.I('v_pk_fma_f32 %s, %s, %s, %s' % (vr(ST + 4 * i + 2, 2), x, x, vr(ST + 4 * i + 2, 2)))
            if j == 1:
                p.I('v_pk_add_f32 %s, %s, %s' % (vr(ST + 4 * i, 2), vr(X + (i * nj) * stride, 2), x))
            elif j > 1:
                p.I('v_pk_add_f32 %s, %s, %s' % (vr(ST + 4 * i, 2), vr(ST + 4 * i, 2), x))
    for i in range(ntok):
        p.I('v_add_f32 v%d, v%d, v%d\nv_add_f32 v%d, v%d, v%d' % (ST + 4 * i, ST + 4 * i, ST + 4 * i + 1, ST + 4 * i + 2, ST + 4 * i + 2, ST + 4 * i + 3))
    red([ST + 4 * i for i in range(ntok)] + [ST + 4 * i + 2 for i in range(ntok)])
    for i in range(ntok):
        a = ST + 4 * i
        p.I('v_mul_f32 v%d, s98, v%d\nv_mul_f32 v%d, s98, v%d' % (a, a, a + 2, a + 2))
    for i in range(ntok):
        a = ST + 4 * i
        p.I('v_fma_f32 v%d, -v%d, v%d, v%d' % (a + 2, a, a, a + 2))
    for i in range(ntok):
        a = ST + 4 * i
        p.I('v_max_f32 v%d, 0, v%d' % (a + 2, a + 2))
    for i in range(ntok):
        a = ST + 4 * i
        p.I('v_add_f32 v%d, s97, v%d' % (a + 2, a + 2))
    for i in range(ntok):
        a = ST + 4 * i
        p.I('v_rsq_f32 v%d, v%d' % (a + 2, a + 2))
    for i in range(ntok):
        a = ST + 4 * i
        p.I('v_mul_f32 v%d, -v%d, v%d' % (a + 1, a, a + 2))
    for i in range(ntok):
        a = ST + 4 * i
        p.I('v_mov_b32 v%d, v%d' % (a, a + 2))

def ln_apply(p, dst, src, P):
    p.I('v_pk_fma_f32 %s, %s, %s, %s op_sel:[0,0,1] op_sel_hi:[1,0,1]' % (vr(dst, 2), vr(src, 2), vr(P, 2), vr(P, 2)))

def gemm_small2(c, lds_base, abase, ACC, BF, after_ks=None):
    p = c.p
    p.I('v_and_b32 v2, 15, v1\nv_lshrrev_b32 v8, 4, v1\nv_xor_b32 v2, v2, v8\nv_lshl_add_u32 v2, v8, 4, v2\nv_lshlrev_b32 v2, 4, v2\nv_add_u32 v2, %d, v2' % lds_base)
    def ldb(ks):
        for tt in range(2):
            p.I('ds_read_b128 %s, v2 offset:%d' % (vr(BF + 8 * (ks % 3) + 4 * tt, 4), (ks * 2 + tt) * 1024))
    ldb(0); ldb(1)
    for ks in range(18):
        if ks + 2 < 18: ldb(ks + 2)
        for e in range(3):
            for tt in range(2):
                a = ACC + 4 * (e * 2 + tt)
                p.I('v_mfma_f32_16x16x32_bf16 %s, %s, %s, %s' % (vr(a, 4), ar(abase + 4 * (e * 18 + ks), 4), vr(BF + 8 * (ks % 3) + 4 * tt, 4), '0' if ks == 0 else vr(a, 4)))
        if after_ks: after_ks(ks)

def wfrag_setup(c, wsoff, srdslot, vaddr):
    p = c.p
    srd(p, srdslot, P_WS, 36 * 18 * 1024, off=wsoff)
    p.I('s_mul_i32 s6, s5, 12\ns_mul_i32 s7, s3, 3\ns_add_u32 s6, s6, s7\ns_mul_i32 s6, s6, %d' % (18 * 1024))
    p.I('v_lshl_add_u32 v%d, v1, 4, s6\nv_add_u32 v%d, %d, v%d\nv_add_u32 v%d, %d, v%d' % (vaddr, vaddr + 1, 18 * 1024, vaddr, vaddr + 2, 36 * 1024, vaddr))

def wfrag_load(c, srdslot, vaddr, abase, ks):
    p = c.p
    for e in range(3):
        if ks % 4 == 0 and ks > 0: p.I('v_add_u32 v%d, 4096, v%d' % (vaddr + e, vaddr + e))
        p.I('buffer_load_dwordx4 %s, v%d, s[%d:%d], 0 offen offset:%d%s' % (ar(abase + 4 * (e * 18 + ks), 4), vaddr + e, srdslot, srdslot + 3, 1024 * (ks % 4), c.sc))

ZS_BASE, A1_BASE = 0, 36864
XF, GH, CB, SB, TM, ST2 = 16, 88, 160, 178, 196, 232

def wg_rb_ns(p):
    m3 = udiv_magic(3, 256)
    p.I('s_lshr_b32 s5, s2, 3\ns_mul_i32 s4, s5, %d\ns_lshr_b32 s4, s4, 16\ns_mul_i32 s6, s4, 3\ns_sub_u32 s5, s5, s6\ns_and_b32 s6, s2, 7\ns_lshl_b32 s6, s6, 3\ns_add_u32 s4, s4, s6' % m3)

def load_wfrags(c, wsoff, abase):
    p = c.p
    srd(p, 64, P_WS, 36 * 18 * 1024, off=wsoff)
    p.I('s_mul_i32 s6, s5, 12\ns_mul_i32 s7, s3, 3\ns_add_u32 s6, s6, s7\ns_mul_i32 s6, s6, %d' % (18 * 1024))
    p.I('v_lshl_add_u32 v2, v1, 4, s6')
    for e in range(3):
        for ks in range(18):
            idx = e * 18 + ks
            if idx % 4 == 0 and idx > 0: p.I('v_add_u32 v2, 4096, v2')
            p.I('buffer_load_dwordx4 %s, v2, s[64:67], 0 offen offset:%d%s' % (ar(abase + 4 * idx, 4), 1024 * (idx % 4), c.sc))

def red32(p, tmp):
    return lambda regs: reduce32(p, regs, tmp)

XP, P0S = 180, 216
PRM_BASE = 73728
HPL_BASE, HPL_RS = 86016, 400

def p2_xload(c):
    p = c.p
    wg_rb_ns(p)
    srd(p, 68, P_Q, L.S * 1152)
    p.I('v_lshrrev_b32 v172, 5, v1\nv_and_b32 v173, 31, v1')
    p.I('s_lshl_b32 s6, s4, 5\ns_lshl_b32 s7, s3, 3\ns_add_u32 s6, s6, s7\nv_lshl_add_u32 v174, v172, 2, s6')
    p.I('s_movk_i32 s7, 1152\nv_mul_lo_u32 v178, v174, s7\nv_lshl_add_u32 v178, v173, 2, v178\nv_add_u32 v179, 2304, v178')
    for i in range(4):
        for j in range(9):
            p.I('buffer_load_dword v%d, v%d, s[68:71], 0 offen offset:%d' % (XP + i * 9 + j, 178 if i < 2 else 179, (i % 2) * 1152 + 128 * j))

def p2_xstats(c):
    p = c.p
    p.I('s_mov_b32 s99, 0xffff0000\ns_mov_b32 s98, 0x%x\ns_mov_b32 s97, 0x%x' % (f2u(1.0 / 576), f2u(1e-5)))
    T = 8
    for k in range(36): unpack(p, T + 2 * k, XP + k, 99)
    ln_stats(p, T, 4, 9, P0S, red32(p, 232))

def p2_pre(c):
    p = c.p
    wg_rb_ns(p)
    p.I('s_mov_b32 s99, 0xffff0000\ns_mov_b32 s98, 0x%x\ns_mov_b32 s97, 0x%x' % (f2u(1.0 / 576), f2u(1e-5)))
    p.I('v_lshrrev_b32 v3, 5, v1\nv_and_b32 v4, 31, v1\nv_mov_b32 v6, v178\nv_mov_b32 v7, v179')
    p.I('v_lshlrev_b32 v8, 4, v0')
    PL = 236
    for k in range(36):
        p.I('v_lshlrev_b32 v%d, 16, v%d\nv_and_b32 v%d, s99, v%d' % (XF + 2 * k, XP + k, XF + 2 * k + 1, XP + k))
    for i in range(4):
        for j in range(9):
            k = i * 9 + j
            ln_apply(p, GH + 2 * k, XF + 2 * k, P0S + 4 * i)
    p.I('s_waitcnt vmcnt(0)')
    p.I('v_add_u32 v9, %d, v8' % PRM_BASE)
    for u in range(3): p.I('ds_write_b128 v9, %s offset:%d' % (vr(PL + 4 * u, 4), 4096 * u))
    p.I('s_waitcnt lgkmcnt(0)\ns_barrier')
    p.I('v_lshlrev_b32 v10, 3, v4\nv_add_u32 v10, %d, v10' % PRM_BASE)
    for arr, dst in ((0, TM), (1, TM + 18), (2, TM + 36), (3, SB), (4, CB)):
        for j in range(9):
            p.I('ds_read_b64 %s, v10 offset:%d' % (vr(dst + 2 * j, 2), arr * 2304 + 256 * j))
    for j in range(9):
        p.I('v_pk_mul_f32 %s, %s, %s' % (vr(TM + 18 + 2 * j, 2), vr(TM + 18 + 2 * j, 2), vr(TM + 36 + 2 * j, 2)))
        p.I('v_pk_mul_f32 %s, %s, %s' % (vr(TM + 2 * j, 2), vr(TM + 2 * j, 2), vr(TM + 36 + 2 * j, 2)))
    for i in range(4):
        for j in range(9):
            g = GH + (i * 9 + j) * 2
            p.I('v_pk_fma_f32 %s, %s, %s, %s' % (vr(g, 2), vr(g, 2), vr(TM + 18 + 2 * j, 2), vr(TM + 2 * j, 2)))

OUTS_BASE, OUTS_RS = 100352, 400
STL_BASE = 113152
P3STATS = os.environ.get('P3STATS', '1') == '1'
def tile_out(c, packed, srdslot):
    p = c.p
    p.I('v_and_b32 v2, 15, v1\nv_mul_u32_u24 v2, %d, v2\nv_lshrrev_b32 v3, 4, v1\nv_lshl_add_u32 v2, v3, 3, v2\ns_mul_i32 s6, s3, 96\ns_add_u32 s6, s6, %d\nv_add_u32 v2, s6, v2' % (OUTS_RS, OUTS_BASE))
    for (e, tt), r in packed.items():
        p.I('ds_write_b64 v2, %s offset:%d' % (vr(r, 2), tt * 16 * OUTS_RS + 32 * e))
    m24 = udiv_magic(24, 768)
    AD = 204
    for u in range(3):
        p.I('v_add_u32 v4, %d, v0\nv_mul_u32_u24 v5, %d, v4\nv_lshrrev_b32 v5, 16, v5\nv_mul_u32_u24 v6, 24, v5\nv_sub_u32 v6, v4, v6' % (256 * u, m24))
        p.I('v_mul_u32_u24 v7, %d, v5\nv_lshl_add_u32 v7, v6, 4, v7\nv_add_u32 v%d, %d, v7' % (OUTS_RS, AD + u, OUTS_BASE))
        p.I('s_lshl_b32 s6, s4, 5\nv_add_u32 v5, s6, v5\ns_movk_i32 s7, 1152\nv_mul_lo_u32 v5, v5, s7\nv_lshl_add_u32 v5, v6, 4, v5\ns_mul_i32 s6, s5, 384\nv_add_u32 v%d, s6, v5' % (AD + 3 + u))
    p.I('s_waitcnt lgkmcnt(0)\ns_barrier')
    D = 212
    for u in range(3): p.I('ds_read_b128 %s, v%d' % (vr(D + 4 * u, 4), AD + u))
    for u in range(3): p.I('buffer_store_dwordx4 %s, v%d, s[%d:%d], 0 offen%s' % (vr(D + 4 * u, 4), AD + 3 + u, srdslot, srdslot + 3, c.sc))

def sentinel_setup(c):
    p = c.p
    m24 = udiv_magic(24, 768)
    p.I('v_mov_b32 v168, -1\nv_mov_b32 v169, -1\nv_mov_b32 v170, -1\nv_mov_b32 v171, -1')
    srd(p, 56, P_WS, L.S * 1152, off=L.H1); srd(p, 68, P_WS, L.S * 1152, off=L.X2)
    for u in range(3):
        p.I('v_add_u32 v4, %d, v0\nv_mul_u32_u24 v5, %d, v4\nv_lshrrev_b32 v5, 16, v5\nv_mul_u32_u24 v6, 24, v5\nv_sub_u32 v6, v4, v6' % (256 * u, m24))
        p.I('s_lshl_b32 s6, s4, 5\nv_add_u32 v5, s6, v5\ns_movk_i32 s7, 1152\nv_mul_lo_u32 v5, v5, s7\nv_lshl_add_u32 v5, v6, 4, v5\ns_mul_i32 s6, s5, 384\nv_add_u32 v%d, s6, v5' % (164 + u))
    return ['buffer_store_dwordx4 v[168:171], v%d, s[%d:%d], 0 offen sc1' % (164 + u, sl, sl + 3) for sl in (56, 68) for u in range(3)]

def tagged_loads(c, loads, regs, probe=None):
    p = c.p
    lp = p.label_name('L_tag'); ok = p.label_name('L_tagok')
    p.I('s_mov_b32 s77, 0')
    if probe:
        lq = p.label_name('L_tagp'); qk = p.label_name('L_tagpok')
        p.label(lq)
        p.I(probe + '\ns_waitcnt vmcnt(0)', nowait=True)
        p.I('v_cmp_eq_u32 vcc, -1, v%d\ns_add_u32 s77, s77, 1\ns_nop 1\ns_cbranch_vccz %s\ns_cmp_ge_u32 s77, %d\ns_cbranch_scc1 %s\ns_sleep 4\ns_branch %s' % (regs[-1] + 3, qk, SPIN_MAX, qk, lq))
        p.label(qk); p.cut()
    p.label(lp)
    loads()
    p.I('s_waitcnt vmcnt(0)'); p.cut()
    chk = [r + 1 for r in regs] + [r + 3 for r in regs]
    p.I('v_max_u32 v251, v%d, v%d' % (chk[0], chk[1]))
    rest = chk[2:]
    while len(rest) >= 2:
        p.I('v_max3_u32 v251, v251, v%d, v%d' % (rest[0], rest[1])); rest = rest[2:]
    for r in rest: p.I('v_max_u32 v251, v251, v%d' % r)
    p.I('v_cmp_eq_u32 vcc, -1, v251\ns_add_u32 s77, s77, 1\ns_nop 1\ns_cbranch_vccz %s\ns_cmp_ge_u32 s77, %d\ns_cbranch_scc1 %s\ns_sleep 2\ns_branch %s' % (ok, SPIN_MAX, ok, lp))
    p.label(ok); p.cut()

def tagged_masked(c, items):
    p = c.p
    lp = p.label_name('L_tm'); ok = p.label_name('L_tmok')
    p.I('s_mov_b32 s77, 0')
    p.label(lp)
    for txt, r in items: p.I(txt, nowait=True)
    p.I('s_waitcnt vmcnt(0)'); p.cut()
    chk = [r + 1 for _, r in items] + [r + 3 for _, r in items]
    p.I('v_max_u32 v251, v%d, v%d' % (chk[0], chk[1]))
    rest = chk[2:]
    while len(rest) >= 2:
        p.I('v_max3_u32 v251, v251, v%d, v%d' % (rest[0], rest[1])); rest = rest[2:]
    for r in rest: p.I('v_max_u32 v251, v251, v%d' % r)
    p.I('v_cmp_eq_u32 vcc, -1, v251\ns_add_u32 s77, s77, 1\ns_nop 1\ns_cbranch_vccz %s\ns_cmp_ge_u32 s77, %d\ns_cbranch_scc1 %s\ns_mov_b64 exec, vcc\ns_branch %s' % (ok, SPIN_MAX, ok, lp))
    p.label(ok)
    p.I('s_mov_b64 exec, -1'); p.cut()

def p2_main(c, abase=0):
    p = c.p
    srd(p, 48, P_WS, L.D * 4096, off=L.ZT)
    srd(p, 52, P_WS, L.S * 1152, off=L.X1); srd(p, 56, P_WS, L.S * 1152, off=L.HP); srd(p, 60, P_WS, L.S * 1152, off=L.H1)
    p.I('v_lshrrev_b32 v8, 2, v1\nv_and_b32 v9, 3, v1\nv_lshlrev_b32 v10, 13, v8\nv_lshl_add_u32 v10, v9, 4, v10\ns_lshl_b32 s6, s4, 6\nv_add_u32 v10, s6, v10')
    p.I('s_lshl_b32 s6, s3, 17\nv_add_u32 v10, s6, v10\ns_movk_i32 s8, 4096')
    if TAGZ:
        items = []
        for t in range(5):
            p.I('v_add_u32 v%d, %d, v10' % (240 + t, t * 4 * 131072))
            items.append(('buffer_load_dwordx4 %s, v%d, s[48:51], 0 offen%s' % (vr(TM + 8 * t, 4), 240 + t, c.sc), TM + 8 * t))
            items.append(('buffer_load_dwordx4 %s, v%d, s[48:51], s8 offen%s' % (vr(TM + 8 * t + 4, 4), 240 + t, c.sc), TM + 8 * t + 4))
        tagged_masked(c, items)
    else:
        for t in range(5):
            if t: p.I('v_add_u32 v10, %d, v10' % (4 * 131072))
            p.I('buffer_load_dwordx4 %s, v10, s[48:51], 0 offen%s' % (vr(TM + 8 * t, 4), c.sc))
            p.I('buffer_load_dwordx4 %s, v10, s[48:51], s8 offen%s' % (vr(TM + 8 * t + 4, 4), c.sc))
    p.I('v_bfe_u32 v11, v8, 1, 3\nv_lshlrev_b32 v12, 1, v9\nv_xor_b32 v11, v11, v12\nv_lshlrev_b32 v11, 4, v11\nv_lshl_add_u32 v11, v8, 7, v11')
    p.I('s_lshl_b32 s6, s3, 11\nv_add_u32 v11, s6, v11\nv_xor_b32 v12, 16, v11')
    p.I('s_mov_b32 s8, 0x05040100\ns_mov_b32 s9, 0x07060302')
    PO = 236
    for t in range(5):
        a, b = TM + 8 * t, TM + 8 * t + 4
        o = PO + 8 * (t % 2)
        for k in range(4):
            p.I('v_perm_b32 v%d, v%d, v%d, s8\nv_perm_b32 v%d, v%d, v%d, s9' % (o + 2 * k, b + k, a + k, o + 2 * k + 1, b + k, a + k))
        p.I('ds_write_b128 v11, %s offset:%d' % (vr(o, 4), ZS_BASE + t * 8192))
        p.I('ds_write_b128 v12, %s offset:%d' % (vr(o + 4, 4), ZS_BASE + t * 8192))
    p.I('s_waitcnt vmcnt(0) lgkmcnt(0)\ns_barrier')
    p.cut()
    c.stamp(8)
    p.I('s_lshl_b32 s6, s3, 1\nv_add_u32 v8, s6, v3\nv_bfe_u32 v9, v4, 1, 3\nv_xor_b32 v8, v8, v9\nv_lshlrev_b32 v8, 4, v8\nv_lshl_add_u32 v8, v4, 7, v8')
    Z = TM
    for j in range(9): p.I('ds_read_b128 %s, v8 offset:%d' % (vr(Z + 4 * j, 4), ZS_BASE + 4096 * j))
    U = 232
    for j in range(9):
        for i in range(4):
            unpack(p, U + 2 * i, Z + 4 * j + i, 99)
        for i in range(4):
            g = vr(GH + (i * 9 + j) * 2, 2)
            p.I('v_pk_fma_f32 %s, %s, %s, %s' % (g, g, vr(U + 2 * i, 2), vr(XF + (i * 9 + j) * 2, 2)))
        for i in range(4):
            p.I('v_cvt_pk_bf16_f32 v%d, v%d, v%d' % (XF + (i * 9 + j) * 2, GH + (i * 9 + j) * 2, GH + (i * 9 + j) * 2 + 1))
    ST = 196
    ln_stats(p, GH, 4, 9, ST, red32(p, ST + 16))
    for j in range(9):
        for i in range(4):
            g = GH + (i * 9 + j) * 2
            ln_apply(p, g, g, ST + 4 * i)
        for i in range(4):
            g = vr(GH + (i * 9 + j) * 2, 2)
            p.I('v_pk_fma_f32 %s, %s, %s, %s' % (g, g, vr(CB + 2 * j, 2), vr(SB + 2 * j, 2)))
        for i in range(4):
            p.I('v_cvt_pk_bf16_f32 v%d, v%d, v%d' % (XF + (i * 9 + j) * 2 + 1, GH + (i * 9 + j) * 2, GH + (i * 9 + j) * 2 + 1))
    ln_stats(p, GH, 4, 9, ST, red32(p, ST + 16))
    p.I('v_bfe_u32 v8, v4, 2, 2\nv_lshrrev_b32 v9, 4, v4\nv_lshlrev_b32 v9, 11, v9\ns_lshr_b32 s6, s3, 1\ns_lshl_b32 s6, s6, 10\ns_and_b32 s7, s3, 1\ns_lshl_b32 s7, s7, 7\ns_add_u32 s6, s6, s7\ns_add_u32 s6, s6, %d' % A1_BASE)
    p.I('v_add_u32 v9, s6, v9\nv_lshl_add_u32 v9, v8, 8, v9\nv_lshl_add_u32 v9, v3, 6, v9\nv_and_b32 v10, 3, v4\nv_lshl_add_u32 v9, v10, 2, v9')
    for i in range(4):
        p.I('v_xor_b32 v10, %d, v8\nv_lshl_add_u32 v%d, v10, 4, v9' % (i, 12 + i))
    for j in range(9):
        for i in range(4):
            g = GH + (i * 9 + j) * 2
            ln_apply(p, U + 2 * i, g, ST + 4 * i)
        for i in range(4):
            p.I('v_cvt_pk_bf16_f32 v%d, v%d, v%d' % (U + 2 * i, U + 2 * i, U + 2 * i + 1))
        for i in range(4):
            p.I('ds_write_b32 v%d, v%d offset:%d' % (12 + i, U + 2 * i, 4096 * j))
    p.I('s_lshl_b32 s6, s3, 3\nv_lshl_add_u32 v11, v3, 2, s6\nv_mul_u32_u24 v11, %d, v11\nv_lshl_add_u32 v11, v4, 2, v11\nv_add_u32 v11, %d, v11' % (HPL_RS, HPL_BASE))
    for jg in range(3):
        lab = p.label_name('L_st')
        p.I('s_cmp_lg_u32 s5, %d\ns_cbranch_scc1 %s' % (jg, lab))
        for j in range(3 * jg, 3 * jg + 3):
            for i in range(4):
                p.I('buffer_store_dword v%d, v%d, s[52:55], 0 offen offset:%d%s' % (XF + (i * 9 + j) * 2, 6 if i < 2 else 7, (i % 2) * 1152 + 128 * j, c.sc), nowait=True)
                p.I('ds_write_b32 v11, v%d offset:%d' % (XF + (i * 9 + j) * 2 + 1, i * HPL_RS + 128 * (j - 3 * jg)), nowait=True)
        p.label(lab)
    p.I('s_waitcnt lgkmcnt(0)\ns_barrier')
    p.cut()
    c.stamp(9)
    wfrag_setup(c, L.W2T, 64, 156)
    gemm_small2(c, A1_BASE, abase, 100, 128, after_ks=lambda ks: wfrag_load(c, 64, 156, abase, ks) if ks < 9 else None)
    ACC = 100
    gelu_consts(p, 8, 9)
    p.I('v_mov_b32 v8, s9')
    gelu_inplace(p, list(range(ACC, ACC + 24)), 160, 8, 8)
    pk = {}
    for e in range(3):
        for tt in range(2):
            a = ACC + 4 * (e * 2 + tt)
            o = 190 + 2 * (e * 2 + tt)
            p.I('v_cvt_pk_bf16_f32 v%d, v%d, v%d\nv_cvt_pk_bf16_f32 v%d, v%d, v%d' % (o, a, a + 1, o + 1, a + 2, a + 3))
            pk[(e, tt)] = o
    tile_out(c, pk, 60)

def p3_main(c, abase=0):
    p = c.p
    srd(p, 48, P_WS, L.S * 1152, off=L.H1); srd(p, 52, P_WS, L.S * 1152, off=L.HP); srd(p, 56, P_WS, L.S * 1152, off=L.X2)
    p.I('s_mov_b32 s99, 0xffff0000')
    p.I('v_lshrrev_b32 v3, 4, v1\nv_and_b32 v4, 15, v1\ns_lshr_b32 s6, s3, 1\ns_lshl_b32 s6, s6, 5\nv_lshl_add_u32 v5, v3, 3, s6')
    p.I('s_lshl_b32 s6, s4, 5\ns_and_b32 s7, s3, 1\ns_lshl_b32 s7, s7, 4\ns_add_u32 s6, s6, s7\nv_add_u32 v6, s6, v4\ns_movk_i32 s7, 1152\nv_mul_lo_u32 v6, v6, s7\nv_lshl_add_u32 v6, v5, 1, v6')
    M1, P1, M2, P2_, N2, N4, N6 = 8, 9, 10, 11, 12, 13, 14
    p.I('v_subrev_u32 v%d, 1152, v6\nv_add_u32 v%d, 1152, v6\nv_subrev_u32 v%d, 2304, v6\nv_add_u32 v%d, 2304, v6' % (M1, P1, M2, P2_))
    p.I('v_cmp_gt_u32 vcc, 16, v5\nv_cndmask_b32 v%d, v%d, v%d, vcc' % (N2, P1, M1))
    p.I('v_cmp_gt_u32 vcc, 32, v5\nv_cndmask_b32 v%d, v%d, v%d, vcc' % (N4, M2, P1))
    p.I('v_cmp_gt_u32 vcc, 48, v5\nv_cndmask_b32 v%d, v%d, v%d, vcc' % (N6, P2_, M2))
    sel = [M1, M1, N2, P1, N4, M2, N6, P2_, P2_]
    T = 16
    def h1loads():
        for n in range(9):
            p.I('buffer_load_dwordx4 %s, v%d, s[48:51], 0 offen offset:%d%s' % (vr(T + 4 * n, 4), sel[n], 128 * n, c.sc))
    if TAG_H1: tagged_loads(c, h1loads, [T + 4 * n for n in range(9)])
    else: h1loads()
    HR = 108
    p.I('v_mul_u32_u24 v15, %d, v4\nv_lshl_add_u32 v15, v3, 3, v15\ns_mul_i32 s6, s3, 96\ns_add_u32 s6, s6, %d\nv_add_u32 v15, s6, v15' % (HPL_RS, HPL_BASE))
    for e in range(3):
        for tt in range(2):
            p.I('ds_read_b64 %s, v15 offset:%d' % (vr(HR + 2 * (e * 2 + tt), 2), tt * 16 * HPL_RS + 32 * e))
    p.I('v_xor_b32 v7, v4, v3\nv_lshl_add_u32 v7, v3, 4, v7\nv_lshlrev_b32 v7, 4, v7\ns_lshl_b32 s6, s3, 10\nv_add_u32 v7, s6, v7')
    for n in range(9): p.I('ds_write_b128 v7, %s offset:%d' % (vr(T + 4 * n, 4), 4096 * n))
    p.I('s_waitcnt lgkmcnt(0)\ns_barrier')
    c.stamp(12)
    gemm_small2(c, 0, abase, 52, 80)
    ACC = 52
    pk = {}
    SS = 140
    for e in range(3):
        for tt in range(2):
            a = ACC + 4 * (e * 2 + tt); h = HR + 2 * (e * 2 + tt); o = 128 + 2 * (e * 2 + tt)
            unpack(p, 120, h, 99); unpack(p, 122, h + 1, 99)
            p.I('v_pk_add_f32 %s, %s, %s\nv_pk_add_f32 %s, %s, %s' % (vr(a, 2), vr(a, 2), vr(120, 2), vr(a + 2, 2), vr(a + 2, 2), vr(122, 2)))
            p.I('v_cvt_pk_bf16_f32 v%d, v%d, v%d\nv_cvt_pk_bf16_f32 v%d, v%d, v%d' % (o, a, a + 1, o + 1, a + 2, a + 3))
            pk[(e, tt)] = o
            S_, Q_ = SS + 4 * tt, SS + 4 * tt + 2
            if e == 0:
                p.I('v_pk_add_f32 %s, %s, %s\nv_pk_mul_f32 %s, %s, %s' % (vr(S_, 2), vr(a, 2), vr(a + 2, 2), vr(Q_, 2), vr(a, 2), vr(a, 2)))
            else:
                p.I('v_pk_add_f32 %s, %s, %s\nv_pk_add_f32 %s, %s, %s\nv_pk_fma_f32 %s, %s, %s, %s' % (vr(S_, 2), vr(S_, 2), vr(a, 2), vr(S_, 2), vr(S_, 2), vr(a + 2, 2), vr(Q_, 2), vr(a, 2), vr(a, 2), vr(Q_, 2)))
            p.I('v_pk_fma_f32 %s, %s, %s, %s' % (vr(Q_, 2), vr(a + 2, 2), vr(a + 2, 2), vr(Q_, 2)))
    if P3STATS:
        R = [SS, SS + 2, SS + 4, SS + 6]
        for r in R: p.I('v_add_f32 v%d, v%d, v%d' % (r, r, r + 1))
        for swap in ('v_permlane16_swap_b32', 'v_permlane32_swap_b32'):
            for r in R: p.I('v_mov_b32 v%d, v%d' % (r + 1, r))
            for r in R: p.I('%s v%d, v%d' % (swap, r, r + 1))
            for r in R: p.I('v_add_f32 v%d, v%d, v%d' % (r, r, r + 1))
        p.I('v_mov_b32 v%d, v%d\nv_mov_b32 v%d, v%d' % (SS + 1, SS + 2, SS + 5, SS + 6))
        p.I('v_and_b32 v150, 15, v1\nv_lshlrev_b32 v150, 3, v150\ns_lshl_b32 s6, s3, 8\ns_add_u32 s6, s6, %d\nv_add_u32 v150, s6, v150' % STL_BASE)
        p.I('s_mov_b64 exec, 0xffff\nds_write_b64 v150, %s\nds_write_b64 v150, %s offset:128\ns_mov_b64 exec, -1' % (vr(SS, 2), vr(SS + 4, 2)))
    tile_out(c, pk, 56)
    if P3STATS:
        l = p.label_name('L_st3')
        wave0(p, l)
        srd(p, 52, P_WS, 3 * 2048 * 8, off=L.STAT)
        p.I('v_lshlrev_b32 v150, 3, v1\nv_add_u32 v150, %d, v150' % STL_BASE)
        for w in range(4): p.I('ds_read_b64 %s, v150 offset:%d' % (vr(140 + 2 * w, 2), 256 * w))
        p.I('v_pk_add_f32 v[140:141], v[140:141], v[142:143]\nv_pk_add_f32 v[144:145], v[144:145], v[146:147]\nv_pk_add_f32 v[140:141], v[140:141], v[144:145]')
        p.I('s_mul_i32 s6, s5, %d\ns_lshl_b32 s7, s4, 8\ns_add_u32 s6, s6, s7\nv_lshl_add_u32 v151, v1, 3, s6' % (2048 * 8))
        p.I('s_mov_b64 exec, 0xffffffff\nbuffer_store_dwordx2 v[140:141], v151, s[52:55], 0 offen sc1\ns_mov_b64 exec, -1', nowait=True)
        p.label(l); p.cut()

def p4_ln(c):
    p = c.p
    srd(p, 48, P_WS, L.S * 1152, off=L.X2)
    p.I('s_mov_b32 s99, 0xffff0000\ns_mov_b32 s98, 0x%x\ns_mov_b32 s97, 0x%x' % (f2u(1.0 / 576), f2u(1e-5)))
    p.I('v_lshrrev_b32 v3, 3, v1\nv_and_b32 v4, 7, v1')
    p.I('s_lshl_b32 s6, s5, 6\ns_lshl_b32 s7, s3, 4\ns_add_u32 s6, s6, s7\nv_add_u32 v5, s6, v3\ns_movk_i32 s7, 1152\nv_mul_lo_u32 v5, v5, s7\nv_lshl_add_u32 v5, v4, 4, v5\nv_add_u32 v6, %d, v5' % (8 * 1152))
    RAW, X = 64, 136
    if P3STATS:
        srd(p, 52, P_WS, 3 * 2048 * 8, off=L.STAT)
        p.I('s_lshl_b32 s6, s5, 6\ns_lshl_b32 s7, s3, 4\ns_add_u32 s6, s6, s7\nv_add_u32 v7, s6, v3\nv_lshlrev_b32 v7, 3, v7\nv_mul_u32_u24 v8, %d, v4\nv_add_u32 v7, v7, v8' % (2048 * 8))
        p.I('v_cmp_gt_u32 vcc, 3, v4\nv_mov_b32 v8, 0x7f000000\nv_cndmask_b32 v7, v8, v7, vcc')
        p.I('buffer_load_dwordx2 v[200:201], v7, s[52:55], 0 offen sc1\nbuffer_load_dwordx2 v[202:203], v7, s[52:55], 0 offen offset:64 sc1')
    def loads():
        for i in range(2):
            for j in range(9):
                p.I('buffer_load_dwordx4 %s, v%d, s[48:51], 0 offen offset:%d%s' % (vr(RAW + 36 * i + 4 * j, 4), 5 + i, 128 * j, c.sc))
    if TAG_H1: tagged_loads(c, loads, [RAW + 4 * k for k in range(18)], probe=('buffer_load_dwordx4 %s, v6, s[48:51], 0 offen offset:1024%s' % (vr(RAW + 68, 4), c.sc)) if PROBE else None)
    else: loads()
    return RAW, X

def p4_ln2(c, RAW, X):
    p = c.p
    mlp32.ln_addr(c)
    ST = 208
    if P3STATS:
        for i in range(2):
            S, Q = 200 + 2 * i, 201 + 2 * i
            reduce8(p, [S, Q])
        for i in range(2):
            S, Q = 200 + 2 * i, 201 + 2 * i; P = ST + 2 * i
            p.I('v_mul_f32 v%d, s98, v%d\nv_mul_f32 v%d, s98, v%d' % (S, S, Q, Q))
            p.I('v_fma_f32 v%d, -v%d, v%d, v%d\nv_max_f32 v%d, 0, v%d\nv_add_f32 v%d, s97, v%d\nv_rsq_f32 v%d, v%d' % (Q, S, S, Q, Q, Q, Q, Q, P, Q))
            p.I('v_mul_f32 v%d, -v%d, v%d' % (P + 1, S, P))
        for i in range(2):
            for j in range(9):
                r = RAW + 36 * i + 4 * j; x = X + 8 * (j % 2)
                for d in range(4): unpack(p, x + 2 * d, r + d, 99)
                for d in range(4): ln_apply(p, x + 2 * d, x + 2 * d, ST + 2 * i)
                for d in range(4): p.I('v_cvt_pk_bf16_f32 v%d, v%d, v%d' % (r + d, x + 2 * d, x + 2 * d + 1))
                if j < 8: p.I('ds_write_b128 v%d, %s offset:%d' % (11 + i, vr(r, 4), 8192 * j))
                else: p.I('v_add_u32 v13, 65536, v%d\nds_write_b128 v13, %s' % (11 + i, vr(r, 4)))
                for _ in range(2):
                    if c.wn < mlp32.RING: mlp32.wload(c)
    else:
        for i in range(2):
            for k in range(36):
                unpack(p, X + 2 * k, RAW + 36 * i + k, 99)
                if k % 2 == 1 and c.wn < mlp32.RING and i == 1: mlp32.wload(c)
            ln_stats_single(p, X, 36, ST)
            for k in range(36):
                ln_apply(p, X + 2 * k, X + 2 * k, ST)
                if k % 2 == 1 and c.wn < mlp32.RING: mlp32.wload(c)
            for k in range(36): p.I('v_cvt_pk_bf16_f32 v%d, v%d, v%d' % (RAW + 36 * i + k, X + 2 * k, X + 2 * k + 1))
            for j in range(8): p.I('ds_write_b128 v%d, %s offset:%d' % (11 + i, vr(RAW + 36 * i + 4 * j, 4), 8192 * j))
            p.I('v_add_u32 v13, 65536, v%d\nds_write_b128 v13, %s' % (11 + i, vr(RAW + 36 * i + 32, 4)))
    while c.wn < mlp32.RING: mlp32.wload(c)
    p.I('s_waitcnt lgkmcnt(0)\ns_barrier')

def ln_stats_single(p, X, n, ST):
    S, Q = ST + 4, ST + 8
    p.I('v_pk_add_f32 %s, %s, %s\nv_pk_add_f32 %s, %s, %s' % (vr(S, 2), vr(X, 2), vr(X + 4, 2), vr(S + 2, 2), vr(X + 2, 2), vr(X + 6, 2)))
    p.I('v_pk_mul_f32 %s, %s, %s\nv_pk_mul_f32 %s, %s, %s' % (vr(Q, 2), vr(X, 2), vr(X, 2), vr(Q + 2, 2), vr(X + 2, 2), vr(X + 2, 2)))
    for k in range(2, n):
        x = vr(X + 2 * k, 2); o = 2 * (k % 2)
        p.I('v_pk_fma_f32 %s, %s, %s, %s' % (vr(Q + o, 2), x, x, vr(Q + o, 2)))
        if k >= 4: p.I('v_pk_add_f32 %s, %s, %s' % (vr(S + o, 2), vr(S + o, 2), x))
    p.I('v_pk_add_f32 %s, %s, %s\nv_pk_add_f32 %s, %s, %s' % (vr(S, 2), vr(S, 2), vr(S + 2, 2), vr(Q, 2), vr(Q, 2), vr(Q + 2, 2)))
    p.I('v_add_f32 v%d, v%d, v%d\nv_add_f32 v%d, v%d, v%d' % (S, S, S + 1, Q, Q, Q + 1))
    reduce8(p, [S, Q])
    p.I('v_mul_f32 v%d, s98, v%d\nv_mul_f32 v%d, s98, v%d' % (S, S, Q, Q))
    p.I('v_fma_f32 v%d, -v%d, v%d, v%d\nv_max_f32 v%d, 0, v%d\nv_add_f32 v%d, s97, v%d\nv_rsq_f32 v%d, v%d' % (Q, S, S, Q, Q, Q, Q, Q, ST, Q))
    p.I('v_mul_f32 v%d, -v%d, v%d' % (ST + 1, S, ST))

def pt34_decode(c, stask, SRD, ST):
    p = c.p
    w4 = p.label_name('L_t4'); dn = p.label_name('L_td')
    p.I('s_cmp_ge_u32 s%d, 216\ns_cbranch_scc1 %s' % (stask, w4))
    p.I('s_mul_i32 s8, s%d, %d\ns_lshr_b32 s8, s8, 16\ns_mul_i32 s9, s8, 3\ns_sub_u32 s9, s%d, s9' % (stask, udiv_magic(3, 300), stask))
    for k in range(4): p.I('s_mov_b32 s%d, s%d' % (SRD + k, 56 + k))
    p.I('s_mul_i32 s%d, s9, %d\ns_lshl_b32 s10, s8, 7\ns_add_u32 s%d, s%d, s10' % (ST + 4, 6 * 32 * 9216, ST + 4, ST + 4))
    p.I('s_mov_b32 s%d, %d\ns_movk_i32 s%d, 9216\ns_movk_i32 s%d, 3072\ns_mov_b32 s%d, 0' % (ST + 5, 32 * 9216, ST + 6, ST + 7, ST + 8))
    for j in range(4):
        p.I('s_lshl_b32 s12, s8, 2\ns_add_u32 s12, s12, %d' % j)
        p.I('s_mul_i32 s13, s12, %d\ns_lshr_b32 s13, s13, 16\ns_mul_i32 s14, s13, 36\ns_sub_u32 s12, s12, s14' % udiv_magic(36, 300))
        p.I('s_mul_i32 s14, s12, %d\ns_lshr_b32 s14, s14, 16\ns_mul_i32 s10, s14, 12\ns_sub_u32 s12, s12, s10' % udiv_magic(12, 40))
        p.I('s_mul_i32 s10, s12, %d\ns_lshr_b32 s10, s10, 16\ns_mul_i32 s11, s10, 3\ns_sub_u32 s12, s12, s11' % udiv_magic(3, 16))
        p.I('s_lshl_b32 s13, s13, 2\ns_add_u32 s13, s13, s10\ns_mul_i32 s13, s13, 324\ns_mul_i32 s14, s14, 54\ns_add_u32 s13, s13, s14\ns_mul_i32 s14, s9, 18\ns_add_u32 s13, s13, s14\ns_add_u32 s13, s13, s12\ns_lshl_b32 s13, s13, 10\ns_add_u32 s%d, s13, %d' % (ST + j, L.W34T - L.W1T))
    p.I('s_branch %s' % dn)
    p.label(w4)
    p.I('s_sub_u32 s7, s%d, 216\ns_mul_i32 s8, s7, %d\ns_lshr_b32 s8, s8, 16\ns_mul_i32 s9, s8, 27\ns_sub_u32 s7, s7, s9' % (stask, udiv_magic(27, 600)))
    p.I('s_mul_i32 s9, s7, %d\ns_lshr_b32 s9, s9, 16\ns_mul_i32 s10, s9, 3\ns_sub_u32 s10, s7, s10' % udiv_magic(3, 32))
    for k in range(4): p.I('s_mov_b32 s%d, s%d' % (SRD + k, 60 + k))
    p.I('s_mul_i32 s11, s8, 18\ns_mul_i32 s12, s10, 6\ns_add_u32 s11, s11, s12\ns_mul_i32 s%d, s11, %d\ns_lshl_b32 s11, s9, 7\ns_add_u32 s%d, s%d, s11' % (ST + 4, 32 * 1152, ST + 4, ST + 4))
    p.I('s_mov_b32 s%d, %d\ns_movk_i32 s%d, 1152\ns_mov_b32 s%d, 1' % (ST + 5, 32 * 1152, ST + 6, ST + 8))
    p.I('s_cmp_eq_u32 s9, 8\ns_movk_i32 s11, 4096\ns_cselect_b32 s%d, 1024, s11' % (ST + 7))
    for j in range(4):
        p.I('s_mul_i32 s11, s10, 24\ns_add_u32 s11, s11, %d\ns_and_b32 s12, s9, 3' % (162 + j))
        p.I('s_cmp_ge_u32 s9, 4\ns_cselect_b32 s13, 72, 0\ns_add_u32 s11, s11, s13')
        p.I('s_mul_i32 s13, s10, 6\ns_add_u32 s13, s13, 306\ns_cmp_eq_u32 s9, 8\ns_cselect_b32 s11, s13, s11\ns_cselect_b32 s12, %d, s12' % j)
        p.I('s_lshl_b32 s13, s8, 2\ns_add_u32 s13, s13, s12\ns_mul_i32 s13, s13, 324\ns_add_u32 s13, s13, s11\ns_lshl_b32 s13, s13, 10\ns_add_u32 s%d, s13, %d' % (ST + j, L.W34T - L.W1T))
    p.label(dn)
    p.I('s_cmp_ge_u32 s%d, 432' % stask)
    for k in range(5): p.I('s_cselect_b32 s%d, 0x7f000000, s%d' % (ST + k, ST + k))
    p.I('s_cselect_b32 s%d, 0, s%d\ns_cselect_b32 s%d, 0, s%d' % (ST + 5, ST + 5, ST + 7, ST + 7))

def pretile34(c, swave):
    p = c.p
    NB, NU = 8, 12
    p.I('s_mul_i32 s96, s3, %d' % (NB * 4096))
    TA, TB = (64, 80), (52, 4)
    SA, SB_ = 80, 89
    regsB = 48
    p.I('s_add_u32 s79, s%d, 256' % swave)
    pt34_decode(c, swave, 64, 80)
    p.I('s_mov_b32 s15, s96')
    pt34_decode(c, 79, 52, 89)
    p.I('v_mad_u32_u24 v12, v2, s%d, v3\nv_add_u32 v12, s%d, v12' % (86, 84))
    p.I('v_mad_u32_u24 v13, v2, s%d, v3\nv_add_u32 v13, s%d, v13' % (95, 93))
    p.I('s_lshl_b32 s4, s86, 3\ns_lshl_b32 s5, s95, 3')
    def issue(n):
        A = n < 6
        va, srdn, s8r, sstep = (12, 64, 4, 85) if A else (13, 52, 5, 94)
        p.I('v_mov_b32 v9, v%d' % va)
        t = None
        for q in range(4):
            p.I('s_add_u32 m0, s15, %d' % ((n % NB) * 4096 + q * 1024))
            if q: p.I('v_add_u32 v9, s%d, v9' % s8r)
            t = p.I('buffer_load_dwordx4 v9, s[%d:%d], 0 offen lds' % (srdn, srdn + 3), nowait=True)
        p.I('v_add_u32 v%d, s%d, v%d' % (va, sstep, va))
        return t
    def process(n):
        A = n < 6
        ST = 80 if A else 89
        R = 16 + 16 * (n % 2)
        lb = p.label_name('L_kb'); le = p.label_name('L_ke')
        p.I('s_cmp_eq_u32 s%d, 1\ns_cbranch_scc1 %s' % (ST + 8, lb))
        for va, jstride, second, lab in ((6, 32, 512, None), (7, 8, 2048, lb)):
            if lab: p.label(lab)
            p.I('s_add_u32 s6, s15, %d\nv_add_u32 v10, s6, v%d' % ((n % NB) * 4096, va))
            for j in range(4):
                p.I('ds_read_b64_tr_b16 %s, v10 offset:%d' % (vr(R + 4 * j, 2), j * jstride), nowait=True)
                p.I('ds_read_b64_tr_b16 %s, v10 offset:%d' % (vr(R + 4 * j + 2, 2), j * jstride + second), nowait=True)
            if not lab: p.I('s_branch %s' % le)
        p.label(le)
        p.I('s_waitcnt lgkmcnt(0)')
        for j in range(4):
            p.I('v_add_u32 v11, s%d, v8\ns_add_u32 s%d, s%d, s%d' % (ST + j, ST + j, ST + j, ST + 7))
            p.I('buffer_store_dwordx4 %s, v11, s[68:71], 0 offen%s' % (vr(R + 4 * j, 4), c.sc), nowait=True)
    toks = [issue(n) for n in range(NB - 1)]
    for n in range(NU):
        if n + NB - 1 < NU: toks.append(issue(n + NB - 1))
        p.wait(toks[n])
        process(n)
    p.I('s_waitcnt vmcnt(0)'); p.cut()

def mlp_map(p, sslice, srb):
    p.I('s_and_b32 s%d, s2, 3\ns_lshl_b32 s%d, s%d, 1\ns_bfe_u32 s76, s2, 0x10003\ns_add_u32 s%d, s%d, s76' % (sslice, sslice, sslice, sslice, sslice))
    p.I('s_bfe_u32 s%d, s2, 0x10002\ns_lshl_b32 s%d, s%d, 4\ns_lshr_b32 s76, s2, 4\ns_add_u32 s%d, s%d, s76' % (srb, srb, srb, srb, srb))

def warm_l2(c, nparts, part_sgpr):
    p = c.p
    lines = 4 * 324 * 8 // nparts
    srd(p, 64, P_WS, 32 * 324 * 1024, off=L.W34T)
    p.I('s_mul_i32 s6, s4, %d\ns_mul_i32 s7, s%d, %d\ns_add_u32 s6, s6, s7\nv_lshl_add_u32 v2, v0, 7, s6' % (4 * 324 * 1024, part_sgpr, lines * 128))
    n = (lines + 255) // 256
    for k in range(n):
        if (k + 1) * 256 > lines:
            p.I('v_cmp_gt_u32 vcc, %d, v0\nv_mov_b32 v3, 0x7f000000\nv_cndmask_b32 v2, v3, v2, vcc' % (lines - k * 256))
        p.I('buffer_load_dword v%d, v2, s[64:67], 0 offen sc1' % (8 + k), nowait=True)
        p.I('v_add_u32 v2, 32768, v2')

def build_mega():
    c = Ctx(); p = c.p
    p.label('L_code_start')
    p.I('s_load_dwordx16 s[16:31], s[0:1], 0\ns_load_dwordx16 s[32:47], s[0:1], 64')
    p.I('v_lshrrev_b32 v2, 6, v0\nv_and_b32 v1, 63, v0')
    p.I('v_readfirstlane_b32 s3, v2')
    p.I('s_cmp_ge_u32 s2, 256\ns_cbranch_scc1 L_end')
    kv_addr(c)
    p.I('s_waitcnt lgkmcnt(0)')
    if STAMPS:
        for k in range(24): p.I('v_accvgpr_write_b32 a%d, 0' % (232 + k))
    c.stamp(0)
    def code_prefetch():
        if os.environ.get('NOCODEPF'): return
        p.I('s_getpc_b64 s[8:9]')
        p.label('L_pc_anchor_%d' % c.npf); c.npf += 1
        p.I('s_sub_u32 s8, s8, (L_pc_anchor_%d - L_code_start)\ns_subb_u32 s9, s9, 0' % (c.npf - 1))
        p.I('s_lshr_b32 s10, s2, 3\ns_mul_i32 s10, s10, CODE_PART\nv_lshl_add_u32 v248, v1, 7, s10')
        p.I('s_mov_b64 exec, CODE_MASK')
        p.I('global_load_dword v249, v248, s[8:9]', nowait=True)
        p.I('s_mov_b64 exec, -1')
    c.npf = 0
    c.code_prefetch = code_prefetch
    p.I('s_cmp_ge_u32 s2, %d\ns_cbranch_scc1 L_pt' % NCONV)
    def fx(p): p.I('s_lshl_b32 s6, s5, 1\nv_add_u32 v252, s6, v1\nv_mul_u32_u24 v252, %d, v252\nv_add_u32 v252, %d, v252\nv_mov_b32 v254, 3\nv_mov_b32 v255, %d\nv_mov_b32 v251, 1\nv_cmp_eq_u32 vcc, 2, v1\nv_cndmask_b32 v252, v252, v255, vcc\nv_cndmask_b32 v254, v254, v251, vcc' % (LS, C_X2 * LS, B_REL * LS))
    p.I('s_cmp_eq_u32 s3, 3\ns_cbranch_scc1 L_kc')
    p0_kv(c)
    p.I('s_mul_i32 s78, s2, 3\ns_add_u32 s78, s78, s3\ns_and_b32 s78, s78, 15')
    wave_arrive(c, 'add', check_ready=140, idx=K_SH, sgpr=78)
    p2_xload(c)
    p.I('s_waitcnt vmcnt(0)')
    p.I('s_branch L_kv_done'); p.cut()
    p.label('L_kc')
    srd(p, S_SYNC, P_WS, 2 << 20, off=L.SYNC)
    def hook3(c):
        c.code_prefetch()
        p2_xload(c)
    p1_kcopies(c, hook=hook3)
    p.I('s_waitcnt vmcnt(0) lgkmcnt(0)')
    p.label('L_kv_done'); p.cut()
    c.stamp(1)
    p2_xstats(c)
    c.stamp(17)
    wait_cnt(c, *w_flags(K_REL, A_REL))
    c.stamp(2)
    p1_main(c)
    c.stamp(5)
    if TAGZ:
        p.I('s_waitcnt lgkmcnt(0)\ns_barrier'); p.cut()
        p2_pre(c)
        c.stamp(6)
        p.I('s_waitcnt lgkmcnt(0)\ns_barrier'); p.cut()
    else:
        p.I('s_and_b32 s78, s2, 15')
        arrive(c, 'add', idx=V_SH, sgpr=78)
        p2_pre(c)
        c.stamp(6)
        if os.environ.get('VDIRECT', '0') == '1':
            def fv(p): p.I('v_mul_u32_u24 v252, %d, v1\nv_add_u32 v252, %d, v252\nv_mov_b32 v254, 12' % (LS, V_SH * LS))
            wait_cnt(c, fv, 16)
        else:
            wait_cnt(c, *w_flags(V_REL))
    c.stamp(7)
    p2_main(c)
    c.stamp(10)
    if TAG_H1:
        for ks in range(9, 18): wfrag_load(c, 64, 156, 0, ks)
        p.I('s_waitcnt lgkmcnt(0)\ns_barrier'); p.cut()
    else:
        arrive(c, 'add', idx=C_H1, sgpr=4)
        def fh(p): p.I('s_sub_u32 s6, s4, 1\nv_add_u32 v252, s6, v1\nv_max_i32 v252, 0, v252\nv_min_i32 v252, 63, v252\nv_mul_u32_u24 v252, %d, v252\nv_add_u32 v252, %d, v252\nv_mov_b32 v254, 3' % (LS, C_H1 * LS))
        def w2late(st):
            for ks in range(9, 18): wfrag_load(c, 64, 156, 0, ks)
        around_wait(c, w2late, lambda: wait_cnt(c, fh, 3))
    c.stamp(11)
    p3_main(c)
    c.stamp(13)
    if TAG_H1:
        wave_wait(c, B3_REL, B_REL)
        mlp_map(p, 10, 11)
        mlp32.ring_setup(c, 10, 160)
        for n in range(mlp32.EARLY): mlp32.ring_load_at(c, mlp32.PERM[n], n, 160)
        mlp_map(p, 4, 5)
        p.I('s_waitcnt lgkmcnt(0)\ns_barrier'); p.cut()
    else:
        arrive(c, 'add', idx=C_X2, sgpr=4)
        wave_wait(c, B3_REL)
        mlp_map(p, 10, 11)
        mlp32.ring_setup(c, 10, 160)
        def early(st):
            c.ring_off = 0
            for n in range(mlp32.EARLY): mlp32.ring_load_at(c, mlp32.PERM[n], n, 160)
        mlp_map(p, 4, 5)
        around_wait(c, early, lambda: wait_cnt(c, fx, 3))
    p.I('s_branch L_mlp2'); p.cut()
    p.label('L_pt')
    srd(p, S_SYNC, P_WS, 2 << 20, off=L.SYNC)
    lpf = p.label_name('L_pf')
    p.I('s_cmp_lg_u32 s3, 3\ns_cbranch_scc1 %s' % lpf)
    c.code_prefetch()
    p.label(lpf); p.cut()
    lz = p.label_name('L_zero')
    p.I('s_cmp_lg_u32 s2, 255\ns_cbranch_scc1 %s\ns_cmp_lg_u32 s3, 0\ns_cbranch_scc1 %s' % (lz, lz))
    p.I('v_mul_u32_u24 v2, %d, v1\nv_mov_b32 v3, 0' % LS)
    for k in range(NCNT // 64):
        p.I('buffer_store_dword v3, v2, s[%d:%d], 0 offen sc1\nv_add_u32 v2, %d, v2' % (S_SYNC, S_SYNC + 3, 64 * LS), nowait=True)
    srd(p, 68, P_DBG, 256)
    p.I('s_waitcnt vmcnt(0)\nv_mov_b32 v2, 0\nv_mov_b32 v3, 1\ns_mov_b64 exec, 1\nbuffer_store_dword v3, v2, s[68:71], 0 offen sc1\ns_mov_b64 exec, -1', nowait=True)
    p.label(lz); p.cut()
    pt_setup(c)
    p.I('s_sub_u32 s4, s2, %d\ns_lshl_b32 s4, s4, 2\ns_add_u32 s78, s4, s3' % NCONV)
    pretile(c, '12', 78)
    arrive(c, 'add', check_ready=True, idx=A_CNT)
    c.stamp(1)
    lmon = p.label_name('L_nomon')
    p.I('s_cmp_lg_u32 s2, 255\ns_cbranch_scc1 %s\ns_cmp_lg_u32 s3, 0\ns_cbranch_scc1 %s' % (lmon, lmon))
    monitor(c)
    p.label(lmon); p.cut()
    p.I('s_cmp_eq_u32 s2, 255\ns_cbranch_scc1 L_pt_skip')
    lm = p.label_name('L_nomod')
    p.I('s_cmp_ge_u32 s2, %d\ns_cbranch_scc1 %s' % (NCONV + 54, lm))
    p0_mod_loads(c, NCONV)
    p0_mod_compute(c, NCONV)
    arrive(c, 'add', idx=M_CNT)
    p.label(lm); p.cut()
    p.I('s_barrier')
    pt.prime(c, NCONV)
    c.stamp(2)
    def mid():
        arrive(c, 'add', idx=B3_CNT)
    pt.run(c, mid)
    arrive(c, 'last', cnt=B_CNT, n=63, rel=B_REL)
    p.label('L_pt_skip'); p.cut()
    c.stamp(3)
    wait_cnt(c, *w_flags(B_REL))
    c.stamp(4)
    mlp_map(p, 4, 5)
    p.I('s_sub_u32 s5, s2, %d\ns_lshr_b32 s5, s5, 4' % NCONV)
    if os.environ.get('WARM'): warm_l2(c, 4, 5)
    p.I('s_waitcnt vmcnt(0)'); p.cut()
    mlp_map(p, 10, 11)
    mlp32.ring_setup(c, 10, 160)
    for n in range(mlp32.EARLY): mlp32.ring_load_at(c, mlp32.PERM[n], n, 160)
    p.label('L_mlp'); p.cut()
    c.stamp(14)
    mlp_map(p, 4, 5)
    if TAG_H1: wait_cnt(c, *w_flags(V_REL, B_REL))
    else: wait_cnt(c, fx, 3)
    p.label('L_mlp2'); p.cut()
    c.stamp(15)
    if os.environ.get('REWARM'):
        p.I('s_lshr_b32 s79, s2, 3')
        warm_l2(c, 32, 79)
    RAW, X = p4_ln(c)
    c.fine = True
    if os.environ.get('FINE2'): c.stamp(6)
    mlp32.ring_resume(c)
    if os.environ.get('FINE2'):
        c.stamp(7); p.I('s_waitcnt vmcnt(18)'); c.stamp(8); p.I('s_waitcnt vmcnt(0)'); c.stamp(9)
    p4_ln2(c, RAW, X)
    c.stamp(16)
    mlp32.mlp_setup(c)
    def arrive_part(k):
        p.I('s_mul_i32 s76, s5, %d\ns_add_u32 s76, s76, %d\ns_cmp_eq_u32 s3, 0\ns_cselect_b32 s76, s76, 0x7f000000\nv_mov_b32 v252, s76\nv_mov_b32 v253, 1\ns_mov_b64 exec, 1' % (LS, (C_PART0, C_PART1)[k] * LS))
        p.I('buffer_atomic_add v253, v252, s[%d:%d], 0 offen sc1' % (S_SYNC, S_SYNC + 3))
        p.I('s_mov_b64 exec, -1')
    def poll_issue():
        p.I('s_mul_i32 s76, s5, %d\ns_add_u32 s76, s76, %d\nv_mov_b32 v252, s76' % (LS, C_PART0 * LS))
        p.I('buffer_load_dword v253, v252, s[%d:%d], 0 offen sc1' % (S_SYNC, S_SYNC + 3))
    def poll_check():
        ok = p.label_name('L_p0ok'); lp = p.label_name('L_p0')
        p.I('v_cmp_gt_u32 vcc, 8, v253\ns_mov_b32 s77, 0\ns_nop 2\ns_cbranch_vccz %s' % ok)
        p.label(lp)
        p.I('buffer_load_dword v253, v252, s[%d:%d], 0 offen sc1\ns_waitcnt vmcnt(0)\nv_cmp_gt_u32 vcc, 8, v253' % (S_SYNC, S_SYNC + 3), nowait=True)
        p.I('s_add_u32 s77, s77, 1\ns_cmp_ge_u32 s77, %d\ns_cbranch_scc1 %s\ns_cbranch_vccnz %s' % (SPIN_MAX, ok, lp))
        p.label(ok)
    c.arrive_part, c.poll_issue, c.poll_check = arrive_part, poll_issue, poll_check
    c.inmlp = True
    mlp32.mlp_main(c)
    c.stamp(21)
    arrive(c, 'add', idx=C_PART, sgpr=5)
    mlp32.final_pair(c, 0)
    def fp(p): p.I('s_mul_i32 s6, s5, %d\ns_add_u32 s6, s6, %d\nv_mov_b32 v252, s6\nv_mov_b32 v254, 8' % (LS, C_PART * LS))
    wait_cnt(c, fp, 1)
    c.stamp(22)
    mlp32.final_gather(c, 1)
    mlp32.final_pair(c, 1)
    p.I('s_waitcnt vmcnt(0)')
    c.stamp_out()
    p.label('L_end')
    p.I('s_endpgm')
    txt = p.finalize()
    return txt

if __name__ == '__main__':
    if 'stamps' in sys.argv: STAMPS = True
    mk.STAMPS = False
    body = build_mega()
    if 'CODE_PART' in body:
        import subprocess
        t = assemble([(NAME + '_kernel', body.replace('CODE_PART', '2048').replace('CODE_MASK', '0xffff'), 256, 256, 147456, 512, 256)])
        open('_p1.s', 'w').write(t)
        subprocess.check_call(['clang', '-x', 'assembler', '-target', 'amdgcn-amd-amdhsa', '-mcpu=gfx950', '-c', '_p1.s', '-o', '_p1.o'])
        syms = subprocess.check_output(['llvm-objdump', '-t', '_p1.o'], text=True)
        ad = {l.split()[-1]: int(l.split()[0], 16) for l in syms.splitlines() if l.split() and l.split()[-1] in ('L_end', 'L_code_start')}
        size = ad['L_end'] - ad['L_code_start']
        nl = size // 128 // 32
        assert nl <= 32
        body = body.replace('CODE_PART', str(nl * 128)).replace('CODE_MASK', hex((1 << nl) - 1))
        print('code size', size, 'lines per part', nl)
    out = assemble([(NAME + '_kernel', body, 256, 256, 147456, 512, 256)])
    open(sys.argv[1], 'w').write(out)
```

```python
import os
from asmlib import *
import layout as L
from mk import srd, udiv_magic, f2u, P_WS, P_OUT, unpack, gelu_consts, Filler, reduce8

A2_BASE, G_BASE = 0, 73728
RING = int(os.environ.get('RING', '54'))
PERM = [(n % 3) * 18 + n // 3 for n in range(54)] if RING == 54 else list(range(RING))
EARLY = 27
NLDS = int(os.environ.get('NLDS', '0'))

def w3_pos(Gl, jn, kh, kk):
    if Gl < 4: return Gl, 5 * kk + 2 * kh + jn
    return Gl - 5, 90 + 4 * kk + 2 * kh + jn
def w4_pos(Gl, jn, kh, pb):
    if Gl < 4: return Gl, (162 + 3 * pb + kh) if jn == 0 else (162 + 54 + 2 * pb + kh)
    return Gl - 5, 162 + (90 if jn == 0 else 126) + 2 * pb + kh
def w4_small_pos(pb): return 162 + 3 * pb + 2

def pt34_lane_consts(p):
    p.I('v_bfe_u32 v4, v1, 4, 1\nv_lshrrev_b32 v5, 5, v1\nv_bfe_u32 v9, v1, 2, 2\nv_and_b32 v10, 3, v1')
    p.I('v_lshl_add_u32 v14, v5, 3, v9\nv_lshlrev_b32 v14, 7, v14\nv_lshl_add_u32 v14, v4, 5, v14\nv_lshl_add_u32 v14, v10, 3, v14')
    p.I('v_lshl_add_u32 v15, v5, 2, v9\nv_lshlrev_b32 v15, 7, v15\nv_and_b32 v11, 1, v10\nv_lshl_add_u32 v15, v11, 5, v15\nv_lshl_add_u32 v15, v4, 4, v15\nv_lshrrev_b32 v11, 1, v10\nv_lshl_add_u32 v15, v11, 3, v15')
    p.I('v_lshrrev_b32 v11, 4, v1\nv_lshl_add_u32 v16, v11, 3, v9\nv_lshlrev_b32 v16, 7, v16\nv_lshl_add_u32 v16, v10, 3, v16')
    p.I('v_lshl_add_u32 v17, v5, 2, v4\nv_lshl_add_u32 v17, v17, 2, v9\nv_lshlrev_b32 v17, 7, v17\nv_lshl_add_u32 v17, v10, 3, v17')

def pt34_decode(c, stask, SRD, ST):
    p = c.p
    w4 = p.label_name('L_t4'); cm = p.label_name('L_tc')
    p.I('s_cmp_ge_u32 s%d, 216\ns_cbranch_scc1 %s' % (stask, w4))
    p.I('s_mul_i32 s8, s%d, %d\ns_lshr_b32 s8, s8, 16\ns_mul_i32 s9, s8, 3\ns_sub_u32 s9, s%d, s9' % (stask, udiv_magic(3, 300), stask))
    for k in range(4): p.I('s_mov_b32 s%d, s%d' % (SRD + k, 56 + k))
    p.I('s_mul_i32 s%d, s9, %d\ns_lshl_b32 s10, s8, 7\ns_add_u32 s%d, s%d, s10' % (ST + 4, 6 * 32 * 9216, ST + 4, ST + 4))
    p.I('s_mov_b32 s%d, %d\ns_movk_i32 s%d, 9216\ns_mov_b32 s%d, 0' % (ST + 5, 32 * 9216, ST + 6, ST + 8))
    p.I('s_mul_i32 s10, s8, %d\ns_lshr_b32 s10, s10, 16\ns_mul_i32 s11, s10, 9\ns_sub_u32 s11, s8, s11\ns_mov_b32 s12, 0' % udiv_magic(9, 100))
    p.I('s_branch %s' % cm)
    p.label(w4)
    p.I('s_sub_u32 s7, s%d, 216\ns_mul_i32 s10, s7, %d\ns_lshr_b32 s10, s10, 16\ns_mul_i32 s9, s10, 27\ns_sub_u32 s7, s7, s9' % (stask, udiv_magic(27, 600)))
    p.I('s_mul_i32 s11, s7, %d\ns_lshr_b32 s11, s11, 16\ns_mul_i32 s9, s11, 3\ns_sub_u32 s9, s7, s9' % udiv_magic(3, 32))
    for k in range(4): p.I('s_mov_b32 s%d, s%d' % (SRD + k, 60 + k))
    p.I('s_mul_i32 s13, s10, 18\ns_mul_i32 s14, s9, 6\ns_add_u32 s13, s13, s14\ns_mul_i32 s%d, s13, %d\ns_lshl_b32 s13, s11, 7\ns_add_u32 s%d, s%d, s13' % (ST + 4, 32 * 1152, ST + 4, ST + 4))
    p.I('s_mov_b32 s%d, %d\ns_movk_i32 s%d, 1152\ns_mov_b32 s%d, 1\ns_movk_i32 s12, 162' % (ST + 5, 32 * 1152, ST + 6, ST + 8))
    p.label(cm)
    p.I('s_cmp_le_u32 s11, 4\ns_cselect_b32 s13, 5, 4\ns_cselect_b32 s14, 0, 90\ns_add_u32 s12, s12, s14\ns_mul_i32 s14, s9, 6\ns_mul_i32 s14, s14, s13\ns_add_u32 s12, s12, s14\ns_lshl_b32 s%d, s13, 10' % (ST + 7))
    p.I('s_sub_u32 s14, s11, 5\ns_cmp_lt_u32 s11, 4\ns_cselect_b32 s14, s11, s14')
    sm = p.label_name('L_ts'); dn = p.label_name('L_td')
    p.I('s_cmp_eq_u32 s11, 4\ns_cbranch_scc1 %s' % sm)
    p.I('s_lshl_b32 s7, s10, 2\ns_add_u32 s7, s7, s14\ns_mul_i32 s7, s7, 324\ns_add_u32 s7, s7, s12\ns_lshl_b32 s7, s7, 10\ns_add_u32 s7, s7, %d' % (L.W34T - L.W1T))
    for jn in range(2):
        for kh in range(2): p.I('s_add_u32 s%d, s7, %d' % (ST + 2 * jn + kh, (2 * kh + jn) * 1024))
    p.I('s_branch %s' % dn)
    p.label(sm)
    p.I('s_add_u32 s%d, s%d, 2' % (ST + 8, ST + 8))
    for j in range(4):
        p.I('s_lshl_b32 s7, s10, 2\ns_add_u32 s7, s7, %d\ns_mul_i32 s7, s7, 324\ns_add_u32 s7, s7, s12\ns_add_u32 s7, s7, 4\ns_lshl_b32 s7, s7, 10\ns_add_u32 s%d, s7, %d' % (j, ST + j, L.W34T - L.W1T))
    p.label(dn)
    p.I('s_cmp_ge_u32 s%d, 432' % stask)
    for k in range(5): p.I('s_cselect_b32 s%d, 0x7f000000, s%d' % (ST + k, ST + k))
    for k in (5, 7): p.I('s_cselect_b32 s%d, 0, s%d' % (ST + k, ST + k))

def pretile34(c, swave):
    p = c.p
    NB, NU = 8, 12
    pt34_lane_consts(p)
    STA, STB = 80, 90
    p.I('s_mul_i32 s15, s3, %d' % (NB * 4096))
    p.I('s_add_u32 s79, s%d, 256' % swave)
    pt34_decode(c, swave, 64, STA)
    pt34_decode(c, 79, 52, STB)
    p.I('v_mad_u32_u24 v12, v2, s%d, v3\nv_add_u32 v12, s%d, v12' % (STA + 6, STA + 4))
    p.I('v_mad_u32_u24 v13, v2, s%d, v3\nv_add_u32 v13, s%d, v13' % (STB + 6, STB + 4))
    p.I('s_lshl_b32 s4, s%d, 3\ns_mov_b32 s5, s%d\ns_mov_b32 s78, 0\ns_mov_b32 s14, s15\ns_add_u32 s13, s15, %d' % (STA + 6, STA + 5, NB * 4096))
    def issue():
        l1 = p.label_name('L_is')
        p.I('s_cmp_lg_u32 s78, 6\ns_cbranch_scc1 %s' % l1)
        p.I('v_mov_b32 v12, v13\ns_lshl_b32 s4, s%d, 3\ns_mov_b32 s5, s%d' % (STB + 6, STB + 5))
        for k in range(4): p.I('s_mov_b32 s%d, s%d' % (64 + k, 52 + k))
        p.label(l1)
        p.I('s_cmp_eq_u32 s78, 12\ns_cselect_b32 s7, 0x7f000000, 0\nv_add_u32 v12, s7, v12')
        p.I('v_mov_b32 v9, v12')
        for q in range(4):
            p.I('s_add_u32 m0, s14, %d' % (q * 1024))
            if q: p.I('v_add_u32 v9, s4, v9')
            p.I('buffer_load_dwordx4 v9, s[64:67], 0 offen lds', nowait=True)
        p.I('v_add_u32 v12, s5, v12\ns_add_u32 s78, s78, 1\ns_add_u32 s14, s14, 4096\ns_cmp_ge_u32 s14, s13\ns_cselect_b32 s14, s15, s14')
    pl = p.label_name('L_prime')
    p.I('v_mov_b32 v11, 0x7f000000')
    p.label(pl)
    issue()
    for f in range(4): p.I('buffer_store_dwordx4 v[20:23], v11, s[68:71], 0 offen', nowait=True)
    p.I('s_cmp_lt_u32 s78, %d\ns_cbranch_scc1 %s' % (NB - 1, pl))
    p.I('s_mov_b32 s79, 0\ns_mov_b32 s12, s15')
    lp = p.label_name('L_ptl')
    p.label(lp)
    def cst(k):
        if os.environ.get('PTST'):
            l = p.label_name('L_cs')
            p.I('s_cmp_lg_u32 s79, %s\ns_cbranch_scc1 %s' % (os.environ['PTST'], l)); c.stamp(k); p.label(l)
    cst(5)
    issue()
    cst(6)
    l2 = p.label_name('L_ps')
    p.I('s_cmp_lg_u32 s79, 6\ns_cbranch_scc1 %s' % l2)
    for k in (0, 1, 2, 3, 7, 8): p.I('s_mov_b32 s%d, s%d' % (STA + k, STB + k))
    p.label(l2)
    p.I('s_waitcnt vmcnt(%d)' % (8 * (NB - 1)))
    cst(7)
    R = 20
    labs = [p.label_name('L_k%d' % k) for k in range(4)]; le = p.label_name('L_ke')
    for k in range(1, 4): p.I('s_cmp_eq_u32 s%d, %d\ns_cbranch_scc1 %s' % (STA + 8, k, labs[k]))
    for k, (va, second) in enumerate(((14, 512), (15, 1024), (16, 512), (17, 1024))):
        if k: p.label(labs[k])
        p.I('v_add_u32 v10, s12, v%d' % va)
        for f in range(4):
            off = (f // 2) * 64 + (f % 2) * 2048 if k < 2 else 32 * f
            p.I('ds_read_b64_tr_b16 %s, v10 offset:%d' % (vr(R + 4 * f, 2), off), nowait=True)
            p.I('ds_read_b64_tr_b16 %s, v10 offset:%d' % (vr(R + 4 * f + 2, 2), off + second), nowait=True)
        if k < 3: p.I('s_branch %s' % le)
    p.label(le)
    p.I('s_waitcnt lgkmcnt(0)')
    cst(8)
    for f in range(4):
        p.I('v_add_u32 v11, s%d, v8\ns_add_u32 s%d, s%d, s%d' % (STA + f, STA + f, STA + f, STA + 7))
        p.I('buffer_store_dwordx4 %s, v11, s[68:71], 0 offen%s' % (vr(R + 4 * f, 4), c.sc), nowait=True)
    cst(9)
    p.I('s_add_u32 s12, s12, 4096\ns_cmp_ge_u32 s12, s13\ns_cselect_b32 s12, s15, s12')
    p.I('s_add_u32 s79, s79, 1\ns_cmp_lt_u32 s79, %d\ns_cbranch_scc1 %s' % (NU, lp))
    p.I('s_waitcnt vmcnt(0)'); p.cut()

def ring_start(c):
    p = c.p
    srd(p, 64, P_WS, 32 * 324 * 1024, off=L.W34T)
    p.I('s_lshl_b32 s6, s4, 2\ns_add_u32 s6, s6, s3\ns_mul_i32 s6, s6, %d\nv_lshl_add_u32 v2, v1, 4, s6' % (324 * 1024))
    c.wn = 0
    for n in range(RING): wload(c)

def ring_setup(c, sslice, vaddr):
    p = c.p
    srd(p, 64, P_WS, 32 * 324 * 1024, off=L.W34T)
    p.I('s_lshl_b32 s6, s%d, 2\ns_add_u32 s6, s6, s3\ns_mul_i32 s6, s6, %d\nv_lshl_add_u32 v%d, v1, 4, s6' % (sslice, 324 * 1024, vaddr))
    c.ring_off = 0

def ring_load_at(c, slot, n, vaddr):
    p = c.p
    c.ring_map = getattr(c, 'ring_map', {})
    c.ring_map[n] = slot
    need = (n // 4) * 4096
    if need != c.ring_off:
        p.I('v_add_u32 v%d, %d, v%d' % (vaddr, need - c.ring_off, vaddr)); c.ring_off = need
    p.I('buffer_load_dwordx4 %s, v%d, s[64:67], 0 offen offset:%d%s' % (ar(4 * slot, 4), vaddr, 1024 * (n % 4), c.sc))

def lds_stage(c, vaddr):
    p = c.p
    if not NLDS: return
    for k in range(NLDS):
        n = RING + k
        need = (n // 4) * 4096
        if need != c.ring_off:
            p.I('v_add_u32 v%d, %d, v%d' % (vaddr, need - c.ring_off, vaddr)); c.ring_off = need
        p.I('buffer_load_dwordx4 %s, v%d, s[64:67], 0 offen offset:%d%s' % (vr(64 + 4 * k, 4), vaddr, 1024 * (n % 4), c.sc))
    p.I('s_mul_i32 s6, s3, %d\ns_add_u32 s6, s6, %d\nv_lshl_add_u32 v161, v1, 4, s6' % (18 * 1024, G_BASE))
    for k in range(NLDS): p.I('ds_write_b128 v161, %s offset:%d' % (vr(64 + 4 * k, 4), 1024 * k))

def ring_resume(c, EARLY=EARLY):
    p = c.p
    srd(p, 64, P_WS, 32 * 324 * 1024, off=L.W34T)
    p.I('s_lshl_b32 s6, s4, 2\ns_add_u32 s6, s6, s3\ns_mul_i32 s6, s6, %d\ns_add_u32 s6, s6, %d\nv_lshl_add_u32 v2, v1, 4, s6' % (324 * 1024, (EARLY // 4) * 4096))
    c.wn = EARLY
    c.ptr = [(EARLY // 4) * 4096, None]
    c.wtok = {}

def stream_order():
    o = list(range(162))
    for ks in range(20):
        pb, kh = ks >> 1, ks & 1
        o.append(162 + 3 * pb + kh); o.append(216 + 2 * pb + kh)
        if kh: o.append(162 + 3 * pb + 2)
    for ks in range(20, 36):
        pb, kh = ks >> 1, ks & 1
        o.append(162 + 3 * pb + kh)
        if kh: o.append(162 + 3 * pb + 2)
    for ks in range(20, 36): o.append(216 + ks)
    o += list(range(252, 324))
    assert sorted(o) == list(range(324))
    return o
ORDER = stream_order()
VPTR = [2, 3]

def wload(c):
    p = c.p
    n = c.wn
    if n >= 324: return
    pos = ORDER[n]
    if RING <= n < RING + NLDS:
        c.wtok[n] = p.I('ds_read_b128 %s, v%d offset:%d' % (ar(4 * PERM[n % RING], 4), 59, 1024 * (n - RING)))
        c.wn += 1
        return
    k = 1 if 216 <= pos < 252 else 0
    need = (pos // 4) * 4096
    if c.ptr[k] is None:
        p.I('v_add_u32 v%d, %d, v%d' % (VPTR[k], need - c.ptr[0], VPTR[0]) if need >= c.ptr[0] else 'v_subrev_u32 v%d, %d, v%d' % (VPTR[k], c.ptr[0] - need, VPTR[0]))
        c.ptr[k] = need
    elif need != c.ptr[k]:
        assert need > c.ptr[k]
        p.I('v_add_u32 v%d, %d, v%d' % (VPTR[k], need - c.ptr[k], VPTR[k])); c.ptr[k] = need
    c.wtok[n] = p.I('buffer_load_dwordx4 %s, v%d, s[64:67], 0 offen offset:%d%s' % (ar(4 * PERM[n % RING], 4), VPTR[k], 1024 * (pos % 4), c.sc))
    c.wn += 1

def ln_addr(c):
    p = c.p
    p.I('v_lshrrev_b32 v7, 1, v4\nv_lshlrev_b32 v9, 11, v7\ns_lshr_b32 s6, s3, 1\ns_lshl_b32 s6, s6, 10\nv_add_u32 v9, s6, v9')
    p.I('v_and_b32 v7, 1, v4\nv_lshlrev_b32 v7, 5, v7\ns_and_b32 s6, s3, 1\ns_lshl_b32 s6, s6, 4\nv_add_u32 v7, s6, v7\nv_add_u32 v7, v7, v3')
    for i in range(2):
        p.I('v_add_u32 v10, %d, v7\nv_xor_b32 v10, v10, v4\nv_lshl_add_u32 v%d, v10, 4, v9' % (8 * i, 11 + i))

def gelu4_lines(a, tmp, o, s1, vc2):
    L_ = []
    for r in range(4): L_.append('v_mul_f32 v%d, v%d, v%d' % (tmp + r, a + r, a + r))
    for r in range(4): L_.append('v_fma_f32 v%d, v%d, v%d, s%d' % (tmp + r, tmp + r, vc2, s1))
    for r in range(4): L_.append('v_mul_f32 v%d, v%d, v%d' % (tmp + r, tmp + r, a + r))
    for r in range(4): L_.append('v_exp_f32 v%d, v%d' % (tmp + r, tmp + r))
    for r in range(4): L_.append('v_add_f32 v%d, 1.0, v%d' % (tmp + r, tmp + r))
    for r in range(4): L_.append('v_rcp_f32 v%d, v%d' % (tmp + r, tmp + r))
    for r in range(4): L_.append('v_mul_f32 v%d, v%d, v%d' % (tmp + r, a + r, tmp + r))
    L_.append('v_cvt_pk_bf16_f32 v%d, v%d, v%d' % (o, tmp, tmp + 1))
    L_.append('v_cvt_pk_bf16_f32 v%d, v%d, v%d' % (o + 1, tmp + 2, tmp + 3))
    return L_

def mlp_setup(c):
    p = c.p
    gelu_consts(p, 8, 9)
    p.I('v_mov_b32 v20, s9')
    p.I('v_lshrrev_b32 v3, 5, v1')
    for q in range(4):
        p.I('v_add_u32 v4, %d, v3\nv_xor_b32 v4, v4, v1\nv_lshlrev_b32 v%d, 4, v4\nv_add_u32 v%d, 65536, v%d' % (2 * q, 14 + q, 24 + q, 14 + q))
    p.I('v_and_b32 v4, 15, v1\nv_bfe_u32 v5, v1, 4, 1\nv_lshl_add_u32 v4, v5, 5, v4')
    for par in range(2):
        p.I('v_lshlrev_b32 v6, 1, v3\nv_add_u32 v6, %d, v6\nv_add_u32 v6, v6, v5\nv_xor_b32 v6, v6, v4\nv_lshlrev_b32 v6, 4, v6\nv_lshl_add_u32 v%d, v3, 11, v6' % (4 * par, 28 + par))
    p.I('v_add_u32 v30, 65536, v28\nv_add_u32 v31, 65536, v29')
    p.I('s_mul_i32 s6, s3, %d\ns_add_u32 s6, s6, %d\nv_lshl_add_u32 v59, v1, 4, s6' % (18 * 1024, G_BASE))
    p.I('v_lshlrev_b32 v18, 4, v1\nv_add_u32 v18, %d, v18\nv_add_u32 v19, 65536, v18' % G_BASE)
    p.I('v_lshlrev_b32 v60, 4, v4\nv_lshl_add_u32 v60, v3, 11, v60\nv_add_u32 v60, %d, v60\nv_add_u32 v61, 65536, v60' % G_BASE)
    p.I('s_lshl_b32 s6, s3, 13\nv_add_u32 v22, s6, v18\ns_add_u32 s6, s6, %d\nv_add_u32 v23, s6, v18' % (20 * 2048))
    p.I('v_lshlrev_b32 v62, 4, v4\nv_lshl_add_u32 v62, v3, 3, v62\ns_add_u32 s6, s3, 16\ns_lshl_b32 s6, s6, 11\ns_add_u32 s6, s6, %d\nv_add_u32 v62, s6, v62' % G_BASE)
    srd(p, 68, P_WS, 32 * 8 * 8 * 9216, off=L.PART)
    p.I('v_bfe_u32 v5, v1, 3, 2\nv_mul_u32_u24 v5, %d, v5\nv_and_b32 v6, 7, v1\nv_lshl_add_u32 v5, v6, 5, v5\nv_lshl_add_u32 v5, v3, 4, v5' % (8 * 9216))
    p.I('s_lshl_b32 s6, s5, 6\ns_add_u32 s6, s6, s4\ns_mul_i32 s6, s6, 9216\nv_add_u32 v21, s6, v5')
    p.I('v_bfe_u32 v5, v1, 3, 1\nv_mul_u32_u24 v5, %d, v5\nv_and_b32 v6, 7, v1\nv_lshl_add_u32 v5, v6, 5, v5\nv_lshrrev_b32 v6, 4, v1\nv_lshl_add_u32 v5, v6, 3, v5' % (8 * 9216))
    p.I('s_lshl_b32 s7, s3, 8\ns_add_u32 s7, s7, s6\ns_add_u32 s7, s7, 8192\nv_add_u32 v63, s7, v5')

def mlp_main(c):
    p = c.p
    GA, GS, GB = 64, 128, 160
    BF, SF = 224, 144
    GT, GO = 32, 40
    F = Filler(p)
    def gelu_big(acc, vaddr):
        k = 0
        for e in range(2):
            for tt in range(2):
                a = acc + 16 * (e * 2 + tt)
                for h in range(2):
                    o = GO + 4 * (k % 2)
                    for q in range(2):
                        F.add('\n'.join(gelu4_lines(a + 8 * h + 4 * q, GT + 4 * q, o + 2 * q, 8, 20)))
                    F.add('ds_write_b128 v%d, %s offset:%d' % (vaddr, vr(o, 4), e * 4096 + h * 2048 + tt * 1024))
                    k += 1
    def gelu_small():
        for tq in range(4):
            o = GO + 2 * (tq % 2)
            F.add('\n'.join(gelu4_lines(GS + 4 * tq, GT + 4 * (tq % 2), o, 8, 20)))
            F.add('ds_write_b64 v62, %s offset:%d' % (vr(o, 2), (tq >> 1) * 1024 + (tq & 1) * 256))
    step = [0]
    side = []
    SPREAD = os.environ.get('SPREAD', '0') == '1'
    def emit_side(n=1):
        for _ in range(n):
            if side:
                txt, d, k = side.pop(0)
                d[k] = p.I(txt)
    def rd(txt, d, k):
        if SPREAD: side.append((txt, d, k))
        else: d[k] = p.I(txt)
    def big_step(accs, bregs, first):
        a = ar(4 * PERM[step[0] % RING], 4)
        for tt in range(2):
            cc = '0' if first else vr(accs[tt], 16)
            p.I('v_mfma_f32_32x32x16_bf16 %s, %s, %s, %s' % (vr(accs[tt], 16), a, vr(bregs[tt], 4), cc))
            emit_side()
            F.tick()
        wload(c); step[0] += 1
    stok = {}
    def small_step(acc, first):
        a = ar(4 * PERM[step[0] % RING], 4)
        emit_side(len(side))
        p.wait(stok.get('s'), c.wtok.get(step[0]))
        for tq in range(4):
            cc = '0' if first else vr(acc + 4 * tq, 4)
            p.I('v_mfma_f32_16x16x32_bf16 %s, %s, %s, %s' % (vr(acc + 4 * tq, 4), a, vr(SF + 4 * tq, 4), cc))
        F.tick()
        wload(c); step[0] += 1
    btok = {}
    def ld_act(ks):
        for tt in range(2):
            off = A2_BASE + (ks * 2 + tt) * 1024
            rd('ds_read_b128 %s, v%d offset:%d' % (vr(BF + 8 * (ks % 3) + 4 * tt, 4), (14 if off < 65536 else 24) + (ks & 3), off % 65536), btok, ks)
    def ld_act_small(K2):
        for tq in range(4):
            off = A2_BASE + K2 * 4096 + (tq >> 1) * 1024 + (tq & 1) * 256
            rd('ds_read_b128 %s, v%d offset:%d' % (vr(SF + 4 * tq, 4), (28 if off < 65536 else 30) + (K2 & 1), off % 65536), stok, 's')
    def ld_g(ksf):
        for tt in range(2):
            off = (ksf * 2 + tt) * 1024
            rd('ds_read_b128 %s, v%d offset:%d' % (vr(BF + 8 * (ksf % 3) + 4 * tt, 4), 18 if off < 65536 else 19, off % 65536), btok, ksf)
    def ld_g_small(K2):
        for tq in range(4):
            off = K2 * 4096 + (tq >> 1) * 1024 + (tq & 1) * 256
            rd('ds_read_b128 %s, v%d offset:%d' % (vr(SF + 4 * tq, 4), 60 if off < 65536 else 61, off % 65536), stok, 's')
    def loop(acc, ntile, sacc, ldb, lds_, barrier_at=None, hook=None):
        ldb(0); ldb(1); emit_side(len(side))
        for ks in range(36):
            if hook: hook(ks)
            if barrier_at is not None and ks == barrier_at:
                F.flush()
                p.I('s_waitcnt lgkmcnt(0)\ns_barrier')
                ldb(ks); ldb(ks + 1); emit_side(len(side))
            nx = ks + 2
            if nx < 36 and not (barrier_at is not None and barrier_at - 2 <= ks < barrier_at): ldb(nx)
            if sacc is not None and ks % 2 == 0: lds_(ks >> 1)
            b = [BF + 8 * (ks % 3) + 4 * tt for tt in range(2)]
            p.wait(btok.get(ks), c.wtok.get(step[0] + ntile - 1))
            for e in range(ntile):
                big_step([acc + 16 * (e * 2 + tt) for tt in range(2)], b, ks == 0)
            if sacc is not None and ks % 2 == 1: small_step(sacc, ks == 1)
    final_setup(c, F); F.set_rate(120)
    loop(GA, 2, GS, ld_act, ld_act_small)
    F.flush()
    c.mstamp(1)
    gelu_big(GA, 22); gelu_small(); F.set_rate(144 - 6)
    loop(GB, 2, None, ld_act, None)
    F.flush()
    c.mstamp(2)
    p.I('s_waitcnt lgkmcnt(0)\ns_barrier')
    O = [64, 96, 64, 96]; OS = 128
    def publish_big(acc, e):
        Ls = []
        for tt in range(2):
            a = acc + 16 * tt
            pk = 44 + 8 * tt
            for d in range(8): Ls.append('v_cvt_pk_bf16_f32 v%d, v%d, v%d' % (pk + d, a + 2 * d, a + 2 * d + 1))
            Ls.append('s_add_u32 s7, s10, %d' % (tt * 4 * 8 * 9216 + e * 2048))
            Ls.append('buffer_store_dwordx4 %s, v21, s[68:71], s7 offen%s' % (vr(pk, 4), c.sc))
            Ls.append('buffer_store_dwordx4 %s, v21, s[68:71], s7 offen offset:256%s' % (vr(pk + 4, 4), c.sc))
        return '\n'.join(Ls)
    def publish_small():
        Ls = []
        for tq in range(4):
            a = OS + 4 * tq; pk = 32 + 2 * tq
            Ls.append('v_cvt_pk_bf16_f32 v%d, v%d, v%d' % (pk, a, a + 1)); Ls.append('v_cvt_pk_bf16_f32 v%d, v%d, v%d' % (pk + 1, a + 2, a + 3))
            Ls.append('s_mov_b32 s7, %d' % (tq * 2 * 8 * 9216))
            Ls.append('buffer_store_dwordx2 %s, v63, s[68:71], s7 offen%s' % (vr(pk, 2), c.sc))
        return '\n'.join(Ls)
    p.I('s_lshl_b32 s10, s3, 9')
    def kloop(ks0, ks1, accs, sacc, hook=None):
        ld_g(ks0); ld_g(ks0 + 1); emit_side(len(side))
        for ks in range(ks0, ks1):
            if hook: hook(ks)
            if ks + 2 < ks1: ld_g(ks + 2)
            if sacc is not None and ks % 2 == 0: ld_g_small(ks >> 1)
            b = [BF + 8 * (ks % 3) + 4 * tt for tt in range(2)]
            p.wait(btok.get(ks), c.wtok.get(step[0] + len(accs) - 1))
            for acc in accs: big_step([acc + 16 * tt for tt in range(2)], b, ks == 0)
            if sacc is not None and ks % 2 == 1: small_step(sacc, ks == 1)
    gelu_big(GB, 23); F.set_rate(80 + 10 - 4)
    kloop(0, 20, [O[0], O[1]], OS)
    F.flush()
    p.I('s_waitcnt lgkmcnt(0)\ns_barrier')
    kloop(20, 36, [O[0]], OS)
    c.mstamp(3)
    F.add(publish_big(O[0], 0)); F.add(publish_small()); F.set_rate(28)
    kloop(20, 36, [O[1]], None)
    F.flush()
    if os.environ.get('FB'): c.stamp(5)
    if os.environ.get('OPSLATE', '0') == '0': final_ops(c)
    F.add(publish_big(O[1], 1)); F.set_rate(24)
    tok01 = [None]
    def hook2(ks):
        if ks == 16: F.flush(); tok01[0] = F.last_tok
        if ks == 30 and not os.environ.get('LATEG'):
            if os.environ.get('FB'): c.stamp(6)
            p.wait(tok01[0]); p.I('s_barrier'); c.arrive_part(0)
            if os.environ.get('FB'): c.stamp(7)
    kloop(0, 36, [O[2]], None, hook=hook2)
    if os.environ.get('FB'): c.stamp(8)
    F.add(publish_big(O[2], 2)); F.set_rate(24)
    def hook3(ks):
        if os.environ.get('LATEG'): return
        if ks == 18: c.poll_issue()
        if ks == 28:
            if os.environ.get('FB'): c.stamp(11)
            c.poll_check()
            if os.environ.get('FB'): c.stamp(12)
            final_gather(c, 0)
            if os.environ.get('FB'): c.stamp(9)
    kloop(0, 36, [O[3]], None, hook=hook3)
    F.flush()
    p.I(publish_big(O[3], 3))
    if os.environ.get('OPSLATE', '0') == '1': final_ops(c)

FA, FB, FROW, FGB, FROWS, FGBS, FOOB = 4, 5, 6, 7, 8, 9, 10
PGA = 160
PS = 192
OPS = 208

class _Collect:
    def __init__(self, F): self.F = F
    def I(self, text, nowait=False): self.F.add(text)

def final_setup(c, F=None):
    p = c.p if F is None else _Collect(F)
    srd(p, 52, P_WS, L.S * 1152, off=L.X1); srd(p, 56, P_WS, L.S * 1152, off=L.X2)
    srd(p, 60, P_OUT, L.S * 1152); srd(p, 48, P_WS, 6 * 576 * 4, off=L.MOD)
    p.I('s_mov_b32 s99, 0xffff0000')
    p.I('s_lshl_b32 s6, s5, 3\ns_add_u32 s6, s6, s4\ns_mul_i32 s6, s6, %d\nv_lshl_add_u32 v%d, v0, 4, s6' % (8 * 9216, FA))
    p.I('v_cmp_gt_u32 vcc, 128, v0\nv_mov_b32 v%d, 0x7f000000\nv_lshlrev_b32 v%d, 3, v0\nv_add_u32 v%d, s6, v%d\nv_add_u32 v%d, 8192, v%d\nv_cndmask_b32 v%d, v%d, v%d, vcc' % (FOOB, FB, FB, FB, FB, FB, FB, FOOB, FB))
    p.I('v_bfe_u32 v11, v0, 1, 3\ns_lshl_b32 s6, s5, 6\ns_lshl_b32 s7, s4, 3\ns_add_u32 s6, s6, s7\nv_add_u32 v11, s6, v11\ns_movk_i32 s7, 1152\nv_mul_lo_u32 v11, v11, s7')
    p.I('v_bfe_u32 v12, v0, 5, 2\nv_lshlrev_b32 v12, 6, v12\nv_lshrrev_b32 v13, 7, v0\nv_lshl_add_u32 v12, v13, 5, v12\nv_and_b32 v13, 1, v0\nv_lshl_add_u32 v12, v13, 4, v12\nv_bfe_u32 v13, v0, 4, 1\nv_lshl_add_u32 v12, v13, 3, v12')
    p.I('v_lshl_add_u32 v%d, v12, 1, v11\nv_lshlrev_b32 v%d, 2, v12\nv_add_u32 v%d, %d, v%d' % (FROW, FGB, FGB, 5 * 2304, FGB))
    p.I('v_bfe_u32 v11, v0, 2, 3\nv_add_u32 v11, s6, v11\nv_mul_lo_u32 v11, v11, s7')
    p.I('v_lshrrev_b32 v12, 5, v0\nv_lshlrev_b32 v12, 4, v12\nv_and_b32 v13, 3, v0\nv_lshl_add_u32 v12, v13, 2, v12\nv_add_u32 v12, 256, v12')
    p.I('v_lshl_add_u32 v%d, v12, 1, v11\nv_lshlrev_b32 v%d, 2, v12\nv_add_u32 v%d, %d, v%d' % (FROWS, FGBS, FGBS, 5 * 2304, FGBS))
    p.I('v_cndmask_b32 v%d, v%d, v%d, vcc\nv_cndmask_b32 v%d, v%d, v%d, vcc' % (FROWS, FOOB, FROWS, FGBS, FOOB, FGBS))

X1P = [208, 24]; X2P = [212, 28]; GBP = [216, 144]; SX1, SX2, SGB = 152, 154, 156
def final_ops(c):
    p = c.p
    for k in range(2):
        p.I('buffer_load_dwordx4 %s, v%d, s[52:55], 0 offen offset:%d%s' % (vr(X1P[k], 4), FROW, 640 * k, c.sc))
        p.I('buffer_load_dwordx4 %s, v%d, s[56:59], 0 offen offset:%d%s' % (vr(X2P[k], 4), FROW, 640 * k, c.sc))
        p.I('buffer_load_dwordx4 %s, v%d, s[48:51], 0 offen offset:%d%s' % (vr(GBP[k], 4), FGB, 1280 * k, c.sc))
        p.I('buffer_load_dwordx4 %s, v%d, s[48:51], 0 offen offset:%d%s' % (vr(GBP[k] + 4, 4), FGB, 1280 * k + 16, c.sc))
    p.I('buffer_load_dwordx2 %s, v%d, s[52:55], 0 offen%s' % (vr(SX1, 2), FROWS, c.sc))
    p.I('buffer_load_dwordx2 %s, v%d, s[56:59], 0 offen%s' % (vr(SX2, 2), FROWS, c.sc))
    p.I('buffer_load_dwordx4 %s, v%d, s[48:51], 0 offen%s' % (vr(SGB, 4), FGBS, c.sc))

def final_gather(c, k):
    p = c.p
    for src in range(8):
        p.I('s_mov_b32 s7, %d\nbuffer_load_dwordx4 %s, v%d, s[68:71], s7 offen%s' % (src * 9216 + k * 4096, vr(PGA + 4 * src, 4), FA, c.sc))
    if k == 0:
        for src in range(8):
            p.I('s_mov_b32 s7, %d\nbuffer_load_dwordx2 %s, v%d, s[68:71], s7 offen%s' % (src * 9216, vr(PS + 2 * src, 2), FB, c.sc))

def final_piece(p, nd, src_reg, x1, x2, gb, out):
    AC, U = 32, 40
    for d in range(nd): unpack(p, AC + 2 * d, src_reg(0) + d, 99)
    for src in range(1, 8):
        u = U + 8 * (src % 2)
        for d in range(nd): unpack(p, u + 2 * d, src_reg(src) + d, 99)
        for d in range(nd): p.I('v_pk_add_f32 %s, %s, %s' % (vr(AC + 2 * d, 2), vr(AC + 2 * d, 2), vr(u + 2 * d, 2)))
    for d in range(nd): unpack(p, U + 2 * d, x2 + d, 99)
    for d in range(nd): p.I('v_pk_add_f32 %s, %s, %s' % (vr(AC + 2 * d, 2), vr(AC + 2 * d, 2), vr(U + 2 * d, 2)))
    for d in range(nd): unpack(p, U + 2 * d, x1 + d, 99)
    for d in range(nd): p.I('v_pk_fma_f32 %s, %s, %s, %s' % (vr(AC + 2 * d, 2), vr(AC + 2 * d, 2), vr(gb + 2 * d, 2), vr(U + 2 * d, 2)))
    for d in range(nd): p.I('v_cvt_pk_bf16_f32 v%d, v%d, v%d' % (out + d, AC + 2 * d, AC + 2 * d + 1))

def final_pair(c, k):
    p = c.p
    final_piece(p, 4, lambda src: PGA + 4 * src, X1P[k], X2P[k], GBP[k], 56)
    p.I('buffer_store_dwordx4 %s, v%d, s[60:63], 0 offen offset:%d' % (vr(56, 4), FROW, 640 * k))
    if k == 0:
        final_piece(p, 2, lambda src: PS + 2 * src, SX1, SX2, SGB, 60)
        p.I('buffer_store_dwordx2 %s, v%d, s[60:63], 0 offen' % (vr(60, 2), FROWS))
```

```python
import sys
sys.path.insert(0, 'gen')
from asmlib import *
import layout as L
import mk
import mlp32
import pt
from mk import (srd, udiv_magic, f2u, bf16_round, LOG2E, NAME, P_Q, P_K, P_V, P_SK, P_SSMK, P_SSMD, P_W1, P_W2, P_W3, P_W4,
                P_C, P_WMOD, P_OUT, P_DBG, P_WS, unpack, gelu_consts, gelu_inplace, reduce32, reduce8, small_out_addr, gemm_small,
                Filler, gelu_tile_lines, KC_STRIDE, KCOPY, XR_BASE, XR_STRIDE, RED_BASE, kernel_header, kernel_desc, assemble)

STAMPS = False
NCONV = 192
LS = 4352
K_SH, K_TOP, K_REL = 0, 16, 17
V_SH, V_TOP, V_REL = 18, 34, 35
M_CNT, M_REL, A_CNT, A_REL, B_CNT, B_REL = 36, 37, 38, 39, 40, 41
C_H1, C_X2, C_PART = 42, 106, 170
B3_CNT, B3_REL = 210, 211
C_PART0 = 212
C_PART1 = 256
NCNT = 320
S_SYNC = 72
SPIN_MAX = 1 << 17
import os
TAG_H1 = os.environ.get('TAG', '0') == '1'
PROBE = os.environ.get('PROBE', '1') == '1'
TAGZ = os.environ.get('TAGZ', '1') == '1'
import os
SLEEP = int(os.environ.get('SLEEP', '1'))

class Ctx:
    def __init__(self):
        self.p = Prog(); self.mega = True; self.sc = ' sc1'; self.first_arrive_done = False
    def stamp(self, k, force=False):
        if not STAMPS: return
        if os.environ.get('FINE2') and k in (6, 7, 8, 9, 10, 11, 12, 13) and not getattr(self, 'fine', False): return
        if os.environ.get('FB') and k in (5, 6, 7, 8, 9, 10, 11, 12) and not getattr(self, 'inmlp', False): return
        if os.environ.get('CYC'):
            self.p.I('s_memtime s[76:77]\ns_waitcnt lgkmcnt(0)\nv_accvgpr_write_b32 a%d, s76' % (232 + k))
        else:
            self.p.I('s_memrealtime s[76:77]\ns_waitcnt lgkmcnt(0)\nv_accvgpr_write_b32 a%d, s76' % (232 + k))
    def mstamp(self, i):
        if 1 <= i < 4: self.stamp(17 + i)
    def stamp_out(self):
        if not STAMPS: return
        p = self.p
        self.stamp(23)
        if os.environ.get('DBGST'):
            l = p.label_name('L_dbgst')
            p.I('s_cmp_lg_u32 s2, 7\ns_cbranch_scc1 %s\ns_cmp_lg_u32 s3, 0\ns_cbranch_scc1 %s' % (l, l))
            srd(p, 48, P_DBG, 256)
            p.I('v_accvgpr_read_b32 v3, a232\nv_mov_b32 v2, 0')
            for i, k in enumerate((1, 2, 4, 5, 7, 9, 10, 11, 13, 15, 16, 19, 21, 22, 23)):
                p.I('v_accvgpr_read_b32 v4, a%d\nv_sub_u32 v4, v4, v3\ns_mov_b64 exec, 1\nbuffer_store_dword v4, v2, s[48:51], 0 offen offset:%d\ns_mov_b64 exec, -1' % (232 + k, 4 * (i + 1)))
            p.label(l)
            return
        srd(p, 48, P_WS, 1 << 20, off=L.DBG)
        p.I('s_lshl_b32 s76, s2, 2\ns_add_u32 s76, s76, s3\ns_lshl_b32 s76, s76, 7\nv_mov_b32 v2, s76')
        for k in range(24): p.I('buffer_store_dword a%d, v2, s[48:51], 0 offen offset:%d' % (232 + k, 4 * k if k < 23 else 124))

def wave0(p, lab):
    p.I('s_cmp_lg_u32 s3, 0\ns_cbranch_scc1 %s' % lab)

def atomic_ret(p):
    p.I('v_mov_b32 v253, 1\nbuffer_atomic_add v253, v252, s[%d:%d], 0 offen sc0 sc1\ns_waitcnt vmcnt(0)\nv_readfirstlane_b32 s76, v253\ns_nop 3' % (S_SYNC, S_SYNC + 3), nowait=True)

def do_arrive(c, kind, check_ready=False, **kw):
    p = c.p
    if check_ready: ready_check(c, None if check_ready is True else check_ready)
    p.I('s_mov_b64 exec, 1')
    done = p.label_name('L_ad')
    if kind == 'add':
        if kw.get('sgpr') is None: p.I('v_mov_b32 v252, %d' % (kw['idx'] * LS))
        else: p.I('s_mul_i32 s76, s%d, %d\ns_add_u32 s76, s76, %d\nv_mov_b32 v252, s76' % (kw['sgpr'], LS, kw['idx'] * LS))
        p.I('v_mov_b32 v253, 1\nbuffer_atomic_add v253, v252, s[%d:%d], 0 offen sc1' % (S_SYNC, S_SYNC + 3), nowait=True)
    else:
        if kind == 'two':
            p.I('s_mul_i32 s76, s%d, %d\ns_add_u32 s76, s76, %d\nv_mov_b32 v252, s76' % (kw['sgpr'], LS, kw['sh'] * LS))
            atomic_ret(p)
            p.I('s_cmp_lg_u32 s76, %d\ns_cbranch_scc1 %s' % (kw['per'] - 1, done))
            cnt, n = kw['top'], kw['nsh']
        else: cnt, n = kw['cnt'], kw['n']
        p.I('v_mov_b32 v252, %d' % (cnt * LS))
        atomic_ret(p)
        p.I('s_cmp_lg_u32 s76, %d\ns_cbranch_scc1 %s' % (n - 1, done))
        p.I('v_mov_b32 v252, %d\nv_mov_b32 v253, 1\nbuffer_store_dword v253, v252, s[%d:%d], 0 offen sc1' % (kw['rel'] * LS, S_SYNC, S_SYNC + 3), nowait=True)
    p.label(done)
    p.I('s_mov_b64 exec, -1'); p.cut()

def arrive(c, kind, check_ready=False, **kw):
    p = c.p
    p.I('s_waitcnt vmcnt(%d) lgkmcnt(0)\ns_barrier' % kw.pop('keep', 0)); p.cut()
    lab = p.label_name('L_arr')
    wave0(p, lab)
    do_arrive(c, kind, check_ready, **kw)
    p.label(lab); p.cut()

def wave_arrive(c, kind, check_ready=False, **kw):
    c.p.I('s_waitcnt vmcnt(0) lgkmcnt(0)'); c.p.cut()
    do_arrive(c, kind, check_ready, **kw)

def ready_probe(c, vreg):
    p = c.p
    srd(p, 64, P_DBG, 256)
    p.I('v_mov_b32 v%d, 0\nbuffer_load_dword v%d, v%d, s[64:67], 0 offen sc1' % (vreg, vreg, vreg))

def ready_check(c, probe=None):
    p = c.p
    lp = p.label_name('L_rdy'); dn = p.label_name('L_rdy_done')
    if probe is not None:
        p.I('v_readfirstlane_b32 s76, v%d\ns_nop 3\ns_cmp_lg_u32 s76, 0\ns_cbranch_scc1 %s' % (probe, dn))
    srd(p, 8, P_DBG, 256)
    p.I('s_mov_b32 s77, 0\nv_mov_b32 v252, 0')
    p.label(lp)
    p.I('buffer_load_dword v253, v252, s[8:11], 0 offen sc1\ns_waitcnt vmcnt(0)\nv_readfirstlane_b32 s76, v253', nowait=True)
    p.I('s_nop 3\ns_cmp_lg_u32 s76, 0\ns_cbranch_scc1 %s\ns_sleep 2\ns_add_u32 s77, s77, 1\ns_cmp_lt_u32 s77, %d\ns_cbranch_scc1 %s' % (dn, SPIN_MAX, lp))
    p.label(dn); p.cut()

def wait_cnt(c, setup, nlanes):
    p = c.p
    lab = p.label_name('L_wt'); lp = p.label_name('L_poll')
    wave0(p, lab)
    setup(p)
    p.I('s_mov_b32 s77, 0')
    p.I('s_mov_b64 exec, 0x%x' % ((1 << nlanes) - 1))
    p.label(lp)
    p.I('buffer_load_dword v253, v252, s[%d:%d], 0 offen sc1\ns_waitcnt vmcnt(0)\nv_cmp_lt_u32 vcc, v253, v254' % (S_SYNC, S_SYNC + 3), nowait=True)
    p.I('s_add_u32 s77, s77, 1\ns_cmp_ge_u32 s77, %d\ns_cbranch_scc1 %s_x\ns_cbranch_vccz %s_x' % (SPIN_MAX, lp, lp))
    if SLEEP: p.I('s_sleep %d' % SLEEP)
    p.I('s_branch %s' % lp)
    p.label(lp + '_x')
    p.I('s_mov_b64 exec, -1')
    p.label(lab)
    p.I('s_barrier'); p.cut()

def monitor(c):
    p = c.p
    ready_check(c)
    p.I('v_mov_b32 v20, %d\nv_mov_b32 v21, %d' % (K_SH * LS, 36))
    p.I('v_mul_u32_u24 v22, %d, v1\nv_add_u32 v20, v20, v22' % LS)
    p.I('v_subrev_u32 v23, 16, v1\nv_mul_u32_u24 v23, %d, v23\nv_add_u32 v23, %d, v23' % (LS, V_SH * LS))
    p.I('v_cmp_le_u32 vcc, 16, v1\nv_cndmask_b32 v20, v20, v23, vcc\nv_mov_b32 v24, %d\nv_cndmask_b32 v21, v21, v24, vcc' % ((48 if TAG_H1 else 0) if TAGZ else 12))
    for lane, idx, tgt in ((32, M_CNT, 54), (33, A_CNT, 64), (34, B3_CNT, 63)):
        p.I('v_mov_b32 v23, %d\nv_mov_b32 v24, %d\nv_cmp_eq_u32 vcc, %d, v1\nv_cndmask_b32 v20, v20, v23, vcc\nv_cndmask_b32 v21, v21, v24, vcc' % (idx * LS, tgt, lane))
    p.I('s_mov_b32 s9, 0\ns_mov_b32 s10, 0\nv_mov_b32 v25, 1')
    lp = p.label_name('L_mon'); dn = p.label_name('L_mon_done')
    p.label(lp)
    p.I('s_mov_b64 exec, 0x3ffffffff' if False else 's_mov_b32 exec_lo, -1\ns_mov_b32 exec_hi, 7')
    p.I('buffer_load_dword v26, v20, s[%d:%d], 0 offen sc1\ns_waitcnt vmcnt(0)\nv_cmp_lt_u32 vcc, v26, v21' % (S_SYNC, S_SYNC + 3), nowait=True)
    p.I('s_nop 4\ns_mov_b64 s[6:7], vcc\ns_mov_b64 exec, 1')
    for bit, (expr, rel) in enumerate((('s_and_b32 s8, s6, 0xffff', K_REL), ('s_lshr_b32 s8, s6, 16', V_REL), ('s_and_b32 s8, s7, 1', M_REL), ('s_and_b32 s8, s7, 2', A_REL), ('s_and_b32 s8, s7, 4', B3_REL))):
        sk = p.label_name('L_ms')
        p.I('s_bitcmp1_b32 s9, %d\ns_cbranch_scc1 %s' % (bit, sk))
        p.I(expr)
        p.I('s_cmp_lg_u32 s8, 0\ns_cbranch_scc1 %s' % sk)
        p.I('v_mov_b32 v27, %d\nbuffer_store_dword v25, v27, s[%d:%d], 0 offen sc1\ns_bitset1_b32 s9, %d' % (rel * LS, S_SYNC, S_SYNC + 3, bit), nowait=True)
        p.label(sk)
    p.I('s_cmp_eq_u32 s9, 31\ns_cbranch_scc1 %s\ns_add_u32 s10, s10, 1\ns_cmp_lt_u32 s10, %d\ns_cbranch_scc1 %s' % (dn, SPIN_MAX, lp))
    p.label(dn)
    p.I('s_mov_b64 exec, -1\ns_waitcnt vmcnt(0)'); p.cut()

def wave_wait(c, *idx):
    p = c.p
    lp = p.label_name('L_ww')
    f, n = w_flags(*idx)
    f(p)
    p.I('s_mov_b32 s77, 0\ns_mov_b64 exec, 0x%x' % ((1 << n) - 1))
    p.label(lp)
    p.I('buffer_load_dword v253, v252, s[%d:%d], 0 offen sc1\ns_waitcnt vmcnt(0)\nv_cmp_lt_u32 vcc, v253, v254' % (S_SYNC, S_SYNC + 3), nowait=True)
    p.I('s_add_u32 s77, s77, 1\ns_cmp_ge_u32 s77, %d\ns_cbranch_scc1 %s_x\ns_cbranch_vccz %s_x\ns_sleep 1\ns_branch %s' % (SPIN_MAX, lp, lp, lp))
    p.label(lp + '_x')
    p.I('s_mov_b64 exec, -1'); p.cut()

def around_wait(c, fn, wait):
    p = c.p
    l0 = p.label_name('L_aw0'); l1 = p.label_name('L_aw1')
    p.I('s_cmp_eq_u32 s3, 0\ns_cbranch_scc1 %s' % l0)
    st = fn(None)
    p.label(l0); p.cut()
    wait()
    p.I('s_cmp_lg_u32 s3, 0\ns_cbranch_scc1 %s' % l1)
    fn(st)
    p.label(l1); p.cut()

def w_flags(*idx):
    def f(p):
        p.I('v_mov_b32 v252, %d\nv_mov_b32 v254, 1' % (idx[0] * LS))
        for k, i in enumerate(idx[1:]):
            p.I('v_mov_b32 v255, %d\nv_cmp_eq_u32 vcc, %d, v1\nv_cndmask_b32 v252, v252, v255, vcc' % (i * LS, k + 1))
    return f, len(idx)

def kv_addr(c):
    p = c.p
    m18 = udiv_magic(18, 800)
    p.I('s_mul_i32 s4, s2, 3\ns_add_u32 s4, s4, s3')
    p.I('s_mul_i32 s5, s4, %d\ns_lshr_b32 s5, s5, 16' % m18)
    p.I('s_mul_i32 s6, s5, 18\ns_sub_u32 s6, s4, s6')
    p.I('v_lshrrev_b32 v2, 2, v1\nv_and_b32 v3, 3, v1')
    p.I('s_lshl_b32 s7, s5, 6\nv_lshl_add_u32 v4, v2, 2, s7')
    p.I('s_lshl_b32 s8, s6, 6\nv_lshl_add_u32 v5, v3, 4, s8')
    p.I('s_movk_i32 s9, 1152\nv_mad_u32_u24 v6, v4, s9, v5')
    p.I('v_subrev_u32 v7, 3456, v6')
    p.I('s_mov_b32 s50, 0x%x\ns_mov_b32 s51, 0x20000\ns_mov_b32 s54, 0x%x\ns_mov_b32 s55, 0x20000' % (L.S * 1152, L.S * 1152))

def p0_kv(c, hook=None):
    p = c.p
    p.I('s_mov_b32 s48, s%d\ns_mov_b32 s49, s%d\ns_mov_b32 s52, s%d\ns_mov_b32 s53, s%d' % (P_K, P_K + 1, P_V, P_V + 1))
    KR, VR, SK = 8, 36, 52
    for i in range(3): p.I('buffer_load_dwordx4 %s, v7, s[48:51], 0 offen offset:%d' % (vr(KR + 4 * i, 4), 1152 * i))
    for i in range(4): p.I('buffer_load_dwordx4 %s, v6, s[48:51], 0 offen offset:%d' % (vr(KR + 4 * (3 + i), 4), 1152 * i))
    for i in range(4): p.I('buffer_load_dwordx4 %s, v6, s[52:55], 0 offen offset:%d' % (vr(VR + 4 * i, 4), 1152 * i))
    srd(p, 56, P_SK, 4608)
    p.I('v_lshlrev_b32 v68, 2, v5')
    for i in range(4): p.I('buffer_load_dwordx4 %s, v68, s[56:59], 0 offen offset:%d' % (vr(SK + 4 * i, 4), 16 * i))
    srd(p, 60, P_WS, L.D * 4096, off=L.XT)
    srd(p, S_SYNC, P_WS, 2 << 20, off=L.SYNC)
    if TAGZ:
        srd(p, 64, P_WS, L.D * 4096, off=L.ZT)
        p.I('v_mov_b32 v144, -1\nv_mov_b32 v145, -1\nv_mov_b32 v146, -1\nv_mov_b32 v147, -1')
        p.I('s_lshl_b32 s11, s4, 12\nv_lshl_add_u32 v148, v1, 4, s11')
        for u in range(4): p.I('buffer_store_dwordx4 v[144:147], v148, s[64:67], 0 offen offset:%d sc1' % (1024 * u))
    p.I('v_lshlrev_b32 v69, 11, v5\nv_lshlrev_b32 v70, 1, v4\nv_sub_u32 v69, v69, v70\nv_add_u32 v69, 4088, v69')
    if hook: hook(c)
    p.I('s_mov_b32 s10, 0xffff0000')
    c.kv_probe = True
    if os.environ.get('FINE2'):
        c.fine = True; c.stamp(12); p.I('s_waitcnt vmcnt(0)'); c.stamp(13); c.fine = False
    C, KP, VP, AC, OUT = 72, 80, 94, 102, 112
    for pr in range(4):
        if pr == 1: ready_probe(c, 140)
        a0, a1, b0, b1 = SK + 4 * pr, SK + 4 * pr + 1, SK + 4 * pr + 2, SK + 4 * pr + 3
        p.I('v_lshlrev_b32 v%d, 16, v%d\nv_lshlrev_b32 v%d, 16, v%d' % (C, a0, C + 1, b0))
        p.I('v_and_b32 v%d, s10, v%d\nv_and_b32 v%d, s10, v%d' % (C + 2, a0, C + 3, b0))
        p.I('v_lshlrev_b32 v%d, 16, v%d\nv_lshlrev_b32 v%d, 16, v%d' % (C + 4, a1, C + 5, b1))
        p.I('v_and_b32 v%d, s10, v%d\nv_and_b32 v%d, s10, v%d' % (C + 6, a1, C + 7, b1))
        for i in range(7):
            p.I('v_lshlrev_b32 v%d, 16, v%d\nv_and_b32 v%d, s10, v%d' % (KP + 2 * i, KR + 4 * i + pr, KP + 2 * i + 1, KR + 4 * i + pr))
        for t in range(4):
            p.I('v_lshlrev_b32 v%d, 16, v%d\nv_and_b32 v%d, s10, v%d' % (VP + 2 * t, VR + 4 * t + pr, VP + 2 * t + 1, VR + 4 * t + pr))
        for t in range(4):
            acc = vr(AC + 2 * t, 2)
            p.I('v_pk_mul_f32 %s, %s, %s' % (acc, vr(C + 6, 2), vr(KP + 2 * t, 2)))
            p.I('v_pk_fma_f32 %s, %s, %s, %s' % (acc, vr(C + 4, 2), vr(KP + 2 * (t + 1), 2), acc))
            p.I('v_pk_fma_f32 %s, %s, %s, %s' % (acc, vr(C + 2, 2), vr(KP + 2 * (t + 2), 2), acc))
            p.I('v_pk_fma_f32 %s, %s, %s, %s' % (acc, vr(C, 2), vr(KP + 2 * (t + 3), 2), acc))
            p.I('v_pk_mul_f32 %s, %s, %s' % (acc, acc, vr(VP + 2 * t, 2)))
        o = OUT + 4 * pr
        p.I('v_cvt_pk_bf16_f32 v%d, v%d, v%d' % (o, AC + 6, AC + 4))
        p.I('v_cvt_pk_bf16_f32 v%d, v%d, v%d' % (o + 1, AC + 2, AC + 0))
        p.I('v_cvt_pk_bf16_f32 v%d, v%d, v%d' % (o + 2, AC + 7, AC + 5))
        p.I('v_cvt_pk_bf16_f32 v%d, v%d, v%d' % (o + 3, AC + 3, AC + 1))
        for h in range(2):
            p.I('s_mov_b32 s11, %d' % (4096 * (2 * pr + h)))
            p.I('buffer_store_dwordx2 %s, v69, s[60:63], s11 offen%s' % (vr(o + 2 * h, 2), c.sc))

KCS8 = 8 * KCOPY
XR8 = 3 * KCS8
RED8 = XR8 + 3 * XR_STRIDE

def p1_kcopies(c, hook=None):
    p = c.p
    p.I('s_mul_i32 s4, s2, %d' % (3 * 4096))
    for ch in range(3):
        p.I('s_add_u32 s5, s4, %d' % (4096 * ch))
        srd(p, 48 + 4 * ch, P_SSMK, 4096, soff=5)
    NR = 5
    D = 16
    p.I('v_lshlrev_b32 v2, 4, v1\nv_subrev_u32 v3, 128, v2')
    for ch in range(3):
        for rd in range(NR):
            r = D + 8 * (ch * NR + rd)
            if rd == 0:
                p.I('buffer_load_dwordx4 %s, v3, s[%d:%d], 0 offen' % (vr(r, 4), 48 + 4 * ch, 51 + 4 * ch))
                p.I('v_subrev_u32 v4, 112, v2\nbuffer_load_dwordx4 %s, v4, s[%d:%d], 0 offen' % (vr(r + 4, 4), 48 + 4 * ch, 51 + 4 * ch))
            else:
                p.I('v_add_u32 v4, %d, v2' % (1024 * rd - 128))
                p.I('buffer_load_dwordx4 %s, v4, s[%d:%d], 0 offen' % (vr(r, 4), 48 + 4 * ch, 51 + 4 * ch))
                p.I('buffer_load_dwordx4 %s, v4, s[%d:%d], 0 offen offset:16' % (vr(r + 4, 4), 48 + 4 * ch, 51 + 4 * ch))
    if hook: hook(c)
    p.I('v_mov_b32 v8, 0\nv_mov_b32 v9, 0\nv_mov_b32 v10, 0\nv_mov_b32 v11, 0')
    p.I('v_lshrrev_b32 v5, 4, v1\nv_and_b32 v6, 15, v1\nv_mul_u32_u24 v5, 48, v5\nv_add_u32 v5, v5, v6\nv_lshlrev_b32 v5, 4, v5\nv_add_u32 v5, %d, v5' % (XR8 + 32 * 16))
    for ch in range(3):
        p.I('ds_write_b128 v5, v[8:11] offset:%d\nds_write_b128 v5, v[8:11] offset:%d' % (ch * XR_STRIDE, ch * XR_STRIDE + 4 * 48 * 16))
    p.I('v_add_u32 v12, %d, v2\nv_add_u32 v13, %d, v2' % (KCS8, 2 * KCS8))
    T = 140
    for ch in range(3):
        va = (2, 12, 13)[ch]
        for rd in range(NR):
            r = D + 8 * (ch * NR + rd)
            t = T + 16 * ((ch * NR + rd) % 2)
            off = 1024 * rd
            if rd == NR - 1: p.I('s_mov_b64 exec, 0xfffff')
            for k in range(4): p.I('v_alignbit_b32 v%d, v%d, v%d, 16' % (t + k, r + k + 1, r + k))
            for k in range(4): p.I('v_mov_b32 v%d, v%d' % (t + 4 + k, r + k + 1))
            for k in range(4): p.I('v_alignbit_b32 v%d, v%d, v%d, 16' % (t + 8 + k, r + k + 2, r + k + 1))
            p.I('ds_write_b128 v%d, %s offset:%d' % (va, vr(t, 4), off))
            p.I('ds_write_b128 v%d, %s offset:%d' % (va, vr(t + 4, 4), off + KCOPY))
            p.I('ds_write_b128 v%d, %s offset:%d' % (va, vr(t + 8, 4), off + 2 * KCOPY))
            p.I('ds_write_b128 v%d, %s offset:%d' % (va, vr(r + 2, 4), off + 3 * KCOPY))
            for k in range(4): p.I('v_alignbit_b32 v%d, v%d, v%d, 16' % (t + 12 + k, r + k + 3, r + k + 2))
            p.I('ds_write_b128 v%d, %s offset:%d' % (va, vr(t + 12, 4), off + 4 * KCOPY))
            u = 172 if False else None
            for k in range(4): p.I('v_mov_b32 v%d, v%d' % (t + k, r + k + 3))
            for k in range(4): p.I('v_alignbit_b32 v%d, v%d, v%d, 16' % (t + 4 + k, r + k + 4, r + k + 3))
            p.I('ds_write_b128 v%d, %s offset:%d' % (va, vr(t, 4), off + 5 * KCOPY))
            p.I('ds_write_b128 v%d, %s offset:%d' % (va, vr(t + 4, 4), off + 6 * KCOPY))
            p.I('ds_write_b128 v%d, %s offset:%d' % (va, vr(r + 4, 4), off + 7 * KCOPY))
            if rd == NR - 1: p.I('s_mov_b64 exec, -1')

def p1_main(c):
    p = c.p
    srd(p, 48, P_WS, L.D * 4096, off=L.XT); srd(p, 52, P_WS, L.D * 4096, off=L.ZT)
    p.I('s_mul_i32 s4, s2, %d\ns_lshl_b32 s5, s3, 10\ns_add_u32 s5, s5, s4\nv_lshl_add_u32 v2, v1, 4, s5' % (3 * 4096))
    for ch in range(3):
        p.I('s_movk_i32 s6, %d\nbuffer_load_dwordx4 %s, v2, s[48:51], s6 offen%s' % (4096 * ch, vr(8 + 4 * ch, 4), c.sc))
    srd(p, 60, P_SSMD, 1152)
    p.I('s_mul_i32 s8, s2, 3\ns_min_u32 s9, s3, 2\ns_add_u32 s8, s8, s9\ns_lshl_b32 s8, s8, 1\nv_mov_b32 v20, s8')
    p.I('buffer_load_ushort v23, v20, s[60:63], 0 offen')
    p.I('v_and_b32 v3, 7, v1\nv_mul_u32_u24 v3, 48, v3\nv_lshrrev_b32 v4, 3, v1\nv_add_u32 v3, v3, v4\ns_lshl_b32 s6, s3, 3\nv_add_u32 v3, s6, v3\nv_lshlrev_b32 v3, 4, v3\nv_add_u32 v3, %d, v3' % XR8)
    VA0, VB0, VA, VB = 24, 25, 26, 27
    p.I('v_and_b32 v4, 7, v1\nv_mul_u32_u24 v4, %d, v4\nv_lshrrev_b32 v5, 4, v1\nv_bfe_u32 v6, v1, 3, 1\nv_add_u32 v6, v6, v5\nv_lshl_add_u32 v%d, v6, 4, v4' % (KCOPY, VA0))
    p.I('v_mul_u32_u24 v4, 48, v5\nv_and_b32 v6, 15, v1\nv_sub_u32 v4, v4, v6\nv_add_u32 v4, 15, v4\nv_lshlrev_b32 v%d, 4, v4' % VB0)
    wg_rb_ns(p)
    wfrag_setup(c, L.W1T, 64, 160)
    sent = sentinel_setup(c) if TAG_H1 else []
    for ch in range(3):
        p.I('ds_write_b128 v3, %s offset:%d' % (vr(8 + 4 * ch, 4), ch * XR_STRIDE))
    p.I('v_lshlrev_b32 v23, 16, v23')
    p.I('s_waitcnt lgkmcnt(0)\ns_barrier')
    p.cut()
    c.stamp(3)
    AS, BS1, BS0, ACC1, ACC0 = 32, 96, 112, 128, 144
    DIST = int(os.environ.get('DIST', '4'))
    w1 = [(e, ks) for ks in range(18) for e in range(3)]
    sq = list(sent)
    def w1_load():
        if not w1:
            if sq: p.I(sq.pop(0))
            return
        e, ks = w1.pop(0)
        if os.environ.get('NOW1') == '2': return
        if ks % 4 == 0 and ks > 0: p.I('v_add_u32 v%d, 4096, v%d' % (160 + e, 160 + e))
        p.I('buffer_load_dwordx4 %s, v%d, s[64:67], 0 offen offset:%d%s' % (ar(4 * (e * 18 + ks), 4), 160 + e, 1024 * (ks % 4), c.sc))
    def ldA(k, rel):
        r = AS + 8 * (k % 8)
        for f in range(2): p.I('ds_read_b128 %s, v%d offset:%d' % (vr(r + 4 * f, 4), VA, 64 * rel + 32 * f))
    def ldB(base, q, ct):
        p.I('ds_read_b128 %s, v%d offset:%d' % (vr(base + 4 * (q % 4), 4), VB, ((q & 1) * 4 * 48 + (q >> 1) + 16 * (1 - ct)) * 16))
    def segment(q0, q1, cts, every):
        act = lambda q: [x for x in cts if x[1] <= q < x[2]]
        for k in range(q0, q0 + DIST + 1): ldA(k, k)
        for q in range(q0, q0 + DIST):
            for ct, a0, a1, acc, bs in act(q): ldB(bs, q, ct)
        cnt = 0
        for q in range(q0, q1):
            for idx, (ct, a0, a1, acc, bs) in enumerate(act(q)):
                for rt in range(4):
                    a = AS + 8 * ((q + rt // 2) % 8) + 4 * (rt % 2)
                    p.I('v_mfma_f32_16x16x32_bf16 %s, %s, %s, %s' % (vr(acc + 4 * rt, 4), vr(a, 4), vr(bs + 4 * (q % 4), 4), '0' if q == a0 else vr(acc + 4 * rt, 4)))
                    if idx == 0 and rt == 0 and q + DIST + 1 <= q1: ldA(q + DIST + 1, q + DIST + 1)
                    if rt == 3 and q + DIST < a1: ldB(bs, q + DIST, ct)
            cnt += 1
            if cnt % every == 0 and os.environ.get('NOW1') != '1': w1_load()
    lw3 = p.label_name('L_cw3'); lj = p.label_name('L_cj')
    p.I('s_cmp_eq_u32 s3, 3\ns_cbranch_scc1 %s' % lw3)
    p.I('s_mul_i32 s14, s3, %d\nv_add_u32 v%d, s14, v%d\ns_mul_i32 s14, s3, %d\ns_add_u32 s14, s14, %d\nv_add_u32 v%d, s14, v%d' % (KCS8, VA, VA0, XR_STRIDE, XR8, VB, VB0))
    segment(0, 64, [(1, 0, 64, ACC1, BS1), (0, 0, 8, ACC0, BS0)], 1)
    while w1 or sq: w1_load()
    p.I('v_mov_b32 v174, %d\nbuffer_load_dword v174, v174, s[%d:%d], 0 offen sc1' % (M_REL * LS, S_SYNC, S_SYNC + 3))
    p.I('s_branch %s' % lj); p.cut()
    p.label(lw3)
    w1[:] = [(e, ks) for ks in range(18) for e in range(3)]
    sq[:] = list(sent)
    for ch in range(3):
        p.I('v_add_u32 v%d, %d, v%d\nv_add_u32 v%d, %d, v%d' % (VA, ch * KCS8, VA0, VB, XR8 + ch * XR_STRIDE, VB0))
        segment(8, 32, [(0, 8, 32, ACC0 if ch % 2 == 0 else ACC1, BS0)], 1)
        acc = ACC0 if ch % 2 == 0 else ACC1
        p.I('v_lshlrev_b32 v2, 4, v1\nv_add_u32 v2, %d, v2' % (RED8 + 4096 * ch))
        for rt in range(4): p.I('ds_write_b128 v2, %s offset:%d' % (vr(acc + 4 * rt, 4), 1024 * rt))
    while w1 or sq: w1_load()
    p.I('v_mov_b32 v174, %d\nbuffer_load_dword v174, v174, s[%d:%d], 0 offen sc1' % (M_REL * LS, S_SYNC, S_SYNC + 3))
    p.label(lj)
    p.I('s_waitcnt vmcnt(0) lgkmcnt(0)\ns_barrier')
    p.cut()
    c.stamp(4)
    ok = p.label_name('L_mok')
    p.I('v_readfirstlane_b32 s76, v174\ns_nop 3\ns_cmp_lg_u32 s76, 0\ns_cbranch_scc1 %s' % ok)
    wave_wait(c, M_REL)
    p.label(ok); p.cut()
    if TAGZ and TAG_H1:
        p.I('s_and_b32 s78, s2, 15')
        do_arrive(c, 'add', idx=V_SH, sgpr=78)
    srd(p, 56, P_WS, 6 * 576 * 4, off=L.MOD)
    p.I('v_lshlrev_b32 v8, 4, v0')
    for u in range(3): p.I('s_movk_i32 s7, %d\nbuffer_load_dwordx4 %s, v8, s[56:59], s7 offen%s' % (4096 * u, vr(236 + 4 * u, 4), c.sc))
    done = p.label_name('L_conv_done')
    p.I('s_cmp_eq_u32 s3, 3\ns_cbranch_scc1 %s' % done)
    p.I('s_lshl_b32 s14, s3, 12\ns_add_u32 s14, s14, %d\nv_lshl_add_u32 v2, v1, 4, s14' % RED8)
    T = 32
    for rt in range(4): p.I('ds_read_b128 %s, v2 offset:%d' % (vr(T + 4 * rt, 4), 1024 * rt))
    p.I('v_lshrrev_b32 v5, 5, v1\nv_sub_u32 v5, 1, v5\nv_mul_u32_u24 v5, 48, v5\nv_and_b32 v6, 15, v1\nv_sub_u32 v5, v5, v6\nv_add_u32 v5, 15, v5\nv_lshlrev_b32 v5, 4, v5')
    p.I('v_bfe_u32 v6, v1, 4, 1\nv_sub_u32 v6, 1, v6\nv_lshl_add_u32 v5, v6, 3, v5')
    p.I('s_mul_i32 s14, s3, %d\ns_add_u32 s14, s14, %d\nv_add_u32 v5, s14, v5' % (XR_STRIDE, XR8))
    X = 48
    for ct in range(2):
        for rt in range(4):
            p.I('ds_read_b64 %s, v5 offset:%d' % (vr(X + 8 * ct + 2 * rt, 2), (2 * (3 - rt) * 48 + 16 * (1 - ct)) * 16))
    for i in range(16): p.I('v_add_f32 v%d, v%d, v%d' % (ACC0 + i, ACC0 + i, T + i))
    p.I('s_mul_i32 s14, s2, 3\ns_add_u32 s14, s14, s3\ns_lshl_b32 s14, s14, 12')
    p.I('v_and_b32 v6, 7, v1\nv_lshl_add_u32 v6, v6, 7, s14\nv_lshrrev_b32 v7, 5, v1\nv_lshl_add_u32 v6, v7, 4, v6\nv_bfe_u32 v7, v1, 4, 1\nv_lshl_add_u32 v6, v7, 5, v6\nv_bfe_u32 v7, v1, 3, 1\nv_lshl_add_u32 v6, v7, 6, v6')
    p.I('s_mov_b32 s10, 0xffff0000')
    Z, U = 64, 80
    for ct in range(2):
        src = ACC0 if ct == 0 else ACC1
        for rt in range(4):
            x0, x1 = X + 8 * ct + 2 * rt, X + 8 * ct + 2 * rt + 1
            a = src + 4 * rt
            p.I('v_and_b32 v%d, s10, v%d\nv_lshlrev_b32 v%d, 16, v%d\nv_and_b32 v%d, s10, v%d\nv_lshlrev_b32 v%d, 16, v%d' % (U, x1, U + 1, x1, U + 2, x0, U + 3, x0))
            for r in range(4): p.I('v_fmac_f32 v%d, v23, v%d' % (a + r, U + r))
            zb = Z + 8 * ct + 4 * (rt // 2) + 2 * (rt % 2)
            p.I('v_cvt_pk_bf16_f32 v%d, v%d, v%d\nv_cvt_pk_bf16_f32 v%d, v%d, v%d' % (zb, a, a + 1, zb + 1, a + 2, a + 3))
        P0_, P1_ = Z + 8 * ct, Z + 8 * ct + 4
        for zb in (P0_, P1_):
            p.I('v_permlane16_swap_b32 v%d, v%d\nv_permlane16_swap_b32 v%d, v%d' % (zb, zb + 2, zb + 1, zb + 3))
        T_ = 84
        for k in range(4): p.I('v_mov_b32 v%d, v%d' % (T_ + k, P0_ + k))
        for k in range(4): p.I('v_mov_b32_dpp v%d, v%d row_ror:8 row_mask:0xf bank_mask:0xc' % (P0_ + k, P1_ + k))
        for k in range(4): p.I('v_mov_b32_dpp v%d, v%d row_ror:8 row_mask:0xf bank_mask:0x3' % (P1_ + k, T_ + k))
        p.I('buffer_store_dwordx4 %s, v6, s[52:55], 0 offen offset:%d%s' % (vr(P0_, 4), 2048 * ct, c.sc))
        p.I('buffer_store_dwordx4 %s, v6, s[52:55], 0 offen offset:%d%s' % (vr(P1_, 4), 2048 * ct + 1024, c.sc))
    p.label(done)

MODW = 100
def p0_mod_loads(c, wg0):
    p = c.p
    p.I('s_sub_u32 s4, s2, %d' % wg0)
    srd(p, 8, P_C, 1152); srd(p, 52, P_WMOD, 576 * 6912)
    p.I('v_lshlrev_b32 v90, 1, v0')
    for i in range(3): p.I('buffer_load_ushort v%d, v90, s[8:11], 0 offen offset:%d' % (172 + i, 512 * i))
    p.I('v_lshrrev_b32 v91, 3, v0\nv_and_b32 v92, 7, v0')
    p.I('s_lshl_b32 s6, s4, 7\nv_lshl_add_u32 v93, v92, 4, s6\ns_movk_i32 s7, 6912\nv_mad_u32_u24 v93, v91, s7, v93')
    for i in range(18):
        p.I('buffer_load_dwordx4 %s, v93, s[52:55], 0 offen' % vr(MODW + 4 * i, 4))
        if i < 17: p.I('v_add_u32 v93, %d, v93' % (32 * 6912))

MODL = 131072
def p0_mod_compute(c, wg0):
    p = c.p
    W = MODW
    p.I('s_sub_u32 s4, s2, %d' % wg0)
    srd(p, 52, P_WS, 6 * 576 * 4, off=L.MOD)
    p.I('v_lshrrev_b32 v8, 3, v0\nv_and_b32 v9, 7, v0')
    p.I('s_mov_b32 s8, 0x%x' % f2u(-LOG2E))
    p.I('v_lshlrev_b32 v12, 2, v0\nv_add_u32 v12, %d, v12' % MODL)
    for i in range(3):
        r = 172 + i
        p.I('v_lshlrev_b32 v%d, 16, v%d' % (r, r))
        p.I('v_mul_f32 v13, s8, v%d\nv_exp_f32 v13, v13\nv_add_f32 v13, 1.0, v13\nv_rcp_f32 v13, v13\nv_mul_f32 v13, v%d, v13' % (r, r))
        bf16_round(p, 13, 13)
        p.I('ds_write_b32 v12, v13 offset:%d' % (1024 * i))
    p.I('s_waitcnt lgkmcnt(0)\ns_barrier')
    p.I('v_lshlrev_b32 v14, 2, v8\nv_add_u32 v14, %d, v14' % MODL)
    SV = 40
    for i in range(18): p.I('ds_read_b32 v%d, v14 offset:%d' % (SV + i, 128 * i))
    AC, T = 16, 24
    p.I('s_mov_b32 s10, 0xffff0000')
    for i in range(18):
        for d in range(4): unpack(p, T + 2 * d, W + 4 * i + d, 10)
        for d in range(4):
            sv = vr((SV + i) & ~1, 2)
            mods = 'op_sel_hi:[1,0,1]' if i % 2 == 0 else 'op_sel:[0,1,0] op_sel_hi:[1,1,1]'
            if i == 0: p.I('v_pk_mul_f32 %s, %s, %s op_sel_hi:[1,0]' % (vr(AC + 2 * d, 2), vr(T + 2 * d, 2), sv))
            else: p.I('v_pk_fma_f32 %s, %s, %s, %s %s' % (vr(AC + 2 * d, 2), vr(T + 2 * d, 2), sv, vr(AC + 2 * d, 2), mods))
    p.I('v_lshlrev_b32 v15, 8, v8\nv_lshl_add_u32 v15, v9, 5, v15\nv_add_u32 v15, %d, v15' % MODL)
    p.I('ds_write_b128 v15, %s offset:4096\nds_write_b128 v15, %s offset:4112' % (vr(AC, 4), vr(AC + 4, 4)))
    p.I('s_waitcnt lgkmcnt(0)\ns_barrier')
    lab = p.label_name('L_mod_skip')
    wave0(p, lab)
    p.I('v_lshlrev_b32 v14, 2, v0\nv_add_u32 v14, %d, v14' % MODL)
    W2_ = 40
    for i in range(32): p.I('ds_read_b32 v%d, v14 offset:%d' % (W2_ + i, 4096 + 256 * i))
    n = 32
    while n > 1:
        n //= 2
        for i in range(n): p.I('v_add_f32 v%d, v%d, v%d' % (W2_ + i, W2_ + i, W2_ + i + n))
    p.I('v_mov_b32 v16, v%d' % W2_)
    bf16_round(p, 16, 16)
    m9 = udiv_magic(9, 64)
    p.I('s_mul_i32 s9, s4, %d\ns_lshr_b32 s9, s9, 16' % m9)
    p.I('s_cmp_eq_u32 s9, 1\ns_cselect_b32 s11, 1, 0\ns_cmp_eq_u32 s9, 4\ns_cselect_b32 s11, 1, s11')
    p.I('v_cvt_f32_u32 v17, s11\nv_add_f32 v16, v16, v17')
    bf16_round(p, 16, 16)
    p.I('s_lshl_b32 s6, s4, 8\nv_lshl_add_u32 v18, v0, 2, s6')
    p.I('buffer_store_dword v16, v18, s[52:55], 0 offen%s' % c.sc)
    p.label(lab); p.cut()

PT_NB = 4
def pt_setup(c):
    p = c.p
    p.I('v_lshrrev_b32 v2, 3, v1\nv_and_b32 v3, 7, v1\nv_lshlrev_b32 v3, 4, v3')
    p.I('v_lshrrev_b32 v4, 4, v1\nv_bfe_u32 v5, v1, 2, 2\nv_and_b32 v9, 3, v1')
    p.I('v_lshl_add_u32 v6, v4, 3, v5\nv_lshlrev_b32 v6, 7, v6\nv_lshl_add_u32 v6, v9, 3, v6')
    p.I('v_lshl_add_u32 v7, v4, 2, v5\nv_lshlrev_b32 v7, 7, v7\nv_lshl_add_u32 v7, v9, 5, v7')
    p.I('v_lshlrev_b32 v8, 4, v1')
    p.I('s_mul_i32 s96, s3, %d' % (PT_NB * 4096))
    srd(p, 48, P_W1, 576 * 1152); srd(p, 52, P_W2, 576 * 1152); srd(p, 56, P_W3, 576 * 9216); srd(p, 60, P_W4, 4608 * 1152)
    srd(p, 68, P_WS, L.W34T + 32 * 324 * 1024 - L.W1T, off=L.W1T)

def pt_src(c, su, mode):
    p = c.p
    if mode == '12':
        p.I('s_cmp_ge_u32 s%d, 162\ns_cselect_b32 s15, 1, 0\ns_cselect_b32 s7, 162, 0\ns_sub_u32 s7, s%d, s7' % (su, su))
        p.I('s_mul_i32 s8, s7, %d\ns_lshr_b32 s8, s8, 16\ns_mul_i32 s9, s8, 9\ns_sub_u32 s9, s7, s9' % udiv_magic(9, 600))
        p.I('s_movk_i32 s11, 1152')
        p.I('s_cmp_eq_u32 s15, 1')
        for k in range(4): p.I('s_cselect_b32 s%d, s%d, s%d' % (64 + k, 52 + k, 48 + k))
        lim = 324
    else:
        p.I('s_cmp_ge_u32 s%d, 1296\ns_cselect_b32 s15, 1, 0\ns_cselect_b32 s7, 1296, 0\ns_sub_u32 s7, s%d, s7' % (su, su))
        p.I('s_mul_i32 s8, s7, %d\ns_lshr_b32 s8, s8, 20\ns_mul_i32 s12, s7, %d\ns_lshr_b32 s12, s12, 20' % (udiv_magic(72, 2600, 20), udiv_magic(9, 2600, 20)))
        p.I('s_cmp_eq_u32 s15, 1\ns_cselect_b32 s8, s12, s8\ns_cselect_b32 s12, 9, 72\ns_movk_i32 s11, 9216\ns_cselect_b32 s11, 1152, s11')
        for k in range(4): p.I('s_cselect_b32 s%d, s%d, s%d' % (64 + k, 60 + k, 56 + k))
        p.I('s_mul_i32 s9, s8, s12\ns_sub_u32 s9, s7, s9')
        lim = 2592
    p.I('s_mul_i32 s10, s8, s11\ns_lshl_b32 s10, s10, 5\ns_lshl_b32 s12, s9, 7\ns_add_u32 s10, s10, s12')
    p.I('s_cmp_ge_u32 s%d, %d\ns_cselect_b32 s10, 0x7f000000, s10' % (su, lim))

def pt_dst(c, su, mode):
    p = c.p
    m18 = udiv_magic(18, 300)
    if mode == '12':
        p.I('s_mul_i32 s12, s9, %d\ns_lshl_b32 s13, s8, 10\ns_add_u32 s12, s12, s13\ns_mul_i32 s13, s15, %d\ns_add_u32 s12, s12, s13' % (4 * 18 * 1024, L.W2T - L.W1T))
        for j in range(4): p.I('s_add_u32 s%d, s12, %d' % (80 + j, j * 18 * 1024))
        lim = 324
    else:
        w4 = p.label_name('L_d4'); dn = p.label_name('L_dd')
        p.I('s_cmp_eq_u32 s15, 1\ns_cbranch_scc1 %s' % w4)
        for j in range(4):
            p.I('s_lshl_b32 s12, s9, 2\ns_add_u32 s12, s12, %d' % j)
            p.I('s_mul_i32 s13, s12, %d\ns_lshr_b32 s13, s13, 16\ns_mul_i32 s14, s13, 36\ns_sub_u32 s12, s12, s14' % udiv_magic(36, 300))
            p.I('s_mul_i32 s14, s12, %d\ns_lshr_b32 s14, s14, 16\ns_mul_i32 s84, s14, 12\ns_sub_u32 s12, s12, s84' % udiv_magic(12, 40))
            p.I('s_mul_i32 s84, s12, %d\ns_lshr_b32 s84, s84, 16\ns_mul_i32 s85, s84, 3\ns_sub_u32 s12, s12, s85' % udiv_magic(3, 16))
            p.I('s_lshl_b32 s13, s13, 2\ns_add_u32 s13, s13, s84\ns_mul_i32 s13, s13, 324\ns_mul_i32 s14, s14, 54\ns_add_u32 s13, s13, s14\ns_mul_i32 s14, s8, 3\ns_add_u32 s13, s13, s14\ns_add_u32 s13, s13, s12\ns_lshl_b32 s13, s13, 10\ns_add_u32 s%d, s13, %d' % (80 + j, L.W34T - L.W1T))
        p.I('s_branch %s' % dn)
        p.label(w4)
        p.I('s_mul_i32 s12, s8, %d\ns_lshr_b32 s12, s12, 16\ns_mul_i32 s13, s12, 18\ns_sub_u32 s13, s8, s13' % m18)
        for j in range(4):
            p.I('s_and_b32 s14, s9, 3\ns_lshl_b32 s84, s13, 2\ns_add_u32 s84, s84, %d' % (162 + j))
            p.I('s_cmp_ge_u32 s9, 4\ns_cselect_b32 s85, 72, 0\ns_add_u32 s84, s84, s85')
            p.I('s_add_u32 s85, s13, 306\ns_cmp_eq_u32 s9, 8\ns_cselect_b32 s84, s85, s84\ns_cselect_b32 s14, %d, s14' % j)
            p.I('s_lshl_b32 s85, s12, 2\ns_add_u32 s85, s85, s14\ns_mul_i32 s85, s85, 324\ns_add_u32 s85, s85, s84\ns_lshl_b32 s85, s85, 10\ns_add_u32 s%d, s85, %d' % (80 + j, L.W34T - L.W1T))
        p.label(dn)
        lim = 2592
    p.I('s_cmp_ge_u32 s%d, %d' % (su, lim))
    for j in range(4): p.I('s_cselect_b32 s%d, 0x7f000000, s%d' % (80 + j, 80 + j))

def pt_issue(c, sbuf):
    p = c.p
    p.I('v_mad_u32_u24 v9, v2, s11, v3\nv_add_u32 v9, s10, v9\ns_lshl_b32 s12, s11, 3')
    for q in range(4):
        p.I('s_add_u32 m0, s%d, %d' % (sbuf, q * 1024))
        if q: p.I('v_add_u32 v9, s12, v9')
        p.I('buffer_load_dwordx4 v9, s[64:67], 0 offen lds', nowait=True)

def pt_process(c, sbuf, mode):
    p = c.p
    R = 16
    def reads(va, jstride, second):
        p.I('v_add_u32 v10, s%d, v%d' % (sbuf, va))
        for j in range(4):
            p.I('ds_read_b64_tr_b16 %s, v10 offset:%d' % (vr(R + 4 * j, 2), j * jstride))
            p.I('ds_read_b64_tr_b16 %s, v10 offset:%d' % (vr(R + 4 * j + 2, 2), j * jstride + second))
    if mode == '12': reads(6, 32, 512)
    else:
        lb = p.label_name('L_kb'); le = p.label_name('L_ke')
        p.I('s_cmp_eq_u32 s15, 1\ns_cbranch_scc1 %s' % lb)
        reads(6, 32, 512)
        p.I('s_branch %s' % le)
        p.label(lb)
        reads(7, 8, 2048)
        p.label(le)
    p.I('s_waitcnt lgkmcnt(0)');
    for j in range(4):
        p.I('v_add_u32 v11, s%d, v8' % (80 + j))
        if os.environ.get('NOST'): continue
        p.I('buffer_store_dwordx4 %s, v11, s[68:71], 0 offen%s' % (vr(R + 4 * j, 4), '' if os.environ.get('PLAINST') else c.sc), nowait=True)

def pretile(c, mode, su0):
    p = c.p
    p.comment('---- pretile %s' % mode)
    lim = 324 if mode == '12' else 2592
    p.I('s_mov_b32 s86, s%d\ns_mov_b32 s87, s%d\ns_mov_b32 s88, s96\ns_mov_b32 s89, s96\ns_add_u32 s90, s96, %d' % (su0, su0, PT_NB * 4096))
    def adv(r): p.I('s_add_u32 s%d, s%d, 4096\ns_cmp_ge_u32 s%d, s90\ns_cselect_b32 s%d, s96, s%d' % (r, r, r, r, r))
    for k in range(PT_NB - 1):
        pt_src(c, 86, mode); pt_issue(c, 88); adv(88); p.I('s_add_u32 s86, s86, 256')
    loop = p.label_name('L_pt'); done = p.label_name('L_pt_done')
    first = True
    p.label(loop)
    p.I('s_cmp_ge_u32 s87, %d\ns_cbranch_scc1 %s' % (lim, done))
    pt_src(c, 86, mode); pt_issue(c, 88); adv(88); p.I('s_add_u32 s86, s86, 256')
    p.I('s_waitcnt vmcnt(%d)' % (4 * (PT_NB - 1)))
    pt_src(c, 87, mode); pt_dst(c, 87, mode)
    pt_process(c, 89, mode); adv(89); p.I('s_add_u32 s87, s87, 256')
    p.I('s_branch %s' % loop)
    p.label(done); p.cut()
    p.I('s_waitcnt vmcnt(0)')

def pretile12(c, su0, hook, nhook):
    p = c.p
    p.I('s_mov_b32 s86, s%d\ns_add_u32 s87, s%d, 256\ns_mov_b32 s88, s96\ns_add_u32 s89, s96, 4096' % (su0, su0))
    pt_src(c, 86, '12'); pt_issue(c, 88)
    pt_src(c, 87, '12'); pt_issue(c, 89)
    hook()
    p.I('s_waitcnt vmcnt(%d)' % min(63, nhook + 4))
    pt_src(c, 86, '12'); pt_dst(c, 86, '12'); pt_process(c, 88, '12')
    p.I('s_waitcnt vmcnt(%d)' % min(63, nhook + 4))
    pt_src(c, 87, '12'); pt_dst(c, 87, '12'); pt_process(c, 89, '12')
    p.cut()

def ln_stats(p, X, ntok, nj, ST, red, stride=2):
    for j in range(nj):
        for i in range(ntok):
            x = vr(X + (i * nj + j) * stride, 2)
            if j == 0:
                p.I('v_pk_mul_f32 %s, %s, %s' % (vr(ST + 4 * i + 2, 2), x, x))
            else:
                p.I('v_pk_fma_f32 %s, %s, %s, %s' % (vr(ST + 4 * i + 2, 2), x, x, vr(ST + 4 * i + 2, 2)))
            if j == 1:
                p.I('v_pk_add_f32 %s, %s, %s' % (vr(ST + 4 * i, 2), vr(X + (i * nj) * stride, 2), x))
            elif j > 1:
                p.I('v_pk_add_f32 %s, %s, %s' % (vr(ST + 4 * i, 2), vr(ST + 4 * i, 2), x))
    for i in range(ntok):
        p.I('v_add_f32 v%d, v%d, v%d\nv_add_f32 v%d, v%d, v%d' % (ST + 4 * i, ST + 4 * i, ST + 4 * i + 1, ST + 4 * i + 2, ST + 4 * i + 2, ST + 4 * i + 3))
    red([ST + 4 * i for i in range(ntok)] + [ST + 4 * i + 2 for i in range(ntok)])
    for i in range(ntok):
        a = ST + 4 * i
        p.I('v_mul_f32 v%d, s98, v%d\nv_mul_f32 v%d, s98, v%d' % (a, a, a + 2, a + 2))
    for i in range(ntok):
        a = ST + 4 * i
        p.I('v_fma_f32 v%d, -v%d, v%d, v%d' % (a + 2, a, a, a + 2))
    for i in range(ntok):
        a = ST + 4 * i
        p.I('v_max_f32 v%d, 0, v%d' % (a + 2, a + 2))
    for i in range(ntok):
        a = ST + 4 * i
        p.I('v_add_f32 v%d, s97, v%d' % (a + 2, a + 2))
    for i in range(ntok):
        a = ST + 4 * i
        p.I('v_rsq_f32 v%d, v%d' % (a + 2, a + 2))
    for i in range(ntok):
        a = ST + 4 * i
        p.I('v_mul_f32 v%d, -v%d, v%d' % (a + 1, a, a + 2))
    for i in range(ntok):
        a = ST + 4 * i
        p.I('v_mov_b32 v%d, v%d' % (a, a + 2))

def ln_apply(p, dst, src, P):
    p.I('v_pk_fma_f32 %s, %s, %s, %s op_sel:[0,0,1] op_sel_hi:[1,0,1]' % (vr(dst, 2), vr(src, 2), vr(P, 2), vr(P, 2)))

def gemm_small2(c, lds_base, abase, ACC, BF, after_ks=None):
    p = c.p
    p.I('v_and_b32 v2, 15, v1\nv_lshrrev_b32 v8, 4, v1\nv_xor_b32 v2, v2, v8\nv_lshl_add_u32 v2, v8, 4, v2\nv_lshlrev_b32 v2, 4, v2\nv_add_u32 v2, %d, v2' % lds_base)
    def ldb(ks):
        for tt in range(2):
            p.I('ds_read_b128 %s, v2 offset:%d' % (vr(BF + 8 * (ks % 3) + 4 * tt, 4), (ks * 2 + tt) * 1024))
    ldb(0); ldb(1)
    for ks in range(18):
        if ks + 2 < 18: ldb(ks + 2)
        for e in range(3):
            for tt in range(2):
                a = ACC + 4 * (e * 2 + tt)
                p.I('v_mfma_f32_16x16x32_bf16 %s, %s, %s, %s' % (vr(a, 4), ar(abase + 4 * (e * 18 + ks), 4), vr(BF + 8 * (ks % 3) + 4 * tt, 4), '0' if ks == 0 else vr(a, 4)))
        if after_ks: after_ks(ks)

def wfrag_setup(c, wsoff, srdslot, vaddr):
    p = c.p
    srd(p, srdslot, P_WS, 36 * 18 * 1024, off=wsoff)
    p.I('s_mul_i32 s6, s5, 12\ns_mul_i32 s7, s3, 3\ns_add_u32 s6, s6, s7\ns_mul_i32 s6, s6, %d' % (18 * 1024))
    p.I('v_lshl_add_u32 v%d, v1, 4, s6\nv_add_u32 v%d, %d, v%d\nv_add_u32 v%d, %d, v%d' % (vaddr, vaddr + 1, 18 * 1024, vaddr, vaddr + 2, 36 * 1024, vaddr))

def wfrag_load(c, srdslot, vaddr, abase, ks):
    p = c.p
    for e in range(3):
        if ks % 4 == 0 and ks > 0: p.I('v_add_u32 v%d, 4096, v%d' % (vaddr + e, vaddr + e))
        p.I('buffer_load_dwordx4 %s, v%d, s[%d:%d], 0 offen offset:%d%s' % (ar(abase + 4 * (e * 18 + ks), 4), vaddr + e, srdslot, srdslot + 3, 1024 * (ks % 4), c.sc))

ZS_BASE, A1_BASE = 0, 36864
XF, GH, CB, SB, TM, ST2 = 16, 88, 160, 178, 196, 232

def wg_rb_ns(p):
    m3 = udiv_magic(3, 256)
    p.I('s_lshr_b32 s5, s2, 3\ns_mul_i32 s4, s5, %d\ns_lshr_b32 s4, s4, 16\ns_mul_i32 s6, s4, 3\ns_sub_u32 s5, s5, s6\ns_and_b32 s6, s2, 7\ns_lshl_b32 s6, s6, 3\ns_add_u32 s4, s4, s6' % m3)

def load_wfrags(c, wsoff, abase):
    p = c.p
    srd(p, 64, P_WS, 36 * 18 * 1024, off=wsoff)
    p.I('s_mul_i32 s6, s5, 12\ns_mul_i32 s7, s3, 3\ns_add_u32 s6, s6, s7\ns_mul_i32 s6, s6, %d' % (18 * 1024))
    p.I('v_lshl_add_u32 v2, v1, 4, s6')
    for e in range(3):
        for ks in range(18):
            idx = e * 18 + ks
            if idx % 4 == 0 and idx > 0: p.I('v_add_u32 v2, 4096, v2')
            p.I('buffer_load_dwordx4 %s, v2, s[64:67], 0 offen offset:%d%s' % (ar(abase + 4 * idx, 4), 1024 * (idx % 4), c.sc))

def red32(p, tmp):
    return lambda regs: reduce32(p, regs, tmp)

XP, P0S = 180, 216
PRM_BASE = 73728
HPL_BASE, HPL_RS = 86016, 400

def p2_xload(c):
    p = c.p
    wg_rb_ns(p)
    srd(p, 68, P_Q, L.S * 1152)
    p.I('v_lshrrev_b32 v172, 5, v1\nv_and_b32 v173, 31, v1')
    p.I('s_lshl_b32 s6, s4, 5\ns_lshl_b32 s7, s3, 3\ns_add_u32 s6, s6, s7\nv_lshl_add_u32 v174, v172, 2, s6')
    p.I('s_movk_i32 s7, 1152\nv_mul_lo_u32 v178, v174, s7\nv_lshl_add_u32 v178, v173, 2, v178\nv_add_u32 v179, 2304, v178')
    for i in range(4):
        for j in range(9):
            p.I('buffer_load_dword v%d, v%d, s[68:71], 0 offen offset:%d' % (XP + i * 9 + j, 178 if i < 2 else 179, (i % 2) * 1152 + 128 * j))

def p2_xstats(c):
    p = c.p
    p.I('s_mov_b32 s99, 0xffff0000\ns_mov_b32 s98, 0x%x\ns_mov_b32 s97, 0x%x' % (f2u(1.0 / 576), f2u(1e-5)))
    T = 8
    for k in range(36): unpack(p, T + 2 * k, XP + k, 99)
    ln_stats(p, T, 4, 9, P0S, red32(p, 232))
    tile_addr(c)

def p2_pre(c):
    p = c.p
    wg_rb_ns(p)
    p.I('s_mov_b32 s99, 0xffff0000\ns_mov_b32 s98, 0x%x\ns_mov_b32 s97, 0x%x' % (f2u(1.0 / 576), f2u(1e-5)))
    p.I('v_lshrrev_b32 v3, 5, v1\nv_and_b32 v4, 31, v1\nv_mov_b32 v6, v178\nv_mov_b32 v7, v179')
    p.I('v_lshlrev_b32 v8, 4, v0')
    PL = 236
    for k in range(36):
        p.I('v_lshlrev_b32 v%d, 16, v%d\nv_and_b32 v%d, s99, v%d' % (XF + 2 * k, XP + k, XF + 2 * k + 1, XP + k))
    for i in range(4):
        for j in range(9):
            k = i * 9 + j
            ln_apply(p, GH + 2 * k, XF + 2 * k, P0S + 4 * i)
    p.I('s_waitcnt vmcnt(0)')
    p.I('v_add_u32 v9, %d, v8' % PRM_BASE)
    for u in range(3): p.I('ds_write_b128 v9, %s offset:%d' % (vr(PL + 4 * u, 4), 4096 * u))
    p.I('s_waitcnt lgkmcnt(0)\ns_barrier')
    p.I('v_lshlrev_b32 v10, 3, v4\nv_add_u32 v10, %d, v10' % PRM_BASE)
    for arr, dst in ((0, TM), (1, TM + 18), (2, TM + 36), (3, SB), (4, CB)):
        for j in range(9):
            p.I('ds_read_b64 %s, v10 offset:%d' % (vr(dst + 2 * j, 2), arr * 2304 + 256 * j))
    for j in range(9):
        p.I('v_pk_mul_f32 %s, %s, %s' % (vr(TM + 18 + 2 * j, 2), vr(TM + 18 + 2 * j, 2), vr(TM + 36 + 2 * j, 2)))
        p.I('v_pk_mul_f32 %s, %s, %s' % (vr(TM + 2 * j, 2), vr(TM + 2 * j, 2), vr(TM + 36 + 2 * j, 2)))
    for i in range(4):
        for j in range(9):
            g = GH + (i * 9 + j) * 2
            p.I('v_pk_fma_f32 %s, %s, %s, %s' % (vr(g, 2), vr(g, 2), vr(TM + 18 + 2 * j, 2), vr(TM + 2 * j, 2)))

OUTS_BASE, OUTS_RS = 100352, 400
STL_BASE = 113152
P3STATS = os.environ.get('P3STATS', '1') == '1'
RINGP3 = os.environ.get('RINGP3', '0') == '1'
def tile_addr(c):
    p = c.p
    p.I('v_and_b32 v2, 15, v1\nv_mul_u32_u24 v2, %d, v2\nv_lshrrev_b32 v5, 4, v1\nv_lshl_add_u32 v2, v5, 3, v2\ns_mul_i32 s6, s3, 96\ns_add_u32 s6, s6, %d\nv_add_u32 v2, s6, v2\nv_accvgpr_write_b32 a216, v2' % (OUTS_RS, OUTS_BASE))
    m24 = udiv_magic(24, 768)
    for u in range(3):
        p.I('v_add_u32 v2, %d, v0\nv_mul_u32_u24 v5, %d, v2\nv_lshrrev_b32 v5, 16, v5\nv_mul_u32_u24 v9, 24, v5\nv_sub_u32 v9, v2, v9' % (256 * u, m24))
        p.I('v_mul_u32_u24 v10, %d, v5\nv_lshl_add_u32 v10, v9, 4, v10\nv_add_u32 v10, %d, v10\nv_accvgpr_write_b32 a%d, v10' % (OUTS_RS, OUTS_BASE, 217 + u))
        p.I('s_lshl_b32 s6, s4, 5\nv_add_u32 v5, s6, v5\ns_movk_i32 s7, 1152\nv_mul_lo_u32 v5, v5, s7\nv_lshl_add_u32 v5, v9, 4, v5\ns_mul_i32 s6, s5, 384\nv_add_u32 v5, s6, v5\nv_accvgpr_write_b32 a%d, v5' % (220 + u))

def tile_out(c, packed, srdslot):
    p = c.p
    AD = 204
    p.I('v_accvgpr_read_b32 v2, a216')
    for k in range(6): p.I('v_accvgpr_read_b32 v%d, a%d' % (AD + k, 217 + k))
    for (e, tt), r in packed.items():
        p.I('ds_write_b64 v2, %s offset:%d' % (vr(r, 2), tt * 16 * OUTS_RS + 32 * e))
    p.I('s_waitcnt lgkmcnt(0)\ns_barrier')
    D = 212
    for u in range(3): p.I('ds_read_b128 %s, v%d' % (vr(D + 4 * u, 4), AD + u))
    for u in range(3): p.I('buffer_store_dwordx4 %s, v%d, s[%d:%d], 0 offen%s' % (vr(D + 4 * u, 4), AD + 3 + u, srdslot, srdslot + 3, c.sc))

def sentinel_setup(c):
    p = c.p
    m24 = udiv_magic(24, 768)
    p.I('v_mov_b32 v168, -1\nv_mov_b32 v169, -1\nv_mov_b32 v170, -1\nv_mov_b32 v171, -1')
    srd(p, 56, P_WS, L.S * 1152, off=L.H1); srd(p, 68, P_WS, L.S * 1152, off=L.X2)
    for u in range(3):
        p.I('v_add_u32 v4, %d, v0\nv_mul_u32_u24 v5, %d, v4\nv_lshrrev_b32 v5, 16, v5\nv_mul_u32_u24 v6, 24, v5\nv_sub_u32 v6, v4, v6' % (256 * u, m24))
        p.I('s_lshl_b32 s6, s4, 5\nv_add_u32 v5, s6, v5\ns_movk_i32 s7, 1152\nv_mul_lo_u32 v5, v5, s7\nv_lshl_add_u32 v5, v6, 4, v5\ns_mul_i32 s6, s5, 384\nv_add_u32 v%d, s6, v5' % (164 + u))
    return ['buffer_store_dwordx4 v[168:171], v%d, s[%d:%d], 0 offen sc1' % (164 + u, sl, sl + 3) for sl in (56, 68) for u in range(3)]

def tagged_loads(c, loads, regs, probe=None):
    p = c.p
    lp = p.label_name('L_tag'); ok = p.label_name('L_tagok')
    p.I('s_mov_b32 s77, 0')
    if probe:
        lq = p.label_name('L_tagp'); qk = p.label_name('L_tagpok')
        p.label(lq)
        p.I(probe + '\ns_waitcnt vmcnt(0)', nowait=True)
        p.I('v_cmp_eq_u32 vcc, -1, v%d\ns_add_u32 s77, s77, 1\ns_nop 1\ns_cbranch_vccz %s\ns_cmp_ge_u32 s77, %d\ns_cbranch_scc1 %s\ns_sleep 4\ns_branch %s' % (regs[-1] + 3, qk, SPIN_MAX, qk, lq))
        p.label(qk); p.cut()
    p.label(lp)
    loads()
    p.I('s_waitcnt vmcnt(0)'); p.cut()
    chk = [r + 1 for r in regs] + [r + 3 for r in regs]
    p.I('v_max_u32 v251, v%d, v%d' % (chk[0], chk[1]))
    rest = chk[2:]
    while len(rest) >= 2:
        p.I('v_max3_u32 v251, v251, v%d, v%d' % (rest[0], rest[1])); rest = rest[2:]
    for r in rest: p.I('v_max_u32 v251, v251, v%d' % r)
    p.I('v_cmp_eq_u32 vcc, -1, v251\ns_add_u32 s77, s77, 1\ns_nop 1\ns_cbranch_vccz %s\ns_cmp_ge_u32 s77, %d\ns_cbranch_scc1 %s\ns_sleep 2\ns_branch %s' % (ok, SPIN_MAX, ok, lp))
    p.label(ok); p.cut()

def tagged_masked(c, items):
    p = c.p
    lp = p.label_name('L_tm'); ok = p.label_name('L_tmok')
    p.I('s_mov_b32 s77, 0')
    p.label(lp)
    for txt, r in items: p.I(txt, nowait=True)
    p.I('s_waitcnt vmcnt(0)'); p.cut()
    chk = [r + 1 for _, r in items] + [r + 3 for _, r in items]
    p.I('v_max_u32 v251, v%d, v%d' % (chk[0], chk[1]))
    rest = chk[2:]
    while len(rest) >= 2:
        p.I('v_max3_u32 v251, v251, v%d, v%d' % (rest[0], rest[1])); rest = rest[2:]
    for r in rest: p.I('v_max_u32 v251, v251, v%d' % r)
    p.I('v_cmp_eq_u32 vcc, -1, v251\ns_add_u32 s77, s77, 1\ns_nop 1\ns_cbranch_vccz %s\ns_cmp_ge_u32 s77, %d\ns_cbranch_scc1 %s\ns_mov_b64 exec, vcc\ns_branch %s' % (ok, SPIN_MAX, ok, lp))
    p.label(ok)
    p.I('s_mov_b64 exec, -1'); p.cut()

def p2_main(c, abase=0):
    p = c.p
    srd(p, 48, P_WS, L.D * 4096, off=L.ZT)
    srd(p, 52, P_WS, L.S * 1152, off=L.X1); srd(p, 56, P_WS, L.S * 1152, off=L.HP); srd(p, 60, P_WS, L.S * 1152, off=L.H1)
    p.I('v_lshrrev_b32 v8, 2, v1\nv_and_b32 v9, 3, v1\nv_lshlrev_b32 v10, 13, v8\nv_lshl_add_u32 v10, v9, 4, v10\ns_lshl_b32 s6, s4, 6\nv_add_u32 v10, s6, v10')
    p.I('s_lshl_b32 s6, s3, 17\nv_add_u32 v10, s6, v10\ns_movk_i32 s8, 4096')
    if TAGZ:
        items = []
        for t in range(5):
            p.I('v_add_u32 v%d, %d, v10' % (240 + t, t * 4 * 131072))
            items.append(('buffer_load_dwordx4 %s, v%d, s[48:51], 0 offen%s' % (vr(TM + 8 * t, 4), 240 + t, c.sc), TM + 8 * t))
            items.append(('buffer_load_dwordx4 %s, v%d, s[48:51], s8 offen%s' % (vr(TM + 8 * t + 4, 4), 240 + t, c.sc), TM + 8 * t + 4))
        tagged_masked(c, items)
    else:
        for t in range(5):
            if t: p.I('v_add_u32 v10, %d, v10' % (4 * 131072))
            p.I('buffer_load_dwordx4 %s, v10, s[48:51], 0 offen%s' % (vr(TM + 8 * t, 4), c.sc))
            p.I('buffer_load_dwordx4 %s, v10, s[48:51], s8 offen%s' % (vr(TM + 8 * t + 4, 4), c.sc))
    p.I('v_bfe_u32 v11, v8, 1, 3\nv_lshlrev_b32 v12, 1, v9\nv_xor_b32 v11, v11, v12\nv_lshlrev_b32 v11, 4, v11\nv_lshl_add_u32 v11, v8, 7, v11')
    p.I('s_lshl_b32 s6, s3, 11\nv_add_u32 v11, s6, v11\nv_xor_b32 v12, 16, v11')
    p.I('s_mov_b32 s8, 0x05040100\ns_mov_b32 s9, 0x07060302')
    PO = 236
    for t in range(5):
        a, b = TM + 8 * t, TM + 8 * t + 4
        o = PO + 8 * (t % 2)
        for k in range(4):
            p.I('v_perm_b32 v%d, v%d, v%d, s8\nv_perm_b32 v%d, v%d, v%d, s9' % (o + 2 * k, b + k, a + k, o + 2 * k + 1, b + k, a + k))
        p.I('ds_write_b128 v11, %s offset:%d' % (vr(o, 4), ZS_BASE + t * 8192))
        p.I('ds_write_b128 v12, %s offset:%d' % (vr(o + 4, 4), ZS_BASE + t * 8192))
    p.I('s_waitcnt vmcnt(0) lgkmcnt(0)\ns_barrier')
    p.cut()
    c.stamp(8)
    p.I('s_lshl_b32 s6, s3, 1\nv_add_u32 v8, s6, v3\nv_bfe_u32 v9, v4, 1, 3\nv_xor_b32 v8, v8, v9\nv_lshlrev_b32 v8, 4, v8\nv_lshl_add_u32 v8, v4, 7, v8')
    Z = TM
    for j in range(9): p.I('ds_read_b128 %s, v8 offset:%d' % (vr(Z + 4 * j, 4), ZS_BASE + 4096 * j))
    U = 232
    for j in range(9):
        for i in range(4):
            unpack(p, U + 2 * i, Z + 4 * j + i, 99)
        for i in range(4):
            g = vr(GH + (i * 9 + j) * 2, 2)
            p.I('v_pk_fma_f32 %s, %s, %s, %s' % (g, g, vr(U + 2 * i, 2), vr(XF + (i * 9 + j) * 2, 2)))
        for i in range(4):
            p.I('v_cvt_pk_bf16_f32 v%d, v%d, v%d' % (XF + (i * 9 + j) * 2, GH + (i * 9 + j) * 2, GH + (i * 9 + j) * 2 + 1))
    ST = 196
    ln_stats(p, GH, 4, 9, ST, red32(p, ST + 16))
    for j in range(9):
        for i in range(4):
            g = GH + (i * 9 + j) * 2
            ln_apply(p, g, g, ST + 4 * i)
        for i in range(4):
            g = vr(GH + (i * 9 + j) * 2, 2)
            p.I('v_pk_fma_f32 %s, %s, %s, %s' % (g, g, vr(CB + 2 * j, 2), vr(SB + 2 * j, 2)))
        for i in range(4):
            p.I('v_cvt_pk_bf16_f32 v%d, v%d, v%d' % (XF + (i * 9 + j) * 2 + 1, GH + (i * 9 + j) * 2, GH + (i * 9 + j) * 2 + 1))
    ln_stats(p, GH, 4, 9, ST, red32(p, ST + 16))
    p.I('v_bfe_u32 v8, v4, 2, 2\nv_lshrrev_b32 v9, 4, v4\nv_lshlrev_b32 v9, 11, v9\ns_lshr_b32 s6, s3, 1\ns_lshl_b32 s6, s6, 10\ns_and_b32 s7, s3, 1\ns_lshl_b32 s7, s7, 7\ns_add_u32 s6, s6, s7\ns_add_u32 s6, s6, %d' % A1_BASE)
    p.I('v_add_u32 v9, s6, v9\nv_lshl_add_u32 v9, v8, 8, v9\nv_lshl_add_u32 v9, v3, 6, v9\nv_and_b32 v10, 3, v4\nv_lshl_add_u32 v9, v10, 2, v9')
    for i in range(4):
        p.I('v_xor_b32 v10, %d, v8\nv_lshl_add_u32 v%d, v10, 4, v9' % (i, 12 + i))
    for j in range(9):
        for i in range(4):
            g = GH + (i * 9 + j) * 2
            ln_apply(p, U + 2 * i, g, ST + 4 * i)
        for i in range(4):
            p.I('v_cvt_pk_bf16_f32 v%d, v%d, v%d' % (U + 2 * i, U + 2 * i, U + 2 * i + 1))
        for i in range(4):
            p.I('ds_write_b32 v%d, v%d offset:%d' % (12 + i, U + 2 * i, 4096 * j))
    p.I('s_lshl_b32 s6, s3, 3\nv_lshl_add_u32 v11, v3, 2, s6\nv_mul_u32_u24 v11, %d, v11\nv_lshl_add_u32 v11, v4, 2, v11\nv_add_u32 v11, %d, v11' % (HPL_RS, HPL_BASE))
    for jg in range(3):
        lab = p.label_name('L_st')
        p.I('s_cmp_lg_u32 s5, %d\ns_cbranch_scc1 %s' % (jg, lab))
        for j in range(3 * jg, 3 * jg + 3):
            for i in range(4):
                p.I('buffer_store_dword v%d, v%d, s[52:55], 0 offen offset:%d%s' % (XF + (i * 9 + j) * 2, 6 if i < 2 else 7, (i % 2) * 1152 + 128 * j, c.sc), nowait=True)
                p.I('ds_write_b32 v11, v%d offset:%d' % (XF + (i * 9 + j) * 2 + 1, i * HPL_RS + 128 * (j - 3 * jg)), nowait=True)
        p.label(lab)
    p.I('s_waitcnt lgkmcnt(0)\ns_barrier')
    p.cut()
    c.stamp(9)
    wfrag_setup(c, L.W2T, 64, 156)
    gemm_small2(c, A1_BASE, abase, 100, 128, after_ks=lambda ks: wfrag_load(c, 64, 156, abase, ks) if ks < 9 else None)
    ACC = 100
    gelu_consts(p, 8, 9)
    p.I('v_mov_b32 v8, s9')
    gelu_inplace(p, list(range(ACC, ACC + 24)), 160, 8, 8)
    pk = {}
    for e in range(3):
        for tt in range(2):
            a = ACC + 4 * (e * 2 + tt)
            o = 190 + 2 * (e * 2 + tt)
            p.I('v_cvt_pk_bf16_f32 v%d, v%d, v%d\nv_cvt_pk_bf16_f32 v%d, v%d, v%d' % (o, a, a + 1, o + 1, a + 2, a + 3))
            pk[(e, tt)] = o
    tile_out(c, pk, 60)

def p3_addr(c):
    p = c.p
    srd(p, 48, P_WS, L.S * 1152, off=L.H1); srd(p, 52, P_WS, L.S * 1152, off=L.HP); srd(p, 56, P_WS, L.S * 1152, off=L.X2)
    p.I('s_mov_b32 s99, 0xffff0000')
    p.I('v_lshrrev_b32 v3, 4, v1\nv_and_b32 v4, 15, v1\ns_lshr_b32 s6, s3, 1\ns_lshl_b32 s6, s6, 5\nv_lshl_add_u32 v5, v3, 3, s6')
    p.I('s_lshl_b32 s6, s4, 5\ns_and_b32 s7, s3, 1\ns_lshl_b32 s7, s7, 4\ns_add_u32 s6, s6, s7\nv_add_u32 v6, s6, v4\ns_movk_i32 s7, 1152\nv_mul_lo_u32 v6, v6, s7\nv_lshl_add_u32 v6, v5, 1, v6')
    M1, P1, M2, P2_, N2, N4, N6 = 8, 9, 10, 11, 12, 13, 14
    p.I('v_subrev_u32 v%d, 1152, v6\nv_add_u32 v%d, 1152, v6\nv_subrev_u32 v%d, 2304, v6\nv_add_u32 v%d, 2304, v6' % (M1, P1, M2, P2_))
    p.I('v_cmp_gt_u32 vcc, 16, v5\nv_cndmask_b32 v%d, v%d, v%d, vcc' % (N2, P1, M1))
    p.I('v_cmp_gt_u32 vcc, 32, v5\nv_cndmask_b32 v%d, v%d, v%d, vcc' % (N4, M2, P1))
    p.I('v_cmp_gt_u32 vcc, 48, v5\nv_cndmask_b32 v%d, v%d, v%d, vcc' % (N6, P2_, M2))
    p.I('v_mul_u32_u24 v15, %d, v4\nv_lshl_add_u32 v15, v3, 3, v15\ns_mul_i32 s6, s3, 96\ns_add_u32 s6, s6, %d\nv_add_u32 v15, s6, v15' % (HPL_RS, HPL_BASE))
    p.I('v_xor_b32 v7, v4, v3\nv_lshl_add_u32 v7, v3, 4, v7\nv_lshlrev_b32 v7, 4, v7\ns_lshl_b32 s6, s3, 10\nv_add_u32 v7, s6, v7')

def p3_main(c, abase=0):
    p = c.p
    M1, P1, M2, P2_, N2, N4, N6 = 8, 9, 10, 11, 12, 13, 14
    sel = [M1, M1, N2, P1, N4, M2, N6, P2_, P2_]
    T = 16
    def h1loads():
        for n in range(9):
            p.I('buffer_load_dwordx4 %s, v%d, s[48:51], 0 offen offset:%d%s' % (vr(T + 4 * n, 4), sel[n], 128 * n, c.sc))
    if TAG_H1: tagged_loads(c, h1loads, [T + 4 * n for n in range(9)])
    else: h1loads()
    HR = 108
    for e in range(3):
        for tt in range(2):
            p.I('ds_read_b64 %s, v15 offset:%d' % (vr(HR + 2 * (e * 2 + tt), 2), tt * 16 * HPL_RS + 32 * e))
    for n in range(9): p.I('ds_write_b128 v7, %s offset:%d' % (vr(T + 4 * n, 4), 4096 * n))
    p.I('s_waitcnt lgkmcnt(0)\ns_barrier')
    c.stamp(12)
    mlp_map(p, 10, 11)
    mlp32.ring_setup(c, 10, 160)
    def ring_after(ks):
        if ks < 9:
            for e in range(3): mlp32.ring_load_at(c, e * 18 + ks, ks * 3 + e, 160)
    gemm_small2(c, 0, abase, 52, 80, after_ks=ring_after if RINGP3 else None)
    ACC = 52
    pk = {}
    SS = 140
    for e in range(3):
        for tt in range(2):
            a = ACC + 4 * (e * 2 + tt); h = HR + 2 * (e * 2 + tt); o = 128 + 2 * (e * 2 + tt)
            unpack(p, 120, h, 99); unpack(p, 122, h + 1, 99)
            p.I('v_pk_add_f32 %s, %s, %s\nv_pk_add_f32 %s, %s, %s' % (vr(a, 2), vr(a, 2), vr(120, 2), vr(a + 2, 2), vr(a + 2, 2), vr(122, 2)))
            p.I('v_cvt_pk_bf16_f32 v%d, v%d, v%d\nv_cvt_pk_bf16_f32 v%d, v%d, v%d' % (o, a, a + 1, o + 1, a + 2, a + 3))
            pk[(e, tt)] = o
            S_, Q_ = SS + 4 * tt, SS + 4 * tt + 2
            if e == 0:
                p.I('v_pk_add_f32 %s, %s, %s\nv_pk_mul_f32 %s, %s, %s' % (vr(S_, 2), vr(a, 2), vr(a + 2, 2), vr(Q_, 2), vr(a, 2), vr(a, 2)))
            else:
                p.I('v_pk_add_f32 %s, %s, %s\nv_pk_add_f32 %s, %s, %s\nv_pk_fma_f32 %s, %s, %s, %s' % (vr(S_, 2), vr(S_, 2), vr(a, 2), vr(S_, 2), vr(S_, 2), vr(a + 2, 2), vr(Q_, 2), vr(a, 2), vr(a, 2), vr(Q_, 2)))
            p.I('v_pk_fma_f32 %s, %s, %s, %s' % (vr(Q_, 2), vr(a + 2, 2), vr(a + 2, 2), vr(Q_, 2)))
    if P3STATS:
        R = [SS, SS + 2, SS + 4, SS + 6]
        for r in R: p.I('v_add_f32 v%d, v%d, v%d' % (r, r, r + 1))
        for swap in ('v_permlane16_swap_b32', 'v_permlane32_swap_b32'):
            for r in R: p.I('v_mov_b32 v%d, v%d' % (r + 1, r))
            for r in R: p.I('%s v%d, v%d' % (swap, r, r + 1))
            for r in R: p.I('v_add_f32 v%d, v%d, v%d' % (r, r, r + 1))
        p.I('v_mov_b32 v%d, v%d\nv_mov_b32 v%d, v%d' % (SS + 1, SS + 2, SS + 5, SS + 6))
        p.I('v_and_b32 v150, 15, v1\nv_lshlrev_b32 v150, 3, v150\ns_lshl_b32 s6, s3, 8\ns_add_u32 s6, s6, %d\nv_add_u32 v150, s6, v150' % STL_BASE)
        p.I('s_mov_b64 exec, 0xffff\nds_write_b64 v150, %s\nds_write_b64 v150, %s offset:128\ns_mov_b64 exec, -1' % (vr(SS, 2), vr(SS + 4, 2)))
    tile_out(c, pk, 56)
    if P3STATS:
        l = p.label_name('L_st3')
        wave0(p, l)
        srd(p, 52, P_WS, 3 * 2048 * 8, off=L.STAT)
        p.I('v_lshlrev_b32 v150, 3, v1\nv_add_u32 v150, %d, v150' % STL_BASE)
        for w in range(4): p.I('ds_read_b64 %s, v150 offset:%d' % (vr(140 + 2 * w, 2), 256 * w))
        p.I('v_pk_add_f32 v[140:141], v[140:141], v[142:143]\nv_pk_add_f32 v[144:145], v[144:145], v[146:147]\nv_pk_add_f32 v[140:141], v[140:141], v[144:145]')
        p.I('s_mul_i32 s6, s5, %d\ns_lshl_b32 s7, s4, 8\ns_add_u32 s6, s6, s7\nv_lshl_add_u32 v151, v1, 3, s6' % (2048 * 8))
        p.I('s_mov_b64 exec, 0xffffffff\nbuffer_store_dwordx2 v[140:141], v151, s[52:55], 0 offen sc1\ns_mov_b64 exec, -1', nowait=True)
        p.label(l); p.cut()

def p4_ln(c):
    p = c.p
    srd(p, 48, P_WS, L.S * 1152, off=L.X2)
    p.I('s_mov_b32 s99, 0xffff0000\ns_mov_b32 s98, 0x%x\ns_mov_b32 s97, 0x%x' % (f2u(1.0 / 576), f2u(1e-5)))
    p.I('v_lshrrev_b32 v3, 3, v1\nv_and_b32 v4, 7, v1')
    p.I('s_lshl_b32 s6, s5, 6\ns_lshl_b32 s7, s3, 4\ns_add_u32 s6, s6, s7\nv_add_u32 v5, s6, v3\ns_movk_i32 s7, 1152\nv_mul_lo_u32 v5, v5, s7\nv_lshl_add_u32 v5, v4, 4, v5\nv_add_u32 v6, %d, v5' % (8 * 1152))
    RAW, X = 64, 136
    if P3STATS:
        srd(p, 52, P_WS, 3 * 2048 * 8, off=L.STAT)
        p.I('s_lshl_b32 s6, s5, 6\ns_lshl_b32 s7, s3, 4\ns_add_u32 s6, s6, s7\nv_add_u32 v7, s6, v3\nv_lshlrev_b32 v7, 3, v7\nv_mul_u32_u24 v8, %d, v4\nv_add_u32 v7, v7, v8' % (2048 * 8))
        p.I('v_cmp_gt_u32 vcc, 3, v4\nv_mov_b32 v8, 0x7f000000\nv_cndmask_b32 v7, v8, v7, vcc')
        p.I('buffer_load_dwordx2 v[200:201], v7, s[52:55], 0 offen sc1\nbuffer_load_dwordx2 v[202:203], v7, s[52:55], 0 offen offset:64 sc1')
    def loads():
        for i in range(2):
            for j in range(9):
                p.I('buffer_load_dwordx4 %s, v%d, s[48:51], 0 offen offset:%d%s' % (vr(RAW + 36 * i + 4 * j, 4), 5 + i, 128 * j, c.sc))
    if TAG_H1: tagged_loads(c, loads, [RAW + 4 * k for k in range(18)], probe=('buffer_load_dwordx4 %s, v6, s[48:51], 0 offen offset:1024%s' % (vr(RAW + 68, 4), c.sc)) if PROBE else None)
    else: loads()
    return RAW, X

def p4_ln2(c, RAW, X):
    p = c.p
    mlp32.ln_addr(c)
    ST = 208
    if P3STATS:
        for i in range(2):
            S, Q = 200 + 2 * i, 201 + 2 * i
            reduce8(p, [S, Q])
        for i in range(2):
            S, Q = 200 + 2 * i, 201 + 2 * i; P = ST + 2 * i
            p.I('v_mul_f32 v%d, s98, v%d\nv_mul_f32 v%d, s98, v%d' % (S, S, Q, Q))
            p.I('v_fma_f32 v%d, -v%d, v%d, v%d\nv_max_f32 v%d, 0, v%d\nv_add_f32 v%d, s97, v%d\nv_rsq_f32 v%d, v%d' % (Q, S, S, Q, Q, Q, Q, Q, P, Q))
            p.I('v_mul_f32 v%d, -v%d, v%d' % (P + 1, S, P))
        for i in range(2):
            for j in range(9):
                r = RAW + 36 * i + 4 * j; x = X + 8 * (j % 2)
                for d in range(4): unpack(p, x + 2 * d, r + d, 99)
                for d in range(4): ln_apply(p, x + 2 * d, x + 2 * d, ST + 2 * i)
                for d in range(4): p.I('v_cvt_pk_bf16_f32 v%d, v%d, v%d' % (r + d, x + 2 * d, x + 2 * d + 1))
                if j < 8: p.I('ds_write_b128 v%d, %s offset:%d' % (11 + i, vr(r, 4), 8192 * j))
                else: p.I('v_add_u32 v13, 65536, v%d\nds_write_b128 v13, %s' % (11 + i, vr(r, 4)))
                for _ in range(2):
                    if c.wn < mlp32.RING: mlp32.wload(c)
    else:
        for i in range(2):
            for k in range(36):
                unpack(p, X + 2 * k, RAW + 36 * i + k, 99)
                if k % 2 == 1 and c.wn < mlp32.RING and i == 1: mlp32.wload(c)
            ln_stats_single(p, X, 36, ST)
            for k in range(36):
                ln_apply(p, X + 2 * k, X + 2 * k, ST)
                if k % 2 == 1 and c.wn < mlp32.RING: mlp32.wload(c)
            for k in range(36): p.I('v_cvt_pk_bf16_f32 v%d, v%d, v%d' % (RAW + 36 * i + k, X + 2 * k, X + 2 * k + 1))
            for j in range(8): p.I('ds_write_b128 v%d, %s offset:%d' % (11 + i, vr(RAW + 36 * i + 4 * j, 4), 8192 * j))
            p.I('v_add_u32 v13, 65536, v%d\nds_write_b128 v13, %s' % (11 + i, vr(RAW + 36 * i + 32, 4)))
    while c.wn < mlp32.RING: mlp32.wload(c)
    p.I('s_waitcnt lgkmcnt(0)\ns_barrier')

def ln_stats_single(p, X, n, ST):
    S, Q = ST + 4, ST + 8
    p.I('v_pk_add_f32 %s, %s, %s\nv_pk_add_f32 %s, %s, %s' % (vr(S, 2), vr(X, 2), vr(X + 4, 2), vr(S + 2, 2), vr(X + 2, 2), vr(X + 6, 2)))
    p.I('v_pk_mul_f32 %s, %s, %s\nv_pk_mul_f32 %s, %s, %s' % (vr(Q, 2), vr(X, 2), vr(X, 2), vr(Q + 2, 2), vr(X + 2, 2), vr(X + 2, 2)))
    for k in range(2, n):
        x = vr(X + 2 * k, 2); o = 2 * (k % 2)
        p.I('v_pk_fma_f32 %s, %s, %s, %s' % (vr(Q + o, 2), x, x, vr(Q + o, 2)))
        if k >= 4: p.I('v_pk_add_f32 %s, %s, %s' % (vr(S + o, 2), vr(S + o, 2), x))
    p.I('v_pk_add_f32 %s, %s, %s\nv_pk_add_f32 %s, %s, %s' % (vr(S, 2), vr(S, 2), vr(S + 2, 2), vr(Q, 2), vr(Q, 2), vr(Q + 2, 2)))
    p.I('v_add_f32 v%d, v%d, v%d\nv_add_f32 v%d, v%d, v%d' % (S, S, S + 1, Q, Q, Q + 1))
    reduce8(p, [S, Q])
    p.I('v_mul_f32 v%d, s98, v%d\nv_mul_f32 v%d, s98, v%d' % (S, S, Q, Q))
    p.I('v_fma_f32 v%d, -v%d, v%d, v%d\nv_max_f32 v%d, 0, v%d\nv_add_f32 v%d, s97, v%d\nv_rsq_f32 v%d, v%d' % (Q, S, S, Q, Q, Q, Q, Q, ST, Q))
    p.I('v_mul_f32 v%d, -v%d, v%d' % (ST + 1, S, ST))

def pt34_decode(c, stask, SRD, ST):
    p = c.p
    w4 = p.label_name('L_t4'); dn = p.label_name('L_td')
    p.I('s_cmp_ge_u32 s%d, 216\ns_cbranch_scc1 %s' % (stask, w4))
    p.I('s_mul_i32 s8, s%d, %d\ns_lshr_b32 s8, s8, 16\ns_mul_i32 s9, s8, 3\ns_sub_u32 s9, s%d, s9' % (stask, udiv_magic(3, 300), stask))
    for k in range(4): p.I('s_mov_b32 s%d, s%d' % (SRD + k, 56 + k))
    p.I('s_mul_i32 s%d, s9, %d\ns_lshl_b32 s10, s8, 7\ns_add_u32 s%d, s%d, s10' % (ST + 4, 6 * 32 * 9216, ST + 4, ST + 4))
    p.I('s_mov_b32 s%d, %d\ns_movk_i32 s%d, 9216\ns_movk_i32 s%d, 3072\ns_mov_b32 s%d, 0' % (ST + 5, 32 * 9216, ST + 6, ST + 7, ST + 8))
    for j in range(4):
        p.I('s_lshl_b32 s12, s8, 2\ns_add_u32 s12, s12, %d' % j)
        p.I('s_mul_i32 s13, s12, %d\ns_lshr_b32 s13, s13, 16\ns_mul_i32 s14, s13, 36\ns_sub_u32 s12, s12, s14' % udiv_magic(36, 300))
        p.I('s_mul_i32 s14, s12, %d\ns_lshr_b32 s14, s14, 16\ns_mul_i32 s10, s14, 12\ns_sub_u32 s12, s12, s10' % udiv_magic(12, 40))
        p.I('s_mul_i32 s10, s12, %d\ns_lshr_b32 s10, s10, 16\ns_mul_i32 s11, s10, 3\ns_sub_u32 s12, s12, s11' % udiv_magic(3, 16))
        p.I('s_lshl_b32 s13, s13, 2\ns_add_u32 s13, s13, s10\ns_mul_i32 s13, s13, 324\ns_mul_i32 s14, s14, 54\ns_add_u32 s13, s13, s14\ns_mul_i32 s14, s9, 18\ns_add_u32 s13, s13, s14\ns_add_u32 s13, s13, s12\ns_lshl_b32 s13, s13, 10\ns_add_u32 s%d, s13, %d' % (ST + j, L.W34T - L.W1T))
    p.I('s_branch %s' % dn)
    p.label(w4)
    p.I('s_sub_u32 s7, s%d, 216\ns_mul_i32 s8, s7, %d\ns_lshr_b32 s8, s8, 16\ns_mul_i32 s9, s8, 27\ns_sub_u32 s7, s7, s9' % (stask, udiv_magic(27, 600)))
    p.I('s_mul_i32 s9, s7, %d\ns_lshr_b32 s9, s9, 16\ns_mul_i32 s10, s9, 3\ns_sub_u32 s10, s7, s10' % udiv_magic(3, 32))
    for k in range(4): p.I('s_mov_b32 s%d, s%d' % (SRD + k, 60 + k))
    p.I('s_mul_i32 s11, s8, 18\ns_mul_i32 s12, s10, 6\ns_add_u32 s11, s11, s12\ns_mul_i32 s%d, s11, %d\ns_lshl_b32 s11, s9, 7\ns_add_u32 s%d, s%d, s11' % (ST + 4, 32 * 1152, ST + 4, ST + 4))
    p.I('s_mov_b32 s%d, %d\ns_movk_i32 s%d, 1152\ns_mov_b32 s%d, 1' % (ST + 5, 32 * 1152, ST + 6, ST + 8))
    p.I('s_cmp_eq_u32 s9, 8\ns_movk_i32 s11, 4096\ns_cselect_b32 s%d, 1024, s11' % (ST + 7))
    for j in range(4):
        p.I('s_mul_i32 s11, s10, 24\ns_add_u32 s11, s11, %d\ns_and_b32 s12, s9, 3' % (162 + j))
        p.I('s_cmp_ge_u32 s9, 4\ns_cselect_b32 s13, 72, 0\ns_add_u32 s11, s11, s13')
        p.I('s_mul_i32 s13, s10, 6\ns_add_u32 s13, s13, 306\ns_cmp_eq_u32 s9, 8\ns_cselect_b32 s11, s13, s11\ns_cselect_b32 s12, %d, s12' % j)
        p.I('s_lshl_b32 s13, s8, 2\ns_add_u32 s13, s13, s12\ns_mul_i32 s13, s13, 324\ns_add_u32 s13, s13, s11\ns_lshl_b32 s13, s13, 10\ns_add_u32 s%d, s13, %d' % (ST + j, L.W34T - L.W1T))
    p.label(dn)
    p.I('s_cmp_ge_u32 s%d, 432' % stask)
    for k in range(5): p.I('s_cselect_b32 s%d, 0x7f000000, s%d' % (ST + k, ST + k))
    p.I('s_cselect_b32 s%d, 0, s%d\ns_cselect_b32 s%d, 0, s%d' % (ST + 5, ST + 5, ST + 7, ST + 7))

def pretile34(c, swave):
    p = c.p
    NB, NU = 8, 12
    p.I('s_mul_i32 s96, s3, %d' % (NB * 4096))
    TA, TB = (64, 80), (52, 4)
    SA, SB_ = 80, 89
    regsB = 48
    p.I('s_add_u32 s79, s%d, 256' % swave)
    pt34_decode(c, swave, 64, 80)
    p.I('s_mov_b32 s15, s96')
    pt34_decode(c, 79, 52, 89)
    p.I('v_mad_u32_u24 v12, v2, s%d, v3\nv_add_u32 v12, s%d, v12' % (86, 84))
    p.I('v_mad_u32_u24 v13, v2, s%d, v3\nv_add_u32 v13, s%d, v13' % (95, 93))
    p.I('s_lshl_b32 s4, s86, 3\ns_lshl_b32 s5, s95, 3')
    def issue(n):
        A = n < 6
        va, srdn, s8r, sstep = (12, 64, 4, 85) if A else (13, 52, 5, 94)
        p.I('v_mov_b32 v9, v%d' % va)
        t = None
        for q in range(4):
            p.I('s_add_u32 m0, s15, %d' % ((n % NB) * 4096 + q * 1024))
            if q: p.I('v_add_u32 v9, s%d, v9' % s8r)
            t = p.I('buffer_load_dwordx4 v9, s[%d:%d], 0 offen lds' % (srdn, srdn + 3), nowait=True)
        p.I('v_add_u32 v%d, s%d, v%d' % (va, sstep, va))
        return t
    def process(n):
        A = n < 6
        ST = 80 if A else 89
        R = 16 + 16 * (n % 2)
        lb = p.label_name('L_kb'); le = p.label_name('L_ke')
        p.I('s_cmp_eq_u32 s%d, 1\ns_cbranch_scc1 %s' % (ST + 8, lb))
        for va, jstride, second, lab in ((6, 32, 512, None), (7, 8, 2048, lb)):
            if lab: p.label(lab)
            p.I('s_add_u32 s6, s15, %d\nv_add_u32 v10, s6, v%d' % ((n % NB) * 4096, va))
            for j in range(4):
                p.I('ds_read_b64_tr_b16 %s, v10 offset:%d' % (vr(R + 4 * j, 2), j * jstride), nowait=True)
                p.I('ds_read_b64_tr_b16 %s, v10 offset:%d' % (vr(R + 4 * j + 2, 2), j * jstride + second), nowait=True)
            if not lab: p.I('s_branch %s' % le)
        p.label(le)
        p.I('s_waitcnt lgkmcnt(0)')
        for j in range(4):
            p.I('v_add_u32 v11, s%d, v8\ns_add_u32 s%d, s%d, s%d' % (ST + j, ST + j, ST + j, ST + 7))
            p.I('buffer_store_dwordx4 %s, v11, s[68:71], 0 offen%s' % (vr(R + 4 * j, 4), c.sc), nowait=True)
    toks = [issue(n) for n in range(NB - 1)]
    for n in range(NU):
        if n + NB - 1 < NU: toks.append(issue(n + NB - 1))
        p.wait(toks[n])
        process(n)
    p.I('s_waitcnt vmcnt(0)'); p.cut()

def mlp_map(p, sslice, srb):
    p.I('s_and_b32 s%d, s2, 3\ns_lshl_b32 s%d, s%d, 1\ns_bfe_u32 s76, s2, 0x10003\ns_add_u32 s%d, s%d, s76' % (sslice, sslice, sslice, sslice, sslice))
    p.I('s_bfe_u32 s%d, s2, 0x10002\ns_lshl_b32 s%d, s%d, 4\ns_lshr_b32 s76, s2, 4\ns_add_u32 s%d, s%d, s76' % (srb, srb, srb, srb, srb))

def warm_l2(c, nparts, part_sgpr):
    p = c.p
    lines = 4 * 324 * 8 // nparts
    srd(p, 64, P_WS, 32 * 324 * 1024, off=L.W34T)
    p.I('s_mul_i32 s6, s4, %d\ns_mul_i32 s7, s%d, %d\ns_add_u32 s6, s6, s7\nv_lshl_add_u32 v2, v0, 7, s6' % (4 * 324 * 1024, part_sgpr, lines * 128))
    n = (lines + 255) // 256
    for k in range(n):
        if (k + 1) * 256 > lines:
            p.I('v_cmp_gt_u32 vcc, %d, v0\nv_mov_b32 v3, 0x7f000000\nv_cndmask_b32 v2, v3, v2, vcc' % (lines - k * 256))
        p.I('buffer_load_dword v%d, v2, s[64:67], 0 offen sc1' % (8 + k), nowait=True)
        p.I('v_add_u32 v2, 32768, v2')

def build_mega():
    c = Ctx(); p = c.p
    p.label('L_code_start')
    p.I('s_load_dwordx16 s[16:31], s[0:1], 0\ns_load_dwordx16 s[32:47], s[0:1], 64')
    p.I('v_lshrrev_b32 v2, 6, v0\nv_and_b32 v1, 63, v0')
    p.I('v_readfirstlane_b32 s3, v2')
    p.I('s_cmp_ge_u32 s2, 256\ns_cbranch_scc1 L_end')
    kv_addr(c)
    p.I('s_waitcnt lgkmcnt(0)')
    if STAMPS:
        for k in range(24): p.I('v_accvgpr_write_b32 a%d, 0' % (232 + k))
    c.stamp(0)
    def code_prefetch():
        if os.environ.get('NOCODEPF'): return
        p.I('s_getpc_b64 s[8:9]')
        p.label('L_pc_anchor_%d' % c.npf); c.npf += 1
        p.I('s_sub_u32 s8, s8, (L_pc_anchor_%d - L_code_start)\ns_subb_u32 s9, s9, 0' % (c.npf - 1))
        p.I('s_lshr_b32 s10, s2, 3\ns_mul_i32 s10, s10, CODE_PART\nv_lshl_add_u32 v248, v1, 7, s10')
        p.I('s_mov_b64 exec, CODE_MASK')
        p.I('global_load_dword v249, v248, s[8:9]', nowait=True)
        p.I('s_mov_b64 exec, -1')
    c.npf = 0
    c.code_prefetch = code_prefetch
    p.I('s_cmp_ge_u32 s2, %d\ns_cbranch_scc1 L_pt' % NCONV)
    def fx(p): p.I('s_lshl_b32 s6, s5, 1\nv_add_u32 v252, s6, v1\nv_mul_u32_u24 v252, %d, v252\nv_add_u32 v252, %d, v252\nv_mov_b32 v254, 3\nv_mov_b32 v255, %d\nv_mov_b32 v251, 1\nv_cmp_eq_u32 vcc, 2, v1\nv_cndmask_b32 v252, v252, v255, vcc\nv_cndmask_b32 v254, v254, v251, vcc' % (LS, C_X2 * LS, B_REL * LS))
    p.I('s_cmp_eq_u32 s3, 3\ns_cbranch_scc1 L_kc')
    p0_kv(c)
    p.I('s_mul_i32 s78, s2, 3\ns_add_u32 s78, s78, s3\ns_and_b32 s78, s78, 15')
    wave_arrive(c, 'add', check_ready=140, idx=K_SH, sgpr=78)
    p2_xload(c)
    p.I('s_waitcnt vmcnt(0)')
    p.I('s_branch L_kv_done'); p.cut()
    p.label('L_kc')
    srd(p, S_SYNC, P_WS, 2 << 20, off=L.SYNC)
    def hook3(c):
        c.code_prefetch()
        p2_xload(c)
    p1_kcopies(c, hook=hook3)
    p.I('s_waitcnt vmcnt(0) lgkmcnt(0)')
    p.label('L_kv_done'); p.cut()
    c.stamp(1)
    p2_xstats(c)
    c.stamp(17)
    wait_cnt(c, *w_flags(K_REL, A_REL))
    c.stamp(2)
    p1_main(c)
    c.stamp(5)
    if TAGZ:
        p.I('s_waitcnt lgkmcnt(0)\ns_barrier'); p.cut()
        p2_pre(c)
        c.stamp(6)
        p.I('s_waitcnt lgkmcnt(0)\ns_barrier'); p.cut()
    else:
        p.I('s_and_b32 s78, s2, 15')
        arrive(c, 'add', idx=V_SH, sgpr=78)
        p2_pre(c)
        c.stamp(6)
        if os.environ.get('VDIRECT', '0') == '1':
            def fv(p): p.I('v_mul_u32_u24 v252, %d, v1\nv_add_u32 v252, %d, v252\nv_mov_b32 v254, 12' % (LS, V_SH * LS))
            wait_cnt(c, fv, 16)
        else:
            wait_cnt(c, *w_flags(V_REL))
    c.stamp(7)
    p2_main(c)
    c.stamp(10)
    if TAG_H1:
        for ks in range(9, 18): wfrag_load(c, 64, 156, 0, ks)
        p3_addr(c)
        p.I('s_waitcnt lgkmcnt(0)\ns_barrier'); p.cut()
    else:
        arrive(c, 'add', idx=C_H1, sgpr=4)
        p3_addr(c)
        def fh(p): p.I('s_sub_u32 s6, s4, 1\nv_add_u32 v252, s6, v1\nv_max_i32 v252, 0, v252\nv_min_i32 v252, 63, v252\nv_mul_u32_u24 v252, %d, v252\nv_add_u32 v252, %d, v252\nv_mov_b32 v254, 3\nv_mov_b32 v255, %d\nv_mov_b32 v251, 1\nv_cmp_eq_u32 vcc, 3, v1\nv_cndmask_b32 v252, v252, v255, vcc\nv_cndmask_b32 v254, v254, v251, vcc' % (LS, C_H1 * LS, B3_REL * LS))
        def w2late(st):
            for ks in range(9, 18): wfrag_load(c, 64, 156, 0, ks)
        around_wait(c, w2late, lambda: wait_cnt(c, fh, 4 if RINGP3 else 3))
    c.stamp(11)
    p3_main(c)
    c.stamp(13)
    if TAG_H1:
        wave_wait(c, B3_REL, B_REL)
        mlp_map(p, 10, 11)
        mlp32.ring_setup(c, 10, 160)
        for n in range(mlp32.EARLY): mlp32.ring_load_at(c, mlp32.PERM[n], n, 160)
        mlp_map(p, 4, 5)
        p.I('s_waitcnt lgkmcnt(0)\ns_barrier'); p.cut()
    else:
        arrive(c, 'add', idx=C_X2, sgpr=4)
        if RINGP3:
            off0 = c.ring_off
            def early(st):
                c.ring_off = off0
                for n in range(27, 54): mlp32.ring_load_at(c, mlp32.PERM[n], n, 160)
        else:
            wave_wait(c, B3_REL)
            mlp_map(p, 10, 11)
            mlp32.ring_setup(c, 10, 160)
            def early(st):
                c.ring_off = 0
                for n in range(mlp32.EARLY): mlp32.ring_load_at(c, mlp32.PERM[n], n, 160)
                mlp32.lds_stage(c, 160)
        mlp_map(p, 4, 5)
        if mlp32.NLDS:
            early(None)
            p.I('s_waitcnt lgkmcnt(0)'); p.cut()
            wait_cnt(c, fx, 3)
        else:
            around_wait(c, early, lambda: wait_cnt(c, fx, 3))
    p.I('s_branch L_mlp2'); p.cut()
    p.label('L_pt')
    srd(p, S_SYNC, P_WS, 2 << 20, off=L.SYNC)
    lpf = p.label_name('L_pf')
    p.I('s_cmp_lg_u32 s3, 3\ns_cbranch_scc1 %s' % lpf)
    c.code_prefetch()
    p.label(lpf); p.cut()
    lz = p.label_name('L_zero')
    p.I('s_cmp_lg_u32 s2, 255\ns_cbranch_scc1 %s\ns_cmp_lg_u32 s3, 0\ns_cbranch_scc1 %s' % (lz, lz))
    p.I('v_mul_u32_u24 v2, %d, v1\nv_mov_b32 v3, 0' % LS)
    for k in range(NCNT // 64):
        p.I('buffer_store_dword v3, v2, s[%d:%d], 0 offen sc1\nv_add_u32 v2, %d, v2' % (S_SYNC, S_SYNC + 3, 64 * LS), nowait=True)
    srd(p, 68, P_DBG, 256)
    p.I('s_waitcnt vmcnt(0)\nv_mov_b32 v2, 0\nv_mov_b32 v3, 1\ns_mov_b64 exec, 1\nbuffer_store_dword v3, v2, s[68:71], 0 offen sc1\ns_mov_b64 exec, -1', nowait=True)
    p.label(lz); p.cut()
    pt_setup(c)
    p.I('s_sub_u32 s4, s2, %d\ns_lshl_b32 s4, s4, 2\ns_add_u32 s78, s4, s3' % NCONV)
    def modhook():
        p0_mod_loads(c, NCONV)
    pretile(c, '12', 78)
    arrive(c, 'add', check_ready=True, idx=A_CNT)
    c.stamp(1)
    lmon = p.label_name('L_nomon')
    p.I('s_cmp_lg_u32 s2, 255\ns_cbranch_scc1 %s\ns_cmp_lg_u32 s3, 0\ns_cbranch_scc1 %s' % (lmon, lmon))
    monitor(c)
    p.label(lmon); p.cut()
    p.I('s_cmp_eq_u32 s2, 255\ns_cbranch_scc1 L_pt_skip')
    lm = p.label_name('L_nomod')
    p.I('s_cmp_ge_u32 s2, %d\ns_cbranch_scc1 %s' % (NCONV + 54, lm))
    p0_mod_loads(c, NCONV)
    p0_mod_compute(c, NCONV)
    arrive(c, 'add', idx=M_CNT)
    p.label(lm); p.cut()
    p.I('s_barrier')
    pt.prime(c, NCONV)
    c.stamp(2)
    def mid():
        arrive(c, 'add', idx=B3_CNT)
    pt.run(c, mid)
    arrive(c, 'last', cnt=B_CNT, n=63, rel=B_REL)
    p.label('L_pt_skip'); p.cut()
    c.stamp(3)
    wait_cnt(c, *w_flags(B_REL))
    c.stamp(4)
    mlp_map(p, 4, 5)
    p.I('s_sub_u32 s5, s2, %d\ns_lshr_b32 s5, s5, 4' % NCONV)
    if os.environ.get('WARM'): warm_l2(c, 4, 5)
    p.I('s_waitcnt vmcnt(0)'); p.cut()
    mlp_map(p, 10, 11)
    mlp32.ring_setup(c, 10, 160)
    for n in range(54 if RINGP3 else mlp32.EARLY): mlp32.ring_load_at(c, mlp32.PERM[n], n, 160)
    mlp32.lds_stage(c, 160)
    p.I('s_waitcnt lgkmcnt(0)'); p.cut()
    p.label('L_mlp'); p.cut()
    c.stamp(14)
    mlp_map(p, 4, 5)
    if TAG_H1: wait_cnt(c, *w_flags(V_REL, B_REL))
    else: wait_cnt(c, fx, 3)
    p.label('L_mlp2'); p.cut()
    c.stamp(15)
    if os.environ.get('REWARM'):
        p.I('s_lshr_b32 s79, s2, 3')
        warm_l2(c, 32, 79)
    RAW, X = p4_ln(c)
    c.fine = True
    if os.environ.get('FINE2'): c.stamp(6)
    mlp32.ring_resume(c, 54 if RINGP3 else mlp32.EARLY)
    if os.environ.get('FINE2'):
        c.stamp(7); p.I('s_waitcnt vmcnt(18)'); c.stamp(8); p.I('s_waitcnt vmcnt(0)'); c.stamp(9)
    p4_ln2(c, RAW, X)
    c.stamp(16)
    mlp32.mlp_setup(c)
    def arrive_part(k):
        p.I('s_mul_i32 s76, s5, %d\ns_add_u32 s76, s76, %d\ns_cmp_eq_u32 s3, 0\ns_cselect_b32 s76, s76, 0x7f000000\nv_mov_b32 v252, s76\nv_mov_b32 v253, 1\ns_mov_b64 exec, 1' % (LS, (C_PART0, C_PART1)[k] * LS))
        p.I('buffer_atomic_add v253, v252, s[%d:%d], 0 offen sc1' % (S_SYNC, S_SYNC + 3))
        p.I('s_mov_b64 exec, -1')
    def poll_issue():
        p.I('s_mul_i32 s76, s5, %d\ns_add_u32 s76, s76, %d\nv_mov_b32 v252, s76' % (LS, C_PART0 * LS))
        p.I('buffer_load_dword v253, v252, s[%d:%d], 0 offen sc1' % (S_SYNC, S_SYNC + 3))
    def poll_check():
        ok = p.label_name('L_p0ok'); lp = p.label_name('L_p0')
        p.I('v_cmp_gt_u32 vcc, 8, v253\ns_mov_b32 s77, 0\ns_nop 2\ns_cbranch_vccz %s' % ok)
        p.label(lp)
        p.I('buffer_load_dword v253, v252, s[%d:%d], 0 offen sc1\ns_waitcnt vmcnt(0)\nv_cmp_gt_u32 vcc, 8, v253' % (S_SYNC, S_SYNC + 3), nowait=True)
        p.I('s_add_u32 s77, s77, 1\ns_cmp_ge_u32 s77, %d\ns_cbranch_scc1 %s\ns_cbranch_vccnz %s' % (SPIN_MAX, ok, lp))
        p.label(ok)
    c.arrive_part, c.poll_issue, c.poll_check = arrive_part, poll_issue, poll_check
    c.inmlp = True
    mlp32.mlp_main(c)
    c.stamp(21)
    arrive(c, 'add', idx=C_PART, sgpr=5)
    if not os.environ.get('LATEG'): mlp32.final_pair(c, 0)
    def fp(p): p.I('s_mul_i32 s6, s5, %d\ns_add_u32 s6, s6, %d\nv_mov_b32 v252, s6\nv_mov_b32 v254, 8' % (LS, C_PART * LS))
    wait_cnt(c, fp, 1)
    c.stamp(22)
    if os.environ.get('LATEG'):
        mlp32.final_gather(c, 0)
        mlp32.PGA_SAVE = mlp32.PGA
        mlp32.PGA = 64
        mlp32.final_gather(c, 1)
        mlp32.PGA = mlp32.PGA_SAVE
        mlp32.final_pair(c, 0)
        mlp32.PGA = 64
        mlp32.final_pair(c, 1)
    else:
        mlp32.final_gather(c, 1)
        mlp32.final_pair(c, 1)
    p.I('s_waitcnt vmcnt(0)')
    c.stamp_out()
    p.label('L_end')
    p.I('s_endpgm')
    txt = p.finalize()
    return txt

if __name__ == '__main__':
    if 'stamps' in sys.argv: STAMPS = True
    mk.STAMPS = False
    body = build_mega()
    if 'CODE_PART' in body:
        import subprocess
        t = assemble([(NAME + '_kernel', body.replace('CODE_PART', '2048').replace('CODE_MASK', '0xffff'), 256, 256, 147456, 512, 256)])
        open('_p1.s', 'w').write(t)
        subprocess.check_call(['clang', '-x', 'assembler', '-target', 'amdgcn-amd-amdhsa', '-mcpu=gfx950', '-c', '_p1.s', '-o', '_p1.o'])
        syms = subprocess.check_output(['llvm-objdump', '-t', '_p1.o'], text=True)
        ad = {l.split()[-1]: int(l.split()[0], 16) for l in syms.splitlines() if l.split() and l.split()[-1] in ('L_end', 'L_code_start')}
        size = ad['L_end'] - ad['L_code_start']
        nl = size // 128 // 32
        assert nl <= 32
        body = body.replace('CODE_PART', str(nl * 128)).replace('CODE_MASK', hex((1 << nl) - 1))
        print('code size', size, 'lines per part', nl)
    out = assemble([(NAME + '_kernel', body, 256, 256, 147456, 512, 256)])
    open(sys.argv[1], 'w').write(out)
```
